```python
import torch

def _softmax(x, axis=-1):
    return torch.softmax(x, dim=axis)
def _gelu(x):
    return torch.nn.functional.gelu(x, approximate="tanh")
def _silu(x):
    return torch.nn.functional.silu(x)
def _sigmoid(x):
    return torch.sigmoid(x)
def _layernorm(x, axis=-1, eps=1e-5):
    m = x.mean(dim=axis, keepdim=True)
    v = x.var(dim=axis, keepdim=True, unbiased=False)
    return (x - m) / torch.sqrt(v + eps)
def _scatter_add(tgt, idx, src, axis=0):
    return tgt.clone().index_add_(axis, idx, src)
def _segment_sum(src, seg, n):
    out = torch.zeros((n,) + src.shape[1:], dtype=src.dtype)
    return out.index_add_(0, seg, src)
def _pad(x, pw):
    flat = tuple(v for pair in reversed(pw) for v in pair)
    return torch.nn.functional.pad(x, flat)

kernel_name = 'concat_heads__sliding_block_cached__compressed_kv_cla__decode'

def setup_inputs():

    _w = (lambda a: (lambda t: t.to(torch.bfloat16) if t.is_floating_point() else t)(torch.as_tensor(a)))
    def _A_setup():
        B, Sq, D = 2, 1, 512
        Hq, Hkv, Sk, Dh = 32, 32, 8192, 128
        assert Hq % Hkv == 0, (Hq, Hkv)
        return {
            "x": _w((lambda *s: torch.randn(*s, dtype=torch.bfloat16) * 1.6)(B, Sq, D)),
            "k_cache": _w((lambda *s: torch.randn(*s, dtype=torch.bfloat16) * 1.6)(B, Hkv, Sk, Dh)),
            "v_cache": _w((lambda *s: torch.randn(*s, dtype=torch.bfloat16) * 0.05)(B, Hkv, Sk, Dh)),
            "wq": _w((lambda *s: torch.randn(*s, dtype=torch.bfloat16) * 1.6)(D, Hq * Dh) * (D ** -0.5)),
            "wo": _w((lambda *s: torch.randn(*s, dtype=torch.bfloat16) * 0.05)(Hq * Dh, D) * ((Hq * Dh) ** -0.5)),
        }
    _A_in = _A_setup()

    def _B_setup():
        B, H, Sq, Sk, D, M = 2, 32, 1, 8192, 128, 512
        Dc = 4 * D
        return {
            "x": _w((lambda *s: torch.randn(*s, dtype=torch.bfloat16) * 3.2)(B, Sq, M)),
            "c_kv": _w((lambda *s: torch.randn(*s, dtype=torch.bfloat16) * 0.1)(B, Sk, Dc)),
            "w_q": _w((lambda *s: torch.randn(*s, dtype=torch.bfloat16) * 6.4)(M, H, D) * (M ** -0.5)),
            "w_uk": _w((lambda *s: torch.randn(*s, dtype=torch.bfloat16) * 6.4)(Dc, H, D) * (Dc ** -0.5)),
            "w_uv": _w((lambda *s: torch.randn(*s, dtype=torch.bfloat16) * 0.1)(Dc, H, D) * (Dc ** -0.5)),
            "w_o": _w((lambda *s: torch.randn(*s, dtype=torch.bfloat16) * 0.1)(H, D, M) * ((H * D) ** -0.5)),
        }
    _B_in = _B_setup()

    return {
        "A_x": _A_in["x"],
        "A_k_cache": _A_in["k_cache"],
        "A_v_cache": _A_in["v_cache"],
        "A_wq": _A_in["wq"],
        "A_wo": _A_in["wo"],
        "B_x": _B_in["x"],
        "B_c_kv": _B_in["c_kv"],
        "B_w_q": _B_in["w_q"],
        "B_w_uk": _B_in["w_uk"],
        "B_w_uv": _B_in["w_uv"],
        "B_w_o": _B_in["w_o"],
    }

def reference(A_x, A_k_cache, A_v_cache, A_wq, A_wo, B_x, B_c_kv, B_w_q, B_w_uk, B_w_uv, B_w_o):
    def _A_ref(x, k_cache, v_cache, wq, wo):
        B, Sq, D = x.shape
        Hq, Dh = 32, 128
        Hkv, Sk = k_cache.shape[1], k_cache.shape[2]
        W = min(4096, max(256, Sk // 4))
        rep = Hq // Hkv
        q = (lambda x, *d: x.permute(*d))((x @ wq).reshape(B, Sq, Hq, Dh), 0, 2, 1, 3)
        k = (lambda x, n, axis: torch.repeat_interleave(x, n, dim=axis))(k_cache[:, :, Sk - W:, :], rep, axis=1)
        v = (lambda x, n, axis: torch.repeat_interleave(x, n, dim=axis))(v_cache[:, :, Sk - W:, :], rep, axis=1)
        scores = torch.einsum("bhqd,bhkd->bhqk", q, k) * (Dh ** -0.5)
        p = _softmax(scores, axis=-1)
        o = torch.einsum("bhqk,bhkd->bhqd", p, v)
        return (lambda x, *d: x.permute(*d))(o, 0, 2, 1, 3).reshape(B, Sq, Hq * Dh) @ wo

    def _B_ref(x, c_kv, w_q, w_uk, w_uv, w_o):
        B, Sq, M = x.shape[0], x.shape[1], x.shape[2]
        Sk = c_kv.shape[1]
        H, D = w_q.shape[1], w_q.shape[2]
        q = torch.einsum("bqm,mhd->bhqd", x, w_q)
        k = torch.einsum("bkc,chd->bhkd", c_kv, w_uk)
        v = torch.einsum("bkc,chd->bhkd", c_kv, w_uv)
        scores = torch.einsum("bhqd,bhkd->bhqk", q, k) * (D ** -0.5)
        off = Sk - Sq
        qi = torch.arange(Sq)[:, None]
        kj = torch.arange(Sk)[None, :]
        cmask = kj <= (qi + off)
        scores = torch.where(cmask[None, None], scores, -1e9)
        p = _softmax(scores, axis=-1)
        ctx = torch.einsum("bhqk,bhkd->bhqd", p, v)
        return torch.einsum("bhqd,hdm->bqm", ctx, w_o)

    a = _A_ref(A_x, A_k_cache, A_v_cache, A_wq, A_wo)
    b = _B_ref(B_x, B_c_kv, B_w_q, B_w_uk, B_w_uv, B_w_o)
    return torch.concatenate([a, b], axis=-1)
```

```python
import re

REG = re.compile(r"\b([vsa])(\d+)\b|\b([vsa])\[(\d+):(\d+)\]|\b(vcc|exec|m0)\b")
TRANS = ("v_exp_", "v_log_", "v_rcp_", "v_rsq_", "v_sqrt_", "v_sin_", "v_cos_")


def regs(text):
    out = set()
    for m in REG.finditer(text):
        if m.group(1):
            out.add((m.group(1), int(m.group(2))))
        elif m.group(3):
            out.update((m.group(3), i) for i in range(int(m.group(4)), int(m.group(5)) + 1))
        else:
            out.add(("x", m.group(6)))
    return out


class Ins:
    def __init__(self, text):
        self.text = text
        t = text.split(";")[0].strip()
        self.label = t.endswith(":")
        self.directive = t.startswith(".") and not self.label
        self.op = "" if (self.label or self.directive or not t) else t.split()[0]
        rest = t[len(self.op):].strip() if self.op else ""
        parts = [p.strip() for p in re.split(r",(?![^\[]*\])", rest)] if rest else []
        self.parts = parts
        op = self.op
        self.valu = op.startswith("v_") and not op.startswith("v_mfma")
        self.mfma = op.startswith("v_mfma")
        self.vmem = op.startswith(("buffer_", "global_", "flat_"))
        self.ds = op.startswith("ds_")
        self.salu = op.startswith("s_")
        self.dpp = "_dpp" in op or any(k in rest for k in ("quad_perm", "row_ror", "row_shr", "row_shl", "row_mirror", "row_half_mirror", "row_newbcast", "row_bcast"))
        self.dot = op.startswith("v_dot")
        self.trans = op.startswith(TRANS)
        self.perml = op.startswith("v_permlane")
        self.lane_rd = op.startswith(("v_readlane", "v_readfirstlane"))
        self.lds_dma = self.vmem and (rest.endswith(" lds") or " lds " in rest or "load_lds" in op)
        w, r = set(), set()
        if self.valu or self.mfma:
            w = regs(parts[0])
            for p in parts[1:]:
                r |= regs(p)
            if self.perml:
                w |= regs(parts[1]); r |= regs(parts[0])
            if op.startswith(("v_fmac", "v_dot2c", "v_writelane", "v_pk_fmac")) or self.dpp:
                r |= regs(parts[0])
            if op.startswith(("v_add_co", "v_addc_co", "v_sub_co")):
                w |= regs(parts[1])
        elif self.ds:
            if op.startswith(("ds_read", "ds_bpermute", "ds_permute", "ds_swizzle")) or "_rtn" in op:
                w = regs(parts[0])
                for p in parts[1:]:
                    r |= regs(p)
            else:
                for p in parts:
                    r |= regs(p)
        elif self.vmem:
            if "load" in op and not self.lds_dma:
                w = regs(parts[0])
                for p in parts[1:]:
                    r |= regs(p)
            else:
                for p in parts:
                    r |= regs(p)
            if self.lds_dma:
                r.add(("x", "m0"))
        elif self.salu and parts:
            if op.startswith(("s_cmp", "s_waitcnt", "s_cbranch", "s_branch", "s_nop", "s_sleep", "s_setprio", "s_bitcmp", "s_setpc")):
                for p in parts:
                    r |= regs(p)
            else:
                w = regs(parts[0])
                for p in parts[1:]:
                    r |= regs(p)
        self.w, self.r = w, r
        self.dpp_src = regs(parts[1]) if self.dpp and len(parts) > 1 else set()
        if self.mfma:
            self.passes = 8 if "32x32" in op else 4
            self.d = regs(parts[0]); self.ab = regs(parts[1]) | regs(parts[2]); self.c = regs(parts[3])
        self.wide_store = self.vmem and "store" in op and ("x4" in op or "x3" in op)
        if self.wide_store:
            self.sdata = regs(parts[0]) if op.startswith("buffer_") else regs(parts[1])
        self.states = 0 if not self.op else (int(parts[0], 0) + 1 if op == "s_nop" else 1)


def vonly(s):
    return {x for x in s if x[0] in "va"}


def sonly(s):
    return {x for x in s if x[0] == "s" or x == ("x", "vcc")}


def need(p, c):
    n = 0
    if p.valu:
        pw = vonly(p.w)
        if c.dpp and pw & c.dpp_src: n = max(n, 2)
        if c.perml and pw & c.r: n = max(n, 2)
        if c.mfma and pw & c.r: n = max(n, 2)
        if c.lane_rd and pw & c.r: n = max(n, 1)
        if p.trans and c.valu and not c.trans and pw & c.r: n = max(n, 1)
        if p.dot and (c.valu or c.mfma or c.ds or c.vmem) and pw & (c.r | c.w):
            same = c.dot and c.op.replace("_dpp", "") == p.op.replace("_dpp", "")
            srcs = set()
            for q in c.parts[1:3]:
                srcs |= regs(q)
            if not (same and not (pw & srcs)): n = max(n, 3)
        ps = sonly(p.w)
        if ps & c.r:
            if c.vmem: n = max(n, 5)
            elif c.op.startswith(("v_readlane", "v_writelane")): n = max(n, 4)
            elif c.valu: n = max(n, 2)
        if ("x", "vcc") in ps and c.op.startswith(("v_cndmask", "v_addc")): n = max(n, 2)
    if p.mfma:
        far = 12 if p.passes == 8 else 8
        if c.mfma:
            if p.d & c.ab: n = max(n, far)
            if p.d & c.c and not (p.d == c.c and p.passes == c.passes): n = max(n, far - 2)
        elif (c.valu or c.vmem or c.ds) and p.d & (c.r | c.w): n = max(n, far)
        if c.valu and p.c & c.w: n = max(n, 7 if p.passes == 8 else 3)
    if p.salu and ("x", "m0") in p.w and (c.lds_dma or c.op.startswith("v_writelane")): n = max(n, 1)
    if p.wide_store and p.sdata & c.w: n = max(n, 2 if c.valu else 1)
    return n


class Asm:
    def __init__(self):
        self.ins = []

    def __call__(self, text):
        for line in text.split("\n"):
            line = line.strip()
            if line:
                self.ins.append(Ins(line))

    def finalize(self):
        out = []
        for c in self.ins:
            if c.op:
                dist = 0; pad = 0
                for p in reversed(out):
                    if dist >= 12: break
                    if p.op:
                        pad = max(pad, need(p, c) - dist)
                        dist += p.states
                if pad > 0:
                    out.append(Ins(f"s_nop {pad - 1}"))
            out.append(c)
        return "\n".join(("" if (i.label or i.directive) else "    ") + i.text for i in out) + "\n"
```

```python
import sys
from asmlib import Asm

NAME = "concat_heads__sliding_block_cached__compressed_kv_cla__decode_kernel"
HEADER = open("concat_heads__sliding_block_cached__compressed_kv_cla__decode.s.ref").read().split("; Override launch")[0]

EPOCH = 0
QA = 0x10000
QB = 0x20000
QABS = 0x30000
F2 = 0x40000
ST = 0x50000
H4A = 0x60000
H4B = 0x80000
OP = 0x100000
H5 = 0x400000
STAMP = 0x800000
WS_SIZE = 0x1000000

AUX = 131072
RED = AUX
MXA = AUX + 8192
LSA = AUX + 8192 + 64
MX = AUX + 9216
LS = AUX + 9216 + 512
PB = AUX + 10240
SM = AUX + 15360
WB = AUX + 16384
E2B = (81920, 114688)
PART = (16384, 49152)
LDS_BYTES = 163840

SCALE = 0x3e0293ee
NEGBIG = 0xff7fffff
SPIN = 1 << 18

sW, sH, sJ, sB, sT, sTAG = "s3", "s4", "s5", "s6", "s7", "s32"
SRD0, SRDW, SRDK, SRDV, SRDE, SRDX = "s[8:11]", "s[12:15]", "s[16:19]", "s[20:23]", "s[24:27]", "s[28:31]"
FULL = "row_mask:0xf bank_mask:0xf"


def vr(a, n):
    return f"v[{a}:{a + n - 1}]"


def dest(i):
    return (i >> 1) * 32768 + (i & 1) * 8192


class Gen:
    def __init__(self, dbg=False, nu=(22, 22, 20), depth=4, qpos=(12, 12, 8), rot=True, pu_pre=4):
        self.a = Asm()
        self.dbg = dbg
        self.nu, self.depth, self.qpos, self.rot, self.pu_pre = nu, depth, qpos, rot, pu_pre
        self.uid = 0

    def lab(self, p):
        self.uid += 1
        return f"L_{p}_{self.uid}"

    def stamp(self, k):
        if self.dbg:
            self.a(f"s_memrealtime s[98:99]\ns_waitcnt lgkmcnt(0)\nv_writelane_b32 v63, s98, {k}")

    def exec64(self, lo, hi=None):
        hi = lo if hi is None else hi
        self.a(f"s_mov_b32 exec_lo, {lo:#x}\ns_mov_b32 exec_hi, {hi:#x}")

    def entry(self):
        a = self.a
        a("s_cmp_ge_u32 s2, 256\ns_cbranch_scc1 L_end")
        if self.dbg:
            a("s_memrealtime s[96:97]")
        a(f"s_lshr_b32 {sH}, s2, 3")
        if self.rot:
            a(f"s_add_u32 {sJ}, s2, {sH}\ns_and_b32 {sJ}, {sJ}, 7")
        else:
            a(f"s_and_b32 {sJ}, s2, 7")
        a(f"""s_and_b32 {sT}, {sJ}, 3
            s_lshl_b32 s33, {sT}, 3
            s_lshr_b32 s33, 0x30403818, s33
            s_and_b32 s33, s33, 0xff
            s_load_dwordx2 s[8:9], s[0:1], s33
            s_load_dwordx2 s[12:13], s[0:1], 104
            s_getpc_b64 s[34:35]
            L_pc:
            v_lshlrev_b32 v7, 2, v0
            v_lshrrev_b32 v8, 6, v0
            s_lshl_b32 s33, {sH}, 11
            v_add_u32 v7, s33, v7
            v_readfirstlane_b32 {sW}, v8
            v_min_u32 v7, L_end-L_pc, v7
            global_load_dword v62, v7, s[34:35]
            s_lshr_b32 {sB}, {sJ}, 2
            v_and_b32 v0, 63, v0
            v_and_b32 v1, 15, v0
            v_lshrrev_b32 v2, 4, v0
            s_mov_b32 s11, 0x20000
            s_mov_b32 s10, 0x400000
            s_mov_b32 s14, {WS_SIZE:#x}
            s_mov_b32 s15, 0x20000
            s_lshl_b32 s44, {sW}, 10
            s_mov_b32 s41, 65536
            s_mov_b32 s38, 64
            s_cmp_eq_u32 {sT}, 3
            s_cbranch_scc1 L_e3
            s_cmp_eq_u32 {sT}, 2
            s_cbranch_scc1 L_e2
            s_lshl_b32 s40, {sW}, 19
            s_lshl_b32 s33, {sB}, 7
            s_add_u32 s40, s40, s33
            s_mov_b32 s42, 262144
            s_mov_b32 s39, 0
            v_lshrrev_b32 v9, 3, v0
            v_and_b32 v10, 7, v0
            v_and_b32 v11, 1, v2
            v_lshlrev_b32 v11, 1, v11
            s_branch L_e01
            L_e2:
            s_lshl_b32 s40, {sW}, 18
            s_lshl_b32 s33, {sB}, 21
            s_add_u32 s40, s40, s33
            s_mov_b32 s42, 32768
            s_mov_b32 s39, 128
            v_mov_b32 v9, v2
            v_mov_b32 v10, v1
            v_mov_b32 v11, v2
            L_e01:
            s_lshl_b32 s33, {sH}, 8
            s_add_u32 s40, s40, s33
            s_branch L_ej
            L_e3:
            s_lshl_b32 s40, {sB}, 23
            s_lshl_b32 s33, {sH}, 18
            s_add_u32 s40, s40, s33
            s_add_u32 s40, s40, s44
            s_mov_b32 s41, 8192
            s_mov_b32 s42, 32768
            s_mov_b32 s38, 32
            s_mov_b32 s39, 0
            s_mov_b32 s10, 0x1000000
            s_and_b32 s33, {sW}, 3
            s_lshl_b32 s33, s33, 2
            s_lshr_b32 s36, {sW}, 2
            s_or_b32 s33, s33, s36
            v_mov_b32 v9, 0
            v_mov_b32 v10, v0
            v_mov_b32 v11, s33
            L_ej:
            v_xor_b32 v10, v10, v11
            v_lshlrev_b32 v10, 4, v10
            v_lshl_add_u32 v3, v9, 13, v10
            v_xor_b32 v4, s38, v3
            v_xor_b32 v5, s39, v3
            v_xor_b32 v6, s39, v4
            s_add_u32 s43, s40, s42
            s_waitcnt lgkmcnt(0)
            s_load_dword {sTAG}, s[12:13], {EPOCH}""")
        for i in range(8):
            so = "s40" if i < 4 else "s43"
            a(f"s_add_u32 m0, s44, {dest(i)}")
            a(f"buffer_load_dwordx4 v{3 + (i & 3)}, {SRD0}, {so} offen nt lds")
            a(f"s_add_u32 {so}, {so}, s41")
        a(f"""s_cmp_lt_u32 {sW}, 4
            s_cselect_b32 s33, 32, 80
            s_load_dwordx2 s[24:25], s[0:1], s33
            s_mov_b32 s26, 0x400000
            s_mov_b32 s27, 0x20000
            v_lshlrev_b32 v16, 4, v0""")
        if self.dbg:
            a("v_mov_b32 v63, 0\ns_waitcnt lgkmcnt(0)\nv_writelane_b32 v63, s96, 0")
        a(f"""s_cmp_eq_u32 {sT}, 3
            s_cbranch_scc1 L_roleB
            s_load_dwordx2 s[16:17], s[0:1], 8
            s_load_dwordx2 s[20:21], s[0:1], 16
            s_mul_i32 s33, {sT}, 40
            s_load_dwordx2 s[28:29], s[0:1], s33
            s_mov_b32 s18, 0x8000000
            s_mov_b32 s19, 0x20000
            s_mov_b32 s22, 0x8000000
            s_mov_b32 s23, 0x20000
            s_mov_b32 s30, 2048
            s_mov_b32 s31, 0x20000""")
        n0, n1, n2 = self.nu
        a(f"""s_lshl_b32 s45, {sB}, 5
            s_add_u32 s45, s45, {sH}
            s_lshl_b32 s45, s45, 21
            s_add_u32 s45, s45, {6144 * 256}
            s_cmp_eq_u32 {sT}, 2
            s_cbranch_scc1 L_rolePU""")

    def red_publish(self, lanes, stride, voff, soff, xe, xo):
        a = self.a
        if lanes == 32:
            self.exec64(0xffffffff, 0)
        a(f"v_add_u32 v7, {RED}, v16")
        for k in range(8):
            a(f"ds_read_b128 {vr(208 + 4 * k, 4)}, v7 offset:{k * stride}")
        a("v_and_b32 v8, 1, v0\nv_cmp_eq_u32 vcc, 1, v8")
        a(f"v_mov_b32 v9, {sTAG}")
        a(f"v_cndmask_b32 v10, {xe}, {xo}, vcc")
        for k in range(1, 8):
            a(f"s_waitcnt lgkmcnt({7 - k})")
            a(f"v_pk_add_f32 v[208:209], v[208:209], {vr(208 + 4 * k, 2)}")
            a(f"v_pk_add_f32 v[210:211], v[210:211], {vr(210 + 4 * k, 2)}")
        a("""v_cvt_pk_bf16_f32 v11, v208, v209
            v_cvt_pk_bf16_f32 v12, v210, v211
            v_cndmask_b32 v212, v9, v11, vcc
            v_cndmask_b32 v213, v10, v12, vcc
            v_cndmask_b32 v214, v11, v9, vcc
            v_cndmask_b32 v215, v12, v10, vcc""")
        a(f"buffer_store_dwordx4 v[212:215], {voff}, {SRDW}, {soff} offen sc1")
        if lanes == 32:
            a("s_mov_b64 exec, -1")

    def gather_rows(self, base, voff, soff):
        a = self.a
        lp, ok = self.lab("gp"), self.lab("gok")
        a(f"s_mov_b32 s37, {SPIN}\n{lp}:")
        for s in range(4):
            a(f"buffer_load_dwordx4 {vr(base + 8 * s, 4)}, {voff}, {SRDW}, {soff} offen offset:{128 * s} sc1")
            a(f"buffer_load_dwordx4 {vr(base + 8 * s + 4, 4)}, {voff}, {SRDW}, {soff} offen offset:{128 * s + 16} sc1")
        a("s_sub_u32 s37, s37, 1\ns_waitcnt vmcnt(0)")
        a(f"s_cbranch_scc1 {ok}")
        for s in range(4):
            a(f"v_bitop3_b32 v{8 + s}, v{base + 8 * s}, v{base + 8 * s + 6}, {sTAG} bitop3:0x7e")
        a("v_or3_b32 v8, v8, v9, v10\nv_or_b32 v8, v8, v11\nv_cmp_ne_u32 vcc, 0, v8")
        a(f"s_cbranch_vccnz {lp}\n{ok}:")

    def e2_dma_setup(self):
        self.a(f"""v_lshrrev_b32 v9, 3, v0
            v_and_b32 v10, 7, v0
            v_and_b32 v11, 1, v2
            v_lshlrev_b32 v11, 1, v11
            v_xor_b32 v10, v10, v11
            v_lshlrev_b32 v10, 4, v10
            v_lshl_add_u32 v17, v9, 10, v10
            v_xor_b32 v18, 64, v17
            s_and_b32 s33, {sW}, 3
            s_lshl_b32 s46, {sH}, 17
            s_lshl_b32 s36, s33, 15
            s_add_u32 s46, s46, s36
            s_lshl_b32 s36, {sJ}, 7
            s_add_u32 s46, s46, s36
            s_cmp_lt_u32 {sW}, 4
            s_mov_b32 s47, {E2B[1]}
            s_cmov_b32 s47, {E2B[0]}
            s_lshl_b32 s36, s33, 12
            s_add_u32 s47, s47, s36""")

    def e2_dma(self, i):
        self.a(f"""s_add_u32 m0, s47, {1024 * i}
            s_nop 0
            buffer_load_dwordx4 v{17 + (i & 1)}, {SRDE}, s46 offen nt lds
            s_add_u32 s46, s46, 8192""")

    def p1(self):
        a = self.a
        D = self.depth
        a(f"""v_and_b32 v7, 1, v0
            v_lshlrev_b32 v7, 10, v7
            v_lshl_add_u32 v7, v2, 4, v7
            s_lshl_b32 s33, {sW}, 7
            s_mul_i32 s36, {sT}, {self.nu[0] * 8192}
            s_add_u32 s45, s45, s36
            s_mul_i32 s36, {sW}, {self.nu[0] * 1024}
            s_add_u32 s45, s45, s36
            s_mov_b32 s48, s45
            s_waitcnt lgkmcnt(0)
            s_add_u32 {sTAG}, {sTAG}, 1
            buffer_load_dwordx4 v[160:163], v7, {SRDX}, s33 offen
            buffer_load_dwordx4 v[164:167], v7, {SRDX}, s33 offen offset:64""")

        def work():
            a(f"""v_lshrrev_b32 v7, 1, v2
                v_lshlrev_b32 v7, 15, v7
                v_and_b32 v8, 1, v2
                v_lshl_add_u32 v7, v8, 13, v7
                v_add_u32 v7, s44, v7
                v_lshrrev_b32 v9, 2, v1
                v_lshl_add_u32 v7, v9, 7, v7
                v_and_b32 v10, 3, v0
                v_lshl_add_u32 v7, v10, 3, v7
                v_lshrrev_b32 v9, 1, v9
                v_lshl_or_b32 v9, v8, 1, v9
                v_lshl_add_u32 v216, v9, 5, v7""")
            for cb in range(1, 4):
                a(f"v_xor_b32 v{216 + cb}, {32 * cb}, v216")
            for cb in range(4):
                a(f"v_add_u32 v{220 + cb}, 65536, v{216 + cb}")
            a(f"""v_and_b32 v7, 1, v0
                v_lshlrev_b32 v7, 8, v7
                v_lshl_add_u32 v7, v2, 4, v7
                s_lshl_b32 s33, {sW}, 9
                s_add_u32 s33, s33, {RED}
                v_add_u32 v13, s33, v7
                s_waitcnt vmcnt({D})""")
            self.stamp(1)
            for t in range(2):
                for cb in range(4):
                    f = 168 + 16 * t + 4 * cb
                    a(f"ds_read_b64_tr_b16 {vr(f, 2)}, v{216 + 4 * t + cb}")
                    a(f"ds_read_b64_tr_b16 {vr(f + 2, 2)}, v{216 + 4 * t + cb} offset:512")
            for t in range(2):
                for cb in range(4):
                    f = 168 + 16 * t + 4 * cb
                    a(f"s_waitcnt lgkmcnt({14 - 8 * t - 2 * cb})")
                    c = "0" if t == 0 else vr(200 + 4 * cb, 4)
                    a(f"v_mfma_f32_16x16x32_bf16 {vr(200 + 4 * cb, 4)}, {vr(f, 4)}, {vr(160 + 4 * t, 4)}, {c}")
            self.exec64(0x00030003)
            for cb in range(4):
                a(f"ds_write_b128 v13, {vr(200 + 4 * cb, 4)} offset:{64 * cb}")
            a("s_mov_b64 exec, -1\ns_waitcnt lgkmcnt(0)\ns_barrier")
            skip = self.lab("p1s")
            a(f"s_cmp_lg_u32 {sW}, 0\ns_cbranch_scc1 {skip}")
            a(f"""v_lshlrev_b32 v14, 9, v2
                v_lshl_add_u32 v14, v1, 4, v14
                s_lshl_b32 s33, {sT}, 16
                s_lshl_b32 s36, {sH}, 10
                s_add_u32 s33, s33, s36
                s_lshl_b32 s36, {sB}, 8
                s_add_u32 s33, s33, s36
                s_add_u32 s33, s33, {QA}
                v_mov_b32 v15, 0""")
            self.red_publish(32, 512, "v14", "s33", "v15", "v15")
            a(f"{skip}:")
            self.stamp(2)
        self.a_stream(self.nu[0], self.qpos[0], D, work)

    def p2(self):
        a = self.a
        pre = self.pu_pre
        a(f"""s_add_u32 s45, s45, {(self.nu[0] + self.nu[1]) * 8192}
            s_mul_i32 s36, {sW}, {self.nu[2] * 1024}
            s_add_u32 s45, s45, s36
            s_mov_b32 s48, s45
            s_waitcnt lgkmcnt(0)
            s_add_u32 {sTAG}, {sTAG}, 1""")

        def work():
            a(f"""v_lshrrev_b32 v7, 3, v1
                v_lshlrev_b32 v7, 15, v7
                v_bfe_u32 v8, v1, 2, 1
                v_lshl_add_u32 v7, v8, 13, v7
                v_and_b32 v8, 3, v1
                v_lshl_add_u32 v7, v8, 8, v7
                v_add_u32 v7, s44, v7
                v_xor_b32 v8, v2, v1
                v_lshl_add_u32 v216, v8, 4, v7""")
            for s in range(1, 4):
                a(f"v_xor_b32 v{216 + s}, {64 * s}, v216")
            for s in range(4):
                a(f"v_add_u32 v{220 + s}, 65536, v{216 + s}")
            a(f"""v_lshlrev_b32 v14, 9, v1
                v_lshl_add_u32 v14, v2, 5, v14
                s_lshl_b32 s49, {sH}, 10
                s_add_u32 s49, s49, {QB}
                s_add_u32 s34, s12, s49
                s_addc_u32 s35, s13, 0
                v_lshlrev_b32 v15, 15, v1
                v_lshl_add_u32 v15, v2, 4, v15
                s_lshl_b32 s50, {sH}, 10
                s_lshl_b32 s36, {sB}, 9
                s_add_u32 s50, s50, s36
                s_lshl_b32 s36, {sW}, 6
                s_add_u32 s50, s50, s36
                s_add_u32 s50, s50, {QABS}
                s_waitcnt vmcnt({pre})""")
            self.stamp(1)
            for blk in range(2):
                for s in range(4):
                    a(f"ds_read_b128 {vr(224 + 16 * blk + 4 * s, 4)}, v{216 + 4 * blk + s}")
            lp, ok = self.lab("h1"), self.lab("h1ok")
            a(f"s_mov_b32 s37, {SPIN}\n{lp}:")
            for k in range(8):
                a(f"s_load_dword s{64 + k}, s[34:35], {128 * k} glc")
            a(f"s_sub_u32 s37, s37, 1\ns_waitcnt lgkmcnt(0)\ns_cbranch_scc1 {ok}")
            for k in range(8):
                a(f"s_cmp_lg_u32 s{64 + k}, {sTAG}\ns_cbranch_scc1 {lp}")
            a(f"{ok}:")
            self.stamp(2)
            self.exec64(0x00030003)
            self.gather_rows(176, "v14", "s49")
            a("s_mov_b64 exec, -1")
            for s in range(4):
                for blk in range(2):
                    c = "0" if s == 0 else vr(208 + 4 * blk, 4)
                    a(f"v_mfma_f32_16x16x32_bf16 {vr(208 + 4 * blk, 4)}, {vr(224 + 16 * blk + 4 * s, 4)}, {vr(178 + 8 * s, 4)}, {c}")
            for k in range(4):
                a(f"v_cvt_pk_bf16_f32 v{168 + k}, v{208 + 2 * k}, v{209 + 2 * k}")
            self.exec64(0x00030003)
            a(f"buffer_store_dwordx4 v[168:171], v15, {SRDW}, s50 offen sc1")
            a("s_mov_b64 exec, -1\ns_waitcnt vmcnt(0)\ns_barrier")
            skip = self.lab("p2s")
            a(f"""s_cmp_lg_u32 {sW}, 0
                s_cbranch_scc1 {skip}
                s_lshr_b32 s33, {sH}, 2
                s_lshl_b32 s33, s33, 7
                s_and_b32 s36, {sH}, 3
                s_lshl_b32 s36, s36, 3
                s_add_u32 s33, s33, s36
                s_lshl_b32 s36, {sB}, 2
                s_add_u32 s33, s33, s36
                s_add_u32 s33, s33, {F2}
                v_mov_b32 v7, {sTAG}
                s_mov_b64 exec, 1
                buffer_store_dword v7, off, {SRDW}, s33 sc1
                s_mov_b64 exec, -1
                {skip}:""")
            self.stamp(3)
        self.a_stream(self.nu[2], self.qpos[2], pre, work)

    def a_stream(self, NU, qpos, pre, work):
        a = self.a
        D = self.depth
        KV = 64
        NG = (NU + 3) // 4
        loads = []
        for u in range(NU):
            loads.append(("K", u))
            if u == qpos:
                loads += [("Q", 0), ("Q", 1)]
        loads += [("V", u) for u in range(NU)] + [("E", i) for i in range(4)]
        pos = {l: i for i, l in enumerate(loads)}

        def issue(l):
            k, u = l
            if k in "KV":
                so, srd = ("s45", SRDK) if k == "K" else ("s48", SRDV)
                a(f"buffer_load_dwordx4 {vr(KV + 4 * u, 4)}, v16, {srd}, {so} offen offset:{1024 * (u & 3)} nt")
                if u & 3 == 3:
                    a(f"s_add_u32 {so}, {so}, 4096")
            elif k == "Q":
                a(f"buffer_load_dwordx4 {vr(20 + 4 * u, 4)}, v19, {SRDW}, s51 offen offset:{16 * u} sc1")
            else:
                self.e2_dma(u)

        def qcheck():
            ok, lp = self.lab("qok"), self.lab("qlp")
            a(f"""s_mov_b32 s37, {SPIN}
                {lp}:
                v_bitop3_b32 v8, v20, v26, {sTAG} bitop3:0x7e
                v_cmp_ne_u32 vcc, 0, v8
                s_cbranch_vccz {ok}
                s_sub_u32 s37, s37, 1
                s_cbranch_scc1 {ok}""")
            issue(("Q", 0)); issue(("Q", 1))
            a(f"s_waitcnt vmcnt(0)\ns_branch {lp}\n{ok}:")
            self.stamp(4)

        def qk(gi):
            us = [u for u in range(4 * gi, min(4 * gi + 4, NU))]
            for e in range(4):
                for k, u in enumerate(us):
                    if e == 0:
                        a(f"v_mov_b32 v{28 + k}, 0")
                for k, u in enumerate(us):
                    a(f"v_dot2c_f32_bf16 v{28 + k}, v{KV + 4 * u + e}, v{22 + e}")
            n = len(us)
            if n < 4:
                a(f"v_mov_b32 v32, {NEGBIG:#x}\nv_mov_b32 v33, {NEGBIG:#x}")
            for k in range(n):
                a(f"v_add_f32_dpp v{32 + (k & 1)}, v{28 + k}, v{28 + k} row_ror:8 row_mask:0xf bank_mask:{0x3 if k < 2 else 0xc:#x}")
            s = 34 + gi
            a(f"v_add_f32_dpp v{s}, v32, v32 row_half_mirror row_mask:0xf bank_mask:0x5")
            a(f"v_add_f32_dpp v{s}, v33, v33 row_half_mirror row_mask:0xf bank_mask:0xa")
            a(f"v_add_f32_dpp v{s}, v{s}, v{s} quad_perm:[1,0,3,2] {FULL}")
            a(f"v_add_f32_dpp v{s}, v{s}, v{s} quad_perm:[2,3,0,1] {FULL}")

        def allred(op, r, t):
            a(f"{op}_dpp v{r}, v{r}, v{r} row_ror:4 {FULL}")
            a(f"{op}_dpp v{r}, v{r}, v{r} row_ror:8 {FULL}")
            for sw in ("v_permlane16_swap_b32", "v_permlane32_swap_b32"):
                a(f"v_mov_b32 v{t}, v{r}\n{sw} v{t}, v{r}\n{op} v{r}, v{r}, v{t}")

        def softmax():
            a("v_max_f32 v7, v34, v35")
            for gi in range(2, NG):
                a(f"v_max_f32 v7, v7, v{34 + gi}")
            allred("v_max_f32", 7, 8)
            a(f"""s_lshl_b32 s33, {sW}, 2
                s_add_u32 s33, s33, {MXA}
                v_mov_b32 v9, s33
                ds_write_b32 v9, v7
                v_mov_b32 v10, {MXA}
                s_waitcnt lgkmcnt(0)
                s_barrier
                ds_read_b128 v[28:31], v10
                ds_read_b128 v[12:15], v10 offset:16
                s_mov_b32 s52, {SCALE:#x}""")
            for k in range(8):
                a(f"v_mov_b32 v{52 + k}, 0")
            a("""s_waitcnt lgkmcnt(0)
                v_max3_f32 v7, v28, v29, v30
                v_max3_f32 v7, v7, v31, v12
                v_max3_f32 v7, v7, v13, v14
                v_max_f32 v7, v7, v15
                v_mul_f32 v60, s52, v7""")
            for gi in range(NG):
                a(f"v_fma_f32 v{34 + gi}, v{34 + gi}, s52, -v60")
            for gi in range(NG):
                a(f"v_exp_f32 v{34 + gi}, v{34 + gi}")
            for gi in range(NG):
                a(f"v_cvt_pk_bf16_f32 v{40 + gi}, v{34 + gi}, 0")
                a(f"v_cvt_pk_bf16_f32 v{46 + gi}, 0, v{34 + gi}")
            a("v_add_f32 v7, v34, v35")
            for gi in range(2, NG):
                a(f"v_add_f32 v7, v7, v{34 + gi}")
            allred("v_add_f32", 7, 8)
            a(f"ds_write_b32 v9, v7 offset:{LSA - MXA}")
            self.stamp(5)

        def pv(u):
            gi, k = u >> 2, u & 3
            for e in range(4):
                a(f"v_dot2c_f32_bf16_dpp v{52 + 2 * e}, v{40 + gi}, v{KV + 4 * u + e} row_newbcast:{4 * k} {FULL}")
                a(f"v_dot2c_f32_bf16_dpp v{53 + 2 * e}, v{46 + gi}, v{KV + 4 * u + e} row_newbcast:{4 * k} {FULL}")

        items = [("qc", None, pos[("Q", 1)], 0)]
        items += [("qk", gi, pos[("K", min(4 * gi + 3, NU - 1))], 2) for gi in range(NG)]
        items += [("sm", None, 0, 2)]
        items += [("pv", u, pos[("V", u)], 1) for u in range(NU)]
        done = set()

        def run(landed, budget):
            while items and items[0][2] <= landed and budget > 0:
                k, x, _, cost = items.pop(0)
                {"qc": lambda: qcheck(), "qk": lambda: qk(x), "sm": lambda: softmax(), "pv": lambda: pv(x)}[k]()
                done.add((k, x)); budget -= cost

        for i in range(pre):
            issue(loads[i])
        work()
        self.e2_dma_setup()
        a(f"""v_lshlrev_b32 v19, 5, v1
            s_lshl_b32 s51, {sH}, 1
            s_add_u32 s51, s51, {sB}
            s_lshl_b32 s51, s51, 9
            s_add_u32 s51, s51, {QA}""")
        for i in range(pre, len(loads)):
            if i >= D:
                a(f"s_waitcnt vmcnt({D - 1})")
            if loads[i][0] == "V":
                assert ("qk", loads[i][1] >> 2) in done, (loads[i], done)
            issue(loads[i])
            run(i - D, 2)
        n = len(loads)
        while items:
            need_pos = items[0][2]
            a(f"s_waitcnt vmcnt({n - 1 - need_pos})")
            run(need_pos, 1)
        self.stamp(6)
        a("s_branch L_afin")

    def a_final(self):
        a = self.a
        a("L_afin:\ns_nop 2")
        for i in range(4):
            a(f"v_permlane32_swap_b32 v{52 + i}, v{56 + i}")
        for i in range(4):
            a(f"v_add_f32 v{52 + i}, v{52 + i}, v{56 + i}")
        a(f"""v_lshlrev_b32 v7, 5, v1
            v_lshl_add_u32 v7, v2, 3, v7
            v_permlane16_swap_b32 v52, v54
            v_permlane16_swap_b32 v53, v55
            s_lshl_b32 s33, {sW}, 9
            s_add_u32 s33, s33, {RED}
            v_add_u32 v7, s33, v7
            v_add_f32 v52, v52, v54
            v_add_f32 v53, v53, v55
            ds_write_b64 v7, v[52:53]
            s_waitcnt lgkmcnt(0)
            s_barrier
            s_cmp_lg_u32 {sW}, 0
            s_cbranch_scc1 L_e2
            v_mov_b32 v10, {LSA}
            ds_read_b128 v[28:31], v10
            ds_read_b128 v[12:15], v10 offset:16
            s_lshl_b32 s33, {sH}, 3
            s_add_u32 s33, s33, {sJ}
            s_lshl_b32 s33, s33, 9
            s_add_u32 s33, s33, {H4A}
            s_waitcnt lgkmcnt(0)
            v_pk_add_f32 v[28:29], v[28:29], v[30:31]
            v_pk_add_f32 v[12:13], v[12:13], v[14:15]
            v_pk_add_f32 v[28:29], v[28:29], v[12:13]
            v_add_f32 v61, v28, v29""".replace("L_e2", "L_stageE2"))
        self.red_publish(32, 512, "v16", "s33", "v60", "v61")

    def e2(self):
        a = self.a
        a("L_stageE2:")
        self.stamp(12)
        a(f"""s_load_dwordx2 s[28:29], s[0:1], 88
            v_lshrrev_b32 v9, 2, v1
            v_lshlrev_b32 v7, 10, v2
            v_lshl_add_u32 v7, v9, 7, v7
            v_and_b32 v10, 3, v0
            v_lshl_add_u32 v7, v10, 3, v7
            v_lshrrev_b32 v9, 1, v9
            v_and_b32 v8, 1, v2
            v_lshl_or_b32 v9, v8, 1, v9
            s_and_b32 s33, {sW}, 3
            v_xor_b32 v9, s33, v9
            v_lshl_add_u32 v7, v9, 5, v7
            s_cmp_lt_u32 {sW}, 4
            s_mov_b32 s36, {E2B[1]}
            s_cmov_b32 s36, {E2B[0]}
            s_mov_b32 s49, {H4B}
            s_cmov_b32 s49, {H4A}
            s_mov_b32 s53, 0x00330033
            s_cmov_b32 s53, 0x00770077
            v_add_u32 v7, s36, v7
            s_lshl_b32 s36, {sH}, 12
            s_add_u32 s49, s49, s36
            v_lshlrev_b32 v14, 9, v1
            v_lshl_add_u32 v14, v2, 5, v14
            s_mov_b32 s30, 4096
            s_mov_b32 s31, 0x20000""")
        for k in range(32):
            a(f"v_mov_b32 v{176 + k}, {NEGBIG if k == 1 else 0:#x}")
        a(f"""v_lshlrev_b32 v15, 12, v2
            v_lshl_add_u32 v15, v1, 3, v15
            s_lshl_b32 s50, {sJ}, 3
            s_add_u32 s50, s50, {sW}
            s_lshl_b32 s50, s50, 13
            s_lshl_b32 s36, {sH}, 7
            s_add_u32 s50, s50, s36
            s_add_u32 s50, s50, {H5}
            v_mov_b32 v213, {sTAG}
            s_waitcnt vmcnt(0) lgkmcnt(0)
            s_barrier""")
        for s in range(4):
            for p in range(2):
                a(f"ds_read_b64_tr_b16 {vr(160 + 4 * s + 2 * p, 2)}, v7 offset:{4096 * s + 512 * p}")
        self.stamp(13)
        a("s_mov_b32 exec_lo, s53\ns_mov_b32 exec_hi, s53")
        self.gather_rows(176, "v14", "s49")
        a("s_mov_b64 exec, -1\ns_waitcnt lgkmcnt(0)")
        self.stamp(14)
        for s in range(4):
            c = "0" if s == 0 else "v[208:211]"
            a(f"v_mfma_f32_16x16x32_bf16 v[208:211], {vr(178 + 8 * s, 4)}, {vr(160 + 4 * s, 4)}, {c}")
        a(f"""v_max_f32_dpp v8, v177, v177 quad_perm:[1,0,3,2] {FULL}
            v_max_f32_dpp v8, v8, v8 quad_perm:[2,3,0,1] {FULL}
            v_sub_f32 v8, v177, v8
            v_exp_f32 v8, v8
            v_mul_f32 v9, v8, v183
            v_add_f32_dpp v9, v9, v9 quad_perm:[1,0,3,2] {FULL}
            v_add_f32_dpp v9, v9, v9 quad_perm:[2,3,0,1] {FULL}
            v_rcp_f32 v9, v9
            v_mul_f32 v8, v8, v9""")
        for r in range(3):
            op = "v_mul_f32_dpp" if r == 0 else "v_fmac_f32_dpp"
            a(f"{op} v212, v8, v{208 + r} row_newbcast:{r} row_mask:0x1 bank_mask:0xf")
            a(f"{op} v212, v8, v{208 + r} row_newbcast:{4 + r} row_mask:0x2 bank_mask:0xf")
        self.exec64(0xffffffff, 0)
        a(f"buffer_store_dwordx2 v[212:213], v15, {SRDW}, s50 offen sc1")
        a("s_mov_b64 exec, -1")
        self.stamp(15)
        a(f"s_cmp_lg_u32 {sW}, 7\ns_cbranch_scc1 L_done")
        a(f"""v_lshrrev_b32 v7, 2, v0
            v_lshlrev_b32 v7, 7, v7
            v_and_b32 v8, 3, v0
            v_lshl_add_u32 v7, v8, 4, v7
            s_lshl_b32 s33, {sJ}, 4
            s_lshr_b32 s36, {sH}, 1
            s_add_u32 s33, s33, s36
            s_lshl_b32 s33, s33, 12
            s_and_b32 s38, {sH}, 1
            s_lshl_b32 s39, s38, 6
            s_add_u32 s33, s33, s39
            s_add_u32 s33, s33, {H5}
            s_and_b32 s36, s36, 1
            s_lshl_b32 s36, s36, 11
            s_lshr_b32 s39, {sH}, 4
            s_lshl_b32 s39, s39, 10
            s_add_u32 s36, s36, s39
            s_lshl_b32 s39, {sJ}, 7
            s_add_u32 s36, s36, s39
            s_bfe_u32 s39, {sH}, 0x20002
            s_lshl_b32 s39, s39, 5
            s_add_u32 s36, s36, s39
            s_lshl_b32 s39, s38, 4
            s_add_u32 s36, s36, s39
            v_lshlrev_b32 v13, 2, v0
            s_mov_b32 s37, {SPIN}
            L_fp:
            buffer_load_dwordx4 v[20:23], v7, {SRDW}, s33 offen sc1
            buffer_load_dwordx4 v[24:27], v7, {SRDW}, s33 offen offset:2048 sc1
            s_sub_u32 s37, s37, 1
            s_waitcnt vmcnt(0)
            s_cbranch_scc1 L_fok
            v_bitop3_b32 v8, v21, v23, {sTAG} bitop3:0x7e
            v_bitop3_b32 v9, v25, v27, {sTAG} bitop3:0x7e
            v_or_b32 v8, v8, v9
            v_cmp_ne_u32 vcc, 0, v8
            s_cbranch_vccnz L_fp
            L_fok:
            v_add_f32 v8, v20, v24
            v_add_f32 v9, v22, v26""")
        self.stamp(16)
        for sh in (4, 8):
            for r in (8, 9):
                a(f"v_add_f32_dpp v{r}, v{r}, v{r} row_ror:{sh} {FULL}")
        a("""v_permlane32_swap_b32 v8, v9
            v_add_f32 v8, v8, v9
            v_mov_b32 v9, v8
            v_permlane16_swap_b32 v8, v9
            v_add_f32 v8, v8, v9
            v_mov_b32 v9, v8
            v_permlane32_swap_b32 v8, v9
            v_cvt_pk_bf16_f32 v8, v8, v9
            s_mov_b64 exec, 15""")
        a(f"buffer_store_dword v8, v13, {SRDX}, s36 offen")
        a(f"""s_or_b32 s33, {sH}, {sJ}
            s_cbranch_scc1 L_done
            s_mov_b64 exec, 1
            buffer_store_dword v213, off, {SRDW}, 0 offset:{EPOCH} sc1
            L_done:""")
        if self.dbg:
            a("s_mov_b64 exec, -1")
            self.stamp(17)
            a(f"""s_getreg_b32 s33, hwreg(HW_REG_XCC_ID)
                v_writelane_b32 v63, s33, 31
                s_lshl_b32 s33, s2, 3
                s_add_u32 s33, s33, {sW}
                s_lshl_b32 s33, s33, 7
                s_add_u32 s33, s33, {STAMP}
                v_lshlrev_b32 v7, 2, v0""")
            self.exec64(0xffffffff, 0)
            a(f"buffer_store_dword v63, v7, {SRDW}, s33 offen")

    def role_b(self):
        a = self.a
        D = self.depth
        QAR, FR, O, S2, S3, PF, S = 64, 128, 160, 192, 224, 32, 48
        a("L_roleB:")
        a(f"""s_load_dwordx2 s[16:17], s[0:1], 72
            s_mov_b32 s18, 0x400000
            s_mov_b32 s19, 0x20000""")
        for i in range(8):
            a(f"s_waitcnt vmcnt({D - 1})\ns_add_u32 m0, s44, {dest(i) + 16384}\ns_nop 0")
            a(f"buffer_load_dwordx4 v{3 + (i & 1)}, {SRD0}, s43 offen nt lds\ns_add_u32 s43, s43, 8192")
        self.stamp(1)

        def stage(reg, i):
            a(f"buffer_load_dwordx4 {vr(reg + 4 * i, 4)}, v{3 + (i & 1)}, {SRD0}, s43 offen nt\ns_add_u32 s43, s43, 8192")

        a(f"""s_and_b32 s54, {sW}, 3
            s_lshr_b32 s55, {sW}, 2
            v_and_b32 v7, 3, v1
            v_lshlrev_b32 v7, 2, v7
            v_lshrrev_b32 v8, 2, v1
            v_or_b32 v7, v7, v8
            v_lshlrev_b32 v7, 4, v7
            v_lshl_add_u32 v7, v2, 8, v7
            v_lshl_add_u32 v7, v1, 10, v7
            s_lshl_b32 s33, s54, 15
            v_add_u32 v28, s33, v7
            v_lshlrev_b32 v7, 4, v1
            v_lshl_add_u32 v7, v2, 8, v7
            v_lshl_add_u32 v7, v1, 10, v7
            s_lshl_b32 s33, s55, 14
            s_add_u32 s33, s33, {AUX}
            v_add_u32 v29, s33, v7
            v_lshrrev_b32 v9, 1, v2
            v_and_b32 v10, 1, v2
            v_bfe_u32 v11, v0, 1, 1
            v_lshl_or_b32 v11, v10, 1, v11
            s_lshl_b32 s33, {sW}, 3
            v_or_b32 v11, s33, v11
            v_lshlrev_b32 v12, 2, v8
            v_lshl_or_b32 v12, v9, 1, v12
            v_xor_b32 v11, v11, v12
            v_lshlrev_b32 v11, 4, v11
            v_lshl_add_u32 v12, v9, 3, v8
            v_lshl_add_u32 v11, v12, 10, v11
            v_and_b32 v12, 1, v0
            v_lshl_add_u32 v20, v12, 3, v11
            v_xor_b32 v21, 16, v20
            v_add_u32 v21, 4096, v21
            v_xor_b32 v22, 64, v20
            v_xor_b32 v23, 64, v21""")
        for k in range(4):
            a(f"v_add_u32 v{24 + k}, 65536, v{20 + k}")
        a(f"""s_lshl_b32 s33, s55, 8
            s_add_u32 s33, s33, {MX}
            v_lshl_add_u32 v30, v1, 4, s33
            s_lshl_b32 s33, s54, 2
            v_add_u32 v31, s33, v30
            v_and_b32 v7, 31, v0
            v_lshlrev_b32 v52, 4, v7
            v_add_u32 v52, {MX}, v52
            v_mul_u32_u24 v53, 144, v7
            v_lshl_add_u32 v53, v9, 4, v53
            v_add_u32 v53, {PB}, v53
            v_mul_u32_u24 v54, 144, v1
            v_lshl_add_u32 v54, v2, 3, v54
            s_mul_i32 s33, s55, {16 * 144}
            s_lshl_b32 s36, s54, 5
            s_add_u32 s33, s33, s36
            s_add_u32 s33, s33, {PB}
            v_add_u32 v54, s33, v54
            v_add_u32 v55, s44, v16
            v_add_u32 v56, 65536, v55
            v_mov_b32 v57, {NEGBIG:#x}
            v_mov_b32 v58, {NEGBIG:#x}
            v_mov_b32 v59, 0
            s_mov_b32 s52, {SCALE:#x}""")
        for k in range(32):
            a(f"v_mov_b32 v{O + k}, 0")
        for i in range(8):
            a(f"s_waitcnt vmcnt({D - 1})")
            stage(S2, i)
        self.stamp(2)
        a(f"""s_lshl_b32 s33, {sW}, 7
            s_add_u32 s33, s33, {F2}
            s_add_u32 s34, s12, s33
            s_addc_u32 s35, s13, 0
            s_lshl_b32 s49, {sB}, 15
            s_lshl_b32 s36, {sW}, 12
            s_add_u32 s49, s49, s36
            s_add_u32 s49, s49, {QABS}
            s_add_u32 s50, s36, {AUX}
            s_lshl_b32 s33, s54, 6
            v_xor_b32 v12, s33, v16
            v_xor_b32 v13, 16, v12
            v_xor_b32 v14, 32, v12
            v_xor_b32 v15, 48, v12
            s_waitcnt lgkmcnt(0)
            s_add_u32 {sTAG}, {sTAG}, 1
            s_mov_b32 s37, {SPIN}
            L_h2:
            s_load_dwordx8 s[64:71], s[34:35], 0 glc
            s_sub_u32 s37, s37, 1
            s_waitcnt lgkmcnt(0)
            s_cbranch_scc1 L_h2ok""")
        for k in range(8):
            a(f"s_cmp_lg_u32 s{64 + k}, {sTAG}\ns_cbranch_scc1 L_h2")
        a("L_h2ok:")
        self.stamp(3)
        for i in range(4):
            a(f"s_add_u32 m0, s50, {1024 * i}\ns_nop 0")
            a(f"buffer_load_dwordx4 v{12 + i}, {SRDW}, s49 offen sc1 lds\ns_add_u32 s49, s49, 1024")
        for i in range(4):
            a(f"s_waitcnt vmcnt({D + 1})")
            stage(S3, i)
        a("s_waitcnt vmcnt(4)\ns_barrier")
        self.stamp(4)
        for s in range(16):
            a(f"v_xor_b32 v7, {s << 4}, v29\nds_read_b128 {vr(QAR + 4 * s, 4)}, v7")
        a("s_waitcnt lgkmcnt(0)\ns_barrier")

        def put(reg, sig):
            for i in range(8):
                d = dest(i) + 16384 * sig
                a(f"ds_write_b128 v{55 + (d >> 16)}, {vr(reg + 4 * i, 4)} offset:{d & 0xffff}")

        def step(t, after_c):
            sig = t & 1
            def rd(s):
                a(f"v_xor_b32 v7, {s << 4}, v28\nds_read_b128 {vr(FR + 4 * (s & 7), 4)}, v7 offset:{16384 * sig}")
            for s in range(8):
                rd(s)
            for s in range(16):
                a(f"s_waitcnt lgkmcnt({7 if s <= 8 else s - 1})")
                c = "0" if s == 0 else vr(S, 4)
                a(f"v_mfma_f32_16x16x32_bf16 {vr(S, 4)}, {vr(FR + 4 * (s & 7), 4)}, {vr(QAR + 4 * s, 4)}, {c}")
                if s < 8:
                    rd(s + 8)
                else:
                    blk, tt = (s - 8) >> 2, (s - 8) & 3
                    for p in range(2):
                        ar = 20 + 4 * (tt >> 1) + 2 * blk + p
                        a(f"ds_read_b64_tr_b16 {vr(FR + 4 * (s - 8) + 2 * p, 2)}, v{ar} offset:{((2 * tt + sig) * 16384) & 0xffff}")
            a(f"v_max3_f32 v7, v{S}, v{S + 1}, v{S + 2}\nv_max_f32 v7, v7, v{S + 3}")
            for sw in ("v_permlane16_swap_b32", "v_permlane32_swap_b32"):
                a(f"v_mov_b32 v8, v7\n{sw} v8, v7\nv_max_f32 v7, v7, v8")
            a(f"""v_mul_f32 v7, s52, v7
                ds_write_b32 v31, v7
                s_waitcnt lgkmcnt(0)
                s_barrier
                ds_read_b128 v[8:11], v30
                ds_read_b128 v[12:15], v52
                s_waitcnt lgkmcnt(1)
                v_max3_f32 v8, v8, v9, v10
                v_max3_f32 v8, v8, v11, v57
                v_sub_f32 v9, v57, v8
                v_mov_b32 v57, v8""")
            for r in range(4):
                a(f"v_fma_f32 v{S + r}, v{S + r}, s52, -v8")
            for r in range(4):
                a(f"v_exp_f32 v{S + r}, v{S + r}")
            a(f"""v_exp_f32 v9, v9
                v_cvt_pk_bf16_f32 v10, v{S}, v{S + 1}
                v_cvt_pk_bf16_f32 v11, v{S + 2}, v{S + 3}
                ds_write_b64 v54, v[10:11]
                s_waitcnt lgkmcnt(1)
                v_max3_f32 v12, v12, v13, v14
                v_max3_f32 v12, v12, v15, v58
                v_sub_f32 v14, v58, v12
                v_exp_f32 v14, v14
                v_mov_b32 v58, v12
                v_fma_f32 v59, v59, v9, v{S}
                v_add_f32 v{S + 1}, v{S + 1}, v{S + 2}
                v_add_f32 v59, v59, v{S + 3}
                v_add_f32 v59, v59, v{S + 1}
                s_waitcnt lgkmcnt(0)
                s_barrier""")
            for tt in range(4):
                a(f"ds_read_b128 {vr(PF + 4 * tt, 4)}, v53 offset:{32 * tt}")
            if t > 0:
                for k in range(16):
                    a(f"v_pk_mul_f32 {vr(O + 2 * k, 2)}, {vr(O + 2 * k, 2)}, v[14:15] op_sel_hi:[1,0]")
            for tt in range(4):
                a(f"s_waitcnt lgkmcnt({3 - tt})")
                for blk in range(2):
                    a(f"v_mfma_f32_32x32x16_bf16 {vr(O + 16 * blk, 16)}, {vr(FR + 4 * (4 * blk + tt), 4)}, {vr(PF + 4 * tt, 4)}, {vr(O + 16 * blk, 16)}")
            after_c()
            self.stamp(5 + t)

        def after0():
            put(S2, 0)
            a("s_waitcnt lgkmcnt(0)")
            for i in range(4, 8):
                a(f"s_waitcnt vmcnt({D - 1})")
                stage(S3, i)

        def uv(i):
            a(f"s_add_u32 m0, s44, {dest(i)}\ns_nop 0")
            a(f"buffer_load_dwordx4 v{5 + (i & 1)}, {SRDK}, s45 offen nt lds\ns_add_u32 s45, s45, 32768")

        def after2():
            a(f"""v_lshlrev_b32 v7, 1, v2
                v_xor_b32 v7, v7, v1
                v_lshlrev_b32 v7, 4, v7
                v_lshl_add_u32 v5, v2, 13, v7
                v_xor_b32 v6, 128, v5
                s_lshl_b32 s45, {sB}, 21
                s_lshl_b32 s36, {sW}, 18
                s_add_u32 s45, s45, s36
                s_lshl_b32 s36, {sH}, 8
                s_add_u32 s45, s45, s36
                s_waitcnt vmcnt(0)""")
            put(S3, 1)
            for i in range(4):
                uv(i)
            a("s_waitcnt lgkmcnt(0)\ns_barrier")

        step(0, after0)
        step(1, lambda: None)
        step(2, after2)
        step(3, lambda: None)

        for sw in ("v_permlane16_swap_b32", "v_permlane32_swap_b32"):
            a(f"v_mov_b32 v8, v59\n{sw} v8, v59\nv_add_f32 v59, v59, v8")
        a(f"""ds_write_b32 v31, v59 offset:{LS - MX}
            s_lshl_b32 s33, s55, 15
            s_lshl_b32 s36, s54, 12
            s_add_u32 s33, s33, s36
            s_add_u32 s33, s33, {PART[0]}
            v_and_b32 v7, 31, v0
            v_and_b32 v8, 7, v0
            v_lshlrev_b32 v9, 4, v8
            v_lshl_add_u32 v9, v7, 7, v9
            v_lshrrev_b32 v10, 5, v0
            v_lshl_add_u32 v9, v10, 3, v9
            v_add_u32 v9, s33, v9
            v_lshrrev_b32 v10, 3, v0
            v_xor_b32 v11, v8, v10
            v_lshlrev_b32 v11, 4, v11
            v_lshl_add_u32 v11, v10, 7, v11
            v_add_u32 v11, s33, v11
            v_lshlrev_b32 v12, 4, v8
            v_lshl_add_u32 v12, v10, 16, v12
            s_lshl_b32 s49, s55, 15
            s_lshl_b32 s36, {sB}, 14
            s_add_u32 s49, s49, s36
            s_lshl_b32 s36, {sH}, 9
            s_add_u32 s49, s49, s36
            s_lshl_b32 s36, s54, 7
            s_add_u32 s49, s49, s36
            s_add_u32 s49, s49, {OP}""")
        for k in range(8):
            a(f"v_cvt_pk_bf16_f32 v{FR + 2 * k}, v{O + 4 * k}, v{O + 4 * k + 1}")
            a(f"v_cvt_pk_bf16_f32 v{FR + 2 * k + 1}, v{O + 4 * k + 2}, v{O + 4 * k + 3}")
            a(f"v_xor_b32 v7, {16 * k}, v9\nds_write_b64 v7, {vr(FR + 2 * k, 2)}")
        a("s_waitcnt lgkmcnt(0)")
        for i in range(4):
            a(f"ds_read_b128 {vr(FR + 16 + 4 * i, 4)}, v11 offset:{1024 * i}")
        for i in range(4):
            a(f"s_waitcnt lgkmcnt({3 - i})")
            a(f"buffer_store_dwordx4 {vr(FR + 16 + 4 * i, 4)}, v12, {SRDW}, s49 offen sc1\ns_add_u32 s49, s49, {8 * 65536}")
        a("s_waitcnt vmcnt(0)\ns_barrier")
        a(f"""s_cmp_lg_u32 {sW}, 0
            s_cbranch_scc1 L_nost
            ds_read_b128 v[8:11], v52 offset:{LS - MX}
            v_lshlrev_b32 v7, 10, v0
            s_lshl_b32 s33, {sB}, 9
            s_lshl_b32 s36, {sH}, 4
            s_add_u32 s33, s33, s36
            s_add_u32 s33, s33, {ST}
            v_mov_b32 v12, v58
            v_mov_b32 v14, {sTAG}
            v_mov_b32 v15, {sTAG}
            s_waitcnt lgkmcnt(0)
            v_add_f32 v8, v8, v9
            v_add_f32 v10, v10, v11
            v_add_f32 v13, v8, v10""")
        self.exec64(0xffffffff, 0)
        a(f"buffer_store_dwordx4 v[12:15], v7, {SRDW}, s33 offen sc1\ns_mov_b64 exec, -1\nL_nost:")
        self.stamp(9)
        for i in range(4, 8):
            uv(i)
        self.e2_dma_setup()
        a(f"""s_lshl_b32 s33, {sH}, 10
            s_lshl_b32 s36, {sW}, 7
            s_add_u32 s33, s33, s36
            s_add_u32 s33, s33, {ST}
            s_add_u32 s34, s12, s33
            s_addc_u32 s35, s13, 0
            v_lshrrev_b32 v7, 5, v0
            s_and_b32 s33, {sW}, 1
            s_lshl_b32 s33, s33, 2
            v_or_b32 v7, s33, v7
            v_lshlrev_b32 v7, 5, v7
            v_xor_b32 v12, v7, v16
            v_xor_b32 v13, 64, v12
            s_lshl_b32 s49, {sH}, 16
            s_lshl_b32 s36, {sB}, 15
            s_add_u32 s49, s49, s36
            s_lshl_b32 s36, {sW}, 12
            s_add_u32 s49, s49, s36
            s_add_u32 s49, s49, {OP}
            s_lshl_b32 s50, s55, 15
            s_lshl_b32 s36, s54, 12
            s_add_u32 s50, s50, s36
            s_add_u32 s50, s50, {PART[0]}
            s_mov_b32 s37, {SPIN}
            L_h3:
            s_load_dwordx16 s[64:79], s[34:35], 0 glc
            s_load_dwordx16 s[80:95], s[34:35], 64 glc
            s_sub_u32 s37, s37, 1
            s_waitcnt lgkmcnt(0)
            s_cbranch_scc1 L_h3ok""")
        for k in range(8):
            a(f"s_cmp_lg_u32 s{66 + 4 * k}, {sTAG}\ns_cbranch_scc1 L_h3")
        a("L_h3ok:")
        self.stamp(10)
        for i in range(4):
            a(f"s_add_u32 m0, s50, {1024 * i}\ns_nop 0")
            a(f"buffer_load_dwordx4 v{12 + (i & 1)}, {SRDW}, s49 offen sc1 lds\ns_add_u32 s49, s49, 1024")
        for k in range(8):
            a(f"v_writelane_b32 v8, s{64 + 4 * k}, {k}\nv_writelane_b32 v9, s{65 + 4 * k}, {k}")
        a(f"""s_lshl_b32 s33, {sW}, 6
            s_add_u32 s33, s33, {SM}
            v_lshl_add_u32 v7, v0, 3, s33
            s_mov_b64 exec, 0xff
            ds_write_b64 v7, v[8:9]
            s_mov_b64 exec, -1""")
        a(f"""v_lshrrev_b32 v8, 2, v1
            v_lshrrev_b32 v9, 1, v2
            v_and_b32 v10, 1, v2
            v_lshlrev_b32 v7, 15, v9
            v_lshl_add_u32 v7, v10, 13, v7
            v_lshl_add_u32 v7, v8, 8, v7
            v_and_b32 v11, 3, v0
            v_lshl_add_u32 v7, v11, 3, v7
            v_lshl_or_b32 v10, v10, 2, v8
            v_lshl_add_u32 v7, v10, 5, v7
            v_add_u32 v20, s44, v7
            v_add_u32 v21, 65536, v20
            s_waitcnt vmcnt(4)""")
        for db in range(8):
            for p in range(2):
                a(f"v_xor_b32 v7, {32 * db}, v{20 + p}\nds_read_b64_tr_b16 {vr(QAR + 4 * db + 2 * p, 2)}, v7")
        for i in range(4):
            self.e2_dma(i)
        a(f"""s_waitcnt lgkmcnt(0)
            s_barrier
            v_lshlrev_b32 v7, 3, v0
            v_add_u32 v7, {SM}, v7
            ds_read_b64 v[12:13], v7
            s_lshl_b32 s33, {sW}, 7
            s_add_u32 s33, s33, {WB}
            v_lshl_add_u32 v22, v0, 1, s33
            v_and_b32 v7, 1, v0
            v_lshlrev_b32 v7, 6, v7
            v_lshl_add_u32 v7, v2, 4, v7
            v_add_u32 v23, s33, v7
            s_waitcnt lgkmcnt(0)
            v_mov_b32 v14, v12""")

        def red32(op, r, t):
            for sh in (1, 2, 4, 8):
                a(f"{op}_dpp v{r}, v{r}, v{r} row_ror:{sh} {FULL}")
            a(f"v_mov_b32 v{t}, v{r}\nv_permlane16_swap_b32 v{t}, v{r}\n{op} v{r}, v{r}, v{t}")
        red32("v_max_f32", 14, 15)
        a("v_sub_f32 v12, v12, v14\nv_exp_f32 v12, v12\nv_mul_f32 v13, v12, v13")
        red32("v_add_f32", 13, 15)
        a(f"""v_rcp_f32 v13, v13
            v_mul_f32 v12, v12, v13
            v_cvt_pk_bf16_f32 v12, v12, v12
            ds_write_b16 v22, v12
            s_waitcnt lgkmcnt(0)
            ds_read_b128 v[12:15], v23
            v_lshlrev_b32 v7, 12, v2
            v_lshl_add_u32 v7, v8, 9, v7
            v_lshl_add_u32 v7, v11, 3, v7
            s_lshl_b32 s33, {sW}, 1
            v_xor_b32 v10, s33, v10
            v_lshl_add_u32 v7, v10, 5, v7
            v_add_u32 v24, {PART[0]}, v7
            v_xor_b32 v25, 32, v24
            v_and_b32 v7, 1, v0
            v_lshlrev_b32 v7, 9, v7
            v_lshl_add_u32 v7, v2, 4, v7
            s_add_u32 s33, s44, {RED}
            v_add_u32 v26, s33, v7
            v_cmp_eq_u32 vcc, 0, v1
            v_cmp_eq_u32 s[38:39], 1, v1
            s_waitcnt lgkmcnt(0)""")
        for k in range(4):
            a(f"v_cndmask_b32 v{32 + k}, 0, v{12 + k}, vcc")
            a(f"v_cndmask_b32 v{36 + k}, 0, v{12 + k}, s[38:39]")
        a("s_waitcnt vmcnt(4)\ns_barrier")
        self.stamp(11)
        for s in range(2):
            for cb in range(2):
                for p in range(2):
                    a(f"ds_read_b64_tr_b16 {vr(FR + 8 * s + 4 * cb + 2 * p, 2)}, v{24 + cb} offset:{32768 * s + 2048 * p}")
        for s in range(2):
            for cb in range(2):
                a(f"s_waitcnt lgkmcnt({6 - 4 * s - 2 * cb})")
                c = "0" if s == 0 else vr(40 + 4 * cb, 4)
                a(f"v_mfma_f32_16x16x32_bf16 {vr(40 + 4 * cb, 4)}, {vr(FR + 8 * s + 4 * cb, 4)}, {vr(32 + 4 * s, 4)}, {c}")
        for k in range(4):
            a(f"v_cvt_pk_bf16_f32 v{48 + k}, v{40 + 2 * k}, v{41 + 2 * k}")
        for db in range(8):
            a(f"v_mfma_f32_16x16x32_bf16 {vr(O + 4 * db, 4)}, {vr(QAR + 4 * db, 4)}, v[48:51], 0")
        self.exec64(0x00030003)
        for db in range(8):
            a(f"ds_write_b128 v26, {vr(O + 4 * db, 4)} offset:{64 * db}")
        a(f"""s_mov_b64 exec, -1
            s_waitcnt lgkmcnt(0)
            s_barrier
            s_cmp_lg_u32 {sW}, 0
            s_cbranch_scc1 L_stageE2
            v_lshrrev_b32 v14, 5, v0
            v_mul_u32_u24 v14, 1536, v14
            v_add_u32 v14, v14, v16
            s_lshl_b32 s33, {sH}, 12
            s_lshl_b32 s36, {sB}, 9
            s_add_u32 s33, s33, s36
            s_add_u32 s33, s33, {H4B}
            v_mov_b32 v60, 0
            v_mov_b32 v61, 0.5""")
        self.red_publish(64, 1024, "v14", "s33", "v60", "v61")
        a("s_branch L_stageE2")

    def build(self):
        a = self.a
        self.entry()
        self.p1()
        a("L_rolePU:")
        self.p2()
        self.role_b()
        self.a_final()
        self.e2()
        a("L_end:\ns_endpgm")
        body = a.finalize()
        return f"""{HEADER}; Generated by a script; one persistent launch, 256 workgroups of 8 waves (one per CU).
; @launch grid=(256,1,1) block=(512,1,1) lds={LDS_BYTES}
.amdgcn_target "amdgcn-amd-amdhsa--gfx950"
.text
.globl {NAME}
.p2align 8
.type {NAME},@function
{NAME}:
{body}.section .rodata,"a"
.p2align 6
.amdhsa_kernel {NAME}
  .amdhsa_next_free_vgpr 256
  .amdhsa_next_free_sgpr 102
  .amdhsa_accum_offset 256
  .amdhsa_group_segment_fixed_size 0
  .amdhsa_kernarg_size 112
  .amdhsa_user_sgpr_count 2
  .amdhsa_user_sgpr_kernarg_segment_ptr 1
  .amdhsa_system_sgpr_workgroup_id_x 1
  .amdhsa_float_denorm_mode_32 3
.end_amdhsa_kernel
"""


if __name__ == "__main__":
    out = sys.argv[1]
    kw = eval("dict(" + (sys.argv[2] if len(sys.argv) > 2 else "") + ")")
    open(out, "w").write(Gen(**kw).build())
```

```python
import sys
from asmlib import Asm

NAME = "concat_heads__sliding_block_cached__compressed_kv_cla__decode_kernel"
HEADER = open("concat_heads__sliding_block_cached__compressed_kv_cla__decode.s.ref").read().split("; Override launch")[0]

EPOCH = 0
QA = 0x10000
QB = 0x20000
QABS = 0x30000
F2 = 0x40000
ST = 0x50000
H4A = 0x60000
H4B = 0x80000
OP = 0x100000
H5 = 0x400000
STAMP = 0x800000
WS_SIZE = 0x1000000

AUX = 131072
RED = AUX
MXA = AUX + 8192
LSA = AUX + 8192 + 64
MX = AUX + 9216
LS = AUX + 9216 + 512
PB = AUX + 10240
SM = AUX + 15360
WB = AUX + 16384
E2B = (81920, 114688)
PART = (16384, 49152)
LDS_BYTES = 163840

SCALE = 0x3e0293ee
NEGBIG = 0xff7fffff
SPIN = 1 << 18

sW, sH, sJ, sB, sT, sTAG = "s3", "s4", "s5", "s6", "s7", "s32"
SRD0, SRDW, SRDK, SRDV, SRDE, SRDX = "s[8:11]", "s[12:15]", "s[16:19]", "s[20:23]", "s[24:27]", "s[28:31]"
FULL = "row_mask:0xf bank_mask:0xf"


def vr(a, n):
    return f"v[{a}:{a + n - 1}]"


def dest(i):
    return (i >> 1) * 32768 + (i & 1) * 8192


class Gen:
    def __init__(self, dbg=False, nu=(22, 22, 20), depth=4, qpos=(12, 12, 8), rot=True, pu_pre=4, calib=0):
        self.a = Asm()
        self.dbg = dbg
        self.nu, self.depth, self.qpos, self.rot, self.pu_pre = nu, depth, qpos, rot, pu_pre
        self.uid = 0
        self.calib = calib

    def lab(self, p):
        self.uid += 1
        return f"L_{p}_{self.uid}"

    def stamp(self, k):
        if self.dbg:
            self.a(f"s_memrealtime s[98:99]\ns_waitcnt lgkmcnt(0)\nv_writelane_b32 v63, s98, {k}")

    def exec64(self, lo, hi=None):
        hi = lo if hi is None else hi
        self.a(f"s_mov_b32 exec_lo, {lo:#x}\ns_mov_b32 exec_hi, {hi:#x}")

    def entry(self):
        a = self.a
        a("s_cmp_ge_u32 s2, 256\ns_cbranch_scc1 L_end")
        if self.dbg or self.calib:
            a("s_memrealtime s[96:97]")
        a(f"s_lshr_b32 {sH}, s2, 3")
        if self.rot:
            a(f"s_add_u32 {sJ}, s2, {sH}\ns_and_b32 {sJ}, {sJ}, 7")
        else:
            a(f"s_and_b32 {sJ}, s2, 7")
        a(f"""s_and_b32 {sT}, {sJ}, 3
            s_lshl_b32 s33, {sT}, 3
            s_lshr_b32 s33, 0x30403818, s33
            s_and_b32 s33, s33, 0xff
            s_load_dwordx2 s[8:9], s[0:1], s33
            s_load_dwordx2 s[12:13], s[0:1], 104
            s_getpc_b64 s[34:35]
            L_pc:
            v_lshlrev_b32 v7, 2, v0
            v_lshrrev_b32 v8, 6, v0
            s_lshl_b32 s33, {sH}, 11
            v_add_u32 v7, s33, v7
            v_readfirstlane_b32 {sW}, v8
            v_min_u32 v7, L_end-L_pc, v7
            global_load_dword v62, v7, s[34:35]
            s_lshr_b32 {sB}, {sJ}, 2
            v_and_b32 v0, 63, v0
            v_and_b32 v1, 15, v0
            v_lshrrev_b32 v2, 4, v0
            s_mov_b32 s11, 0x20000
            s_mov_b32 s10, 0x400000
            s_mov_b32 s14, {WS_SIZE:#x}
            s_mov_b32 s15, 0x20000
            s_lshl_b32 s44, {sW}, 10
            s_mov_b32 s41, 65536
            s_mov_b32 s38, 64
            s_cmp_eq_u32 {sT}, 3
            s_cbranch_scc1 L_e3
            s_cmp_eq_u32 {sT}, 2
            s_cbranch_scc1 L_e2
            s_lshl_b32 s40, {sW}, 19
            s_lshl_b32 s33, {sB}, 7
            s_add_u32 s40, s40, s33
            s_mov_b32 s42, 262144
            s_mov_b32 s39, 0
            v_lshrrev_b32 v9, 3, v0
            v_and_b32 v10, 7, v0
            v_and_b32 v11, 1, v2
            v_lshlrev_b32 v11, 1, v11
            s_branch L_e01
            L_e2:
            s_lshl_b32 s40, {sW}, 18
            s_lshl_b32 s33, {sB}, 21
            s_add_u32 s40, s40, s33
            s_mov_b32 s42, 32768
            s_mov_b32 s39, 128
            v_mov_b32 v9, v2
            v_mov_b32 v10, v1
            v_mov_b32 v11, v2
            L_e01:
            s_lshl_b32 s33, {sH}, 8
            s_add_u32 s40, s40, s33
            s_branch L_ej
            L_e3:
            s_lshl_b32 s40, {sB}, 23
            s_lshl_b32 s33, {sH}, 18
            s_add_u32 s40, s40, s33
            s_add_u32 s40, s40, s44
            s_mov_b32 s41, 8192
            s_mov_b32 s42, 32768
            s_mov_b32 s38, 32
            s_mov_b32 s39, 0
            s_mov_b32 s10, 0x1000000
            s_and_b32 s33, {sW}, 3
            s_lshl_b32 s33, s33, 2
            s_lshr_b32 s36, {sW}, 2
            s_or_b32 s33, s33, s36
            v_mov_b32 v9, 0
            v_mov_b32 v10, v0
            v_mov_b32 v11, s33
            L_ej:
            v_xor_b32 v10, v10, v11
            v_lshlrev_b32 v10, 4, v10
            v_lshl_add_u32 v3, v9, 13, v10
            v_xor_b32 v4, s38, v3
            v_xor_b32 v5, s39, v3
            v_xor_b32 v6, s39, v4
            s_add_u32 s43, s40, s42
            s_waitcnt lgkmcnt(0)
            s_load_dword {sTAG}, s[12:13], {EPOCH}""")
        for i in range(8):
            so = "s40" if i < 4 else "s43"
            a(f"s_add_u32 m0, s44, {dest(i)}")
            a(f"buffer_load_dwordx4 v{3 + (i & 3)}, {SRD0}, {so} offen nt lds")
            a(f"s_add_u32 {so}, {so}, s41")
        a(f"""s_cmp_lt_u32 {sW}, 4
            s_cselect_b32 s33, 32, 80
            s_load_dwordx2 s[24:25], s[0:1], s33
            s_mov_b32 s26, 0x400000
            s_mov_b32 s27, 0x20000
            v_lshlrev_b32 v16, 4, v0""")
        if self.dbg:
            a("v_mov_b32 v63, 0\ns_waitcnt lgkmcnt(0)\nv_writelane_b32 v63, s96, 0")
        a(f"""s_cmp_eq_u32 {sT}, 3
            s_cbranch_scc1 L_roleB
            s_load_dwordx2 s[16:17], s[0:1], 8
            s_load_dwordx2 s[20:21], s[0:1], 16
            s_mul_i32 s33, {sT}, 40
            s_load_dwordx2 s[28:29], s[0:1], s33
            s_mov_b32 s18, 0x8000000
            s_mov_b32 s19, 0x20000
            s_mov_b32 s22, 0x8000000
            s_mov_b32 s23, 0x20000
            s_mov_b32 s30, 2048
            s_mov_b32 s31, 0x20000""")
        n0, n1, n2 = self.nu
        a(f"""s_lshl_b32 s45, {sB}, 5
            s_add_u32 s45, s45, {sH}
            s_lshl_b32 s45, s45, 21
            s_add_u32 s45, s45, {6144 * 256}
            s_cmp_eq_u32 {sT}, 2
            s_cbranch_scc1 L_rolePU""")

    def red_publish(self, lanes, stride, voff, soff, xe, xo):
        a = self.a
        if lanes == 32:
            self.exec64(0xffffffff, 0)
        a(f"v_add_u32 v7, {RED}, v16")
        for k in range(8):
            a(f"ds_read_b128 {vr(208 + 4 * k, 4)}, v7 offset:{k * stride}")
        a("v_and_b32 v8, 1, v0\nv_cmp_eq_u32 vcc, 1, v8")
        a(f"v_mov_b32 v9, {sTAG}")
        a(f"v_cndmask_b32 v10, {xe}, {xo}, vcc")
        for k in range(1, 8):
            a(f"s_waitcnt lgkmcnt({7 - k})")
            a(f"v_pk_add_f32 v[208:209], v[208:209], {vr(208 + 4 * k, 2)}")
            a(f"v_pk_add_f32 v[210:211], v[210:211], {vr(210 + 4 * k, 2)}")
        a("""v_cvt_pk_bf16_f32 v11, v208, v209
            v_cvt_pk_bf16_f32 v12, v210, v211
            v_cndmask_b32 v212, v9, v11, vcc
            v_cndmask_b32 v213, v10, v12, vcc
            v_cndmask_b32 v214, v11, v9, vcc
            v_cndmask_b32 v215, v12, v10, vcc""")
        a(f"buffer_store_dwordx4 v[212:215], {voff}, {SRDW}, {soff} offen sc1")
        if lanes == 32:
            a("s_mov_b64 exec, -1")

    def gather_rows(self, base, voff, soff):
        a = self.a
        lp, ok = self.lab("gp"), self.lab("gok")
        a(f"s_mov_b32 s37, {SPIN}\n{lp}:")
        for s in range(4):
            a(f"buffer_load_dwordx4 {vr(base + 8 * s, 4)}, {voff}, {SRDW}, {soff} offen offset:{128 * s} sc1")
            a(f"buffer_load_dwordx4 {vr(base + 8 * s + 4, 4)}, {voff}, {SRDW}, {soff} offen offset:{128 * s + 16} sc1")
        a("s_sub_u32 s37, s37, 1\ns_waitcnt vmcnt(0)")
        a(f"s_cbranch_scc1 {ok}")
        for s in range(4):
            a(f"v_bitop3_b32 v{8 + s}, v{base + 8 * s}, v{base + 8 * s + 6}, {sTAG} bitop3:0x7e")
        a("v_or3_b32 v8, v8, v9, v10\nv_or_b32 v8, v8, v11\nv_cmp_ne_u32 vcc, 0, v8")
        a(f"s_cbranch_vccnz {lp}\n{ok}:")

    def e2_dma_setup(self):
        self.a(f"""v_lshrrev_b32 v9, 3, v0
            v_and_b32 v10, 7, v0
            v_and_b32 v11, 1, v2
            v_lshlrev_b32 v11, 1, v11
            v_xor_b32 v10, v10, v11
            v_lshlrev_b32 v10, 4, v10
            v_lshl_add_u32 v17, v9, 10, v10
            v_xor_b32 v18, 64, v17
            s_and_b32 s33, {sW}, 3
            s_lshl_b32 s46, {sH}, 17
            s_lshl_b32 s36, s33, 15
            s_add_u32 s46, s46, s36
            s_lshl_b32 s36, {sJ}, 7
            s_add_u32 s46, s46, s36
            s_cmp_lt_u32 {sW}, 4
            s_mov_b32 s47, {E2B[1]}
            s_cmov_b32 s47, {E2B[0]}
            s_lshl_b32 s36, s33, 12
            s_add_u32 s47, s47, s36""")

    def e2_dma(self, i):
        self.a(f"""s_add_u32 m0, s47, {1024 * i}
            s_nop 0
            buffer_load_dwordx4 v{17 + (i & 1)}, {SRDE}, s46 offen nt lds
            s_add_u32 s46, s46, 8192""")

    def p1(self):
        a = self.a
        D = self.depth
        a(f"""v_and_b32 v7, 1, v0
            v_lshlrev_b32 v7, 10, v7
            v_lshl_add_u32 v7, v2, 4, v7
            s_lshl_b32 s33, {sW}, 7
            s_mul_i32 s36, {sT}, {self.nu[0] * 8192}
            s_add_u32 s45, s45, s36
            s_mul_i32 s36, {sW}, {self.nu[0] * 1024}
            s_add_u32 s45, s45, s36
            s_mov_b32 s48, s45
            s_waitcnt lgkmcnt(0)
            s_add_u32 {sTAG}, {sTAG}, 1
            buffer_load_dwordx4 v[160:163], v7, {SRDX}, s33 offen
            buffer_load_dwordx4 v[164:167], v7, {SRDX}, s33 offen offset:64""")

        def work():
            a(f"""v_lshrrev_b32 v7, 1, v2
                v_lshlrev_b32 v7, 15, v7
                v_and_b32 v8, 1, v2
                v_lshl_add_u32 v7, v8, 13, v7
                v_add_u32 v7, s44, v7
                v_lshrrev_b32 v9, 2, v1
                v_lshl_add_u32 v7, v9, 7, v7
                v_and_b32 v10, 3, v0
                v_lshl_add_u32 v7, v10, 3, v7
                v_lshrrev_b32 v9, 1, v9
                v_lshl_or_b32 v9, v8, 1, v9
                v_lshl_add_u32 v216, v9, 5, v7""")
            for cb in range(1, 4):
                a(f"v_xor_b32 v{216 + cb}, {32 * cb}, v216")
            for cb in range(4):
                a(f"v_add_u32 v{220 + cb}, 65536, v{216 + cb}")
            a(f"""v_and_b32 v7, 1, v0
                v_lshlrev_b32 v7, 8, v7
                v_lshl_add_u32 v7, v2, 4, v7
                s_lshl_b32 s33, {sW}, 9
                s_add_u32 s33, s33, {RED}
                v_add_u32 v13, s33, v7
                s_waitcnt vmcnt({D})""")
            self.stamp(1)
            for t in range(2):
                for cb in range(4):
                    f = 168 + 16 * t + 4 * cb
                    a(f"ds_read_b64_tr_b16 {vr(f, 2)}, v{216 + 4 * t + cb}")
                    a(f"ds_read_b64_tr_b16 {vr(f + 2, 2)}, v{216 + 4 * t + cb} offset:512")
            for t in range(2):
                for cb in range(4):
                    f = 168 + 16 * t + 4 * cb
                    a(f"s_waitcnt lgkmcnt({14 - 8 * t - 2 * cb})")
                    c = "0" if t == 0 else vr(200 + 4 * cb, 4)
                    a(f"v_mfma_f32_16x16x32_bf16 {vr(200 + 4 * cb, 4)}, {vr(f, 4)}, {vr(160 + 4 * t, 4)}, {c}")
            self.exec64(0x00030003)
            for cb in range(4):
                a(f"ds_write_b128 v13, {vr(200 + 4 * cb, 4)} offset:{64 * cb}")
            a("s_mov_b64 exec, -1\ns_waitcnt lgkmcnt(0)\ns_barrier")
            skip = self.lab("p1s")
            a(f"s_cmp_lg_u32 {sW}, 0\ns_cbranch_scc1 {skip}")
            a(f"""v_lshlrev_b32 v14, 9, v2
                v_lshl_add_u32 v14, v1, 4, v14
                s_lshl_b32 s33, {sT}, 16
                s_lshl_b32 s36, {sH}, 10
                s_add_u32 s33, s33, s36
                s_lshl_b32 s36, {sB}, 8
                s_add_u32 s33, s33, s36
                s_add_u32 s33, s33, {QA}
                v_mov_b32 v15, 0""")
            self.red_publish(32, 512, "v14", "s33", "v15", "v15")
            a(f"{skip}:")
            self.stamp(2)
        self.a_stream(self.nu[0], self.qpos[0], D, work)

    def p2(self):
        a = self.a
        pre = self.pu_pre
        a(f"""s_add_u32 s45, s45, {(self.nu[0] + self.nu[1]) * 8192}
            s_mul_i32 s36, {sW}, {self.nu[2] * 1024}
            s_add_u32 s45, s45, s36
            s_mov_b32 s48, s45
            s_waitcnt lgkmcnt(0)
            s_add_u32 {sTAG}, {sTAG}, 1""")

        def work():
            a(f"""v_lshrrev_b32 v7, 3, v1
                v_lshlrev_b32 v7, 15, v7
                v_bfe_u32 v8, v1, 2, 1
                v_lshl_add_u32 v7, v8, 13, v7
                v_and_b32 v8, 3, v1
                v_lshl_add_u32 v7, v8, 8, v7
                v_add_u32 v7, s44, v7
                v_xor_b32 v8, v2, v1
                v_lshl_add_u32 v216, v8, 4, v7""")
            for s in range(1, 4):
                a(f"v_xor_b32 v{216 + s}, {64 * s}, v216")
            for s in range(4):
                a(f"v_add_u32 v{220 + s}, 65536, v{216 + s}")
            a(f"""v_lshlrev_b32 v14, 9, v1
                v_lshl_add_u32 v14, v2, 5, v14
                s_lshl_b32 s49, {sH}, 10
                s_add_u32 s49, s49, {QB}
                s_add_u32 s34, s12, s49
                s_addc_u32 s35, s13, 0
                v_lshlrev_b32 v15, 15, v1
                v_lshl_add_u32 v15, v2, 4, v15
                s_lshl_b32 s50, {sH}, 10
                s_lshl_b32 s36, {sB}, 9
                s_add_u32 s50, s50, s36
                s_lshl_b32 s36, {sW}, 6
                s_add_u32 s50, s50, s36
                s_add_u32 s50, s50, {QABS}
                s_waitcnt vmcnt({pre})""")
            self.stamp(1)
            for blk in range(2):
                for s in range(4):
                    a(f"ds_read_b128 {vr(224 + 16 * blk + 4 * s, 4)}, v{216 + 4 * blk + s}")
            lp, ok = self.lab("h1"), self.lab("h1ok")
            a(f"s_mov_b32 s37, {SPIN}\n{lp}:")
            for k in range(8):
                a(f"s_load_dword s{64 + k}, s[34:35], {128 * k} glc")
            a(f"s_sub_u32 s37, s37, 1\ns_waitcnt lgkmcnt(0)\ns_cbranch_scc1 {ok}")
            for k in range(8):
                a(f"s_cmp_lg_u32 s{64 + k}, {sTAG}\ns_cbranch_scc1 {lp}")
            a(f"{ok}:")
            self.stamp(2)
            self.exec64(0x00030003)
            self.gather_rows(176, "v14", "s49")
            a("s_mov_b64 exec, -1")
            for s in range(4):
                for blk in range(2):
                    c = "0" if s == 0 else vr(208 + 4 * blk, 4)
                    a(f"v_mfma_f32_16x16x32_bf16 {vr(208 + 4 * blk, 4)}, {vr(224 + 16 * blk + 4 * s, 4)}, {vr(178 + 8 * s, 4)}, {c}")
            for k in range(4):
                a(f"v_cvt_pk_bf16_f32 v{168 + k}, v{208 + 2 * k}, v{209 + 2 * k}")
            self.exec64(0x00030003)
            a(f"buffer_store_dwordx4 v[168:171], v15, {SRDW}, s50 offen sc1")
            a("s_mov_b64 exec, -1\ns_waitcnt vmcnt(0)\ns_barrier")
            skip = self.lab("p2s")
            a(f"""s_cmp_lg_u32 {sW}, 0
                s_cbranch_scc1 {skip}
                s_lshr_b32 s33, {sH}, 2
                s_lshl_b32 s33, s33, 7
                s_and_b32 s36, {sH}, 3
                s_lshl_b32 s36, s36, 3
                s_add_u32 s33, s33, s36
                s_lshl_b32 s36, {sB}, 2
                s_add_u32 s33, s33, s36
                s_add_u32 s33, s33, {F2}
                v_mov_b32 v7, {sTAG}
                s_mov_b64 exec, 1
                buffer_store_dword v7, off, {SRDW}, s33 sc1
                s_mov_b64 exec, -1
                {skip}:""")
            self.stamp(3)
        self.a_stream(self.nu[2], self.qpos[2], pre, work)

    def a_stream(self, NU, qpos, pre, work):
        a = self.a
        D = self.depth
        KV = 64
        NG = (NU + 3) // 4
        loads = []
        for u in range(NU):
            loads.append(("K", u))
            if u == qpos:
                loads += [("Q", 0), ("Q", 1)]
        loads += [("V", u) for u in range(NU)] + [("E", i) for i in range(4)]
        pos = {l: i for i, l in enumerate(loads)}

        def issue(l):
            k, u = l
            if k in "KV":
                so, srd = ("s45", SRDK) if k == "K" else ("s48", SRDV)
                a(f"buffer_load_dwordx4 {vr(KV + 4 * u, 4)}, v16, {srd}, {so} offen offset:{1024 * (u & 3)} nt")
                if u & 3 == 3:
                    a(f"s_add_u32 {so}, {so}, 4096")
            elif k == "Q":
                a(f"buffer_load_dwordx4 {vr(20 + 4 * u, 4)}, v19, {SRDW}, s51 offen offset:{16 * u} sc1")
            else:
                self.e2_dma(u)

        def qcheck():
            ok, lp = self.lab("qok"), self.lab("qlp")
            a(f"""s_mov_b32 s37, {SPIN}
                {lp}:
                v_bitop3_b32 v8, v20, v26, {sTAG} bitop3:0x7e
                v_cmp_ne_u32 vcc, 0, v8
                s_cbranch_vccz {ok}
                s_sub_u32 s37, s37, 1
                s_cbranch_scc1 {ok}""")
            issue(("Q", 0)); issue(("Q", 1))
            a(f"s_waitcnt vmcnt(0)\ns_branch {lp}\n{ok}:")
            self.stamp(4)

        def qk(gi):
            us = [u for u in range(4 * gi, min(4 * gi + 4, NU))]
            for e in range(4):
                for k, u in enumerate(us):
                    if e == 0:
                        a(f"v_mov_b32 v{28 + k}, 0")
                for k, u in enumerate(us):
                    a(f"v_dot2c_f32_bf16 v{28 + k}, v{KV + 4 * u + e}, v{22 + e}")
            n = len(us)
            if n < 4:
                a(f"v_mov_b32 v32, {NEGBIG:#x}\nv_mov_b32 v33, {NEGBIG:#x}")
            for k in range(n):
                a(f"v_add_f32_dpp v{32 + (k & 1)}, v{28 + k}, v{28 + k} row_ror:8 row_mask:0xf bank_mask:{0x3 if k < 2 else 0xc:#x}")
            s = 34 + gi
            a(f"v_add_f32_dpp v{s}, v32, v32 row_half_mirror row_mask:0xf bank_mask:0x5")
            a(f"v_add_f32_dpp v{s}, v33, v33 row_half_mirror row_mask:0xf bank_mask:0xa")
            a(f"v_add_f32_dpp v{s}, v{s}, v{s} quad_perm:[1,0,3,2] {FULL}")
            a(f"v_add_f32_dpp v{s}, v{s}, v{s} quad_perm:[2,3,0,1] {FULL}")

        def allred(op, r, t):
            a(f"{op}_dpp v{r}, v{r}, v{r} row_ror:4 {FULL}")
            a(f"{op}_dpp v{r}, v{r}, v{r} row_ror:8 {FULL}")
            for sw in ("v_permlane16_swap_b32", "v_permlane32_swap_b32"):
                a(f"v_mov_b32 v{t}, v{r}\n{sw} v{t}, v{r}\n{op} v{r}, v{r}, v{t}")

        def softmax():
            a("v_max_f32 v7, v34, v35")
            for gi in range(2, NG):
                a(f"v_max_f32 v7, v7, v{34 + gi}")
            allred("v_max_f32", 7, 8)
            a(f"""s_lshl_b32 s33, {sW}, 2
                s_add_u32 s33, s33, {MXA}
                v_mov_b32 v9, s33
                ds_write_b32 v9, v7
                v_mov_b32 v10, {MXA}
                s_waitcnt lgkmcnt(0)
                s_barrier
                ds_read_b128 v[28:31], v10
                ds_read_b128 v[12:15], v10 offset:16
                s_mov_b32 s52, {SCALE:#x}""")
            for k in range(8):
                a(f"v_mov_b32 v{52 + k}, 0")
            a("""s_waitcnt lgkmcnt(0)
                v_max3_f32 v7, v28, v29, v30
                v_max3_f32 v7, v7, v31, v12
                v_max3_f32 v7, v7, v13, v14
                v_max_f32 v7, v7, v15
                v_mul_f32 v60, s52, v7""")
            for gi in range(NG):
                a(f"v_fma_f32 v{34 + gi}, v{34 + gi}, s52, -v60")
            for gi in range(NG):
                a(f"v_exp_f32 v{34 + gi}, v{34 + gi}")
            for gi in range(NG):
                a(f"v_cvt_pk_bf16_f32 v{40 + gi}, v{34 + gi}, 0")
                a(f"v_cvt_pk_bf16_f32 v{46 + gi}, 0, v{34 + gi}")
            a("v_add_f32 v7, v34, v35")
            for gi in range(2, NG):
                a(f"v_add_f32 v7, v7, v{34 + gi}")
            allred("v_add_f32", 7, 8)
            a(f"ds_write_b32 v9, v7 offset:{LSA - MXA}")
            self.stamp(5)

        def pv(u):
            gi, k = u >> 2, u & 3
            for e in range(4):
                a(f"v_dot2c_f32_bf16_dpp v{52 + 2 * e}, v{40 + gi}, v{KV + 4 * u + e} row_newbcast:{4 * k} {FULL}")
                a(f"v_dot2c_f32_bf16_dpp v{53 + 2 * e}, v{46 + gi}, v{KV + 4 * u + e} row_newbcast:{4 * k} {FULL}")

        items = [("qc", None, pos[("Q", 1)], 0)]
        items += [("qk", gi, pos[("K", min(4 * gi + 3, NU - 1))], 2) for gi in range(NG)]
        items += [("sm", None, 0, 2)]
        items += [("pv", u, pos[("V", u)], 1) for u in range(NU)]
        done = set()

        def run(landed, budget):
            while items and items[0][2] <= landed and budget > 0:
                k, x, _, cost = items.pop(0)
                {"qc": lambda: qcheck(), "qk": lambda: qk(x), "sm": lambda: softmax(), "pv": lambda: pv(x)}[k]()
                done.add((k, x)); budget -= cost

        for i in range(pre):
            issue(loads[i])
        work()
        self.e2_dma_setup()
        a(f"""v_lshlrev_b32 v19, 5, v1
            s_lshl_b32 s51, {sH}, 1
            s_add_u32 s51, s51, {sB}
            s_lshl_b32 s51, s51, 9
            s_add_u32 s51, s51, {QA}""")
        for i in range(pre, len(loads)):
            if i >= D:
                a(f"s_waitcnt vmcnt({D - 1})")
            if loads[i][0] == "V":
                assert ("qk", loads[i][1] >> 2) in done, (loads[i], done)
            issue(loads[i])
            run(i - D, 2)
        n = len(loads)
        while items:
            need_pos = items[0][2]
            a(f"s_waitcnt vmcnt({n - 1 - need_pos})")
            run(need_pos, 1)
        self.stamp(6)
        a("s_branch L_afin")

    def a_final(self):
        a = self.a
        a("L_afin:\ns_nop 2")
        for i in range(4):
            a(f"v_permlane32_swap_b32 v{52 + i}, v{56 + i}")
        for i in range(4):
            a(f"v_add_f32 v{52 + i}, v{52 + i}, v{56 + i}")
        a(f"""v_lshlrev_b32 v7, 5, v1
            v_lshl_add_u32 v7, v2, 3, v7
            v_permlane16_swap_b32 v52, v54
            v_permlane16_swap_b32 v53, v55
            s_lshl_b32 s33, {sW}, 9
            s_add_u32 s33, s33, {RED}
            v_add_u32 v7, s33, v7
            v_add_f32 v52, v52, v54
            v_add_f32 v53, v53, v55
            ds_write_b64 v7, v[52:53]
            s_waitcnt lgkmcnt(0)
            s_barrier
            s_cmp_lg_u32 {sW}, 0
            s_cbranch_scc1 L_e2
            v_mov_b32 v10, {LSA}
            ds_read_b128 v[28:31], v10
            ds_read_b128 v[12:15], v10 offset:16
            s_lshl_b32 s33, {sH}, 3
            s_add_u32 s33, s33, {sJ}
            s_lshl_b32 s33, s33, 9
            s_add_u32 s33, s33, {H4A}
            s_waitcnt lgkmcnt(0)
            v_pk_add_f32 v[28:29], v[28:29], v[30:31]
            v_pk_add_f32 v[12:13], v[12:13], v[14:15]
            v_pk_add_f32 v[28:29], v[28:29], v[12:13]
            v_add_f32 v61, v28, v29""".replace("L_e2", "L_stageE2"))
        self.red_publish(32, 512, "v16", "s33", "v60", "v61")

    def e2(self):
        a = self.a
        a("L_stageE2:")
        self.stamp(12)
        a(f"""s_load_dwordx2 s[28:29], s[0:1], 88
            v_lshrrev_b32 v9, 2, v1
            v_lshlrev_b32 v7, 10, v2
            v_lshl_add_u32 v7, v9, 7, v7
            v_and_b32 v10, 3, v0
            v_lshl_add_u32 v7, v10, 3, v7
            v_lshrrev_b32 v9, 1, v9
            v_and_b32 v8, 1, v2
            v_lshl_or_b32 v9, v8, 1, v9
            s_and_b32 s33, {sW}, 3
            v_xor_b32 v9, s33, v9
            v_lshl_add_u32 v7, v9, 5, v7
            s_cmp_lt_u32 {sW}, 4
            s_mov_b32 s36, {E2B[1]}
            s_cmov_b32 s36, {E2B[0]}
            s_mov_b32 s49, {H4B}
            s_cmov_b32 s49, {H4A}
            s_mov_b32 s53, 0x00330033
            s_cmov_b32 s53, 0x00770077
            v_add_u32 v7, s36, v7
            s_lshl_b32 s36, {sH}, 12
            s_add_u32 s49, s49, s36
            v_lshlrev_b32 v14, 9, v1
            v_lshl_add_u32 v14, v2, 5, v14
            s_mov_b32 s30, 4096
            s_mov_b32 s31, 0x20000""")
        for k in range(32):
            a(f"v_mov_b32 v{176 + k}, {NEGBIG if k == 1 else 0:#x}")
        a(f"""v_lshlrev_b32 v15, 12, v2
            v_lshl_add_u32 v15, v1, 3, v15
            s_lshl_b32 s50, {sJ}, 3
            s_add_u32 s50, s50, {sW}
            s_lshl_b32 s50, s50, 13
            s_lshl_b32 s36, {sH}, 7
            s_add_u32 s50, s50, s36
            s_add_u32 s50, s50, {H5}
            v_mov_b32 v213, {sTAG}
            s_waitcnt vmcnt(0) lgkmcnt(0)
            s_barrier""")
        for s in range(4):
            for p in range(2):
                a(f"ds_read_b64_tr_b16 {vr(160 + 4 * s + 2 * p, 2)}, v7 offset:{4096 * s + 512 * p}")
        self.stamp(13)
        a("s_mov_b32 exec_lo, s53\ns_mov_b32 exec_hi, s53")
        self.gather_rows(176, "v14", "s49")
        a("s_mov_b64 exec, -1\ns_waitcnt lgkmcnt(0)")
        self.stamp(14)
        for s in range(4):
            c = "0" if s == 0 else "v[208:211]"
            a(f"v_mfma_f32_16x16x32_bf16 v[208:211], {vr(178 + 8 * s, 4)}, {vr(160 + 4 * s, 4)}, {c}")
        a(f"""v_max_f32_dpp v8, v177, v177 quad_perm:[1,0,3,2] {FULL}
            v_max_f32_dpp v8, v8, v8 quad_perm:[2,3,0,1] {FULL}
            v_sub_f32 v8, v177, v8
            v_exp_f32 v8, v8
            v_mul_f32 v9, v8, v183
            v_add_f32_dpp v9, v9, v9 quad_perm:[1,0,3,2] {FULL}
            v_add_f32_dpp v9, v9, v9 quad_perm:[2,3,0,1] {FULL}
            v_rcp_f32 v9, v9
            v_mul_f32 v8, v8, v9""")
        for r in range(3):
            op = "v_mul_f32_dpp" if r == 0 else "v_fmac_f32_dpp"
            a(f"{op} v212, v8, v{208 + r} row_newbcast:{r} row_mask:0x1 bank_mask:0xf")
            a(f"{op} v212, v8, v{208 + r} row_newbcast:{4 + r} row_mask:0x2 bank_mask:0xf")
        self.exec64(0xffffffff, 0)
        a(f"buffer_store_dwordx2 v[212:213], v15, {SRDW}, s50 offen sc1")
        a("s_mov_b64 exec, -1")
        self.stamp(15)
        a(f"s_cmp_lg_u32 {sW}, 7\ns_cbranch_scc1 L_done")
        a(f"""v_lshrrev_b32 v7, 2, v0
            v_lshlrev_b32 v7, 7, v7
            v_and_b32 v8, 3, v0
            v_lshl_add_u32 v7, v8, 4, v7
            s_lshl_b32 s33, {sJ}, 4
            s_lshr_b32 s36, {sH}, 1
            s_add_u32 s33, s33, s36
            s_lshl_b32 s33, s33, 12
            s_and_b32 s38, {sH}, 1
            s_lshl_b32 s39, s38, 6
            s_add_u32 s33, s33, s39
            s_add_u32 s33, s33, {H5}
            s_and_b32 s36, s36, 1
            s_lshl_b32 s36, s36, 11
            s_lshr_b32 s39, {sH}, 4
            s_lshl_b32 s39, s39, 10
            s_add_u32 s36, s36, s39
            s_lshl_b32 s39, {sJ}, 7
            s_add_u32 s36, s36, s39
            s_bfe_u32 s39, {sH}, 0x20002
            s_lshl_b32 s39, s39, 5
            s_add_u32 s36, s36, s39
            s_lshl_b32 s39, s38, 4
            s_add_u32 s36, s36, s39
            v_lshlrev_b32 v13, 2, v0
            s_mov_b32 s37, {SPIN}
            L_fp:
            buffer_load_dwordx4 v[20:23], v7, {SRDW}, s33 offen sc1
            buffer_load_dwordx4 v[24:27], v7, {SRDW}, s33 offen offset:2048 sc1
            s_sub_u32 s37, s37, 1
            s_waitcnt vmcnt(0)
            s_cbranch_scc1 L_fok
            v_bitop3_b32 v8, v21, v23, {sTAG} bitop3:0x7e
            v_bitop3_b32 v9, v25, v27, {sTAG} bitop3:0x7e
            v_or_b32 v8, v8, v9
            v_cmp_ne_u32 vcc, 0, v8
            s_cbranch_vccnz L_fp
            L_fok:
            v_add_f32 v8, v20, v24
            v_add_f32 v9, v22, v26""")
        self.stamp(16)
        for sh in (4, 8):
            for r in (8, 9):
                a(f"v_add_f32_dpp v{r}, v{r}, v{r} row_ror:{sh} {FULL}")
        a("""v_permlane32_swap_b32 v8, v9
            v_add_f32 v8, v8, v9
            v_mov_b32 v9, v8
            v_permlane16_swap_b32 v8, v9
            v_add_f32 v8, v8, v9
            v_mov_b32 v9, v8
            v_permlane32_swap_b32 v8, v9
            v_cvt_pk_bf16_f32 v8, v8, v9
            s_mov_b64 exec, 15""")
        a(f"buffer_store_dword v8, v13, {SRDX}, s36 offen")
        a(f"""s_or_b32 s33, {sH}, {sJ}
            s_cbranch_scc1 L_done
            s_mov_b64 exec, 1
            buffer_store_dword v213, off, {SRDW}, 0 offset:{EPOCH} sc1
            L_done:""")
        if self.calib:
            a(f"""L_cal:
                s_memrealtime s[98:99]
                s_waitcnt lgkmcnt(0)
                s_sub_u32 s98, s98, s96
                s_cmp_lt_u32 s98, {self.calib * 100}
                s_cbranch_scc1 L_cal""")
        if self.dbg:
            a("s_mov_b64 exec, -1")
            self.stamp(17)
            a(f"""s_getreg_b32 s33, hwreg(HW_REG_XCC_ID)
                v_writelane_b32 v63, s33, 31
                s_lshl_b32 s33, s2, 3
                s_add_u32 s33, s33, {sW}
                s_lshl_b32 s33, s33, 7
                s_add_u32 s33, s33, {STAMP}
                v_lshlrev_b32 v7, 2, v0""")
            self.exec64(0xffffffff, 0)
            a(f"buffer_store_dword v63, v7, {SRDW}, s33 offen")

    def role_b(self):
        a = self.a
        D = self.depth
        QAR, FR, O, S2, S3, PF, S = 64, 128, 160, 192, 224, 32, 48
        a("L_roleB:")
        a(f"""s_load_dwordx2 s[16:17], s[0:1], 72
            s_mov_b32 s18, 0x400000
            s_mov_b32 s19, 0x20000""")
        for i in range(8):
            a(f"s_waitcnt vmcnt({D - 1})\ns_add_u32 m0, s44, {dest(i) + 16384}\ns_nop 0")
            a(f"buffer_load_dwordx4 v{3 + (i & 1)}, {SRD0}, s43 offen nt lds\ns_add_u32 s43, s43, 8192")
        self.stamp(1)

        def stage(reg, i):
            a(f"buffer_load_dwordx4 {vr(reg + 4 * i, 4)}, v{3 + (i & 1)}, {SRD0}, s43 offen nt\ns_add_u32 s43, s43, 8192")

        a(f"""s_and_b32 s54, {sW}, 3
            s_lshr_b32 s55, {sW}, 2
            v_and_b32 v7, 3, v1
            v_lshlrev_b32 v7, 2, v7
            v_lshrrev_b32 v8, 2, v1
            v_or_b32 v7, v7, v8
            v_lshlrev_b32 v7, 4, v7
            v_lshl_add_u32 v7, v2, 8, v7
            v_lshl_add_u32 v7, v1, 10, v7
            s_lshl_b32 s33, s54, 15
            v_add_u32 v28, s33, v7
            v_lshlrev_b32 v7, 4, v1
            v_lshl_add_u32 v7, v2, 8, v7
            v_lshl_add_u32 v7, v1, 10, v7
            s_lshl_b32 s33, s55, 14
            s_add_u32 s33, s33, {AUX}
            v_add_u32 v29, s33, v7
            v_lshrrev_b32 v9, 1, v2
            v_and_b32 v10, 1, v2
            v_bfe_u32 v11, v0, 1, 1
            v_lshl_or_b32 v11, v10, 1, v11
            s_lshl_b32 s33, {sW}, 3
            v_or_b32 v11, s33, v11
            v_lshlrev_b32 v12, 2, v8
            v_lshl_or_b32 v12, v9, 1, v12
            v_xor_b32 v11, v11, v12
            v_lshlrev_b32 v11, 4, v11
            v_lshl_add_u32 v12, v9, 3, v8
            v_lshl_add_u32 v11, v12, 10, v11
            v_and_b32 v12, 1, v0
            v_lshl_add_u32 v20, v12, 3, v11
            v_xor_b32 v21, 16, v20
            v_add_u32 v21, 4096, v21
            v_xor_b32 v22, 64, v20
            v_xor_b32 v23, 64, v21""")
        for k in range(4):
            a(f"v_add_u32 v{24 + k}, 65536, v{20 + k}")
        a(f"""s_lshl_b32 s33, s55, 8
            s_add_u32 s33, s33, {MX}
            v_lshl_add_u32 v30, v1, 4, s33
            s_lshl_b32 s33, s54, 2
            v_add_u32 v31, s33, v30
            v_and_b32 v7, 31, v0
            v_lshlrev_b32 v52, 4, v7
            v_add_u32 v52, {MX}, v52
            v_mul_u32_u24 v53, 144, v7
            v_lshl_add_u32 v53, v9, 4, v53
            v_add_u32 v53, {PB}, v53
            v_mul_u32_u24 v54, 144, v1
            v_lshl_add_u32 v54, v2, 3, v54
            s_mul_i32 s33, s55, {16 * 144}
            s_lshl_b32 s36, s54, 5
            s_add_u32 s33, s33, s36
            s_add_u32 s33, s33, {PB}
            v_add_u32 v54, s33, v54
            v_add_u32 v55, s44, v16
            v_add_u32 v56, 65536, v55
            v_mov_b32 v57, {NEGBIG:#x}
            v_mov_b32 v58, {NEGBIG:#x}
            v_mov_b32 v59, 0
            s_mov_b32 s52, {SCALE:#x}""")
        for k in range(32):
            a(f"v_mov_b32 v{O + k}, 0")
        for i in range(8):
            a(f"s_waitcnt vmcnt({D - 1})")
            stage(S2, i)
        self.stamp(2)
        a(f"""s_lshl_b32 s33, {sW}, 7
            s_add_u32 s33, s33, {F2}
            s_add_u32 s34, s12, s33
            s_addc_u32 s35, s13, 0
            s_lshl_b32 s49, {sB}, 15
            s_lshl_b32 s36, {sW}, 12
            s_add_u32 s49, s49, s36
            s_add_u32 s49, s49, {QABS}
            s_add_u32 s50, s36, {AUX}
            s_lshl_b32 s33, s54, 6
            v_xor_b32 v12, s33, v16
            v_xor_b32 v13, 16, v12
            v_xor_b32 v14, 32, v12
            v_xor_b32 v15, 48, v12
            s_waitcnt lgkmcnt(0)
            s_add_u32 {sTAG}, {sTAG}, 1
            s_mov_b32 s37, {SPIN}
            L_h2:
            s_load_dwordx8 s[64:71], s[34:35], 0 glc
            s_sub_u32 s37, s37, 1
            s_waitcnt lgkmcnt(0)
            s_cbranch_scc1 L_h2ok""")
        for k in range(8):
            a(f"s_cmp_lg_u32 s{64 + k}, {sTAG}\ns_cbranch_scc1 L_h2")
        a("L_h2ok:")
        self.stamp(3)
        for i in range(4):
            a(f"s_add_u32 m0, s50, {1024 * i}\ns_nop 0")
            a(f"buffer_load_dwordx4 v{12 + i}, {SRDW}, s49 offen sc1 lds\ns_add_u32 s49, s49, 1024")
        for i in range(4):
            a(f"s_waitcnt vmcnt({D + 1})")
            stage(S3, i)
        a("s_waitcnt vmcnt(4)\ns_barrier")
        self.stamp(4)
        for s in range(16):
            a(f"v_xor_b32 v7, {s << 4}, v29\nds_read_b128 {vr(QAR + 4 * s, 4)}, v7")
        a("s_waitcnt lgkmcnt(0)\ns_barrier")

        def put(reg, sig):
            for i in range(8):
                d = dest(i) + 16384 * sig
                a(f"ds_write_b128 v{55 + (d >> 16)}, {vr(reg + 4 * i, 4)} offset:{d & 0xffff}")

        def step(t, after_c):
            sig = t & 1
            def rd(s):
                a(f"v_xor_b32 v7, {s << 4}, v28\nds_read_b128 {vr(FR + 4 * (s & 7), 4)}, v7 offset:{16384 * sig}")
            for s in range(8):
                rd(s)
            for s in range(16):
                a(f"s_waitcnt lgkmcnt({7 if s <= 8 else s - 1})")
                c = "0" if s == 0 else vr(S, 4)
                a(f"v_mfma_f32_16x16x32_bf16 {vr(S, 4)}, {vr(FR + 4 * (s & 7), 4)}, {vr(QAR + 4 * s, 4)}, {c}")
                if s < 8:
                    rd(s + 8)
                else:
                    blk, tt = (s - 8) >> 2, (s - 8) & 3
                    for p in range(2):
                        ar = 20 + 4 * (tt >> 1) + 2 * blk + p
                        a(f"ds_read_b64_tr_b16 {vr(FR + 4 * (s - 8) + 2 * p, 2)}, v{ar} offset:{((2 * tt + sig) * 16384) & 0xffff}")
            a(f"v_max3_f32 v7, v{S}, v{S + 1}, v{S + 2}\nv_max_f32 v7, v7, v{S + 3}")
            for sw in ("v_permlane16_swap_b32", "v_permlane32_swap_b32"):
                a(f"v_mov_b32 v8, v7\n{sw} v8, v7\nv_max_f32 v7, v7, v8")
            a(f"""v_mul_f32 v7, s52, v7
                ds_write_b32 v31, v7
                s_waitcnt lgkmcnt(0)
                s_barrier
                ds_read_b128 v[8:11], v30
                ds_read_b128 v[12:15], v52
                s_waitcnt lgkmcnt(1)
                v_max3_f32 v8, v8, v9, v10
                v_max3_f32 v8, v8, v11, v57
                v_sub_f32 v9, v57, v8
                v_mov_b32 v57, v8""")
            for r in range(4):
                a(f"v_fma_f32 v{S + r}, v{S + r}, s52, -v8")
            for r in range(4):
                a(f"v_exp_f32 v{S + r}, v{S + r}")
            a(f"""v_exp_f32 v9, v9
                v_cvt_pk_bf16_f32 v10, v{S}, v{S + 1}
                v_cvt_pk_bf16_f32 v11, v{S + 2}, v{S + 3}
                ds_write_b64 v54, v[10:11]
                s_waitcnt lgkmcnt(1)
                v_max3_f32 v12, v12, v13, v14
                v_max3_f32 v12, v12, v15, v58
                v_sub_f32 v14, v58, v12
                v_exp_f32 v14, v14
                v_mov_b32 v58, v12
                v_fma_f32 v59, v59, v9, v{S}
                v_add_f32 v{S + 1}, v{S + 1}, v{S + 2}
                v_add_f32 v59, v59, v{S + 3}
                v_add_f32 v59, v59, v{S + 1}
                s_waitcnt lgkmcnt(0)
                s_barrier""")
            for tt in range(4):
                a(f"ds_read_b128 {vr(PF + 4 * tt, 4)}, v53 offset:{32 * tt}")
            if t > 0:
                for k in range(16):
                    a(f"v_pk_mul_f32 {vr(O + 2 * k, 2)}, {vr(O + 2 * k, 2)}, v[14:15] op_sel_hi:[1,0]")
            for tt in range(4):
                a(f"s_waitcnt lgkmcnt({3 - tt})")
                for blk in range(2):
                    a(f"v_mfma_f32_32x32x16_bf16 {vr(O + 16 * blk, 16)}, {vr(FR + 4 * (4 * blk + tt), 4)}, {vr(PF + 4 * tt, 4)}, {vr(O + 16 * blk, 16)}")
            after_c()
            self.stamp(5 + t)

        def after0():
            put(S2, 0)
            a("s_waitcnt lgkmcnt(0)")
            for i in range(4, 8):
                a(f"s_waitcnt vmcnt({D - 1})")
                stage(S3, i)

        def uv(i):
            a(f"s_add_u32 m0, s44, {dest(i)}\ns_nop 0")
            a(f"buffer_load_dwordx4 v{5 + (i & 1)}, {SRDK}, s45 offen nt lds\ns_add_u32 s45, s45, 32768")

        def after2():
            a(f"""v_lshlrev_b32 v7, 1, v2
                v_xor_b32 v7, v7, v1
                v_lshlrev_b32 v7, 4, v7
                v_lshl_add_u32 v5, v2, 13, v7
                v_xor_b32 v6, 128, v5
                s_lshl_b32 s45, {sB}, 21
                s_lshl_b32 s36, {sW}, 18
                s_add_u32 s45, s45, s36
                s_lshl_b32 s36, {sH}, 8
                s_add_u32 s45, s45, s36
                s_waitcnt vmcnt(0)""")
            put(S3, 1)
            for i in range(4):
                uv(i)
            a("s_waitcnt lgkmcnt(0)\ns_barrier")

        step(0, after0)
        step(1, lambda: None)
        step(2, after2)
        step(3, lambda: None)

        for sw in ("v_permlane16_swap_b32", "v_permlane32_swap_b32"):
            a(f"v_mov_b32 v8, v59\n{sw} v8, v59\nv_add_f32 v59, v59, v8")
        a(f"""ds_write_b32 v31, v59 offset:{LS - MX}
            s_lshl_b32 s33, s55, 15
            s_lshl_b32 s36, s54, 12
            s_add_u32 s33, s33, s36
            s_add_u32 s33, s33, {PART[0]}
            v_and_b32 v7, 31, v0
            v_and_b32 v8, 7, v0
            v_lshlrev_b32 v9, 4, v8
            v_lshl_add_u32 v9, v7, 7, v9
            v_lshrrev_b32 v10, 5, v0
            v_lshl_add_u32 v9, v10, 3, v9
            v_add_u32 v9, s33, v9
            v_lshrrev_b32 v10, 3, v0
            v_xor_b32 v11, v8, v10
            v_lshlrev_b32 v11, 4, v11
            v_lshl_add_u32 v11, v10, 7, v11
            v_add_u32 v11, s33, v11
            v_lshlrev_b32 v12, 4, v8
            v_lshl_add_u32 v12, v10, 16, v12
            s_lshl_b32 s49, s55, 15
            s_lshl_b32 s36, {sB}, 14
            s_add_u32 s49, s49, s36
            s_lshl_b32 s36, {sH}, 9
            s_add_u32 s49, s49, s36
            s_lshl_b32 s36, s54, 7
            s_add_u32 s49, s49, s36
            s_add_u32 s49, s49, {OP}""")
        for k in range(8):
            a(f"v_cvt_pk_bf16_f32 v{FR + 2 * k}, v{O + 4 * k}, v{O + 4 * k + 1}")
            a(f"v_cvt_pk_bf16_f32 v{FR + 2 * k + 1}, v{O + 4 * k + 2}, v{O + 4 * k + 3}")
            a(f"v_xor_b32 v7, {16 * k}, v9\nds_write_b64 v7, {vr(FR + 2 * k, 2)}")
        a("s_waitcnt lgkmcnt(0)")
        for i in range(4):
            a(f"ds_read_b128 {vr(FR + 16 + 4 * i, 4)}, v11 offset:{1024 * i}")
        for i in range(4):
            a(f"s_waitcnt lgkmcnt({3 - i})")
            a(f"buffer_store_dwordx4 {vr(FR + 16 + 4 * i, 4)}, v12, {SRDW}, s49 offen sc1\ns_add_u32 s49, s49, {8 * 65536}")
        a("s_waitcnt vmcnt(0)\ns_barrier")
        a(f"""s_cmp_lg_u32 {sW}, 0
            s_cbranch_scc1 L_nost
            ds_read_b128 v[8:11], v52 offset:{LS - MX}
            v_lshlrev_b32 v7, 10, v0
            s_lshl_b32 s33, {sB}, 9
            s_lshl_b32 s36, {sH}, 4
            s_add_u32 s33, s33, s36
            s_add_u32 s33, s33, {ST}
            v_mov_b32 v12, v58
            v_mov_b32 v14, {sTAG}
            v_mov_b32 v15, {sTAG}
            s_waitcnt lgkmcnt(0)
            v_add_f32 v8, v8, v9
            v_add_f32 v10, v10, v11
            v_add_f32 v13, v8, v10""")
        self.exec64(0xffffffff, 0)
        a(f"buffer_store_dwordx4 v[12:15], v7, {SRDW}, s33 offen sc1\ns_mov_b64 exec, -1\nL_nost:")
        self.stamp(9)
        for i in range(4, 8):
            uv(i)
        self.e2_dma_setup()
        a(f"""s_lshl_b32 s33, {sH}, 10
            s_lshl_b32 s36, {sW}, 7
            s_add_u32 s33, s33, s36
            s_add_u32 s33, s33, {ST}
            s_add_u32 s34, s12, s33
            s_addc_u32 s35, s13, 0
            v_lshrrev_b32 v7, 5, v0
            s_and_b32 s33, {sW}, 1
            s_lshl_b32 s33, s33, 2
            v_or_b32 v7, s33, v7
            v_lshlrev_b32 v7, 5, v7
            v_xor_b32 v12, v7, v16
            v_xor_b32 v13, 64, v12
            s_lshl_b32 s49, {sH}, 16
            s_lshl_b32 s36, {sB}, 15
            s_add_u32 s49, s49, s36
            s_lshl_b32 s36, {sW}, 12
            s_add_u32 s49, s49, s36
            s_add_u32 s49, s49, {OP}
            s_lshl_b32 s50, s55, 15
            s_lshl_b32 s36, s54, 12
            s_add_u32 s50, s50, s36
            s_add_u32 s50, s50, {PART[0]}
            s_mov_b32 s37, {SPIN}
            L_h3:
            s_load_dwordx16 s[64:79], s[34:35], 0 glc
            s_load_dwordx16 s[80:95], s[34:35], 64 glc
            s_sub_u32 s37, s37, 1
            s_waitcnt lgkmcnt(0)
            s_cbranch_scc1 L_h3ok""")
        for k in range(8):
            a(f"s_cmp_lg_u32 s{66 + 4 * k}, {sTAG}\ns_cbranch_scc1 L_h3")
        a("L_h3ok:")
        self.stamp(10)
        for i in range(4):
            a(f"s_add_u32 m0, s50, {1024 * i}\ns_nop 0")
            a(f"buffer_load_dwordx4 v{12 + (i & 1)}, {SRDW}, s49 offen sc1 lds\ns_add_u32 s49, s49, 1024")
        for k in range(8):
            a(f"v_writelane_b32 v8, s{64 + 4 * k}, {k}\nv_writelane_b32 v9, s{65 + 4 * k}, {k}")
        a(f"""s_lshl_b32 s33, {sW}, 6
            s_add_u32 s33, s33, {SM}
            v_lshl_add_u32 v7, v0, 3, s33
            s_mov_b64 exec, 0xff
            ds_write_b64 v7, v[8:9]
            s_mov_b64 exec, -1""")
        a(f"""v_lshrrev_b32 v8, 2, v1
            v_lshrrev_b32 v9, 1, v2
            v_and_b32 v10, 1, v2
            v_lshlrev_b32 v7, 15, v9
            v_lshl_add_u32 v7, v10, 13, v7
            v_lshl_add_u32 v7, v8, 8, v7
            v_and_b32 v11, 3, v0
            v_lshl_add_u32 v7, v11, 3, v7
            v_lshl_or_b32 v10, v10, 2, v8
            v_lshl_add_u32 v7, v10, 5, v7
            v_add_u32 v20, s44, v7
            v_add_u32 v21, 65536, v20
            s_waitcnt vmcnt(4)""")
        for db in range(8):
            for p in range(2):
                a(f"v_xor_b32 v7, {32 * db}, v{20 + p}\nds_read_b64_tr_b16 {vr(QAR + 4 * db + 2 * p, 2)}, v7")
        for i in range(4):
            self.e2_dma(i)
        a(f"""s_waitcnt lgkmcnt(0)
            s_barrier
            v_lshlrev_b32 v7, 3, v0
            v_add_u32 v7, {SM}, v7
            ds_read_b64 v[12:13], v7
            s_lshl_b32 s33, {sW}, 7
            s_add_u32 s33, s33, {WB}
            v_lshl_add_u32 v22, v0, 1, s33
            v_and_b32 v7, 1, v0
            v_lshlrev_b32 v7, 6, v7
            v_lshl_add_u32 v7, v2, 4, v7
            v_add_u32 v23, s33, v7
            s_waitcnt lgkmcnt(0)
            v_mov_b32 v14, v12""")

        def red32(op, r, t):
            for sh in (1, 2, 4, 8):
                a(f"{op}_dpp v{r}, v{r}, v{r} row_ror:{sh} {FULL}")
            a(f"v_mov_b32 v{t}, v{r}\nv_permlane16_swap_b32 v{t}, v{r}\n{op} v{r}, v{r}, v{t}")
        red32("v_max_f32", 14, 15)
        a("v_sub_f32 v12, v12, v14\nv_exp_f32 v12, v12\nv_mul_f32 v13, v12, v13")
        red32("v_add_f32", 13, 15)
        a(f"""v_rcp_f32 v13, v13
            v_mul_f32 v12, v12, v13
            v_cvt_pk_bf16_f32 v12, v12, v12
            ds_write_b16 v22, v12
            s_waitcnt lgkmcnt(0)
            ds_read_b128 v[12:15], v23
            v_lshlrev_b32 v7, 12, v2
            v_lshl_add_u32 v7, v8, 9, v7
            v_lshl_add_u32 v7, v11, 3, v7
            s_lshl_b32 s33, {sW}, 1
            v_xor_b32 v10, s33, v10
            v_lshl_add_u32 v7, v10, 5, v7
            v_add_u32 v24, {PART[0]}, v7
            v_xor_b32 v25, 32, v24
            v_and_b32 v7, 1, v0
            v_lshlrev_b32 v7, 9, v7
            v_lshl_add_u32 v7, v2, 4, v7
            s_add_u32 s33, s44, {RED}
            v_add_u32 v26, s33, v7
            v_cmp_eq_u32 vcc, 0, v1
            v_cmp_eq_u32 s[38:39], 1, v1
            s_waitcnt lgkmcnt(0)""")
        for k in range(4):
            a(f"v_cndmask_b32 v{32 + k}, 0, v{12 + k}, vcc")
            a(f"v_cndmask_b32 v{36 + k}, 0, v{12 + k}, s[38:39]")
        a("s_waitcnt vmcnt(4)\ns_barrier")
        self.stamp(11)
        for s in range(2):
            for cb in range(2):
                for p in range(2):
                    a(f"ds_read_b64_tr_b16 {vr(FR + 8 * s + 4 * cb + 2 * p, 2)}, v{24 + cb} offset:{32768 * s + 2048 * p}")
        for s in range(2):
            for cb in range(2):
                a(f"s_waitcnt lgkmcnt({6 - 4 * s - 2 * cb})")
                c = "0" if s == 0 else vr(40 + 4 * cb, 4)
                a(f"v_mfma_f32_16x16x32_bf16 {vr(40 + 4 * cb, 4)}, {vr(FR + 8 * s + 4 * cb, 4)}, {vr(32 + 4 * s, 4)}, {c}")
        for k in range(4):
            a(f"v_cvt_pk_bf16_f32 v{48 + k}, v{40 + 2 * k}, v{41 + 2 * k}")
        for db in range(8):
            a(f"v_mfma_f32_16x16x32_bf16 {vr(O + 4 * db, 4)}, {vr(QAR + 4 * db, 4)}, v[48:51], 0")
        self.exec64(0x00030003)
        for db in range(8):
            a(f"ds_write_b128 v26, {vr(O + 4 * db, 4)} offset:{64 * db}")
        a(f"""s_mov_b64 exec, -1
            s_waitcnt lgkmcnt(0)
            s_barrier
            s_cmp_lg_u32 {sW}, 0
            s_cbranch_scc1 L_stageE2
            v_lshrrev_b32 v14, 5, v0
            v_mul_u32_u24 v14, 1536, v14
            v_add_u32 v14, v14, v16
            s_lshl_b32 s33, {sH}, 12
            s_lshl_b32 s36, {sB}, 9
            s_add_u32 s33, s33, s36
            s_add_u32 s33, s33, {H4B}
            v_mov_b32 v60, 0
            v_mov_b32 v61, 0.5""")
        self.red_publish(64, 1024, "v14", "s33", "v60", "v61")
        a("s_branch L_stageE2")

    def build(self):
        a = self.a
        self.entry()
        self.p1()
        a("L_rolePU:")
        self.p2()
        self.role_b()
        self.a_final()
        self.e2()
        a("L_end:\ns_endpgm")
        body = a.finalize()
        return f"""{HEADER}; Generated by a script; one persistent launch, 256 workgroups of 8 waves (one per CU).
; @launch grid=(256,1,1) block=(512,1,1) lds={LDS_BYTES}
.amdgcn_target "amdgcn-amd-amdhsa--gfx950"
.text
.globl {NAME}
.p2align 8
.type {NAME},@function
{NAME}:
{body}.section .rodata,"a"
.p2align 6
.amdhsa_kernel {NAME}
  .amdhsa_next_free_vgpr 256
  .amdhsa_next_free_sgpr 102
  .amdhsa_accum_offset 256
  .amdhsa_group_segment_fixed_size 0
  .amdhsa_kernarg_size 112
  .amdhsa_user_sgpr_count 2
  .amdhsa_user_sgpr_kernarg_segment_ptr 1
  .amdhsa_system_sgpr_workgroup_id_x 1
  .amdhsa_float_denorm_mode_32 3
.end_amdhsa_kernel
"""


if __name__ == "__main__":
    out = sys.argv[1]
    kw = eval("dict(" + (sys.argv[2] if len(sys.argv) > 2 else "") + ")")
    open(out, "w").write(Gen(**kw).build())
```

```python
import sys
from asmlib import Asm

NAME = "concat_heads__sliding_block_cached__compressed_kv_cla__decode_kernel"
HEADER = open("concat_heads__sliding_block_cached__compressed_kv_cla__decode.s.ref").read().split("; Override launch")[0]

EPOCH = 0
QA = 0x10000
QB = 0x20000
CNT = 0xa00000
QABS = 0x30000
F2 = 0x40000
ST = 0x50000
H4A = 0x60000
H4B = 0x80000
OP = 0x100000
H5 = 0x400000
STAMP = 0x800000
WS_SIZE = 0x1000000

AUX = 131072
RED = AUX
MXA = AUX + 8192
LSA = AUX + 8192 + 64
MX = AUX + 9216
LS = AUX + 9216 + 512
PB = AUX + 10240
SM = AUX + 28672
WB = AUX + 29696
ARR = AUX + 9216
QL = AUX + 10240
HI = AUX + 20480
HS = AUX + 26624
E2B = (81920, 114688)
PART = (16384, 49152)
LDS_BYTES = 163840

SCALE = 0x3e0293ee
NEGBIG = 0xff7fffff
SPIN = 1 << 18

sW, sH, sJ, sB, sT, sTAG = "s3", "s4", "s5", "s6", "s7", "s32"
SRD0, SRDW, SRDK, SRDV, SRDE, SRDX = "s[8:11]", "s[12:15]", "s[16:19]", "s[20:23]", "s[24:27]", "s[28:31]"
FULL = "row_mask:0xf bank_mask:0xf"


def vr(a, n):
    return f"v[{a}:{a + n - 1}]"


def dest(i):
    return (i >> 1) * 32768 + (i & 1) * 8192


class Gen:
    def __init__(self, dbg=False, depth=4, rot=True, pu_pre=0, calib=0, bdepth=5, nstatic=12, xfl='', pf=True, diag='', xpos=5):
        self.a = Asm()
        self.dbg, self.depth, self.rot, self.pu_pre = dbg, depth, rot, pu_pre
        self.calib, self.bdepth, self.nstatic = calib, bdepth, nstatic
        self.uid = 0
        self.xpos = xpos
        self.xfl, self.pf, self.diag = xfl, pf, diag

    def lab(self, p):
        self.uid += 1
        return f"L_{p}_{self.uid}"

    def stamp(self, k):
        if self.dbg:
            self.a(f"s_memrealtime s[98:99]\ns_waitcnt lgkmcnt(0)\nv_writelane_b32 v63, s98, {k}")

    def raw(self, k):
        if self.dbg:
            self.a(f"s_memrealtime s[{46 + 2 * k}:{47 + 2 * k}]")

    def x_frag(self, r):
        for b in range(2):
            for g in range(4):
                for e in range(4):
                    self.a(f"v_writelane_b32 v{r + e}, s{64 + 16 * b + 4 * g + e}, {16 * g + b}")

    def exec64(self, lo, hi=None):
        hi = lo if hi is None else hi
        self.a(f"s_mov_b32 exec_lo, {lo:#x}\ns_mov_b32 exec_hi, {hi:#x}")

    def entry(self):
        a = self.a
        a("s_cmp_ge_u32 s2, 256\ns_cbranch_scc1 L_end")
        if self.dbg or self.calib:
            a("s_memrealtime s[96:97]")
        a(f"s_lshr_b32 {sH}, s2, 3")
        if self.rot:
            a(f"s_add_u32 {sJ}, s2, {sH}\ns_and_b32 {sJ}, {sJ}, 7")
        else:
            a(f"s_and_b32 {sJ}, s2, 7")
        a(f"""s_and_b32 {sT}, {sJ}, 3
            s_lshl_b32 s33, {sT}, 3
            s_lshr_b32 s36, 0x30403838, s33
            s_and_b32 s36, s36, 0xff
            s_load_dwordx2 s[8:9], s[0:1], s36
            s_lshr_b32 s36, 0x30401818, s33
            s_and_b32 s36, s36, 0xff
            s_load_dwordx2 s[24:25], s[0:1], s36
            s_load_dwordx2 s[12:13], s[0:1], 104
            s_load_dwordx2 s[28:29], s[0:1], 0
            s_load_dwordx2 s[30:31], s[0:1], 40
            s_load_dwordx2 s[16:17], s[0:1], 8
            s_load_dwordx2 s[20:21], s[0:1], 16
            s_getpc_b64 s[34:35]
            L_pc:
            v_lshrrev_b32 v8, 6, v0
            s_lshr_b32 {sB}, {sJ}, 2
            v_readfirstlane_b32 {sW}, v8
            v_and_b32 v0, 63, v0
            v_and_b32 v1, 15, v0
            v_lshrrev_b32 v2, 4, v0
            v_lshlrev_b32 v16, 4, v0
            s_mov_b32 s11, 0x20000
            s_mov_b32 s10, 0x400000
            s_mov_b32 s27, 0x20000
            s_lshl_b32 s44, {sW}, 10
            s_mov_b32 s41, 65536
            s_mov_b32 s38, 64
            s_mov_b32 s39, 0
            s_mov_b32 s42, 32768
            s_cmp_eq_u32 {sT}, 3
            s_cbranch_scc1 L_e3
            s_lshl_b32 s40, {sW}, 18
            s_lshl_b32 s33, {sH}, 8
            s_add_u32 s40, s40, s33
            s_cmp_eq_u32 {sT}, 2
            s_cbranch_scc1 L_e2
            s_lshl_b32 s33, {sT}, 21
            s_add_u32 s40, s40, s33
            s_lshl_b32 s33, {sB}, 7
            s_add_u32 s40, s40, s33
            s_mov_b32 s42, 0
            v_lshrrev_b32 v9, 3, v0
            v_and_b32 v10, 7, v0
            v_and_b32 v11, 1, v2
            v_lshlrev_b32 v11, 1, v11
            s_branch L_ej
            L_e2:
            s_lshl_b32 s33, {sB}, 21
            s_add_u32 s40, s40, s33
            s_mov_b32 s39, 128
            v_mov_b32 v9, v2
            v_mov_b32 v10, v1
            v_mov_b32 v11, v2
            s_branch L_ej
            L_e3:
            s_lshl_b32 s40, {sB}, 23
            s_lshl_b32 s33, {sH}, 18
            s_add_u32 s40, s40, s33
            s_add_u32 s40, s40, s44
            s_mov_b32 s41, 8192
            s_mov_b32 s38, 32
            s_mov_b32 s10, 0x1000000
            s_and_b32 s33, {sW}, 3
            s_lshl_b32 s33, s33, 2
            s_lshr_b32 s36, {sW}, 2
            s_or_b32 s33, s33, s36
            v_mov_b32 v9, 0
            v_mov_b32 v10, v0
            v_mov_b32 v11, s33
            L_ej:
            v_xor_b32 v10, v10, v11
            v_lshlrev_b32 v10, 4, v10
            v_lshl_add_u32 v3, v9, 13, v10
            v_xor_b32 v4, s38, v3
            v_xor_b32 v5, s39, v3
            v_xor_b32 v6, s39, v4
            s_add_u32 s43, s40, s42
            s_mov_b32 s26, s10
            s_mov_b32 m0, s44
            s_waitcnt lgkmcnt(0)""")
        self.raw(0)
        for i in range(4):
            a(f"buffer_load_dwordx4 v{3 + i}, {SRD0}, s40 offen nt lds")
            a(f"s_add_u32 m0, s44, {dest(i + 1)}\ns_add_u32 s40, s40, s41")
        self.raw(1)
        a(f"""s_and_b32 s33, {sT}, 1
            s_lshl_b32 s33, s33, 9
            s_lshl_b32 s36, {sW}, 6
            s_add_u32 s61, s33, s36
            s_add_u32 s62, s61, 1024
            v_mov_b32 v7, {ARR}
            v_mov_b32 v8, 0
            v_mov_b32 v9, 0
            ds_write_b64 v7, v[8:9]
            s_waitcnt lgkmcnt(0)
            s_barrier
            s_cmp_gt_u32 {sT}, 1
            {'s_branch' if 'noX' in self.diag else 's_cbranch_scc1'} L_nox0
            s_load_dwordx16 s[64:79], s[30:31], s61
            s_load_dwordx16 s[80:95], s[30:31], s62
            L_nox0:
            s_lshl_b32 s33, {sH}, 3
            s_add_u32 s33, s33, {sW}
            s_lshl_b32 s33, s33, 7
            s_min_u32 s33, s33, L_end-L_pc-64
            s_add_u32 s36, s33, 64
            {'' if self.pf else ';'}s_load_dword s100, s[34:35], s33
            {'' if self.pf else ';'}s_load_dword s101, s[34:35], s36
            {';' if 'noEp' in self.diag else ''}s_load_dword {sTAG}, s[12:13], {EPOCH}
            s_mov_b32 s14, {WS_SIZE:#x}
            s_mov_b32 s15, 0x20000
            s_mov_b32 s18, 0x8000000
            s_mov_b32 s19, 0x20000
            s_mov_b32 s22, 0x8000000
            s_mov_b32 s23, 0x20000
            s_lshl_b32 s45, {sB}, 5
            s_add_u32 s45, s45, {sH}
            s_lshl_b32 s45, s45, 21
            s_add_u32 s45, s45, {6144 * 256}
            s_lshl_b32 s57, {sT}, 3
            s_add_u32 s57, s57, {sW}""")
        if self.dbg:
            a("v_mov_b32 v63, 0\nv_writelane_b32 v63, s96, 0")
        for i in range(4, 8):
            a(f"s_waitcnt vmcnt(3)\nbuffer_load_dwordx4 v{3 + (i & 3)}, {SRDE}, s43 offen nt lds")
            if i < 7:
                a(f"s_add_u32 m0, s44, {dest(i + 1)}")
            a("s_add_u32 s43, s43, s41")
            if i in (4, 7):
                self.raw(2 if i == 4 else 3)
            if i == self.xpos:
                a(f"s_cmp_gt_u32 {sT}, 1\n{'s_branch' if 'noX' in self.diag else 's_cbranch_scc1'} L_nox1\ns_waitcnt lgkmcnt(0)")
                self.x_frag(160)
                a("s_load_dwordx16 s[64:79], s[28:29], s61\ns_load_dwordx16 s[80:95], s[28:29], s62\nL_nox1:")
        a(f"""s_cmp_lt_u32 {sW}, 4
            s_cselect_b32 s33, 32, 80
            s_waitcnt lgkmcnt(0)
            s_add_u32 {sTAG}, {sTAG}, 1""")
        if self.dbg:
            self.stamp(22)
            for k in range(4):
                a(f"v_writelane_b32 v63, s{46 + 2 * k}, {18 + k}")
        a(f"""s_load_dwordx2 s[24:25], s[0:1], s33
            s_mov_b32 s26, 0x400000
            s_mov_b32 s52, {SCALE:#x}
            s_cmp_eq_u32 {sT}, 3
            s_cbranch_scc1 L_roleB
            s_cmp_eq_u32 {sT}, 2
            s_cbranch_scc1 L_rolePU""")

    def red_publish(self, lanes, base, stride, voff, soff, xe, xo, weighted=False):
        a = self.a
        if lanes == 32:
            self.exec64(0xffffffff, 0)
        if weighted:
            a(f"v_mov_b32 v10, {MXA}")
            for k in range(4):
                a(f"ds_read_b128 {vr(192 + 4 * k, 4)}, v10 offset:{16 * k}")
        a(f"v_add_u32 v7, {base}, v16")
        for k in range(8):
            a(f"ds_read_b128 {vr(208 + 4 * k, 4)}, v7 offset:{k * stride}")
        a("v_and_b32 v8, 1, v0\nv_cmp_eq_u32 vcc, 1, v8")
        a(f"v_mov_b32 v11, {sTAG}")
        if weighted:
            a("""s_waitcnt lgkmcnt(8)
                v_max3_f32 v60, v192, v194, v196
                v_max3_f32 v9, v198, v200, v202
                v_max3_f32 v60, v60, v204, v206
                v_max_f32 v60, v60, v9""")
            for k in range(8):
                a(f"v_sub_f32 v{192 + 2 * k}, v{192 + 2 * k}, v60")
            for k in range(8):
                a(f"v_exp_f32 v{192 + 2 * k}, v{192 + 2 * k}")
            a("v_mul_f32 v61, v192, v193")
            for k in range(1, 8):
                a(f"v_fmac_f32 v61, v{192 + 2 * k}, v{193 + 2 * k}")
            a("s_waitcnt lgkmcnt(0)")
            a("v_pk_mul_f32 v[208:209], v[208:209], v[192:193] op_sel_hi:[1,0]")
            a("v_pk_mul_f32 v[210:211], v[210:211], v[192:193] op_sel_hi:[1,0]")
            for k in range(1, 8):
                a(f"v_pk_fma_f32 v[208:209], {vr(208 + 4 * k, 2)}, {vr(192 + 2 * k, 2)}, v[208:209] op_sel_hi:[1,0,1]")
                a(f"v_pk_fma_f32 v[210:211], {vr(210 + 4 * k, 2)}, {vr(192 + 2 * k, 2)}, v[210:211] op_sel_hi:[1,0,1]")
        else:
            for k in range(1, 8):
                a(f"s_waitcnt lgkmcnt({7 - k})")
                a(f"v_pk_add_f32 v[208:209], v[208:209], {vr(208 + 4 * k, 2)}")
                a(f"v_pk_add_f32 v[210:211], v[210:211], {vr(210 + 4 * k, 2)}")
        a(f"v_cndmask_b32 v10, {xe}, {xo}, vcc")
        a("v_cvt_pk_bf16_f32 v8, v208, v209\nv_cvt_pk_bf16_f32 v9, v210, v211")
        a(f"buffer_store_dwordx4 v[8:11], {voff}, {SRDW}, {soff} offen sc1\ns_nop 1")
        if lanes == 32:
            a("s_mov_b64 exec, -1")

    def sum_halves(self, r):
        self.a(f"""v_lshlrev_b32 v8, 16, v{r}
            v_and_b32 v9, 0xffff0000, v{r}
            v_lshlrev_b32 v10, 16, v{r + 1}
            v_and_b32 v11, 0xffff0000, v{r + 1}
            v_permlane32_swap_b32 v8, v10
            v_permlane32_swap_b32 v9, v11
            v_add_f32 v8, v8, v10
            v_add_f32 v9, v9, v11
            v_cvt_pk_bf16_f32 v{r}, v8, v9""")

    def poll_rows(self, voff, soff):
        a = self.a
        lp, ok = self.lab("gp"), self.lab("gok")
        a(f"""s_mov_b32 s37, {SPIN}
            {lp}:
            buffer_load_dwordx4 v[176:179], {voff}, {SRDW}, {soff} offen sc1
            s_sub_u32 s37, s37, 1
            s_waitcnt vmcnt(0)
            s_cbranch_scc1 {ok}
            v_cmp_ne_u32 vcc, {sTAG}, v179
            s_cbranch_vccnz {lp}
            {ok}:""")

    def e2_dma_setup(self):
        self.a(f"""v_lshrrev_b32 v9, 3, v0
            v_and_b32 v10, 7, v0
            v_and_b32 v11, 1, v2
            v_lshlrev_b32 v11, 1, v11
            v_xor_b32 v10, v10, v11
            v_lshlrev_b32 v10, 4, v10
            v_lshl_add_u32 v17, v9, 10, v10
            v_xor_b32 v18, 64, v17
            s_and_b32 s33, {sW}, 3
            s_lshl_b32 s46, {sH}, 17
            s_lshl_b32 s36, s33, 15
            s_add_u32 s46, s46, s36
            s_lshl_b32 s36, {sJ}, 7
            s_add_u32 s46, s46, s36
            s_cmp_lt_u32 {sW}, 4
            s_mov_b32 s47, {E2B[1]}
            s_cmov_b32 s47, {E2B[0]}
            s_lshl_b32 s36, s33, 12
            s_add_u32 s47, s47, s36""")

    def e2_dma(self, i):
        self.a(f"""s_add_u32 m0, s47, {1024 * i}
            s_nop 0
            buffer_load_dwordx4 v{17 + (i & 1)}, {SRDE}, s46 offen nt lds
            s_add_u32 s46, s46, 8192""")

    KV = 64

    def a_addr(self):
        self.a("s_lshl_b32 s48, s57, 11\ns_add_u32 s48, s48, s45")

    def a_load(self, ph, k, cnt):
        srd = SRDK if k < 2 else SRDV
        self.a(f"s_waitcnt vmcnt({cnt})")
        self.a(f"buffer_load_dwordx4 {vr(self.KV + 16 * ph + 4 * k, 4)}, v16, {srd}, s48 offen offset:{1024 * (k & 1)} nt")

    def a_qk(self, ph, last=False):
        a = self.a
        K = self.KV + 16 * ph
        a("v_mov_b32 v28, 0\nv_mov_b32 v29, 0")
        for e in range(4):
            for u in range(2):
                a(f"v_dot2c_f32_bf16 v{28 + u}, v{K + 4 * u + e}, v{24 + e}")
        a("v_add_f32_dpp v30, v28, v28 row_ror:8 row_mask:0xf bank_mask:0x3")
        a("v_add_f32_dpp v30, v29, v29 row_ror:8 row_mask:0xf bank_mask:0xc")
        for m in ("row_half_mirror", "quad_perm:[1,0,3,2]", "quad_perm:[2,3,0,1]"):
            a(f"v_add_f32_dpp v30, v30, v30 {m} {FULL}")

    def a_soft(self, last=False):
        a = self.a
        a(f"v_max_f32_dpp v31, v30, v30 row_ror:8 {FULL}\nv_mul_f32 v31, s52, v31\nv_max_f32 v31, v31, v60")
        if last:
            for sw in ("v_permlane16_swap_b32", "v_permlane32_swap_b32"):
                a(f"v_mov_b32 v32, v31\n{sw} v32, v31\nv_max_f32 v31, v31, v32")
        a("""v_sub_f32 v32, v60, v31
            v_fma_f32 v30, v30, s52, -v31
            v_exp_f32 v32, v32
            v_exp_f32 v30, v30
            v_mov_b32 v60, v31
            v_fma_f32 v61, v61, v32, v30
            v_cvt_pk_bf16_f32 v34, v30, 0
            v_cvt_pk_bf16_f32 v35, 0, v30""")
        for k in range(4):
            a(f"v_pk_mul_f32 {vr(52 + 2 * k, 2)}, {vr(52 + 2 * k, 2)}, v[32:33] op_sel_hi:[1,0]")

    def a_pv(self, ph, u):
        V = self.KV + 16 * ph + 8 + 4 * u
        for e in range(4):
            self.a(f"v_dot2c_f32_bf16_dpp v{52 + 2 * e}, v34, v{V + e} row_newbcast:{8 * u} {FULL}")
            self.a(f"v_dot2c_f32_bf16_dpp v{53 + 2 * e}, v35, v{V + e} row_newbcast:{8 * u} {FULL}")

    def p1(self):
        a = self.a
        D = self.depth
        a(f"""v_lshrrev_b32 v7, 1, v2
            v_lshlrev_b32 v7, 15, v7
            v_and_b32 v8, 1, v2
            v_lshl_add_u32 v7, v8, 13, v7
            v_add_u32 v7, s44, v7
            v_lshrrev_b32 v9, 2, v1
            v_lshl_add_u32 v7, v9, 7, v7
            v_and_b32 v10, 3, v0
            v_lshl_add_u32 v7, v10, 3, v7
            v_lshrrev_b32 v9, 1, v9
            v_lshl_or_b32 v9, v8, 1, v9
            v_lshl_add_u32 v40, v9, 5, v7""")
        for cb in range(1, 4):
            a(f"v_xor_b32 v{40 + cb}, {32 * cb}, v40")
        a(f"""v_and_b32 v7, 1, v0
            v_lshlrev_b32 v7, 8, v7
            v_lshl_add_u32 v7, v2, 4, v7
            s_lshl_b32 s33, {sW}, 9
            s_add_u32 s33, s33, {RED}
            v_add_u32 v13, s33, v7
            v_mov_b32 v44, {ARR}
            v_mov_b32 v45, 1""")

        def half(t, between):
            if 'noP1' in self.diag:
                return
            for cb in range(4):
                f = 168 + 4 * cb
                a(f"ds_read_b64_tr_b16 {vr(f, 2)}, v{40 + cb}")
                a(f"ds_read_b64_tr_b16 {vr(f + 2, 2)}, v{40 + cb} offset:512")
            for cb in range(4):
                a(f"s_waitcnt lgkmcnt({6 - 2 * cb})")
                a(f"v_mfma_f32_16x16x32_bf16 {vr(184 + 4 * cb, 4)}, {vr(168 + 4 * cb, 4)}, {vr(160 + 4 * t, 4)}, 0")
            self.exec64(0x00030003)
            for cb in range(4):
                a(f"ds_write_b128 v13, {vr(184 + 4 * cb, 4)} offset:{64 * cb + 4096 * t}")
            skip = self.lab("p1s")
            a(f"""s_mov_b64 exec, 1
                ds_add_rtn_u32 v9, v44, v45 offset:{4 * t}
                s_mov_b64 exec, -1""")
            between()
            a(f"""s_waitcnt lgkmcnt(0)
                v_readfirstlane_b32 s33, v9
                s_cmp_lg_u32 s33, 7
                s_cbranch_scc1 {skip}""")
            a(f"""v_lshlrev_b32 v14, 10, v2
                v_lshl_add_u32 v14, v1, 4, v14
                s_lshl_b32 s33, {sH}, 11
                s_lshl_b32 s36, {sT}, 9
                s_add_u32 s33, s33, s36
                s_lshl_b32 s36, {sB}, 8
                s_add_u32 s33, s33, s36
                s_add_u32 s33, s33, {QA if t else QB}""")
            self.red_publish(32, RED + 4096 * t, 512, "v14", "s33", "v14", "v14")
            a(f"{skip}:")

        self.a_addr()
        a("s_waitcnt lgkmcnt(0)")
        self.stamp(1)
        half(0, lambda: None)
        self.stamp(2)
        self.a_load(0, 0, D - 1)
        self.x_frag(164)
        for cb in range(4):
            a(f"v_add_u32 v{40 + cb}, 65536, v{40 + cb}")
        for k in range(1, 4):
            self.a_load(0, k, D - 1)
        a("s_waitcnt vmcnt(4)")
        half(1, lambda: None)
        self.stamp(3)
        a("s_branch L_acommon")

    def p2(self):
        a = self.a
        D, pre = self.depth, self.pu_pre
        self.a_addr()
        for k in range(pre):
            self.a_load(0, k, D - 1)
        a(f"""v_lshrrev_b32 v7, 3, v1
            v_lshlrev_b32 v7, 15, v7
            v_bfe_u32 v8, v1, 2, 1
            v_lshl_add_u32 v7, v8, 13, v7
            v_and_b32 v8, 3, v1
            v_lshl_add_u32 v7, v8, 8, v7
            v_add_u32 v7, s44, v7
            v_xor_b32 v8, v2, v1
            v_lshl_add_u32 v216, v8, 4, v7""")
        for s in range(1, 4):
            a(f"v_xor_b32 v{216 + s}, {64 * s}, v216")
        for s in range(4):
            a(f"v_add_u32 v{220 + s}, 65536, v{216 + s}")
        a(f"""v_and_b32 v13, 31, v0
            v_lshlrev_b32 v13, 3, v13
            v_lshrrev_b32 v7, 5, v0
            v_lshl_add_u32 v13, v7, 2, v13
            s_lshl_b32 s33, {sW}, 8
            s_add_u32 s33, s33, {HI}
            v_add_u32 v13, s33, v13
            v_and_b32 v14, 1, v0
            v_lshlrev_b32 v14, 8, v14
            v_lshl_add_u32 v14, v2, 4, v14
            v_add_u32 v14, {HI}, v14
            s_lshl_b32 s49, {sH}, 11
            s_add_u32 s49, s49, s44
            s_add_u32 s49, s49, {QB}
            v_lshlrev_b32 v15, 15, v1
            v_lshl_add_u32 v15, v2, 4, v15
            s_lshl_b32 s50, {sH}, 10
            s_lshl_b32 s36, {sB}, 9
            s_add_u32 s50, s50, s36
            s_lshl_b32 s36, {sW}, 6
            s_add_u32 s50, s50, s36
            s_add_u32 s50, s50, {QABS}
            s_lshr_b32 s53, {sH}, 2
            s_lshl_b32 s53, s53, 7
            s_and_b32 s36, {sH}, 3
            s_lshl_b32 s36, s36, 3
            s_add_u32 s53, s53, s36
            s_lshl_b32 s36, {sB}, 2
            s_add_u32 s53, s53, s36
            s_add_u32 s53, s53, {F2}
            v_mov_b32 v36, {sTAG}
            v_lshlrev_b32 v37, 10, v0""")
        if 'noP2' in self.diag:
            a("s_branch L_p2end")
        skip = self.lab("h1s")
        a(f"s_cmp_gt_u32 {sW}, 1\ns_cbranch_scc1 {skip}")
        self.poll_rows("v16", "s49")
        self.sum_halves(176)
        a(f"ds_write_b32 v13, v176\n{skip}:\ns_waitcnt vmcnt({pre})")
        self.stamp(1)
        for blk in range(2):
            for s in range(4):
                a(f"ds_read_b128 {vr(224 + 16 * blk + 4 * s, 4)}, v{216 + 4 * blk + s}")
        a("s_waitcnt lgkmcnt(0)\ns_barrier")
        self.stamp(2)
        for s in range(4):
            a(f"ds_read_b128 {vr(176 + 4 * s, 4)}, v14 offset:{64 * s}")
        for s in range(4):
            a(f"s_waitcnt lgkmcnt({3 - s})")
            for blk in range(2):
                c = "0" if s == 0 else vr(208 + 4 * blk, 4)
                a(f"v_mfma_f32_16x16x32_bf16 {vr(208 + 4 * blk, 4)}, {vr(224 + 16 * blk + 4 * s, 4)}, {vr(176 + 4 * s, 4)}, {c}")
        for k in range(4):
            a(f"v_cvt_pk_bf16_f32 v{168 + k}, v{208 + 2 * k}, v{209 + 2 * k}")
        self.exec64(0x00030003)
        a(f"buffer_store_dwordx4 v[168:171], v15, {SRDW}, s50 offen sc1")
        a("s_mov_b64 exec, -1\ns_waitcnt vmcnt(0)\ns_barrier")
        skip = self.lab("p2s")
        a(f"""s_cmp_lg_u32 {sW}, 0
            s_cbranch_scc1 {skip}
            buffer_store_dword v36, v37, {SRDW}, s53 offen sc1
            {skip}:""")
        a("L_p2end:")
        self.stamp(3)
        for k in range(pre, 4):
            self.a_load(0, k, D - 1)

    def a_common(self):
        a = self.a
        D = self.depth
        a("L_acommon:")
        self.e2_dma_setup()
        a(f"""s_lshl_b32 s51, {sH}, 1
            s_add_u32 s51, s51, {sB}
            s_lshl_b32 s51, s51, 10
            s_add_u32 s51, s51, {QA}
            v_and_b32 v36, 31, v0
            v_lshlrev_b32 v36, 3, v36
            v_lshrrev_b32 v7, 5, v0
            v_lshl_add_u32 v36, v7, 2, v36
            s_lshl_b32 s33, {sW}, 8
            s_add_u32 s33, s33, {QL}
            v_add_u32 v36, s33, v36
            v_lshl_add_u32 v37, v1, 4, s33
            v_mov_b32 v60, {NEGBIG:#x}
            v_mov_b32 v61, 0
            v_lshlrev_b32 v38, 5, v1
            v_lshl_add_u32 v38, v2, 3, v38
            s_lshl_b32 s33, {sW}, 9
            s_add_u32 s33, s33, {RED}
            v_add_u32 v38, s33, v38
            s_lshl_b32 s33, {sW}, 3
            s_add_u32 s33, s33, {MXA}
            v_mov_b32 v39, s33""")
        for k in range(8):
            a(f"v_mov_b32 v{52 + k}, 0")
        for ph in (1, 2):
            a("s_add_u32 s57, s57, 24")
            self.a_addr()
            for k in range(4):
                self.a_load(ph, k, D - 1)
        qld = f"buffer_load_dwordx4 v[20:23], v16, {SRDW}, s51 offen sc1"
        a(qld)
        a("s_add_u32 s57, s57, 24")
        self.a_addr()
        for k in range(4):
            self.a_load(3, k, D if k < D else D - 1)
        a(f"""s_add_u32 s57, s57, 24
            s_mov_b32 s37, {SPIN}
            s_waitcnt vmcnt(4)
            {'s_branch L_qok' if 'noP1' in self.diag else ''}
            L_qlp:
            v_cmp_ne_u32 vcc, {sTAG}, v23
            s_cbranch_vccz L_qok
            s_sub_u32 s37, s37, 1
            s_cbranch_scc1 L_qok
            {qld}
            s_waitcnt vmcnt(0)
            s_branch L_qlp
            L_qok:""")
        self.sum_halves(20)
        a("ds_write_b32 v36, v20\ns_waitcnt lgkmcnt(0)\nds_read_b128 v[24:27], v37\ns_waitcnt lgkmcnt(0)")
        self.stamp(4)
        self.a_qk(0); self.a_soft(); self.a_pv(0, 0); self.a_pv(0, 1)
        a("L_aloop:")
        for ph in range(4):
            a(f"s_cmp_ge_u32 s57, 256\ns_cbranch_scc1 L_drain{ph}")
            self.a_addr()
            a("s_add_u32 s57, s57, 24")
            q = (ph + 1) & 3
            self.a_load(ph, 0, D - 1); self.a_qk(q)
            self.a_load(ph, 1, D - 1); self.a_soft()
            self.a_load(ph, 2, D - 1); self.a_pv(q, 0)
            self.a_load(ph, 3, D - 1); self.a_pv(q, 1)
        a("s_branch L_aloop")
        for ph in range(4):
            a(f"L_drain{ph}:")
            self.stamp(5)
            q1, q2, q3 = (ph + 1) & 3, (ph + 2) & 3, (ph + 3) & 3
            self.a_qk(q1); self.a_soft(); self.a_pv(q1, 0); self.a_pv(q1, 1)
            a("s_waitcnt vmcnt(4)")
            self.a_qk(q2); self.a_soft(); self.a_pv(q2, 0); self.a_pv(q2, 1)
            a("s_waitcnt vmcnt(2)")
            self.e2_dma(0); self.e2_dma(1)
            self.a_qk(q3); self.a_soft(last=True)
            a(f"v_add_f32_dpp v61, v61, v61 row_ror:8 {FULL}")
            for sw in ("v_permlane16_swap_b32", "v_permlane32_swap_b32"):
                a(f"v_mov_b32 v32, v61\n{sw} v32, v61\nv_add_f32 v61, v61, v32")
            a("ds_write_b64 v39, v[60:61]\ns_waitcnt vmcnt(3)")
            self.e2_dma(2)
            self.a_pv(q3, 0)
            a("s_waitcnt vmcnt(3)")
            self.e2_dma(3)
            self.a_pv(q3, 1)
            if ph < 3:
                a("s_branch L_afin")
        a("L_afin:\ns_nop 2")
        self.stamp(6)
        for i in range(4):
            a(f"v_permlane32_swap_b32 v{52 + i}, v{56 + i}")
        for i in range(4):
            a(f"v_add_f32 v{52 + i}, v{52 + i}, v{56 + i}")
        a(f"""v_permlane16_swap_b32 v52, v54
            v_permlane16_swap_b32 v53, v55
            v_add_f32 v52, v52, v54
            v_add_f32 v53, v53, v55
            ds_write_b64 v38, v[52:53]
            s_lshl_b32 s33, {sH}, 3
            s_add_u32 s33, s33, {sJ}
            s_lshl_b32 s33, s33, 9
            s_add_u32 s33, s33, {H4A}
            s_waitcnt lgkmcnt(0)
            s_barrier
            s_cmp_lg_u32 {sW}, 3
            s_cbranch_scc1 L_stageE2""")
        self.red_publish(32, RED, 512, "v16", "s33", "v60", "v61", weighted=True)

    def e2(self):
        a = self.a
        a("L_stageE2:")
        self.stamp(12)
        if self.diag:
            a("s_branch L_done")
        a(f"""s_load_dwordx2 s[28:29], s[0:1], 88
            v_lshrrev_b32 v9, 2, v1
            v_lshlrev_b32 v7, 10, v2
            v_lshl_add_u32 v7, v9, 7, v7
            v_and_b32 v10, 3, v0
            v_lshl_add_u32 v7, v10, 3, v7
            v_lshrrev_b32 v9, 1, v9
            v_and_b32 v8, 1, v2
            v_lshl_or_b32 v9, v8, 1, v9
            s_and_b32 s33, {sW}, 3
            v_xor_b32 v9, s33, v9
            v_lshl_add_u32 v7, v9, 5, v7
            s_cmp_lt_u32 {sW}, 4
            s_mov_b32 s36, {E2B[1]}
            s_cmov_b32 s36, {E2B[0]}
            s_mov_b32 s49, {H4B}
            s_cmov_b32 s49, {H4A}
            v_add_u32 v7, s36, v7
            s_lshl_b32 s36, {sH}, 12
            s_add_u32 s49, s49, s36
            s_lshl_b32 s36, s33, 9
            s_add_u32 s49, s49, s36
            v_lshrrev_b32 v9, 5, v0
            v_mul_u32_u24 v14, 1536, v9
            v_add_u32 v14, v14, v16
            s_and_b32 s36, {sW}, 4
            s_lshl_b32 s36, s36, 1
            s_add_u32 s38, s36, s33
            v_lshl_add_u32 v9, v9, 2, s38
            v_and_b32 v10, 31, v0
            v_mul_u32_u24 v12, 272, v9
            v_lshl_add_u32 v12, v10, 3, v12
            v_add_u32 v12, {HI}, v12
            v_lshlrev_b32 v13, 7, v9
            v_lshl_add_u32 v13, v10, 2, v13
            v_add_u32 v13, {HS}, v13
            v_and_b32 v9, 7, v0
            v_add_u32 v9, s36, v9
            v_mul_u32_u24 v20, 272, v9
            v_lshl_add_u32 v20, v2, 4, v20
            v_add_u32 v20, {HI}, v20
            v_lshlrev_b32 v21, 7, v9
            v_add_u32 v21, {HS}, v21
            v_mov_b32 v176, 0
            v_mov_b32 v177, 0
            v_and_b32 v10, 1, v0
            v_cmp_eq_u32 vcc, 0, v10
            v_mov_b32 v9, {NEGBIG:#x}
            v_cndmask_b32 v178, 0, v9, vcc
            s_mov_b32 s30, 4096
            s_mov_b32 s31, 0x20000""")
        a(f"""v_lshlrev_b32 v15, 12, v2
            v_lshl_add_u32 v15, v1, 3, v15
            s_lshl_b32 s50, {sJ}, 3
            s_add_u32 s50, s50, {sW}
            s_lshl_b32 s50, s50, 13
            s_lshl_b32 s36, {sH}, 7
            s_add_u32 s50, s50, s36
            s_add_u32 s50, s50, {H5}
            v_mov_b32 v213, {sTAG}
            s_lshr_b32 s33, 0x37, {sW}
            s_and_b32 s33, s33, 1
            s_cbranch_scc0 L_nopoll""")
        self.poll_rows("v14", "s49")
        a("""L_nopoll:
            ds_write_b64 v12, v[176:177]
            ds_write_b32 v13, v178
            s_waitcnt vmcnt(0) lgkmcnt(0)
            s_barrier""")
        self.stamp(14)
        a("ds_read_b64 v[22:23], v21")
        for s in range(4):
            a(f"ds_read_b128 {vr(176 + 4 * s, 4)}, v20 offset:{64 * s}")
            for p in range(2):
                a(f"ds_read_b64_tr_b16 {vr(160 + 4 * s + 2 * p, 2)}, v7 offset:{4096 * s + 512 * p}")
        for s in range(4):
            c = "0" if s == 0 else "v[208:211]"
            a(f"s_waitcnt lgkmcnt({9 - 3 * s})")
            a(f"v_mfma_f32_16x16x32_bf16 v[208:211], {vr(176 + 4 * s, 4)}, {vr(160 + 4 * s, 4)}, {c}")
        a(f"""v_max_f32_dpp v8, v22, v22 quad_perm:[1,0,3,2] {FULL}
            v_max_f32_dpp v8, v8, v8 quad_perm:[2,3,0,1] {FULL}
            v_sub_f32 v8, v22, v8
            v_exp_f32 v8, v8
            v_mul_f32 v9, v8, v23
            v_add_f32_dpp v9, v9, v9 quad_perm:[1,0,3,2] {FULL}
            v_add_f32_dpp v9, v9, v9 quad_perm:[2,3,0,1] {FULL}
            v_rcp_f32 v9, v9
            v_mul_f32 v8, v8, v9""")
        for r in range(3):
            op = "v_mul_f32_dpp" if r == 0 else "v_fmac_f32_dpp"
            a(f"{op} v212, v8, v{208 + r} row_newbcast:{r} row_mask:0x1 bank_mask:0xf")
            a(f"{op} v212, v8, v{208 + r} row_newbcast:{4 + r} row_mask:0x2 bank_mask:0xf")
        self.exec64(0xffffffff, 0)
        a(f"buffer_store_dwordx2 v[212:213], v15, {SRDW}, s50 offen sc1")
        a("s_mov_b64 exec, -1")
        self.stamp(15)
        a(f"s_cmp_lg_u32 {sW}, 7\ns_cbranch_scc1 L_done")
        a(f"""v_lshrrev_b32 v7, 2, v0
            v_lshlrev_b32 v7, 7, v7
            v_and_b32 v8, 3, v0
            v_lshl_add_u32 v7, v8, 4, v7
            s_lshl_b32 s33, {sJ}, 4
            s_lshr_b32 s36, {sH}, 1
            s_add_u32 s33, s33, s36
            s_lshl_b32 s33, s33, 12
            s_and_b32 s38, {sH}, 1
            s_lshl_b32 s39, s38, 6
            s_add_u32 s33, s33, s39
            s_add_u32 s33, s33, {H5}
            s_and_b32 s36, s36, 1
            s_lshl_b32 s36, s36, 11
            s_lshr_b32 s39, {sH}, 4
            s_lshl_b32 s39, s39, 10
            s_add_u32 s36, s36, s39
            s_lshl_b32 s39, {sJ}, 7
            s_add_u32 s36, s36, s39
            s_bfe_u32 s39, {sH}, 0x20002
            s_lshl_b32 s39, s39, 5
            s_add_u32 s36, s36, s39
            s_lshl_b32 s39, s38, 4
            s_add_u32 s36, s36, s39
            v_lshlrev_b32 v13, 2, v0
            s_mov_b32 s37, {SPIN}
            L_fp:
            buffer_load_dwordx4 v[20:23], v7, {SRDW}, s33 offen sc1
            buffer_load_dwordx4 v[24:27], v7, {SRDW}, s33 offen offset:2048 sc1
            s_sub_u32 s37, s37, 1
            s_waitcnt vmcnt(0)
            s_cbranch_scc1 L_fok
            v_bitop3_b32 v8, v21, v23, {sTAG} bitop3:0x7e
            v_bitop3_b32 v9, v25, v27, {sTAG} bitop3:0x7e
            v_or_b32 v8, v8, v9
            v_cmp_ne_u32 vcc, 0, v8
            s_cbranch_vccnz L_fp
            L_fok:
            v_add_f32 v8, v20, v24
            v_add_f32 v9, v22, v26""")
        self.stamp(16)
        for sh in (4, 8):
            for r in (8, 9):
                a(f"v_add_f32_dpp v{r}, v{r}, v{r} row_ror:{sh} {FULL}")
        a("""v_permlane32_swap_b32 v8, v9
            v_add_f32 v8, v8, v9
            v_mov_b32 v9, v8
            v_permlane16_swap_b32 v8, v9
            v_add_f32 v8, v8, v9
            v_mov_b32 v9, v8
            v_permlane32_swap_b32 v8, v9
            v_cvt_pk_bf16_f32 v8, v8, v9
            s_mov_b64 exec, 15""")
        a(f"buffer_store_dword v8, v13, {SRDX}, s36 offen")
        a(f"""s_or_b32 s33, {sH}, {sJ}
            s_cbranch_scc1 L_done
            s_mov_b64 exec, 1
            buffer_store_dword v213, off, {SRDW}, 0 offset:{EPOCH} sc1
            L_done:""")
        if self.calib:
            a(f"""L_cal:
                s_memrealtime s[98:99]
                s_waitcnt lgkmcnt(0)
                s_sub_u32 s98, s98, s96
                s_cmp_lt_u32 s98, {self.calib * 100}
                s_cbranch_scc1 L_cal""")
        if self.dbg:
            a("s_mov_b64 exec, -1")
            self.stamp(17)
            a(f"""s_getreg_b32 s33, hwreg(HW_REG_XCC_ID)
                v_writelane_b32 v63, s33, 31
                s_lshl_b32 s33, s2, 3
                s_add_u32 s33, s33, {sW}
                s_lshl_b32 s33, s33, 7
                s_add_u32 s33, s33, {STAMP}
                v_lshlrev_b32 v7, 2, v0""")
            self.exec64(0xffffffff, 0)
            a(f"buffer_store_dword v63, v7, {SRDW}, s33 offen")

    def role_b(self):
        a = self.a
        D = self.bdepth
        QAR, FR, O, S2, S3, PF, S = 64, 128, 160, 192, 224, 32, 48
        a("L_roleB:")
        if 'noB' in self.diag:
            a("s_branch L_done")
        a(f"""s_load_dwordx2 s[16:17], s[0:1], 72
            s_mov_b32 s18, 0x400000
            s_mov_b32 s19, 0x20000""")
        for i in range(8):
            a(f"s_waitcnt vmcnt({D - 1})\ns_add_u32 m0, s44, {dest(i) + 16384}\ns_nop 0")
            a(f"buffer_load_dwordx4 v{3 + (i & 1)}, {SRD0}, s43 offen nt lds\ns_add_u32 s43, s43, 8192")
        self.stamp(1)

        def stage(reg, i):
            a(f"buffer_load_dwordx4 {vr(reg + 4 * i, 4)}, v{3 + (i & 1)}, {SRD0}, s43 offen nt\ns_add_u32 s43, s43, 8192")

        a(f"""s_and_b32 s54, {sW}, 3
            s_lshr_b32 s55, {sW}, 2
            v_and_b32 v7, 3, v1
            v_lshlrev_b32 v7, 2, v7
            v_lshrrev_b32 v8, 2, v1
            v_or_b32 v7, v7, v8
            v_lshlrev_b32 v7, 4, v7
            v_lshl_add_u32 v7, v2, 8, v7
            v_lshl_add_u32 v7, v1, 10, v7
            s_lshl_b32 s33, s54, 15
            v_add_u32 v28, s33, v7
            v_lshlrev_b32 v7, 4, v1
            v_lshl_add_u32 v7, v2, 8, v7
            v_lshl_add_u32 v7, v1, 10, v7
            s_lshl_b32 s33, s55, 14
            s_add_u32 s33, s33, {AUX}
            v_add_u32 v29, s33, v7
            v_lshrrev_b32 v9, 1, v2
            v_and_b32 v10, 1, v2
            v_bfe_u32 v11, v0, 1, 1
            v_lshl_or_b32 v11, v10, 1, v11
            s_lshl_b32 s33, {sW}, 3
            v_or_b32 v11, s33, v11
            v_lshlrev_b32 v12, 2, v8
            v_lshl_or_b32 v12, v9, 1, v12
            v_xor_b32 v11, v11, v12
            v_lshlrev_b32 v11, 4, v11
            v_lshl_add_u32 v12, v9, 3, v8
            v_lshl_add_u32 v11, v12, 10, v11
            v_and_b32 v12, 1, v0
            v_lshl_add_u32 v20, v12, 3, v11
            v_xor_b32 v21, 16, v20
            v_add_u32 v21, 4096, v21
            v_xor_b32 v22, 64, v20
            v_xor_b32 v23, 64, v21""")
        for k in range(4):
            a(f"v_add_u32 v{24 + k}, 65536, v{20 + k}")
        a(f"""s_lshl_b32 s33, s55, 8
            s_add_u32 s33, s33, {MX}
            v_lshl_add_u32 v30, v1, 4, s33
            s_lshl_b32 s33, s54, 2
            v_add_u32 v31, s33, v30
            v_and_b32 v7, 31, v0
            v_lshlrev_b32 v56, 4, v7
            v_add_u32 v56, {MX}, v56
            v_mul_u32_u24 v60, 272, v7
            v_lshl_add_u32 v60, v9, 4, v60
            v_add_u32 v60, {PB}, v60
            v_mul_u32_u24 v61, 272, v1
            v_lshl_add_u32 v61, v2, 3, v61
            s_mul_i32 s33, s55, {16 * 272}
            s_lshl_b32 s36, s54, 6
            s_add_u32 s33, s33, s36
            s_add_u32 s33, s33, {PB}
            v_add_u32 v61, s33, v61
            v_add_u32 v19, s44, v16
            v_add_u32 v62, 65536, v19
            v_mov_b32 v57, {NEGBIG:#x}
            v_mov_b32 v58, {NEGBIG:#x}
            v_mov_b32 v59, 0
            v_lshlrev_b32 v7, 1, v2
            v_xor_b32 v7, v7, v1
            v_lshlrev_b32 v7, 4, v7
            v_lshl_add_u32 v5, v2, 13, v7
            v_xor_b32 v6, 128, v5
            s_lshl_b32 s45, {sB}, 21
            s_lshl_b32 s36, {sW}, 18
            s_add_u32 s45, s45, s36
            s_lshl_b32 s36, {sH}, 8
            s_add_u32 s45, s45, s36""")
        for k in range(32):
            a(f"v_mov_b32 v{O + k}, 0")
        for i in range(8):
            a(f"s_waitcnt vmcnt({D - 1})")
            stage(S2, i)
        self.stamp(2)
        if 'Bstop2' in self.diag:
            a("s_branch L_done")
        if 'Bload' in self.diag:
            for i in range(8):
                a(f"s_waitcnt vmcnt({D - 1})")
                stage(S3, i)
            self.stamp(3)
            for i in range(8):
                a(f"s_waitcnt vmcnt({D - 1})")
                a(f"buffer_load_dwordx4 {vr(S2 + 4 * i, 4)}, v{5 + (i & 1)}, {SRDK}, s45 offen nt\ns_add_u32 s45, s45, 32768")
            a("s_waitcnt vmcnt(0)\ns_branch L_done")
        a(f"""s_lshl_b32 s33, {sH}, 1
            s_add_u32 s33, s33, {sB}
            s_lshl_b32 s33, s33, 3
            s_add_u32 s33, s33, {sW}
            s_lshl_b32 s33, s33, 7
            s_add_u32 s33, s33, {F2}
            s_add_u32 s34, s12, s33
            s_addc_u32 s35, s13, 0
            s_lshl_b32 s49, {sB}, 15
            s_lshl_b32 s36, {sW}, 12
            s_add_u32 s49, s49, s36
            s_add_u32 s49, s49, {QABS}
            s_add_u32 s50, s36, {AUX}
            s_lshl_b32 s33, s54, 6
            v_xor_b32 v12, s33, v16
            v_xor_b32 v13, 16, v12
            v_xor_b32 v14, 32, v12
            v_xor_b32 v15, 48, v12
            s_mov_b32 s37, {SPIN}
            L_h2:
            s_load_dwordx8 s[64:71], s[34:35], 0 glc
            s_sub_u32 s37, s37, 1
            s_waitcnt lgkmcnt(0)
            s_cbranch_scc1 L_h2ok""")
        for k in range(8):
            a(f"s_cmp_lg_u32 s{64 + k}, {sTAG}\ns_cbranch_scc1 L_h2")
        a("L_h2ok:")
        self.stamp(3)
        for i in range(4):
            a(f"s_add_u32 m0, s50, {1024 * i}\ns_nop 0")
            a(f"buffer_load_dwordx4 v{12 + i}, {SRDW}, s49 offen sc1 lds\ns_add_u32 s49, s49, 1024")
        for i in range(4):
            a(f"s_waitcnt vmcnt({D + 1})")
            stage(S3, i)
        a("s_waitcnt vmcnt(4)\ns_barrier")
        self.stamp(4)
        for s in range(16):
            a(f"v_xor_b32 v7, {s << 4}, v29\nds_read_b128 {vr(QAR + 4 * s, 4)}, v7")
        a("s_waitcnt lgkmcnt(0)\ns_barrier")

        def put(reg, sig):
            for i in range(8):
                d = dest(i) + 16384 * sig
                a(f"ds_write_b128 v{62 if d >> 16 else 19}, {vr(reg + 4 * i, 4)} offset:{d & 0xffff}")

        def step(t, after_qk):
            def rd(r):
                if r & 1 == 0:
                    a(f"v_xor_b32 v7, {(r >> 1) << 4}, v28")
                a(f"ds_read_b128 {vr(FR + 4 * (r & 7), 4)}, v7 offset:{16384 * (r & 1)}")

            def tr(be, blk):
                for p in range(2):
                    ar = 20 + 4 * (be >> 2) + 2 * blk + p
                    a(f"ds_read_b64_tr_b16 {vr(FR + 8 * (be & 3) + 4 * blk + 2 * p, 2)}, v{ar} offset:{(be & 3) * 16384}")
            for r in range(8):
                rd(r)
            for r in range(32):
                a(f"s_waitcnt lgkmcnt({7 if r <= 24 else r - 17})")
                acc = vr(S + 4 * (r & 1), 4)
                a(f"v_mfma_f32_16x16x32_bf16 {acc}, {vr(FR + 4 * (r & 7), 4)}, {vr(QAR + 4 * (r >> 1), 4)}, {'0' if r < 2 else acc}")
                if r < 24:
                    rd(r + 8)
                else:
                    tr((r - 24) >> 1, (r - 24) & 1)
            after_qk()
            a(f"""v_max3_f32 v7, v{S}, v{S + 1}, v{S + 2}
                v_max3_f32 v8, v{S + 4}, v{S + 5}, v{S + 6}
                v_max3_f32 v7, v7, v{S + 3}, v{S + 7}
                v_max_f32 v7, v7, v8""")
            for sw in ("v_permlane16_swap_b32", "v_permlane32_swap_b32"):
                a(f"v_mov_b32 v8, v7\n{sw} v8, v7\nv_max_f32 v7, v7, v8")
            a(f"""v_mul_f32 v7, s52, v7
                ds_write_b32 v31, v7
                s_waitcnt lgkmcnt(0)
                s_barrier
                ds_read_b128 v[8:11], v30
                ds_read_b128 v[12:15], v56
                s_waitcnt lgkmcnt(1)
                v_max3_f32 v8, v8, v9, v10
                v_max3_f32 v8, v8, v11, v57
                v_sub_f32 v9, v57, v8
                v_mov_b32 v57, v8""")
            for r in range(8):
                a(f"v_fma_f32 v{S + r}, v{S + r}, s52, -v8")
            for r in range(8):
                a(f"v_exp_f32 v{S + r}, v{S + r}")
            a("v_exp_f32 v9, v9")
            for r in range(4):
                a(f"v_cvt_pk_bf16_f32 v{PF + r}, v{S + 2 * r}, v{S + 2 * r + 1}")
            a(f"""ds_write_b64 v61, {vr(PF, 2)}
                ds_write_b64 v61, {vr(PF + 2, 2)} offset:32
                s_waitcnt lgkmcnt(2)
                v_max3_f32 v12, v12, v13, v14
                v_max3_f32 v12, v12, v15, v58
                v_sub_f32 v14, v58, v12
                v_exp_f32 v14, v14
                v_mov_b32 v58, v12
                s_waitcnt lgkmcnt(0)
                s_barrier""")
            for be in range(4):
                a(f"ds_read_b128 {vr(PF + 4 * be, 4)}, v60 offset:{32 * be}")
            a(f"""v_pk_add_f32 {vr(S, 2)}, {vr(S, 2)}, {vr(S + 2, 2)}
                v_pk_add_f32 {vr(S + 4, 2)}, {vr(S + 4, 2)}, {vr(S + 6, 2)}
                v_fma_f32 v59, v59, v9, v{S}
                v_add_f32 v{S + 4}, v{S + 4}, v{S + 5}
                v_add_f32 v59, v59, v{S + 1}
                v_add_f32 v59, v59, v{S + 4}""")
            if t > 0:
                for k in range(16):
                    a(f"v_pk_mul_f32 {vr(O + 2 * k, 2)}, {vr(O + 2 * k, 2)}, v[14:15] op_sel_hi:[1,0]")
            for be in range(8):
                if be in (0, 5, 6, 7):
                    a(f"s_waitcnt lgkmcnt({ {0: 0, 5: 10, 6: 5, 7: 0}[be] })")
                if be == 7:
                    a("s_barrier")
                for blk in range(2):
                    a(f"v_mfma_f32_32x32x16_bf16 {vr(O + 16 * blk, 16)}, {vr(FR + 8 * (be & 3) + 4 * blk, 4)}, {vr(PF + 4 * (be & 3), 4)}, {vr(O + 16 * blk, 16)}")
                if be < 4:
                    if be == 3:
                        a("s_waitcnt lgkmcnt(10)")
                    a(f"ds_read_b128 {vr(PF + 4 * be, 4)}, v60 offset:{32 * (be + 4)}")
                    tr(be + 4, 0); tr(be + 4, 1)

        def uv(i):
            a(f"buffer_load_dwordx4 {vr(S2 + 4 * i, 4)}, v{5 + (i & 1)}, {SRDK}, s45 offen nt\ns_add_u32 s45, s45, 32768")

        step(0, lambda: [stage(S3, i) for i in range(4, 8)])
        self.stamp(5)
        put(S2, 0)
        a("s_waitcnt vmcnt(0)")
        self.stamp(6)
        put(S3, 1)
        a("s_waitcnt lgkmcnt(8)")
        for i in range(4):
            uv(i)
        a("s_waitcnt lgkmcnt(0)\ns_barrier")
        self.stamp(7)
        step(1, lambda: None)
        self.stamp(8)

        if 'Bstop8' in self.diag:
            a("s_branch L_done")
        for sw in ("v_permlane16_swap_b32", "v_permlane32_swap_b32"):
            a(f"v_mov_b32 v8, v59\n{sw} v8, v59\nv_add_f32 v59, v59, v8")
        a(f"""ds_write_b32 v31, v59 offset:{LS - MX}
            s_lshl_b32 s33, s55, 15
            s_lshl_b32 s36, s54, 12
            s_add_u32 s33, s33, s36
            s_add_u32 s33, s33, {PART[0]}
            v_and_b32 v7, 31, v0
            v_and_b32 v8, 7, v0
            v_lshlrev_b32 v9, 4, v8
            v_lshl_add_u32 v9, v7, 7, v9
            v_lshrrev_b32 v10, 5, v0
            v_lshl_add_u32 v9, v10, 3, v9
            v_add_u32 v9, s33, v9
            v_lshrrev_b32 v10, 3, v0
            v_xor_b32 v11, v8, v10
            v_lshlrev_b32 v11, 4, v11
            v_lshl_add_u32 v11, v10, 7, v11
            v_add_u32 v11, s33, v11
            v_lshlrev_b32 v12, 4, v8
            v_lshl_add_u32 v12, v10, 16, v12
            s_lshl_b32 s49, s55, 15
            s_lshl_b32 s36, {sB}, 14
            s_add_u32 s49, s49, s36
            s_lshl_b32 s36, {sH}, 9
            s_add_u32 s49, s49, s36
            s_lshl_b32 s36, s54, 7
            s_add_u32 s49, s49, s36
            s_add_u32 s49, s49, {OP}""")
        for k in range(8):
            a(f"v_cvt_pk_bf16_f32 v{FR + 2 * k}, v{O + 4 * k}, v{O + 4 * k + 1}")
            a(f"v_cvt_pk_bf16_f32 v{FR + 2 * k + 1}, v{O + 4 * k + 2}, v{O + 4 * k + 3}")
            a(f"v_xor_b32 v7, {16 * k}, v9\nds_write_b64 v7, {vr(FR + 2 * k, 2)}")
        a("s_waitcnt lgkmcnt(0)")
        for i in range(4):
            a(f"ds_read_b128 {vr(FR + 16 + 4 * i, 4)}, v11 offset:{1024 * i}")
        for i in range(4):
            a(f"s_waitcnt lgkmcnt({3 - i})")
            a(f"buffer_store_dwordx4 {vr(FR + 16 + 4 * i, 4)}, v12, {SRDW}, s49 offen sc1\ns_add_u32 s49, s49, {8 * 65536}")
        a("s_waitcnt vmcnt(0)\ns_barrier")
        a(f"""s_cmp_lg_u32 {sW}, 0
            s_cbranch_scc1 L_nost
            ds_read_b128 v[8:11], v56 offset:{LS - MX}
            v_lshlrev_b32 v7, 10, v0
            s_lshl_b32 s33, {sB}, 9
            s_lshl_b32 s36, {sH}, 4
            s_add_u32 s33, s33, s36
            s_add_u32 s33, s33, {ST}
            v_mov_b32 v12, v58
            v_mov_b32 v14, {sTAG}
            v_mov_b32 v15, {sTAG}
            s_waitcnt lgkmcnt(0)
            v_add_f32 v8, v8, v9
            v_add_f32 v10, v10, v11
            v_add_f32 v13, v8, v10""")
        self.exec64(0xffffffff, 0)
        a(f"buffer_store_dwordx4 v[12:15], v7, {SRDW}, s33 offen sc1\ns_mov_b64 exec, -1\nL_nost:")
        self.stamp(9)
        for i in range(4, 8):
            uv(i)
        self.e2_dma_setup()
        if 'Bstop9' in self.diag:
            a("s_branch L_done")
        a(f"""s_lshl_b32 s33, {sH}, 10
            s_lshl_b32 s36, {sW}, 7
            s_add_u32 s33, s33, s36
            s_add_u32 s33, s33, {ST}
            s_add_u32 s34, s12, s33
            s_addc_u32 s35, s13, 0
            v_lshrrev_b32 v7, 5, v0
            s_and_b32 s33, {sW}, 1
            s_lshl_b32 s33, s33, 2
            v_or_b32 v7, s33, v7
            v_lshlrev_b32 v7, 5, v7
            v_xor_b32 v12, v7, v16
            v_xor_b32 v13, 64, v12
            s_lshl_b32 s49, {sH}, 16
            s_lshl_b32 s36, {sB}, 15
            s_add_u32 s49, s49, s36
            s_lshl_b32 s36, {sW}, 12
            s_add_u32 s49, s49, s36
            s_add_u32 s49, s49, {OP}
            s_lshl_b32 s50, s55, 15
            s_lshl_b32 s36, s54, 12
            s_add_u32 s50, s50, s36
            s_add_u32 s50, s50, {PART[0]}
            s_mov_b32 s37, {SPIN}
            L_h3:
            s_load_dwordx16 s[64:79], s[34:35], 0 glc
            s_load_dwordx16 s[80:95], s[34:35], 64 glc
            s_sub_u32 s37, s37, 1
            s_waitcnt lgkmcnt(0)
            s_cbranch_scc1 L_h3ok""")
        for k in range(8):
            a(f"s_cmp_lg_u32 s{66 + 4 * k}, {sTAG}\ns_cbranch_scc1 L_h3")
        a("L_h3ok:")
        self.stamp(10)
        for i in range(4):
            a(f"s_add_u32 m0, s50, {1024 * i}\ns_nop 0")
            a(f"buffer_load_dwordx4 v{12 + (i & 1)}, {SRDW}, s49 offen sc1 lds\ns_add_u32 s49, s49, 1024")
        for k in range(8):
            a(f"v_writelane_b32 v8, s{64 + 4 * k}, {k}\nv_writelane_b32 v9, s{65 + 4 * k}, {k}")
        a(f"""s_lshl_b32 s33, {sW}, 6
            s_add_u32 s33, s33, {SM}
            v_lshl_add_u32 v7, v0, 3, s33
            s_mov_b64 exec, 0xff
            ds_write_b64 v7, v[8:9]
            s_mov_b64 exec, -1""")
        a(f"""v_lshrrev_b32 v8, 2, v1
            v_lshrrev_b32 v9, 1, v2
            v_and_b32 v10, 1, v2
            v_lshlrev_b32 v7, 15, v9
            v_lshl_add_u32 v7, v10, 13, v7
            v_lshl_add_u32 v7, v8, 8, v7
            v_and_b32 v11, 3, v0
            v_lshl_add_u32 v7, v11, 3, v7
            v_lshl_or_b32 v10, v10, 2, v8
            v_lshl_add_u32 v7, v10, 5, v7
            v_add_u32 v20, s44, v7
            v_add_u32 v21, 65536, v20
            s_waitcnt vmcnt(4)""")
        put(S2, 0)
        a("s_waitcnt lgkmcnt(0)")
        for db in range(8):
            for p in range(2):
                a(f"v_xor_b32 v7, {32 * db}, v{20 + p}\nds_read_b64_tr_b16 {vr(QAR + 4 * db + 2 * p, 2)}, v7")
        for i in range(4):
            self.e2_dma(i)
        a(f"""s_waitcnt lgkmcnt(0)
            s_barrier
            v_lshlrev_b32 v7, 3, v0
            v_add_u32 v7, {SM}, v7
            ds_read_b64 v[12:13], v7
            s_lshl_b32 s33, {sW}, 7
            s_add_u32 s33, s33, {WB}
            v_lshl_add_u32 v22, v0, 1, s33
            v_and_b32 v7, 1, v0
            v_lshlrev_b32 v7, 6, v7
            v_lshl_add_u32 v7, v2, 4, v7
            v_add_u32 v23, s33, v7
            s_waitcnt lgkmcnt(0)
            v_mov_b32 v14, v12""")

        def red32(op, r, t):
            for sh in (1, 2, 4, 8):
                a(f"{op}_dpp v{r}, v{r}, v{r} row_ror:{sh} {FULL}")
            a(f"v_mov_b32 v{t}, v{r}\nv_permlane16_swap_b32 v{t}, v{r}\n{op} v{r}, v{r}, v{t}")
        red32("v_max_f32", 14, 15)
        a("v_sub_f32 v12, v12, v14\nv_exp_f32 v12, v12\nv_mul_f32 v13, v12, v13")
        red32("v_add_f32", 13, 15)
        a(f"""v_rcp_f32 v13, v13
            v_mul_f32 v12, v12, v13
            v_cvt_pk_bf16_f32 v12, v12, v12
            ds_write_b16 v22, v12
            s_waitcnt lgkmcnt(0)
            ds_read_b128 v[12:15], v23
            v_lshlrev_b32 v7, 12, v2
            v_lshl_add_u32 v7, v8, 9, v7
            v_lshl_add_u32 v7, v11, 3, v7
            s_lshl_b32 s33, {sW}, 1
            v_xor_b32 v10, s33, v10
            v_lshl_add_u32 v7, v10, 5, v7
            v_add_u32 v24, {PART[0]}, v7
            v_xor_b32 v25, 32, v24
            v_and_b32 v7, 1, v0
            v_lshlrev_b32 v7, 9, v7
            v_lshl_add_u32 v7, v2, 4, v7
            s_add_u32 s33, s44, {RED}
            v_add_u32 v26, s33, v7
            v_cmp_eq_u32 vcc, 0, v1
            v_cmp_eq_u32 s[38:39], 1, v1
            s_waitcnt lgkmcnt(0)""")
        for k in range(4):
            a(f"v_cndmask_b32 v{32 + k}, 0, v{12 + k}, vcc")
            a(f"v_cndmask_b32 v{36 + k}, 0, v{12 + k}, s[38:39]")
        a("s_waitcnt vmcnt(4)\ns_barrier")
        self.stamp(11)
        for s in range(2):
            for cb in range(2):
                for p in range(2):
                    a(f"ds_read_b64_tr_b16 {vr(FR + 8 * s + 4 * cb + 2 * p, 2)}, v{24 + cb} offset:{32768 * s + 2048 * p}")
        for s in range(2):
            for cb in range(2):
                a(f"s_waitcnt lgkmcnt({6 - 4 * s - 2 * cb})")
                c = "0" if s == 0 else vr(40 + 4 * cb, 4)
                a(f"v_mfma_f32_16x16x32_bf16 {vr(40 + 4 * cb, 4)}, {vr(FR + 8 * s + 4 * cb, 4)}, {vr(32 + 4 * s, 4)}, {c}")
        for k in range(4):
            a(f"v_cvt_pk_bf16_f32 v{48 + k}, v{40 + 2 * k}, v{41 + 2 * k}")
        for db in range(8):
            a(f"v_mfma_f32_16x16x32_bf16 {vr(O + 4 * db, 4)}, {vr(QAR + 4 * db, 4)}, v[48:51], 0")
        self.exec64(0x00030003)
        for db in range(8):
            a(f"ds_write_b128 v26, {vr(O + 4 * db, 4)} offset:{64 * db}")
        a(f"""s_mov_b64 exec, -1
            s_waitcnt lgkmcnt(0)
            s_barrier
            s_cmp_lg_u32 {sW}, 3
            s_cbranch_scc1 L_stageE2
            v_lshrrev_b32 v14, 5, v0
            v_mul_u32_u24 v14, 1536, v14
            v_add_u32 v14, v14, v16
            s_lshl_b32 s33, {sH}, 12
            s_lshl_b32 s36, {sB}, 9
            s_add_u32 s33, s33, s36
            s_add_u32 s33, s33, {H4B}
            v_mov_b32 v60, 0
            v_mov_b32 v61, 0.5""")
        self.red_publish(64, RED, 1024, "v14", "s33", "v60", "v61")
        a("s_branch L_stageE2")

    def build(self):
        a = self.a
        self.entry()
        self.p1()
        a("L_rolePU:")
        self.p2()
        self.a_common()
        self.e2()
        a("s_endpgm")
        self.role_b()
        a("L_end:\ns_endpgm")
        body = a.finalize()
        return f"""{HEADER}; Generated by a script; one persistent launch, 256 workgroups of 8 waves (one per CU).
; @launch grid=(256,1,1) block=(512,1,1) lds={LDS_BYTES}
.amdgcn_target "amdgcn-amd-amdhsa--gfx950"
.text
.globl {NAME}
.p2align 8
.type {NAME},@function
{NAME}:
{body}.section .rodata,"a"
.p2align 6
.amdhsa_kernel {NAME}
  .amdhsa_next_free_vgpr 256
  .amdhsa_next_free_sgpr 102
  .amdhsa_accum_offset 256
  .amdhsa_group_segment_fixed_size 0
  .amdhsa_kernarg_size 112
  .amdhsa_user_sgpr_count 2
  .amdhsa_user_sgpr_kernarg_segment_ptr 1
  .amdhsa_system_sgpr_workgroup_id_x 1
  .amdhsa_float_denorm_mode_32 3
.end_amdhsa_kernel
"""


if __name__ == "__main__":
    out = sys.argv[1]
    kw = eval("dict(" + (sys.argv[2] if len(sys.argv) > 2 else "") + ")")
    open(out, "w").write(Gen(**kw).build())
```

```python
import sys
from asmlib import Asm

NAME = "concat_heads__sliding_block_cached__compressed_kv_cla__decode_kernel"
HEADER = open("concat_heads__sliding_block_cached__compressed_kv_cla__decode.s.ref").read().split("; Override launch")[0]

EPOCH = 0
QA = 0xa0000
QB = 0xc0000
CNT = 0xa00000
QABS = 0x30000
F2 = 0x40000
ST = 0x50000
H4A = 0x60000
H4B = 0x80000
OP = 0x100000
H5 = 0x400000
STAMP = 0x800000
WS_SIZE = 0x1000000

AUX = 131072
RED = AUX
MXA = AUX + 512
LSA = AUX + 8192 + 64
MX = AUX + 9216
LS = AUX + 9216 + 512
PB = AUX + 10240
SM = AUX + 28672
WB = AUX + 29696
TK = AUX + 768
XI = AUX + 12288
CC = AUX + 30720
QL = AUX + 10240
HI = AUX + 20480
HS = AUX + 26624
E2B = (81920, 114688)
PART = (16384, 49152)
LDS_BYTES = 163840

SCALE = 0x3e0293ee
NEGBIG = 0xff7fffff
SPIN = 1 << 18

sW, sH, sJ, sB, sT, sTAG = "s3", "s4", "s5", "s6", "s7", "s32"
SRD0, SRDW, SRDK, SRDV, SRDE, SRDX = "s[8:11]", "s[12:15]", "s[16:19]", "s[20:23]", "s[24:27]", "s[28:31]"
FULL = "row_mask:0xf bank_mask:0xf"


def vr(a, n):
    return f"v[{a}:{a + n - 1}]"


def dest(i):
    return (i >> 1) * 32768 + (i & 1) * 8192


class Gen:
    def __init__(self, dbg=False, depth=4, rot=True, pu_pre=0, calib=0, bdepth=5, nstatic=12, xfl='', pf=True, diag='', xpos=5, edepth=(4, 4, 3, 3), rounds=10, n0=9, lf=2, srot=0, pfl='sc1', gfl='sc1', nst=4, jmul=3, outfl='', wlo=(0, 0), wend=12, ps=(0, 0, 0), lo=3, nlo=5, lofrom=1, noack=True, pollw=True, hookpos=((0, 8, 16, 24, 31), (16, 21, 26, 31)), bmin=2, e2early=False, hxa=2, hxu=1):
        self.a = Asm()
        self.dbg, self.depth, self.rot, self.pu_pre = dbg, depth, rot, pu_pre
        self.calib, self.bdepth, self.nstatic = calib, bdepth, nstatic
        self.uid = 0
        self.bmin, self.e2early = bmin, e2early
        self.lf, self.srot, self.pfl, self.gfl, self.nst = lf, srot, pfl, gfl, nst
        self.n0, self.jmul, self.outfl = n0, jmul, outfl
        self.ps, self.wlo, self.wend = ps, wlo, wend
        self.lo, self.nlo, self.lofrom = lo, nlo, lofrom
        self.rounds, self.hookpos, self.noack, self.pollw = rounds, hookpos, noack, pollw
        self.xpos, self.edepth, self.hxa, self.hxu = xpos, edepth, hxa, hxu
        self.xfl, self.pf, self.diag = xfl, pf, diag

    def lab(self, p):
        self.uid += 1
        return f"L_{p}_{self.uid}"

    def stamp(self, k):
        if self.dbg and (self.dbg is True or k in self.dbg or k == 17):
            self.a(f"s_memrealtime s[98:99]\ns_waitcnt lgkmcnt(0)\nv_writelane_b32 v63, s98, {k}")

    def cyc(self, k):
        if 'cyc' in self.diag:
            self.a(f"s_memtime s[{64 + 2 * k}:{65 + 2 * k}]")

    def exec64(self, lo, hi=None):
        hi = lo if hi is None else hi
        self.a(f"s_mov_b32 exec_lo, {lo:#x}\ns_mov_b32 exec_hi, {hi:#x}")

    def entry(self):
        a = self.a
        a("s_cmp_ge_u32 s2, 256\ns_cbranch_scc1 L_end")
        if self.dbg or self.calib:
            a("s_memrealtime s[96:97]")
        a(f"s_lshr_b32 {sH}, s2, 3")
        if self.rot:
            a(f"s_add_u32 {sJ}, s2, {sH}\ns_mul_i32 {sJ}, {sJ}, {self.jmul}\ns_and_b32 {sJ}, {sJ}, 7")
        else:
            a(f"s_and_b32 {sJ}, s2, 7")
        a(f"""s_and_b32 {sT}, {sJ}, 3
            s_lshl_b32 s33, {sT}, 3
            s_lshr_b32 s36, 0x30403838, s33
            s_and_b32 s36, s36, 0xff
            s_load_dwordx2 s[8:9], s[0:1], s36
            s_lshr_b32 s36, 0x30401818, s33
            s_and_b32 s36, s36, 0xff
            s_load_dwordx2 s[24:25], s[0:1], s36
            s_load_dwordx2 s[12:13], s[0:1], 104
            s_load_dwordx2 s[28:29], s[0:1], 0
            s_load_dwordx2 s[30:31], s[0:1], 40
            s_load_dwordx2 s[16:17], s[0:1], 8
            s_load_dwordx2 s[20:21], s[0:1], 16
            s_getpc_b64 s[34:35]
            L_pc:
            v_lshrrev_b32 v8, 6, v0
            s_lshr_b32 {sB}, {sJ}, 2
            v_readfirstlane_b32 {sW}, v8
            v_and_b32 v0, 63, v0
            v_and_b32 v1, 15, v0
            v_lshrrev_b32 v2, 4, v0
            v_lshlrev_b32 v16, 4, v0
            s_mov_b32 s11, 0x20000
            s_mov_b32 s10, 0x400000
            s_mov_b32 s27, 0x20000
            s_lshl_b32 s44, {sW}, 10
            s_mov_b32 s41, 65536
            s_mov_b32 s38, 64
            s_mov_b32 s39, 0
            s_mov_b32 s42, 32768
            s_cmp_eq_u32 {sT}, 3
            s_cbranch_scc1 L_e3
            v_mov_b32 v9, v2
            v_mov_b32 v10, v1
            s_cmp_eq_u32 {sT}, 2
            s_cbranch_scc1 L_e2
            s_lshl_b32 s63, {sT}, 1
            s_add_u32 s63, s63, {sB}
            s_lshl_b32 s40, s63, 20
            s_lshl_b32 s33, {sW}, 17
            s_add_u32 s40, s40, s33
            s_lshl_b32 s33, {sH}, 8
            s_xor_b32 s42, s33, {self.hxa << 8}
            s_sub_u32 s42, s42, s33
            s_add_u32 s40, s40, s33
            s_mov_b32 s41, 32768
            s_mov_b32 s38, 0
            s_mov_b32 s39, 128
            v_lshlrev_b32 v11, 1, v2
            s_branch L_ej
            L_e2:
            s_xor_b32 s63, {sH}, {self.hxu}
            s_lshl_b32 s40, {sW}, 18
            s_lshl_b32 s33, s63, 8
            s_add_u32 s40, s40, s33
            s_lshl_b32 s33, {sB}, 21
            s_add_u32 s40, s40, s33
            s_mov_b32 s39, 128
            v_mov_b32 v11, v2
            s_branch L_ej
            L_e3:
            s_lshl_b32 s40, {sB}, 23
            s_lshl_b32 s33, {sH}, 18
            s_add_u32 s40, s40, s33
            s_add_u32 s40, s40, s44
            s_mov_b32 s41, 8192
            s_mov_b32 s38, 32
            s_mov_b32 s10, 0x1000000
            s_and_b32 s33, {sW}, 3
            s_lshl_b32 s33, s33, 2
            s_lshr_b32 s36, {sW}, 2
            s_or_b32 s33, s33, s36
            v_mov_b32 v9, 0
            v_mov_b32 v10, v0
            v_mov_b32 v11, s33
            L_ej:
            v_xor_b32 v10, v10, v11
            v_lshlrev_b32 v10, 4, v10
            v_lshl_add_u32 v3, v9, 13, v10
            v_xor_b32 v4, s38, v3
            v_xor_b32 v5, s39, v3
            v_xor_b32 v6, s39, v4
            s_add_u32 s43, s40, s42
            s_mov_b32 s26, s10
            s_mov_b32 m0, s44
            s_waitcnt lgkmcnt(0)""")
        for i in range(4):
            a(f"buffer_load_dwordx4 v{3 + i}, {SRD0}, s40 offen nt lds")
            a(f"s_add_u32 m0, s44, {dest(i + 1)}\ns_add_u32 s40, s40, s41")
        a(f"""s_lshl_b32 s33, {sH}, 3
            s_add_u32 s33, s33, {sW}
            s_lshl_b32 s33, s33, 7
            s_min_u32 s33, s33, L_end-L_pc-64
            s_add_u32 s36, s33, 64
            s_load_dword s100, s[34:35], s33
            s_load_dword s101, s[34:35], s36
            s_load_dword {sTAG}, s[12:13], {EPOCH}
            s_mov_b32 s14, {WS_SIZE:#x}
            s_mov_b32 s15, 0x20000
            s_mov_b32 s19, 0x20000
            s_mov_b32 s52, {SCALE:#x}""")
        if self.dbg:
            a("v_mov_b32 v63, 0\nv_writelane_b32 v63, s96, 0")
        a(f"""s_cmp_eq_u32 {sT}, 3
            s_cbranch_scc1 L_roleB
            s_mov_b32 s18, 0x8000000
            s_mov_b32 s22, 0x8000000
            s_mov_b32 s23, 0x20000
            s_lshl_b32 s45, {sB}, 5
            s_add_u32 s45, s45, {sH}
            s_mul_i32 s42, s45, {self.srot}
            s_lshl_b32 s45, s45, 21
            s_add_u32 s45, s45, {6144 * 256}
            s_lshl_b32 s57, {sT}, 3
            s_add_u32 s57, s57, {sW}""")
        self.a_addr()
        a(f"v_add_u32 v7, {RED}, v16")
        for k in range(4):
            a(f"v_mov_b32 v{8 + k}, 0")
        a(f"ds_write_b128 v7, v[8:11]")
        a(f"s_cmp_eq_u32 {sT}, 2\ns_cbranch_scc1 L_rolePU")

    def second_batch(self, mid, extra=0):
        a = self.a
        for i in range(4, 8):
            a(f"s_waitcnt vmcnt({3 + extra})\nbuffer_load_dwordx4 v{3 + (i & 3)}, {SRDE}, s43 offen nt lds")
            if i < 7:
                a(f"s_add_u32 m0, s44, {dest(i + 1)}")
            a("s_add_u32 s43, s43, s41")
            if i == self.xpos:
                a(f"s_waitcnt lgkmcnt(0)\ns_add_u32 {sTAG}, {sTAG}, 1")
                mid()

    def load_e2_ptr(self):
        self.a(f"""s_cmp_lt_u32 {sW}, 4
            s_cselect_b32 s33, 32, 80
            s_load_dwordx2 s[24:25], s[0:1], s33
            s_mov_b32 s26, 0x400000""")

    def sum_parts(self, r):
        self.a(f"""v_lshlrev_b32 v8, 16, v{r}
            v_and_b32 v9, 0xffff0000, v{r}
            v_lshlrev_b32 v10, 16, v{r + 1}
            v_and_b32 v11, 0xffff0000, v{r + 1}
            v_lshlrev_b32 v{r}, 16, v{r + 4}
            v_and_b32 v{r + 1}, 0xffff0000, v{r + 4}
            v_lshlrev_b32 v{r + 2}, 16, v{r + 5}
            v_and_b32 v{r + 3}, 0xffff0000, v{r + 5}
            v_pk_add_f32 v[8:9], v[8:9], {vr(r, 2)}
            v_pk_add_f32 v[10:11], v[10:11], {vr(r + 2, 2)}
            v_permlane32_swap_b32 v8, v10
            v_permlane32_swap_b32 v9, v11
            v_pk_add_f32 v[8:9], v[8:9], v[10:11]
            v_cvt_pk_bf16_f32 v{r}, v8, v9""")

    def poll_rows(self, voff, soff, two=False):
        a = self.a
        lp, ok = self.lab("gp"), self.lab("gok")
        a(f"s_mov_b32 s37, {SPIN}\n{lp}:\n{f's_sleep {self.ps[2]}' if self.ps[2] and not two else ''}\nbuffer_load_dwordx4 v[176:179], {voff}, {SRDW}, {soff} offen sc1")
        if two:
            a(f"buffer_load_dwordx4 v[180:183], {voff}, {SRDW}, {soff} offen offset:1024 sc1")
        a(f"s_sub_u32 s37, s37, 1\ns_waitcnt vmcnt(0)\ns_cbranch_scc1 {ok}")
        if two:
            a(f"v_bitop3_b32 v8, v179, v183, {sTAG} bitop3:0x7e\nv_cmp_ne_u32 vcc, 0, v8")
        else:
            a(f"v_cmp_ne_u32 vcc, {sTAG}, v179")
        a(f"s_cbranch_vccnz {lp}\n{ok}:")

    def e2_dma_setup(self):
        self.a(f"""v_lshrrev_b32 v9, 3, v0
            v_and_b32 v10, 7, v0
            v_and_b32 v11, 1, v2
            v_lshlrev_b32 v11, 1, v11
            v_xor_b32 v10, v10, v11
            v_lshlrev_b32 v10, 4, v10
            v_lshl_add_u32 v17, v9, 10, v10
            v_xor_b32 v18, 64, v17
            s_and_b32 s33, {sW}, 3
            s_lshl_b32 s46, {sH}, 17
            s_lshl_b32 s36, s33, 15
            s_add_u32 s46, s46, s36
            s_lshl_b32 s36, {sJ}, 7
            s_add_u32 s46, s46, s36
            s_cmp_lt_u32 {sW}, 4
            s_mov_b32 s47, {E2B[1]}
            s_cmov_b32 s47, {E2B[0]}
            s_lshl_b32 s36, s33, 12
            s_add_u32 s47, s47, s36""")

    def e2_dma(self, i):
        self.a(f"""s_add_u32 m0, s47, {1024 * i}
            s_nop 0
            buffer_load_dwordx4 v{17 + (i & 1)}, {SRDE}, s46 offen nt lds
            s_add_u32 s46, s46, 8192""")

    KV = 64

    def a_addr(self):
        if self.srot:
            self.a("s_mov_b32 s54, s48\ns_add_u32 s48, s57, s42\ns_and_b32 s48, s48, 255\ns_lshl_b32 s48, s48, 11\ns_add_u32 s48, s48, s45")
        else:
            self.a("s_mov_b32 s54, s48\ns_lshl_b32 s48, s57, 11\ns_add_u32 s48, s48, s45")

    def a_load(self, ph, k, cnt, lo=None):
        srd, so = (SRDK, "s48") if k < 2 else (SRDV, "s54")
        self.a(f"s_waitcnt vmcnt({cnt})")
        if lo is not None and lo < cnt:
            sk = self.lab("lo")
            self.a(f"s_cbranch_vccz {sk}\ns_waitcnt vmcnt({lo})\n{sk}:")
        self.a(f"buffer_load_dwordx4 {vr(self.KV + 16 * ph + 4 * k, 4)}, v16, {srd}, {so} offen offset:{1024 * (k & 1)} nt")

    def a_first(self, k, cnt):
        if k == 2:
            self.a("s_add_u32 s57, s57, 24")
            self.a_addr()
        self.a_load(k >> 1, k & 1, cnt)

    def a_qk(self, ph, r=30):
        a = self.a
        K = self.KV + 16 * ph
        a("v_mov_b32 v28, 0\nv_mov_b32 v29, 0")
        for e in range(4):
            for u in range(2):
                a(f"v_dot2c_f32_bf16 v{28 + u}, v{K + 4 * u + e}, v{24 + e}")
        a(f"v_add_f32_dpp v{r}, v28, v28 row_ror:8 row_mask:0xf bank_mask:0x3")
        a(f"v_add_f32_dpp v{r}, v29, v29 row_ror:8 row_mask:0xf bank_mask:0xc")
        for m in ("row_half_mirror", "quad_perm:[1,0,3,2]", "quad_perm:[2,3,0,1]"):
            a(f"v_add_f32_dpp v{r}, v{r}, v{r} {m} {FULL}")

    def a_max(self):
        self.a(f"v_max_f32_dpp v31, v30, v30 row_ror:8 {FULL}\nv_mul_f32 v31, s52, v31\nv_max_f32 v31, v31, v60")

    def a_soft(self, with_max=True):
        a = self.a
        if with_max:
            self.a_max()
        a("""v_sub_f32 v32, v60, v31
            v_fma_f32 v30, v30, s52, -v31
            v_exp_f32 v32, v32
            v_exp_f32 v30, v30
            v_mov_b32 v60, v31
            v_fma_f32 v61, v61, v32, v30
            v_cvt_pk_bf16_f32 v34, v30, 0
            v_cvt_pk_bf16_f32 v35, 0, v30""")
        for k in range(4):
            a(f"v_pk_mul_f32 {vr(52 + 2 * k, 2)}, {vr(52 + 2 * k, 2)}, v[32:33] op_sel_hi:[1,0]")

    def a_pv(self, ph, u):
        V = self.KV + 16 * ph + 8 + 4 * u
        for e in range(4):
            self.a(f"v_dot2c_f32_bf16_dpp v{52 + 2 * e}, v34, v{V + e} row_newbcast:{8 * u} {FULL}")
            self.a(f"v_dot2c_f32_bf16_dpp v{53 + 2 * e}, v35, v{V + e} row_newbcast:{8 * u} {FULL}")

    def p1(self):
        a = self.a
        D = self.edepth[0]
        a(f"""s_lshl_b32 s33, s63, 8
            s_lshl_b32 s36, {sW}, 5
            s_add_u32 s61, s33, s36
            s_add_u32 s62, s61, 1024
            s_load_dwordx8 s[64:71], s[30:31], s61
            s_load_dwordx8 s[72:79], s[30:31], s62
            s_load_dwordx8 s[80:87], s[28:29], s61
            s_load_dwordx8 s[88:95], s[28:29], s62
            v_and_b32 v8, 1, v2
            v_lshlrev_b32 v7, 15, v8
            v_lshrrev_b32 v9, 1, v2
            v_lshl_add_u32 v7, v9, 10, v7
            v_lshrrev_b32 v9, 2, v1
            v_lshl_add_u32 v7, v9, 8, v7
            v_and_b32 v10, 3, v0
            v_lshl_add_u32 v7, v10, 3, v7
            v_lshl_or_b32 v9, v8, 2, v9
            v_xor_b32 v9, {sW}, v9
            v_lshl_add_u32 v40, v9, 5, v7
            v_add_u32 v41, 65536, v40
            v_lshrrev_b32 v7, 3, v0
            v_lshlrev_b32 v7, 8, v7
            v_and_b32 v8, 7, v0
            v_lshl_add_u32 v7, v8, 2, v7
            s_add_u32 s36, s36, {XI}
            v_add_u32 v42, s36, v7
            v_and_b32 v7, 1, v0
            v_lshlrev_b32 v8, 8, v7
            v_lshl_add_u32 v8, v2, 4, v8
            v_add_u32 v43, {XI}, v8
            v_lshlrev_b32 v8, 11, v7
            v_lshl_add_u32 v44, v2, 4, v8
            s_lshl_b32 s58, {sH}, 12
            s_lshl_b32 s36, s63, 9
            s_add_u32 s58, s58, s36
            s_lshl_b32 s36, {sW}, 6
            s_add_u32 s58, s58, s36
            s_xor_b32 s59, s58, {self.hxa << 12}
            s_add_u32 s58, s58, {QB}
            s_add_u32 s59, s59, {QA}""")

        def mid():
            for k in range(32):
                a(f"v_writelane_b32 v45, s{64 + k}, {k}")
            self.exec64(0xffffffff, 0)
            a(f"ds_write_b32 v42, v45\ns_mov_b64 exec, -1\nv_mov_b32 v51, {sTAG}")
            if self.n0:
                a(f"""s_cmp_lg_u32 s57, 0
                    s_cbranch_scc1 L_nocnt
                    s_xor_b32 s33, {sH}, {self.hxa}
                    s_lshl_b32 s33, s33, 1
                    s_add_u32 s33, s33, {sB}
                    s_mul_i32 s33, s33, 1280
                    s_add_u32 s33, s33, {CNT}
                    v_mov_b32 v46, {3 * self.n0 + 1}
                    s_mov_b64 exec, 1
                    buffer_store_dword v46, off, {SRDW}, s33 sc1
                    s_mov_b64 exec, -1
                    L_nocnt:""")

        def half(t):
            a("s_waitcnt lgkmcnt(0)\ns_barrier")
            for s in range(4):
                a(f"ds_read_b128 {vr(160 + 4 * s, 4)}, v43 offset:{512 * t + 64 * s}")
                for p in range(2):
                    a(f"ds_read_b64_tr_b16 {vr(176 + 4 * s + 2 * p, 2)}, v{40 + t} offset:{2048 * s + 8192 * p}")
            for s in range(4):
                a(f"s_waitcnt lgkmcnt({9 - 3 * s})")
                a(f"v_mfma_f32_16x16x32_bf16 v[192:195], {vr(176 + 4 * s, 4)}, {vr(160 + 4 * s, 4)}, {'v[192:195]' if s else '0'}")
            self.exec64(0x00030003)
            a("v_cvt_pk_bf16_f32 v48, v192, v193\nv_cvt_pk_bf16_f32 v49, v194, v195")
            a(f"buffer_store_dwordx4 v[48:51], v44, {SRDW}, s{58 + t} offen sc1\ns_mov_b64 exec, -1")

        self.second_batch(mid)
        self.stamp(1)
        half(0)
        self.stamp(2)
        self.load_e2_ptr()
        for k in range(4):
            self.a_first(k, D if k < D else D - 1)
        a("s_waitcnt vmcnt(5)")
        half(1)
        self.stamp(3)
        a("s_branch L_acommon")

    def p2(self):
        a = self.a
        D, pre = self.edepth[0], self.pu_pre
        a(f"""v_lshrrev_b32 v7, 3, v1
            v_lshlrev_b32 v7, 15, v7
            v_bfe_u32 v8, v1, 2, 1
            v_lshl_add_u32 v7, v8, 13, v7
            v_and_b32 v8, 3, v1
            v_lshl_add_u32 v7, v8, 8, v7
            v_add_u32 v7, s44, v7
            v_xor_b32 v8, v2, v1
            v_lshl_add_u32 v216, v8, 4, v7""")
        for s in range(1, 4):
            a(f"v_xor_b32 v{216 + s}, {64 * s}, v216")
        for s in range(4):
            a(f"v_add_u32 v{220 + s}, 65536, v{216 + s}")
        a(f"""v_and_b32 v13, 31, v0
            v_lshlrev_b32 v13, 3, v13
            v_lshrrev_b32 v7, 5, v0
            v_lshl_add_u32 v13, v7, 2, v13
            s_lshl_b32 s33, {sW}, 8
            s_add_u32 s33, s33, {HI}
            v_add_u32 v13, s33, v13
            v_and_b32 v14, 1, v0
            v_lshlrev_b32 v14, 8, v14
            v_lshl_add_u32 v14, v2, 4, v14
            v_add_u32 v14, {HI}, v14
            s_lshl_b32 s49, s63, 12
            s_lshl_b32 s36, {sW}, 11
            s_add_u32 s49, s49, s36
            s_add_u32 s49, s49, {QB}
            v_lshlrev_b32 v15, 15, v1
            v_lshl_add_u32 v15, v2, 4, v15
            s_lshl_b32 s50, s63, 10
            s_lshl_b32 s36, {sB}, 9
            s_add_u32 s50, s50, s36
            s_lshl_b32 s36, {sW}, 6
            s_add_u32 s50, s50, s36
            s_add_u32 s50, s50, {QABS}
            s_lshr_b32 s53, s63, 2
            s_lshl_b32 s53, s53, 7
            s_and_b32 s36, s63, 3
            s_lshl_b32 s36, s36, 3
            s_add_u32 s53, s53, s36
            s_lshl_b32 s36, {sB}, 2
            s_add_u32 s53, s53, s36
            s_add_u32 s53, s53, {F2}
            v_lshlrev_b32 v37, 10, v0""")
        if self.noack:
            for k in range(4):
                a(f"v_mov_b32 v{40 + k}, -1")
            self.exec64(0x00030003)
            a(f"buffer_store_dwordx4 v[40:43], v15, {SRDW}, s50 offen sc1\ns_mov_b64 exec, -1")
        self.second_batch(lambda: a(f"v_mov_b32 v36, {sTAG}"), 1 if self.noack else 0)
        self.load_e2_ptr()
        for k in range(pre):
            self.a_first(k, D - 1)
        skip = self.lab("h1s")
        a(f"s_cmp_gt_u32 {sW}, 1\ns_cbranch_scc1 {skip}")
        if self.pollw:
            a(f"s_waitcnt vmcnt({pre})")
        self.poll_rows("v16", "s49", two=True)
        self.sum_parts(176)
        a(f"ds_write_b32 v13, v176\n{skip}:\ns_waitcnt vmcnt({pre})")
        self.stamp(1)
        for blk in range(2):
            for s in range(4):
                a(f"ds_read_b128 {vr(224 + 16 * blk + 4 * s, 4)}, v{216 + 4 * blk + s}")
        a("s_waitcnt lgkmcnt(0)\ns_barrier")
        self.stamp(2)
        for s in range(4):
            a(f"ds_read_b128 {vr(176 + 4 * s, 4)}, v14 offset:{64 * s}")
        for s in range(4):
            a(f"s_waitcnt lgkmcnt({3 - s})")
            for blk in range(2):
                c = "0" if s == 0 else vr(208 + 4 * blk, 4)
                a(f"v_mfma_f32_16x16x32_bf16 {vr(208 + 4 * blk, 4)}, {vr(224 + 16 * blk + 4 * s, 4)}, {vr(176 + 4 * s, 4)}, {c}")
        for k in range(4):
            a(f"v_cvt_pk_bf16_f32 v{168 + k}, v{208 + 2 * k}, v{209 + 2 * k}")
        self.exec64(0x00030003)
        a(f"buffer_store_dwordx4 v[168:171], v15, {SRDW}, s50 offen sc1")
        a("s_mov_b64 exec, -1")
        if not self.noack:
            a("s_waitcnt vmcnt(0)")
        a("s_barrier")
        skip = self.lab("p2s")
        a(f"""s_cmp_lg_u32 {sW}, 0
            s_cbranch_scc1 {skip}
            buffer_store_dword v36, v37, {SRDW}, s53 offen sc1
            {skip}:""")
        self.stamp(3)
        for k in range(pre, 4):
            self.a_first(k, D + 1)

    def a_common(self):
        a = self.a
        D, E = self.depth, self.edepth
        a("L_acommon:")
        self.e2_dma_setup()
        a(f"""s_lshl_b32 s51, {sH}, 1
            s_add_u32 s51, s51, {sB}
            s_lshl_b32 s51, s51, 11
            s_add_u32 s51, s51, {QA}
            v_and_b32 v36, 31, v0
            v_lshlrev_b32 v36, 3, v36
            v_lshrrev_b32 v7, 5, v0
            v_lshl_add_u32 v36, v7, 2, v36
            s_lshl_b32 s33, {sW}, 8
            s_add_u32 s33, s33, {QL}
            v_add_u32 v36, s33, v36
            v_lshl_add_u32 v37, v1, 4, s33
            v_mov_b32 v60, {NEGBIG:#x}
            v_mov_b32 v61, 0
            v_lshlrev_b32 v38, 5, v1
            v_lshl_add_u32 v38, v2, 3, v38
            s_lshl_b32 s33, {sW}, 9
            s_add_u32 s33, s33, {RED + 1024}
            v_add_u32 v38, s33, v38
            s_lshl_b32 s33, {sW}, 2
            s_add_u32 s33, s33, {MXA}
            v_mov_b32 v39, s33
            v_mov_b32 v43, {MXA}
            v_lshrrev_b32 v44, 5, v0
            v_mul_u32_u24 v44, 1536, v44
            v_add_u32 v44, v44, v16
            v_add_u32 v44, {RED + 1024}, v44
            s_lshl_b32 s61, {sH}, 3
            s_add_u32 s61, s61, {sJ}
            s_lshl_b32 s61, s61, 9
            s_add_u32 s61, s61, {H4A}""")
        for k in range(8):
            a(f"v_mov_b32 v{52 + k}, 0")
        L = self.lo
        a(f"""s_cmp_eq_u32 {sT}, 2
            s_cselect_b32 s55, 0, {24 * self.nlo}
            s_cselect_b32 s33, {self.wlo[1]}, {self.wlo[0]}
            s_cmp_lt_u32 {sW}, s33
            s_cmov_b32 s55, {24 * self.wend}
            s_cmp_lg_u32 s55, 0
            s_cselect_b64 vcc, -1, 0""")
        assert D <= 4 or self.lf
        lo = lambda ph: L - 1 if self.lofrom <= ph < self.nlo else None
        for k in (2, 3):
            self.a_load(0, k, D - 1, lo(1))
        a("s_add_u32 s57, s57, 24")
        self.a_addr()
        for k in range(4):
            self.a_load(2 if k < 2 else 1, k, D - 1, lo(2))
        qld = f"buffer_load_dwordx4 v[20:23], v16, {SRDW}, s51 offen sc1\nbuffer_load_dwordx4 v[24:27], v16, {SRDW}, s51 offen offset:1024 sc1"
        a(qld)
        a("s_add_u32 s57, s57, 24")
        self.a_addr()
        for k in range(4):
            self.a_load(3 if k < 2 else 2, k, D + 1 if k < D else D - 1, (L + 1 if k < L else L - 1) if self.nlo > 3 else None)
        R = self.rounds
        a(f"""s_add_u32 s57, s57, 24
            s_cmp_eq_u32 {sT}, 2
            s_cselect_b32 s56, 256, 16
            s_mov_b32 s60, {24 * R}
            s_cmov_b32 s60, {24 * (R - 1)}
            s_mov_b32 s37, {SPIN}
            s_waitcnt vmcnt(4)
            L_qlp:
            v_bitop3_b32 v8, v23, v27, {sTAG} bitop3:0x7e
            v_cmp_ne_u32 vcc, 0, v8
            s_cbranch_vccz L_qok
            s_sub_u32 s37, s37, 1
            s_cbranch_scc1 L_qok
            {qld}
            s_waitcnt vmcnt(0)
            s_branch L_qlp
            L_qok:""")
        self.sum_parts(20)
        a("ds_write_b32 v36, v20\ns_waitcnt lgkmcnt(0)\nds_read_b128 v[24:27], v37\ns_waitcnt lgkmcnt(0)")
        self.stamp(4)
        if self.n0:
            a(f"""s_lshl_b32 s33, {sH}, 1
                s_add_u32 s33, s33, {sB}
                s_mul_i32 s33, s33, 1280
                s_add_u32 s33, s33, {CNT}
                s_add_u32 s58, s12, s33
                s_addc_u32 s59, s13, 0
                s_mov_b32 s60, 4
                s_sub_u32 s62, {sW}, 8
                s_mov_b32 s37, {SPIN * 16}
                v_mov_b32 v40, {TK}""")
        for ph in range(2):
            self.a_qk(ph); self.a_soft(); self.a_pv(ph, 0); self.a_pv(ph, 1)
        a("L_aloop:")
        for ph in range(4):
            if self.n0:
                n0 = self.n0
                st, nw, nc, rd, go = (self.lab(x) for x in ("st", "nw", "nc", "rd", "go"))
                a(f"""s_cmp_lt_u32 s60, {n0 - 2}
                    s_cbranch_scc1 {go}
                    s_waitcnt lgkmcnt(0)
                    s_cmp_lg_u32 {sW}, 0
                    s_cbranch_scc1 {nc}
                    s_cmp_eq_u32 s60, {n0 - 2}
                    s_cbranch_scc1 {nw}
                    v_mov_b32 v41, s56
                    ds_write_b32 v40, v41 offset:4
                    {nw}:
                    s_mov_b32 s56, 1
                    s_atomic_add s56, s[58:59], 0 glc
                    {nc}:
                    s_cmp_lt_u32 s60, {n0}
                    s_cbranch_scc1 {st}
                    {rd}:
                    v_readfirstlane_b32 s33, v42
                    s_cmp_lg_u32 s33, 0
                    s_cbranch_scc1 {rd}_ok
                    s_sub_u32 s37, s37, 1
                    s_cbranch_scc1 L_drain{ph}
                    ds_read_b32 v42, v40
                    s_waitcnt lgkmcnt(0)
                    s_branch {rd}
                    {rd}_ok:
                    s_cmp_gt_u32 s33, 32
                    s_cbranch_scc1 L_drain{ph}
                    s_lshl_b32 s57, s33, 3
                    s_add_u32 s57, s57, s62
                    {st}:
                    v_add_u32 v40, 4, v40
                    {go}:""")
                self.a_addr()
                a("s_cmp_lt_u32 s57, s55\ns_cselect_b64 vcc, -1, 0\ns_add_u32 s57, s57, 24\ns_add_u32 s60, s60, 1")
            else:
                a(f"s_cmp_ge_u32 s57, 256\ns_cbranch_scc1 L_drain{ph}")
                self.a_addr()
                a("s_cmp_lt_u32 s57, s55\ns_cselect_b64 vcc, -1, 0")
                a(f"s_cmp_lt_u32 s57, s60\ns_cselect_b32 s33, 24, s56\ns_add_u32 s57, s57, s33")
            q, pv = (ph + 2) & 3, (ph + 3) & 3
            if self.lf:
                for k in range(4):
                    self.a_load(ph if k < 2 else pv, k, D - 1, L - 1)
                self.a_qk(q); self.a_soft()
                if D > 4:
                    a("s_waitcnt vmcnt(5)")
                self.a_pv(q, 0)
                if D > 4:
                    a("s_waitcnt vmcnt(4)")
            else:
                self.a_load(ph, 0, D - 1, L - 1); self.a_qk(q)
                self.a_load(ph, 1, D - 1, L - 1); self.a_soft()
                self.a_load(pv, 2, D - 1, L - 1); self.a_pv(q, 0)
                self.a_load(pv, 3, D - 1, L - 1)
            if self.n0:
                a("ds_read_b32 v42, v40")
            self.a_pv(q, 1)
        a("s_branch L_aloop")
        for ph in range(4):
            a(f"L_drain{ph}:")
            self.stamp(5)
            q, n = (ph + 2) & 3, (ph + 3) & 3
            a("s_mov_b32 s54, s48")
            if self.lf == 2:
                self.a_load(n, 2, 5); self.a_load(n, 3, 5)
                self.a_qk(q); self.a_soft()
                a("s_waitcnt vmcnt(4)")
            else:
                self.a_qk(q); self.a_soft()
                self.a_load(n, 2, 3); self.a_load(n, 3, 3)
            self.a_qk(n); self.a_max()
            for sw in ("v_permlane16_swap_b32", "v_permlane32_swap_b32"):
                a(f"v_mov_b32 v32, v31\n{sw} v32, v31\nv_max_f32 v31, v31, v32")
            a("ds_write_b32 v39, v31\ns_waitcnt vmcnt(3)")
            self.e2_dma(0)
            self.a_pv(q, 0)
            a("s_waitcnt vmcnt(3)")
            self.e2_dma(1)
            self.a_pv(q, 1)
            a("s_waitcnt lgkmcnt(0)\ns_barrier")
            if self.e2early:
                self.e2_dma(2); self.e2_dma(3)
            x = 2 if self.e2early else 0
            a(f"""
                ds_read_b128 v[8:11], v43
                ds_read_b128 v[12:15], v43 offset:16
                s_waitcnt lgkmcnt(0)
                v_max3_f32 v31, v8, v9, v10
                v_max3_f32 v12, v12, v13, v14
                v_max3_f32 v31, v31, v11, v15
                v_max_f32 v31, v31, v12""")
            self.a_soft(with_max=False)
            a(f"v_add_f32_dpp v61, v61, v61 row_ror:8 {FULL}")
            for sw in ("v_permlane16_swap_b32", "v_permlane32_swap_b32"):
                a(f"v_mov_b32 v32, v61\n{sw} v32, v61\nv_add_f32 v61, v61, v32")
            a("s_mov_b64 exec, 1\nds_add_f32 v43, v61 offset:32\ns_mov_b64 exec, -1")
            a(f"s_waitcnt vmcnt({3 + x})")
            self.a_pv(n, 0)
            a(f"s_waitcnt vmcnt({2 + x})")
            self.a_pv(n, 1)
            if ph < 3:
                a("s_branch L_afin")
        a("L_afin:\ns_nop 2")
        self.stamp(6)
        for i in range(4):
            a(f"v_permlane32_swap_b32 v{52 + i}, v{56 + i}")
        a("v_pk_add_f32 v[52:53], v[52:53], v[56:57]\nv_pk_add_f32 v[54:55], v[54:55], v[58:59]")
        a(f"""v_permlane16_swap_b32 v52, v54
            v_permlane16_swap_b32 v53, v55
            v_pk_add_f32 v[52:53], v[52:53], v[54:55]
            ds_write_b64 v38, v[52:53]""")
        if not self.e2early:
            self.e2_dma(2); self.e2_dma(3)
        a(f"""s_waitcnt lgkmcnt(0)
            s_barrier
            s_cmp_lg_u32 {sW}, 3
            s_cbranch_scc1 L_stageE2
            ds_read_b128 v[208:211], v44
            ds_read_b128 v[212:215], v44 offset:512
            ds_read_b128 v[216:219], v44 offset:1024
            ds_read_b128 v[220:223], v44 offset:1536
            ds_read_b32 v61, v43 offset:32
            v_and_b32 v8, 1, v0
            v_cmp_eq_u32 vcc, 1, v8
            v_mov_b32 v11, {sTAG}
            s_waitcnt lgkmcnt(3)
            v_pk_add_f32 v[208:209], v[208:209], v[212:213]
            v_pk_add_f32 v[210:211], v[210:211], v[214:215]
            s_waitcnt lgkmcnt(1)
            v_pk_add_f32 v[216:217], v[216:217], v[220:221]
            v_pk_add_f32 v[218:219], v[218:219], v[222:223]
            v_pk_add_f32 v[208:209], v[208:209], v[216:217]
            v_pk_add_f32 v[210:211], v[210:211], v[218:219]
            v_permlane32_swap_b32 v208, v210
            v_permlane32_swap_b32 v209, v211
            v_pk_add_f32 v[208:209], v[208:209], v[210:211]
            v_cvt_pk_bf16_f32 v8, v208, v209
            v_cvt_pk_bf16_f32 v9, v208, v209
            s_waitcnt lgkmcnt(0)
            v_cndmask_b32 v10, v60, v61, vcc
            v_permlane32_swap_b32 v8, v9""")
        self.exec64(0xffffffff, 0)
        a(f"""
            buffer_store_dwordx4 v[8:11], v16, {SRDW}, s61 offen sc1
            s_mov_b64 exec, -1
            s_nop 0""")

    def e2(self):
        a = self.a
        a("L_stageE2:")
        self.stamp(12)
        if self.diag and self.diag != 'cyc':
            a("s_branch L_done")
        a(f"""s_load_dwordx2 s[28:29], s[0:1], 88
            v_lshrrev_b32 v9, 2, v1
            v_lshlrev_b32 v7, 10, v2
            v_lshl_add_u32 v7, v9, 7, v7
            v_and_b32 v10, 3, v0
            v_lshl_add_u32 v7, v10, 3, v7
            v_lshrrev_b32 v9, 1, v9
            v_and_b32 v8, 1, v2
            v_lshl_or_b32 v9, v8, 1, v9
            s_and_b32 s33, {sW}, 3
            v_xor_b32 v9, s33, v9
            v_lshl_add_u32 v7, v9, 5, v7
            s_cmp_lt_u32 {sW}, 4
            s_mov_b32 s36, {E2B[1]}
            s_cmov_b32 s36, {E2B[0]}
            s_mov_b32 s49, {H4B}
            s_cmov_b32 s49, {H4A}
            v_add_u32 v7, s36, v7
            s_lshl_b32 s36, {sH}, 12
            s_add_u32 s49, s49, s36
            s_lshl_b32 s36, s33, 9
            s_add_u32 s49, s49, s36
            v_lshrrev_b32 v9, 5, v0
            v_mul_u32_u24 v14, 1536, v9
            v_add_u32 v14, v14, v16
            s_and_b32 s36, {sW}, 4
            s_lshl_b32 s36, s36, 1
            s_add_u32 s38, s36, s33
            v_lshl_add_u32 v9, v9, 2, s38
            v_and_b32 v10, 31, v0
            v_mul_u32_u24 v12, 272, v9
            v_lshl_add_u32 v12, v10, 3, v12
            v_add_u32 v12, {HI}, v12
            v_lshlrev_b32 v13, 7, v9
            v_lshl_add_u32 v13, v10, 2, v13
            v_add_u32 v13, {HS}, v13
            v_and_b32 v9, 7, v0
            v_add_u32 v9, s36, v9
            v_mul_u32_u24 v20, 272, v9
            v_lshl_add_u32 v20, v2, 4, v20
            v_add_u32 v20, {HI}, v20
            v_lshlrev_b32 v21, 7, v9
            v_add_u32 v21, {HS}, v21
            v_mov_b32 v176, 0
            v_mov_b32 v177, 0
            v_and_b32 v10, 1, v0
            v_cmp_eq_u32 vcc, 0, v10
            v_mov_b32 v9, {NEGBIG:#x}
            v_cndmask_b32 v178, 0, v9, vcc
            s_mov_b32 s30, 4096
            s_mov_b32 s31, 0x20000""")
        a(f"""v_lshlrev_b32 v15, 12, v2
            v_lshl_add_u32 v15, v1, 3, v15
            s_lshl_b32 s50, {sJ}, 3
            s_add_u32 s50, s50, {sW}
            s_lshl_b32 s50, s50, 13
            s_lshl_b32 s36, {sH}, 7
            s_add_u32 s50, s50, s36
            s_add_u32 s50, s50, {H5}
            v_mov_b32 v213, {sTAG}
            s_lshr_b32 s33, 0x37, {sW}
            s_and_b32 s33, s33, 1
            s_cbranch_scc0 L_nopoll""")
        self.poll_rows("v14", "s49")
        a("""L_nopoll:
            ds_write_b64 v12, v[176:177]
            ds_write_b32 v13, v178
            s_waitcnt vmcnt(0) lgkmcnt(0)
            s_barrier""")
        self.stamp(14)
        a("ds_read_b64 v[22:23], v21")
        for s in range(4):
            a(f"ds_read_b128 {vr(176 + 4 * s, 4)}, v20 offset:{64 * s}")
            for p in range(2):
                a(f"ds_read_b64_tr_b16 {vr(160 + 4 * s + 2 * p, 2)}, v7 offset:{4096 * s + 512 * p}")
        chain = [f"v_max_f32_dpp v8, v22, v22 quad_perm:[1,0,3,2] {FULL}\nv_max_f32_dpp v8, v8, v8 quad_perm:[2,3,0,1] {FULL}\nv_sub_f32 v8, v22, v8\nv_exp_f32 v8, v8",
                 "v_mul_f32 v9, v8, v23",
                 f"v_add_f32_dpp v9, v9, v9 quad_perm:[1,0,3,2] {FULL}",
                 f"v_add_f32_dpp v9, v9, v9 quad_perm:[2,3,0,1] {FULL}\nv_rcp_f32 v9, v9"]
        a("s_waitcnt lgkmcnt(12)")
        for s in range(4):
            c = "0" if s == 0 else "v[208:211]"
            a(chain[s])
            a(f"s_waitcnt lgkmcnt({9 - 3 * s})")
            a(f"v_mfma_f32_16x16x32_bf16 v[208:211], {vr(176 + 4 * s, 4)}, {vr(160 + 4 * s, 4)}, {c}")
        a("v_mul_f32 v8, v8, v9")
        for r in range(3):
            op = "v_mul_f32_dpp" if r == 0 else "v_fmac_f32_dpp"
            a(f"{op} v212, v8, v{208 + r} row_newbcast:{r} row_mask:0x1 bank_mask:0xf")
            a(f"{op} v212, v8, v{208 + r} row_newbcast:{4 + r} row_mask:0x2 bank_mask:0xf")
        self.exec64(0xffffffff, 0)
        a(f"buffer_store_dwordx2 v[212:213], v15, {SRDW}, s50 offen sc1")
        a("s_mov_b64 exec, -1")
        self.stamp(15)
        a(f"s_cmp_lg_u32 {sW}, 7\ns_cbranch_scc1 L_done")
        a(f"""v_lshrrev_b32 v7, 2, v0
            v_lshlrev_b32 v7, 7, v7
            v_and_b32 v8, 3, v0
            v_lshl_add_u32 v7, v8, 4, v7
            s_lshl_b32 s33, {sJ}, 4
            s_lshr_b32 s36, {sH}, 1
            s_add_u32 s33, s33, s36
            s_lshl_b32 s33, s33, 12
            s_and_b32 s38, {sH}, 1
            s_lshl_b32 s39, s38, 6
            s_add_u32 s33, s33, s39
            s_add_u32 s33, s33, {H5}
            s_and_b32 s36, s36, 1
            s_lshl_b32 s36, s36, 11
            s_lshr_b32 s39, {sH}, 4
            s_lshl_b32 s39, s39, 10
            s_add_u32 s36, s36, s39
            s_lshl_b32 s39, {sJ}, 7
            s_add_u32 s36, s36, s39
            s_bfe_u32 s39, {sH}, 0x20002
            s_lshl_b32 s39, s39, 5
            s_add_u32 s36, s36, s39
            s_lshl_b32 s39, s38, 4
            s_add_u32 s36, s36, s39
            v_lshlrev_b32 v13, 2, v0
            s_mov_b32 s37, {SPIN}
            L_fp:
            buffer_load_dwordx4 v[20:23], v7, {SRDW}, s33 offen sc1
            buffer_load_dwordx4 v[24:27], v7, {SRDW}, s33 offen offset:2048 sc1
            s_sub_u32 s37, s37, 1
            s_waitcnt vmcnt(0)
            s_cbranch_scc1 L_fok
            v_bitop3_b32 v8, v21, v23, {sTAG} bitop3:0x7e
            v_bitop3_b32 v9, v25, v27, {sTAG} bitop3:0x7e
            v_or_b32 v8, v8, v9
            v_cmp_ne_u32 vcc, 0, v8
            s_cbranch_vccnz L_fp
            L_fok:
            v_add_f32 v8, v20, v24
            v_add_f32 v9, v22, v26""")
        self.stamp(16)
        for sh in (4, 8):
            for r in (8, 9):
                a(f"v_add_f32_dpp v{r}, v{r}, v{r} row_ror:{sh} {FULL}")
        a("""v_permlane32_swap_b32 v8, v9
            v_add_f32 v8, v8, v9
            v_mov_b32 v9, v8
            v_permlane16_swap_b32 v8, v9
            v_add_f32 v8, v8, v9
            v_mov_b32 v9, v8
            v_permlane32_swap_b32 v8, v9
            v_cvt_pk_bf16_f32 v8, v8, v9
            s_mov_b64 exec, 15""")
        a(f"buffer_store_dword v8, v13, {SRDX}, s36 offen {self.outfl}")
        a(f"""s_or_b32 s33, {sH}, {sJ}
            s_cbranch_scc1 L_done
            s_mov_b64 exec, 1
            buffer_store_dword v213, off, {SRDW}, 0 offset:{EPOCH} sc1
            L_done:""")
        if self.calib:
            a(f"""L_cal:
                s_memrealtime s[98:99]
                s_waitcnt lgkmcnt(0)
                s_sub_u32 s98, s98, s96
                s_cmp_lt_u32 s98, {self.calib * 100}
                s_cbranch_scc1 L_cal""")
        if self.dbg:
            a("s_mov_b64 exec, -1")
            self.stamp(17)
            a(f"""s_getreg_b32 s33, hwreg(HW_REG_XCC_ID)
                v_writelane_b32 v63, s33, 31
                s_lshl_b32 s33, s2, 3
                s_add_u32 s33, s33, {sW}
                s_lshl_b32 s33, s33, 7
                s_add_u32 s33, s33, {STAMP}
                v_lshlrev_b32 v7, 2, v0""")
            self.exec64(0xffffffff, 0)
            a(f"buffer_store_dword v63, v7, {SRDW}, s33 offen")

    def role_b(self):
        a = self.a
        D = self.bdepth
        QAR, FR, O, S2, S3, PF, S = 64, 128, 160, 192, 224, 32, 48
        a("L_roleB:")
        a("s_load_dwordx2 s[16:17], s[0:1], 72\ns_mov_b32 s18, 0x400000")
        self.second_batch(lambda: None)
        self.load_e2_ptr()
        for i in range(8):
            a(f"s_waitcnt vmcnt({D - 1})\ns_add_u32 m0, s44, {dest(i) + 16384}\ns_nop 0")
            a(f"buffer_load_dwordx4 v{3 + (i & 1)}, {SRD0}, s43 offen nt lds\ns_add_u32 s43, s43, 8192")
        self.stamp(1)

        def stage(i):
            a(f"s_add_u32 s33, s43, {8192 * i}\nbuffer_load_dwordx4 {vr(S2 + 4 * i, 4)}, v{3 + (i & 1)}, {SRD0}, s33 offen nt")

        def late(i, wait=None):
            sk = self.lab("lt")
            a(f"s_cmp_le_u32 s62, {i}\ns_cbranch_scc1 {sk}")
            if wait is not None:
                a(f"s_waitcnt vmcnt({wait})")
            stage(i)
            a(f"{sk}:")

        a(f"""s_and_b32 s54, {sW}, 3
            s_lshr_b32 s55, {sW}, 2
            v_and_b32 v7, 3, v1
            v_lshlrev_b32 v7, 2, v7
            v_lshrrev_b32 v8, 2, v1
            v_or_b32 v7, v7, v8
            v_lshlrev_b32 v7, 4, v7
            v_lshl_add_u32 v7, v2, 8, v7
            v_lshl_add_u32 v7, v1, 10, v7
            s_lshl_b32 s33, s54, 15
            v_add_u32 v28, s33, v7
            v_lshlrev_b32 v7, 4, v1
            v_lshl_add_u32 v7, v2, 8, v7
            v_lshl_add_u32 v7, v1, 10, v7
            s_lshl_b32 s33, s55, 14
            s_add_u32 s33, s33, {AUX}
            v_add_u32 v29, s33, v7
            v_lshrrev_b32 v9, 1, v2
            v_and_b32 v10, 1, v2
            v_bfe_u32 v11, v0, 1, 1
            v_lshl_or_b32 v11, v10, 1, v11
            s_lshl_b32 s33, {sW}, 3
            v_or_b32 v11, s33, v11
            v_lshlrev_b32 v12, 2, v8
            v_lshl_or_b32 v12, v9, 1, v12
            v_xor_b32 v11, v11, v12
            v_lshlrev_b32 v11, 4, v11
            v_lshl_add_u32 v12, v9, 3, v8
            v_lshl_add_u32 v11, v12, 10, v11
            v_and_b32 v12, 1, v0
            v_lshl_add_u32 v20, v12, 3, v11
            v_xor_b32 v21, 16, v20
            v_add_u32 v21, 4096, v21
            v_xor_b32 v22, 64, v20
            v_xor_b32 v23, 64, v21""")
        for k in range(4):
            a(f"v_add_u32 v{24 + k}, 65536, v{20 + k}")
        a(f"""s_lshl_b32 s33, s55, 8
            s_add_u32 s33, s33, {MX}
            v_lshl_add_u32 v30, v1, 4, s33
            s_lshl_b32 s33, s54, 2
            v_add_u32 v31, s33, v30
            v_and_b32 v7, 31, v0
            v_lshlrev_b32 v56, 4, v7
            v_add_u32 v56, {MX}, v56
            v_mul_u32_u24 v60, 272, v7
            v_lshl_add_u32 v60, v9, 4, v60
            v_add_u32 v60, {PB}, v60
            v_mul_u32_u24 v61, 272, v1
            v_lshl_add_u32 v61, v2, 3, v61
            s_mul_i32 s33, s55, {16 * 272}
            s_lshl_b32 s36, s54, 6
            s_add_u32 s33, s33, s36
            s_add_u32 s33, s33, {PB}
            v_add_u32 v61, s33, v61
            v_add_u32 v19, s44, v16
            v_add_u32 v62, 65536, v19
            v_mov_b32 v57, {NEGBIG:#x}
            v_mov_b32 v58, {NEGBIG:#x}
            v_mov_b32 v59, 0
            v_lshlrev_b32 v7, 1, v2
            v_xor_b32 v7, v7, v1
            v_lshlrev_b32 v7, 4, v7
            v_lshl_add_u32 v5, v2, 13, v7
            v_xor_b32 v6, 128, v5
            s_lshl_b32 s45, {sB}, 21
            s_lshl_b32 s36, {sW}, 18
            s_add_u32 s45, s45, s36
            s_lshl_b32 s36, {sH}, 8
            s_add_u32 s45, s45, s36""")
        for k in range(32):
            a(f"v_mov_b32 v{O + k}, 0")
        a(f"""s_lshl_b32 s33, {sH}, 1
            s_add_u32 s33, s33, {sB}
            s_lshl_b32 s33, s33, 3
            s_add_u32 s33, s33, {sW}
            s_lshl_b32 s33, s33, 7
            s_add_u32 s33, s33, {F2}
            s_add_u32 s34, s12, s33
            s_addc_u32 s35, s13, 0
            s_lshl_b32 s49, {sB}, 15
            s_lshl_b32 s36, {sW}, 12
            s_add_u32 s49, s49, s36
            s_add_u32 s49, s49, {QABS}
            s_add_u32 s50, s36, {AUX}
            s_mov_b32 s60, {sTAG}
            s_mov_b32 s61, {sTAG}""")

        def flags_differ():
            for k in range(4):
                a(f"s_xor_b64 s[{64 + 2 * k}:{65 + 2 * k}], s[{64 + 2 * k}:{65 + 2 * k}], s[60:61]")
            a("s_or_b64 s[64:65], s[64:65], s[66:67]\ns_or_b64 s[68:69], s[68:69], s[70:71]\ns_or_b64 s[64:65], s[64:65], s[68:69]")
        for i in range(15, 3, -2):
            chk = 17 - i >= self.bmin
            if chk:
                a("s_load_dwordx8 s[64:71], s[34:35], 0 glc")
            for k in (i, i - 1):
                a(f"s_waitcnt vmcnt({D - 1})")
                stage(k)
            if chk:
                a(f"s_mov_b32 s62, {i - 1}\ns_waitcnt lgkmcnt(0)")
                flags_differ()
                a("s_cbranch_scc0 L_h2ok")
        self.stamp(2)
        a(f"""s_mov_b32 s62, 4
            s_mov_b32 s37, {SPIN}
            L_h2:
            s_load_dwordx8 s[64:71], s[34:35], 0 glc
            s_sub_u32 s37, s37, 1
            s_waitcnt lgkmcnt(0)
            s_cbranch_scc1 L_h2ok""")
        flags_differ()
        a("s_cbranch_scc1 L_h2")
        a("L_h2ok:")
        self.stamp(3)
        def qcopy():
            a(f"""s_lshl_b32 s33, s54, 6
                v_xor_b32 v12, s33, v16
                v_xor_b32 v13, 16, v12
                v_xor_b32 v14, 32, v12
                v_xor_b32 v15, 48, v12
                s_mov_b32 m0, s50""")
            for i in range(4):
                a(f"buffer_load_dwordx4 v{12 + i}, {SRDW}, s49 offen offset:{1024 * i} sc1 lds")

        def qread():
            for s in range(16):
                a(f"v_xor_b32 v7, {s << 4}, v29\nds_read_b128 {vr(QAR + 4 * s, 4)}, v7")
        qcopy()
        a("s_barrier")
        for i in range(4):
            a(f"s_waitcnt vmcnt({D + 1})")
            stage(i)
        a("s_waitcnt vmcnt(4)\ns_barrier")
        self.stamp(4)
        a("s_mov_b32 s37, 4096\nL_qa:")
        qread()
        a("s_waitcnt lgkmcnt(0)\ns_barrier")

        def put(reg, sig):
            for i in range(8):
                d = dest(i) + 16384 * sig
                a(f"ds_write_b128 v{62 if d >> 16 else 19}, {vr(reg + 4 * i, 4)} offset:{d & 0xffff}")

        def step(t, hook):
            def rd(r):
                if r & 1 == 0:
                    a(f"v_xor_b32 v7, {(r >> 1) << 4}, v28")
                a(f"ds_read_b128 {vr(FR + 4 * (r & 7), 4)}, v7 offset:{16384 * (r & 1)}")

            def tr(be, blk):
                for p in range(2):
                    ar = 20 + 4 * (be >> 2) + 2 * blk + p
                    a(f"ds_read_b64_tr_b16 {vr(FR + 8 * (be & 3) + 4 * blk + 2 * p, 2)}, v{ar} offset:{(be & 3) * 16384}")
            if t: self.cyc(0); a("s_waitcnt lgkmcnt(0)")
            for r in range(8):
                rd(r)
            for r in range(32):
                a(f"s_waitcnt lgkmcnt({7 if r <= 24 else r - 17})")
                acc = vr(S + 4 * (r & 1), 4)
                a(f"v_mfma_f32_16x16x32_bf16 {acc}, {vr(FR + 4 * (r & 7), 4)}, {vr(QAR + 4 * (r >> 1), 4)}, {'0' if r < 2 else acc}")
                if r in self.hookpos[t]:
                    hook(self.hookpos[t].index(r))
                if r < 24:
                    rd(r + 8)
                else:
                    tr((r - 24) >> 1, (r - 24) & 1)
            if t: self.cyc(1)
            a(f"""v_max3_f32 v7, v{S}, v{S + 1}, v{S + 2}
                v_max3_f32 v8, v{S + 4}, v{S + 5}, v{S + 6}
                v_max3_f32 v7, v7, v{S + 3}, v{S + 7}
                v_max_f32 v7, v7, v8""")
            for sw in ("v_permlane16_swap_b32", "v_permlane32_swap_b32"):
                a(f"v_mov_b32 v8, v7\n{sw} v8, v7\nv_max_f32 v7, v7, v8")
            a(f"""v_mul_f32 v7, s52, v7
                ds_write_b32 v31, v7
                s_waitcnt lgkmcnt(0)
                {'s_memtime s[68:69]' if t and 'cyc' in self.diag else ''}
                s_barrier
                {'s_memtime s[70:71]' if t and 'cyc' in self.diag else ''}
                {'s_waitcnt lgkmcnt(0)' if t and 'cyc' in self.diag else ''}
                ds_read_b128 v[8:11], v30
                ds_read_b128 v[12:15], v56""")
            if t == 0 and self.noack:
                a("s_waitcnt lgkmcnt(0)\nv_cmp_u_f32 vcc, v12, v12\ns_cbranch_vccnz L_qretry\nL_qaok:")
                if self.dbg is True:
                    a("s_sub_u32 s33, 4096, s37\nv_writelane_b32 v63, s33, 29")
            a(f"""s_waitcnt lgkmcnt(1)
                v_max3_f32 v8, v8, v9, v10
                v_max3_f32 v8, v8, v11, v57
                v_sub_f32 v9, v57, v8
                v_mov_b32 v57, v8""")
            for r in range(8):
                a(f"v_fma_f32 v{S + r}, v{S + r}, s52, -v8")
            for r in range(8):
                a(f"v_exp_f32 v{S + r}, v{S + r}")
            a("v_exp_f32 v9, v9")
            for r in range(4):
                a(f"v_cvt_pk_bf16_f32 v{PF + r}, v{S + 2 * r}, v{S + 2 * r + 1}")
            a(f"""ds_write_b64 v61, {vr(PF, 2)}
                ds_write_b64 v61, {vr(PF + 2, 2)} offset:32
                s_waitcnt lgkmcnt(2)
                v_max3_f32 v12, v12, v13, v14
                v_max3_f32 v12, v12, v15, v58
                v_sub_f32 v14, v58, v12
                v_exp_f32 v14, v14
                v_mov_b32 v58, v12
                s_waitcnt lgkmcnt(0)
                {'s_memtime s[72:73]' if t and 'cyc' in self.diag else ''}
                s_barrier
                {'s_memtime s[74:75]' if t and 'cyc' in self.diag else ''}""")
            for be in range(4):
                a(f"ds_read_b128 {vr(PF + 4 * be, 4)}, v60 offset:{32 * be}")
            a(f"""v_pk_add_f32 {vr(S, 2)}, {vr(S, 2)}, {vr(S + 2, 2)}
                v_pk_add_f32 {vr(S + 4, 2)}, {vr(S + 4, 2)}, {vr(S + 6, 2)}
                v_fma_f32 v59, v59, v9, v{S}
                v_add_f32 v{S + 4}, v{S + 4}, v{S + 5}
                v_add_f32 v59, v59, v{S + 1}
                v_add_f32 v59, v59, v{S + 4}""")
            if t > 0:
                for sw in ("v_permlane16_swap_b32", "v_permlane32_swap_b32"):
                    a(f"v_mov_b32 v8, v59\n{sw} v8, v59\nv_add_f32 v59, v59, v8")
                a(f"ds_write_b32 v31, v59 offset:{LS - MX}")
                for k in range(16):
                    a(f"v_pk_mul_f32 {vr(O + 2 * k, 2)}, {vr(O + 2 * k, 2)}, v[14:15] op_sel_hi:[1,0]")
            for be in range(8):
                if be in (0, 5, 6, 7):
                    a(f"s_waitcnt lgkmcnt({ {0: 0, 5: 10, 6: 5, 7: 0}[be] })")
                if be == 7:
                    a("s_barrier")
                for blk in range(2):
                    a(f"v_mfma_f32_32x32x16_bf16 {vr(O + 16 * blk, 16)}, {vr(FR + 8 * (be & 3) + 4 * blk, 4)}, {vr(PF + 4 * (be & 3), 4)}, {vr(O + 16 * blk, 16)}")
                if t == 0 and be in (0, 2, 4, 6):
                    hook(len(self.hookpos[0]) + be // 2)
                if be < 4:
                    if be == 3:
                        a("s_waitcnt lgkmcnt(10)")
                    a(f"ds_read_b128 {vr(PF + 4 * be, 4)}, v60 offset:{32 * (be + 4)}")
                    tr(be + 4, 0); tr(be + 4, 1)

        def uv(i):
            a(f"buffer_load_dwordx4 {vr(S2 + 4 * i, 4)}, v{5 + (i & 1)}, {SRDK}, s45 offen nt\ns_add_u32 s45, s45, 32768")

        step(0, lambda k: late(4 + k))
        self.stamp(5)
        for i in range(8 + len(self.hookpos[0]), 14):
            late(i, D - 1)
        a("s_sub_u32 s33, s62, 4\ns_lshl_b32 s63, 15, s33\ns_waitcnt vmcnt(4)")
        for rnd in range(2):
            for i in range(16):
                if rnd and i >= 14:
                    continue
                sk = self.lab("pt")
                d = dest(i & 7) + 16384 * (i >> 3)
                if i < 14:
                    a(f"s_bitcmp1_b32 s63, {i}\ns_cbranch_scc{1 - rnd} {sk}")
                a(f"ds_write_b128 v{62 if d >> 16 else 19}, {vr(S2 + 4 * i, 4)} offset:{d & 0xffff}\n{sk}:")
            if rnd == 0:
                a("s_waitcnt vmcnt(0)")
                self.stamp(6)
        a("s_waitcnt lgkmcnt(0)")
        for i in range(4):
            uv(i)
        a(f"""s_lshl_b32 s50, s55, 15
            s_lshl_b32 s36, s54, 12
            s_add_u32 s50, s50, s36
            s_add_u32 s50, s50, {PART[0]}
            v_and_b32 v7, 31, v0
            v_and_b32 v8, 7, v0
            v_lshlrev_b32 v9, 4, v8
            v_lshl_add_u32 v9, v7, 7, v9
            v_lshrrev_b32 v10, 5, v0
            v_lshl_add_u32 v9, v10, 3, v9
            v_lshrrev_b32 v10, 3, v0
            v_xor_b32 v11, v8, v10
            v_lshlrev_b32 v11, 4, v11
            v_lshl_add_u32 v11, v10, 7, v11
            v_lshlrev_b32 v12, 4, v8
            s_lshl_b32 s49, s55, 15
            s_lshl_b32 s36, {sB}, 14
            s_add_u32 s49, s49, s36
            s_lshl_b32 s36, {sH}, 9
            s_add_u32 s49, s49, s36
            s_lshl_b32 s36, s54, 7
            s_add_u32 s49, s49, s36
            s_add_u32 s49, s49, {OP}
            s_lshl_b32 s53, {sB}, 9
            s_lshl_b32 s36, {sH}, 4
            s_add_u32 s53, s53, s36
            s_add_u32 s53, s53, {ST}
            s_waitcnt lgkmcnt(0)
            s_barrier
            v_add_u32 v{S3}, s50, v9
            v_add_u32 v{S3 + 8}, s50, v11
            v_lshl_add_u32 v{S3 + 9}, v10, 16, v12
            v_lshlrev_b32 v{S3 + 10}, 10, v0
            v_mov_b32 v{S3 + 14}, {sTAG}
            v_mov_b32 v{S3 + 15}, {sTAG}
            v_mov_b32 v{S3 + 11}, 0x10001""")
        for k in range(4):
            a(f"s_bfe_u32 s33, {sTAG}, {0x20000 + 2 * k:#x}\ns_mul_i32 s33, s33, 0x8001\ns_and_b32 s{56 + k}, s33, 0x10001")
        for k in range(1, 8):
            a(f"v_xor_b32 v{S3 + k}, {16 * k}, v{S3}")
        self.stamp(7)
        step(1, lambda k: uv(4 + k))
        self.cyc(6)
        self.stamp(8)
        if 'cyc' in self.diag:
            for k in range(1, 7):
                a(f"s_sub_u32 s33, s{64 + 2 * k}, s64\nv_writelane_b32 v63, s33, {23 + k}")

        if 'Bstop8' in self.diag:
            a("s_branch L_done")
        a(f"""s_cmp_lg_u32 {sW}, 0
            s_cbranch_scc1 L_nost
            ds_read_b128 v[8:11], v56 offset:{LS - MX}
            v_mov_b32 v{S3 + 12}, v58
            s_waitcnt lgkmcnt(0)
            v_add_f32 v8, v8, v9
            v_add_f32 v10, v10, v11
            v_add_f32 v{S3 + 13}, v8, v10""")
        self.exec64(0xffffffff, 0)
        a(f"buffer_store_dwordx4 {vr(S3 + 12, 4)}, v{S3 + 10}, {SRDW}, s53 offen sc1\ns_mov_b64 exec, -1\nL_nost:\ns_nop 11")
        for k in range(8):
            a(f"v_cvt_pk_bf16_f32 v{FR + 2 * k}, v{O + 4 * k}, v{O + 4 * k + 1}")
            a(f"v_cvt_pk_bf16_f32 v{FR + 2 * k + 1}, v{O + 4 * k + 2}, v{O + 4 * k + 3}")
            a(f"ds_write_b64 v{S3 + k}, {vr(FR + 2 * k, 2)}")
        for i in range(4):
            a(f"ds_read_b128 {vr(FR + 16 + 4 * i, 4)}, v{S3 + 8} offset:{1024 * i}")
        for i in range(4):
            a(f"s_waitcnt lgkmcnt({3 - i})")
            for k in range(4):
                a(f"v_bfi_b32 v{FR + 16 + 4 * i + k}, v{S3 + 11}, s{56 + k}, v{FR + 16 + 4 * i + k}")
            a(f"{'' if i < self.nst else ';'}buffer_store_dwordx4 {vr(FR + 16 + 4 * i, 4)}, v{S3 + 9}, {SRDW}, s49 offen {self.pfl}\ns_add_u32 s49, s49, {8 * 65536}")
        self.stamp(9)
        self.e2_dma_setup()
        a(f"""s_lshl_b32 s33, {sH}, 10
            s_lshl_b32 s36, {sW}, 7
            s_add_u32 s33, s33, s36
            s_add_u32 s33, s33, {ST}
            s_add_u32 s34, s12, s33
            s_addc_u32 s35, s13, 0
            v_lshrrev_b32 v7, 5, v0
            s_and_b32 s33, {sW}, 1
            s_lshl_b32 s33, s33, 2
            v_or_b32 v7, s33, v7
            v_lshlrev_b32 v7, 5, v7
            v_xor_b32 v3, v7, v16
            v_xor_b32 v4, 64, v3
            s_lshl_b32 s49, {sH}, 16
            s_lshl_b32 s36, {sB}, 15
            s_add_u32 s49, s49, s36
            s_lshl_b32 s36, {sW}, 12
            s_add_u32 s49, s49, s36
            s_add_u32 s49, s49, {OP}
            v_add_u32 v5, s50, v16
            v_lshrrev_b32 v8, 2, v1
            v_lshrrev_b32 v9, 1, v2
            v_and_b32 v10, 1, v2
            v_lshlrev_b32 v7, 15, v9
            v_lshl_add_u32 v7, v10, 13, v7
            v_lshl_add_u32 v7, v8, 8, v7
            v_and_b32 v11, 3, v0
            v_lshl_add_u32 v7, v11, 3, v7
            v_lshl_or_b32 v10, v10, 2, v8
            v_xor_b32 v9, {sW}, v10
            v_lshl_add_u32 v20, v9, 5, v7
            v_add_u32 v21, 65536, v20
            v_lshlrev_b32 v7, 12, v2
            v_lshl_add_u32 v7, v8, 9, v7
            v_lshl_add_u32 v7, v11, 3, v7
            s_lshl_b32 s33, {sW}, 1
            v_xor_b32 v10, s33, v10
            v_lshl_add_u32 v7, v10, 5, v7
            v_add_u32 v24, {PART[0]}, v7
            v_xor_b32 v25, 32, v24
            s_lshl_b32 s33, {sW}, 7
            s_add_u32 s36, s33, {WB}
            v_lshl_add_u32 v22, v0, 1, s36
            v_and_b32 v8, 1, v0
            v_lshlrev_b32 v7, 6, v8
            v_lshl_add_u32 v7, v2, 4, v7
            v_add_u32 v23, s36, v7
            v_add_u32 v27, {CC}, v7
            v_add_u32 v26, s33, v27
            v_lshlrev_b32 v7, 11, v8
            v_lshl_add_u32 v28, v2, 4, v7
            s_lshl_b32 s53, {sH}, 12
            s_lshl_b32 s36, {sB}, 9
            s_add_u32 s53, s53, s36
            s_lshl_b32 s36, {sW}, 6
            s_add_u32 s53, s53, s36
            s_add_u32 s53, s53, {H4B}
            s_add_u32 s36, s36, {SM}
            v_lshl_add_u32 v29, v0, 3, s36
            v_lshlrev_b32 v30, 3, v0
            v_add_u32 v30, {SM}, v30
            v_and_b32 v7, 1, v2
            v_cvt_f32_u32 v54, v7
            v_mul_f32 v54, 0.5, v54
            v_mov_b32 v55, {sTAG}
            s_waitcnt vmcnt(4)""")
        put(S2, 0)
        if 'Bstop9' in self.diag:
            a("s_branch L_done")
        a(f"""s_mov_b32 s37, {SPIN}
            L_h3:
            {f's_sleep {self.ps[1]}' if self.ps[1] else ''}
            s_load_dwordx16 s[64:79], s[34:35], 0 glc
            s_load_dwordx16 s[80:95], s[34:35], 64 glc
            s_sub_u32 s37, s37, 1
            s_waitcnt lgkmcnt(0)
            s_cbranch_scc1 L_h3ok""")
        for k in range(8):
            a(f"s_cmp_lg_u32 s{66 + 4 * k}, {sTAG}\ns_cbranch_scc1 L_h3")
        a("L_h3ok:")
        self.stamp(10)

        def fetch():
            for i in range(4):
                a(f"buffer_load_dwordx4 {vr(O + 4 * i, 4)}, v{3 + (i & 1)}, {SRDW}, s49 offen offset:{1024 * i} {self.gfl}")
        fetch()
        for k in range(8):
            a(f"v_writelane_b32 v8, s{64 + 4 * k}, {k}\nv_writelane_b32 v9, s{65 + 4 * k}, {k}")
        a("""s_mov_b64 exec, 0xff
            ds_write_b64 v29, v[8:9]
            s_mov_b64 exec, -1
            s_waitcnt lgkmcnt(0)
            s_barrier
            ds_read_b64 v[12:13], v30""")
        for s in range(7):
            for p in range(2):
                a(f"ds_read_b64_tr_b16 {vr(QAR + 4 * s + 2 * p, 2)}, v{20 + p} offset:{1024 * s}")
        a("s_waitcnt lgkmcnt(14)\nv_mov_b32 v14, v12")

        def red32(op, r, t):
            for sh in (1, 2, 4, 8):
                a(f"{op}_dpp v{r}, v{r}, v{r} row_ror:{sh} {FULL}")
            a(f"v_mov_b32 v{t}, v{r}\nv_permlane16_swap_b32 v{t}, v{r}\n{op} v{r}, v{r}, v{t}")
        red32("v_max_f32", 14, 15)
        for p in range(2):
            a(f"ds_read_b64_tr_b16 {vr(QAR + 28 + 2 * p, 2)}, v{20 + p} offset:{1024 * 7}")
        a("v_sub_f32 v12, v12, v14\nv_exp_f32 v12, v12\nv_mul_f32 v13, v12, v13")
        red32("v_add_f32", 13, 15)
        a(f"""v_rcp_f32 v13, v13
            v_mul_f32 v12, v12, v13
            v_cvt_pk_bf16_f32 v12, v12, v12
            ds_write_b16 v22, v12
            ds_read_b128 v[12:15], v23
            v_cmp_eq_u32 vcc, 0, v1
            v_cmp_eq_u32 s[38:39], 1, v1
            s_mov_b32 s37, {SPIN}
            s_waitcnt lgkmcnt(0)""")
        for k in range(4):
            a(f"v_cndmask_b32 v{32 + k}, 0, v{12 + k}, vcc")
            a(f"v_cndmask_b32 v{36 + k}, 0, v{12 + k}, s[38:39]")
        a(f"""L_h3p:
            s_waitcnt vmcnt(0)
""")
        for k in range(4):
            a(f"v_bitop3_b32 v{8 + 2 * k}, v{O + k}, v{O + 4 + k}, s{56 + k} bitop3:0x7e")
            a(f"v_bitop3_b32 v{9 + 2 * k}, v{O + 8 + k}, v{O + 12 + k}, s{56 + k} bitop3:0x7e")
        a(f"""v_or3_b32 v8, v8, v9, v10
            v_or3_b32 v11, v11, v12, v13
            v_or3_b32 v8, v8, v14, v15
            v_or_b32 v8, v8, v11
            v_and_b32 v8, 0x10001, v8
            v_cmp_ne_u32 vcc, 0, v8
            s_cbranch_vccz L_h3pok
            s_sub_u32 s37, s37, 1
            s_cbranch_scc1 L_h3pok""")
        fetch()
        a("s_branch L_h3p\nL_h3pok:")
        for i in range(4):
            a(f"ds_write_b128 v5, {vr(O + 4 * i, 4)} offset:{1024 * i}")
        if self.dbg is True:
            a(f"s_sub_u32 s33, {SPIN}, s37\nv_writelane_b32 v63, s33, 30")
        a("s_waitcnt lgkmcnt(0)\ns_barrier")
        self.stamp(11)
        for s in range(2):
            for cb in range(2):
                for p in range(2):
                    a(f"ds_read_b64_tr_b16 {vr(FR + 8 * s + 4 * cb + 2 * p, 2)}, v{24 + cb} offset:{32768 * s + 2048 * p}")
        for i in range(4):
            self.e2_dma(i)
        for s in range(2):
            for cb in range(2):
                a(f"s_waitcnt lgkmcnt({6 - 4 * s - 2 * cb})")
                c = "0" if s == 0 else vr(40 + 4 * cb, 4)
                a(f"v_mfma_f32_16x16x32_bf16 {vr(40 + 4 * cb, 4)}, {vr(FR + 8 * s + 4 * cb, 4)}, {vr(32 + 4 * s, 4)}, {c}")
        for k in range(4):
            a(f"v_cvt_pk_bf16_f32 v{48 + k}, v{40 + 2 * k}, v{41 + 2 * k}")
        self.exec64(0x00030003)
        a("ds_write_b128 v26, v[48:51]\ns_mov_b64 exec, -1\ns_waitcnt lgkmcnt(0)\ns_barrier")
        for s in range(8):
            a(f"ds_read_b128 {vr(FR + 4 * s, 4)}, v27 offset:{128 * s}")
        for s in range(8):
            a(f"s_waitcnt lgkmcnt({7 - s})")
            a(f"v_mfma_f32_16x16x32_bf16 v[40:43], {vr(QAR + 4 * s, 4)}, {vr(FR + 4 * s, 4)}, {'v[40:43]' if s else '0'}")
        self.exec64(0x00030003)
        a("v_cvt_pk_bf16_f32 v52, v40, v41\nv_cvt_pk_bf16_f32 v53, v42, v43")
        a(f"buffer_store_dwordx4 v[52:55], v28, {SRDW}, s53 offen sc1\ns_mov_b64 exec, -1\ns_branch L_stageE2")
        if self.noack:
            a("L_qretry:\ns_sub_u32 s37, s37, 1\ns_cbranch_scc1 L_qaok\ns_barrier")
            qcopy()
            a("s_waitcnt vmcnt(0)\ns_barrier\ns_branch L_qa")

    def build(self):
        a = self.a
        self.entry()
        self.p1()
        a("L_rolePU:")
        self.p2()
        self.a_common()
        self.e2()
        a("s_endpgm")
        self.role_b()
        a("L_end:\ns_endpgm")
        body = a.finalize()
        return f"""{HEADER}; Generated by a script; one persistent launch, 256 workgroups of 8 waves (one per CU).
; @launch grid=(256,1,1) block=(512,1,1) lds={LDS_BYTES}
.amdgcn_target "amdgcn-amd-amdhsa--gfx950"
.text
.globl {NAME}
.p2align 8
.type {NAME},@function
{NAME}:
{body}.section .rodata,"a"
.p2align 6
.amdhsa_kernel {NAME}
  .amdhsa_next_free_vgpr 256
  .amdhsa_next_free_sgpr 102
  .amdhsa_accum_offset 256
  .amdhsa_group_segment_fixed_size 0
  .amdhsa_kernarg_size 112
  .amdhsa_user_sgpr_count 2
  .amdhsa_user_sgpr_kernarg_segment_ptr 1
  .amdhsa_system_sgpr_workgroup_id_x 1
  .amdhsa_float_denorm_mode_32 3
.end_amdhsa_kernel
"""


if __name__ == "__main__":
    out = sys.argv[1]
    kw = eval("dict(" + (sys.argv[2] if len(sys.argv) > 2 else "") + ")")
    open(out, "w").write(Gen(**kw).build())
```

```python
import sys
from asmlib import Asm

NAME = "concat_heads__sliding_block_cached__compressed_kv_cla__decode_kernel"
HEADER = open("concat_heads__sliding_block_cached__compressed_kv_cla__decode.s.ref").read().split("; Override launch")[0]

EPOCH = 0
QA = 0xa0000
QB = 0xc0000
CNT = 0xa00000
QABS = 0x30000
F2 = 0x40000
ST = 0x50000
H4A = 0x60000
H4B = 0x80000
OP = 0x100000
H5 = 0x400000
STAMP = 0x800000
WS_SIZE = 0x1000000

AUX = 131072
RED = AUX
MXA = AUX + 512
LSA = AUX + 8192 + 64
MX = AUX + 9216
LS = AUX + 9216 + 512
PB = AUX + 10240
SM = AUX + 28672
WB = AUX + 29696
TK = AUX + 768
XI = AUX + 12288
CC = AUX + 30720
QL = AUX + 10240
HI = AUX + 20480
HS = AUX + 26624
E2B = (81920, 114688)
PART = (16384, 49152)
LDS_BYTES = 163840

SCALE = 0x3e0293ee
NEGBIG = 0xff7fffff
SPIN = 1 << 18

sW, sH, sJ, sB, sT, sTAG = "s3", "s4", "s5", "s6", "s7", "s32"
SRD0, SRDW, SRDK, SRDV, SRDE, SRDX = "s[8:11]", "s[12:15]", "s[16:19]", "s[20:23]", "s[24:27]", "s[28:31]"
FULL = "row_mask:0xf bank_mask:0xf"


def vr(a, n):
    return f"v[{a}:{a + n - 1}]"


def dest(i):
    return (i >> 1) * 32768 + (i & 1) * 8192


class Gen:
    def __init__(self, dbg=False, depth=4, rot=True, pu_pre=0, calib=0, bdepth=5, nstatic=12, xfl='', pf=True, diag='', xpos=5, edepth=(4, 4, 3, 3), rounds=10, n0=9, lf=2, srot=0, amp=None, pfl='sc1', gfl='sc1', nst=4, jmul=3, outfl='', wlo=(0, 0), wend=12, ps=(0, 0, 0), lo=3, nlo=5, lofrom=1, noack=True, pollw=True, hookpos=((0, 8, 16, 24, 31), (16, 21, 26, 31)), bmin=2, e2early=False, hxa=2, hxu=1):
        self.a = Asm()
        self.dbg, self.depth, self.rot, self.pu_pre = dbg, depth, rot, pu_pre
        self.calib, self.bdepth, self.nstatic = calib, bdepth, nstatic
        self.uid = 0
        self.bmin, self.e2early, self.amp = bmin, e2early, amp
        self.lf, self.srot, self.pfl, self.gfl, self.nst = lf, srot, pfl, gfl, nst
        self.n0, self.jmul, self.outfl = n0, jmul, outfl
        self.ps, self.wlo, self.wend = ps, wlo, wend
        self.lo, self.nlo, self.lofrom = lo, nlo, lofrom
        self.rounds, self.hookpos, self.noack, self.pollw = rounds, hookpos, noack, pollw
        self.xpos, self.edepth, self.hxa, self.hxu = xpos, edepth, hxa, hxu
        self.xfl, self.pf, self.diag = xfl, pf, diag

    def lab(self, p):
        self.uid += 1
        return f"L_{p}_{self.uid}"

    def stamp(self, k):
        if self.dbg and (self.dbg is True or k in self.dbg or k == 17):
            self.a(f"s_memrealtime s[98:99]\ns_waitcnt lgkmcnt(0)\nv_writelane_b32 v63, s98, {k}")

    def cyc(self, k):
        if 'cyc' in self.diag:
            self.a(f"s_memtime s[{64 + 2 * k}:{65 + 2 * k}]")

    def exec64(self, lo, hi=None):
        hi = lo if hi is None else hi
        self.a(f"s_mov_b32 exec_lo, {lo:#x}\ns_mov_b32 exec_hi, {hi:#x}")

    def entry(self):
        a = self.a
        a("s_cmp_ge_u32 s2, 256\ns_cbranch_scc1 L_end")
        if self.dbg or self.calib:
            a("s_memrealtime s[96:97]")
        a(f"s_lshr_b32 {sH}, s2, 3")
        if self.rot:
            a(f"s_add_u32 {sJ}, s2, {sH}\ns_mul_i32 {sJ}, {sJ}, {self.jmul}\ns_and_b32 {sJ}, {sJ}, 7")
        else:
            a(f"s_and_b32 {sJ}, s2, 7")
        a(f"""s_and_b32 {sT}, {sJ}, 3
            s_lshl_b32 s33, {sT}, 3
            s_lshr_b32 s36, 0x30403838, s33
            s_and_b32 s36, s36, 0xff
            s_load_dwordx2 s[8:9], s[0:1], s36
            s_lshr_b32 s36, 0x30401818, s33
            s_and_b32 s36, s36, 0xff
            s_load_dwordx2 s[24:25], s[0:1], s36
            s_load_dwordx2 s[12:13], s[0:1], 104
            s_load_dwordx2 s[28:29], s[0:1], 0
            s_load_dwordx2 s[30:31], s[0:1], 40
            s_load_dwordx2 s[16:17], s[0:1], 8
            s_load_dwordx2 s[20:21], s[0:1], 16
            s_getpc_b64 s[34:35]
            L_pc:
            v_lshrrev_b32 v8, 6, v0
            s_lshr_b32 {sB}, {sJ}, 2
            v_readfirstlane_b32 {sW}, v8
            v_and_b32 v0, 63, v0
            v_and_b32 v1, 15, v0
            v_lshrrev_b32 v2, 4, v0
            v_lshlrev_b32 v16, 4, v0
            s_mov_b32 s11, 0x20000
            s_mov_b32 s10, 0x400000
            s_mov_b32 s27, 0x20000
            s_lshl_b32 s44, {sW}, 10
            s_mov_b32 s41, 65536
            s_mov_b32 s38, 64
            s_mov_b32 s39, 0
            s_mov_b32 s42, 32768
            s_cmp_eq_u32 {sT}, 3
            s_cbranch_scc1 L_e3
            v_mov_b32 v9, v2
            v_mov_b32 v10, v1
            s_cmp_eq_u32 {sT}, 2
            s_cbranch_scc1 L_e2
            s_lshl_b32 s63, {sT}, 1
            s_add_u32 s63, s63, {sB}
            s_lshl_b32 s40, s63, 20
            s_lshl_b32 s33, {sW}, 17
            s_add_u32 s40, s40, s33
            s_lshl_b32 s33, {sH}, 8
            s_xor_b32 s42, s33, {self.hxa << 8}
            s_sub_u32 s42, s42, s33
            s_add_u32 s40, s40, s33
            s_mov_b32 s41, 32768
            s_mov_b32 s38, 0
            s_mov_b32 s39, 128
            v_lshlrev_b32 v11, 1, v2
            s_branch L_ej
            L_e2:
            s_xor_b32 s63, {sH}, {self.hxu}
            s_lshl_b32 s40, {sW}, 18
            s_lshl_b32 s33, s63, 8
            s_add_u32 s40, s40, s33
            s_lshl_b32 s33, {sB}, 21
            s_add_u32 s40, s40, s33
            s_mov_b32 s39, 128
            v_mov_b32 v11, v2
            s_branch L_ej
            L_e3:
            s_lshl_b32 s40, {sB}, 23
            s_lshl_b32 s33, {sH}, 18
            s_add_u32 s40, s40, s33
            s_add_u32 s40, s40, s44
            s_mov_b32 s41, 8192
            s_mov_b32 s38, 32
            s_mov_b32 s10, 0x1000000
            s_and_b32 s33, {sW}, 3
            s_lshl_b32 s33, s33, 2
            s_lshr_b32 s36, {sW}, 2
            s_or_b32 s33, s33, s36
            v_mov_b32 v9, 0
            v_mov_b32 v10, v0
            v_mov_b32 v11, s33
            L_ej:
            v_xor_b32 v10, v10, v11
            v_lshlrev_b32 v10, 4, v10
            v_lshl_add_u32 v3, v9, 13, v10
            v_xor_b32 v4, s38, v3
            v_xor_b32 v5, s39, v3
            v_xor_b32 v6, s39, v4
            s_add_u32 s43, s40, s42
            s_mov_b32 s26, s10
            s_mov_b32 m0, s44
            s_waitcnt lgkmcnt(0)""")
        for i in range(4):
            a(f"buffer_load_dwordx4 v{3 + i}, {SRD0}, s40 offen nt lds")
            a(f"s_add_u32 m0, s44, {dest(i + 1)}\ns_add_u32 s40, s40, s41")
        a(f"""s_lshl_b32 s33, {sH}, 3
            s_add_u32 s33, s33, {sW}
            s_lshl_b32 s33, s33, 7
            s_min_u32 s33, s33, L_end-L_pc-64
            s_add_u32 s36, s33, 64
            s_load_dword s100, s[34:35], s33
            s_load_dword s101, s[34:35], s36
            s_load_dword {sTAG}, s[12:13], {EPOCH}
            s_mov_b32 s14, {WS_SIZE:#x}
            s_mov_b32 s15, 0x20000
            s_mov_b32 s19, 0x20000
            s_mov_b32 s52, {SCALE:#x}""")
        if self.dbg:
            a("v_mov_b32 v63, 0\nv_writelane_b32 v63, s96, 0")
        a(f"""s_cmp_eq_u32 {sT}, 3
            s_cbranch_scc1 L_roleB
            s_mov_b32 s18, 0x8000000
            s_mov_b32 s22, 0x8000000
            s_mov_b32 s23, 0x20000
            s_lshl_b32 s45, {sB}, 5
            s_add_u32 s45, s45, {sH}
            s_mul_i32 s42, s45, {self.srot}
            s_lshl_b32 s45, s45, 21
            s_add_u32 s45, s45, {6144 * 256}
            s_lshl_b32 s57, {sT}, 3
            s_add_u32 s57, s57, {sW}""")
        self.a_addr()
        a(f"v_add_u32 v7, {RED}, v16")
        for k in range(4):
            a(f"v_mov_b32 v{8 + k}, 0")
        a(f"ds_write_b128 v7, v[8:11]")
        a(f"s_cmp_eq_u32 {sT}, 2\ns_cbranch_scc1 L_rolePU")

    def second_batch(self, mid, extra=0):
        a = self.a
        for i in range(4, 8):
            a(f"s_waitcnt vmcnt({3 + extra})\nbuffer_load_dwordx4 v{3 + (i & 3)}, {SRDE}, s43 offen nt lds")
            if i < 7:
                a(f"s_add_u32 m0, s44, {dest(i + 1)}")
            a("s_add_u32 s43, s43, s41")
            if i == self.xpos:
                a(f"s_waitcnt lgkmcnt(0)\ns_add_u32 {sTAG}, {sTAG}, 1")
                mid()

    def load_e2_ptr(self):
        self.a(f"""s_cmp_lt_u32 {sW}, 4
            s_cselect_b32 s33, 32, 80
            s_load_dwordx2 s[24:25], s[0:1], s33
            s_mov_b32 s26, 0x400000""")

    def sum_parts(self, r):
        self.a(f"""v_lshlrev_b32 v8, 16, v{r}
            v_and_b32 v9, 0xffff0000, v{r}
            v_lshlrev_b32 v10, 16, v{r + 1}
            v_and_b32 v11, 0xffff0000, v{r + 1}
            v_lshlrev_b32 v{r}, 16, v{r + 4}
            v_and_b32 v{r + 1}, 0xffff0000, v{r + 4}
            v_lshlrev_b32 v{r + 2}, 16, v{r + 5}
            v_and_b32 v{r + 3}, 0xffff0000, v{r + 5}
            v_pk_add_f32 v[8:9], v[8:9], {vr(r, 2)}
            v_pk_add_f32 v[10:11], v[10:11], {vr(r + 2, 2)}
            v_permlane32_swap_b32 v8, v10
            v_permlane32_swap_b32 v9, v11
            v_pk_add_f32 v[8:9], v[8:9], v[10:11]
            v_cvt_pk_bf16_f32 v{r}, v8, v9""")

    def poll_rows(self, voff, soff, two=False):
        a = self.a
        lp, ok = self.lab("gp"), self.lab("gok")
        a(f"s_mov_b32 s37, {SPIN}\n{lp}:\n{f's_sleep {self.ps[2]}' if self.ps[2] and not two else ''}\nbuffer_load_dwordx4 v[176:179], {voff}, {SRDW}, {soff} offen sc1")
        if two:
            a(f"buffer_load_dwordx4 v[180:183], {voff}, {SRDW}, {soff} offen offset:1024 sc1")
        a(f"s_sub_u32 s37, s37, 1\ns_waitcnt vmcnt(0)\ns_cbranch_scc1 {ok}")
        if two:
            a(f"v_bitop3_b32 v8, v179, v183, {sTAG} bitop3:0x7e\nv_cmp_ne_u32 vcc, 0, v8")
        else:
            a(f"v_cmp_ne_u32 vcc, {sTAG}, v179")
        a(f"s_cbranch_vccnz {lp}\n{ok}:")

    def e2_dma_setup(self):
        self.a(f"""v_lshrrev_b32 v9, 3, v0
            v_and_b32 v10, 7, v0
            v_and_b32 v11, 1, v2
            v_lshlrev_b32 v11, 1, v11
            v_xor_b32 v10, v10, v11
            v_lshlrev_b32 v10, 4, v10
            v_lshl_add_u32 v17, v9, 10, v10
            v_xor_b32 v18, 64, v17
            s_and_b32 s33, {sW}, 3
            s_lshl_b32 s46, {sH}, 17
            s_lshl_b32 s36, s33, 15
            s_add_u32 s46, s46, s36
            s_lshl_b32 s36, {sJ}, 7
            s_add_u32 s46, s46, s36
            s_cmp_lt_u32 {sW}, 4
            s_mov_b32 s47, {E2B[1]}
            s_cmov_b32 s47, {E2B[0]}
            s_lshl_b32 s36, s33, 12
            s_add_u32 s47, s47, s36""")

    def e2_dma(self, i):
        self.a(f"""s_add_u32 m0, s47, {1024 * i}
            s_nop 0
            buffer_load_dwordx4 v{17 + (i & 1)}, {SRDE}, s46 offen nt lds
            s_add_u32 s46, s46, 8192""")

    KV = 64

    def a_addr(self):
        if self.srot:
            self.a("s_mov_b32 s54, s48\ns_add_u32 s48, s57, s42\ns_and_b32 s48, s48, 255\ns_lshl_b32 s48, s48, 11\ns_add_u32 s48, s48, s45")
        else:
            self.a("s_mov_b32 s54, s48\ns_lshl_b32 s48, s57, 11\ns_add_u32 s48, s48, s45")

    def a_load(self, ph, k, cnt, lo=None):
        srd, so = (SRDK, "s48") if k < 2 else (SRDV, "s54")
        self.a(f"s_waitcnt vmcnt({cnt})")
        if lo is not None and lo < cnt:
            sk = self.lab("lo")
            self.a(f"s_cbranch_vccz {sk}\ns_waitcnt vmcnt({lo})\n{sk}:")
        self.a(f"buffer_load_dwordx4 {vr(self.KV + 16 * ph + 4 * k, 4)}, v16, {srd}, {so} offen offset:{1024 * (k & 1)} nt")

    def a_first(self, k, cnt):
        if k == 2:
            self.a("s_add_u32 s57, s57, 24")
            self.a_addr()
        self.a_load(k >> 1, k & 1, cnt)

    def a_qk(self, ph, r=30):
        a = self.a
        K = self.KV + 16 * ph
        a("v_mov_b32 v28, 0\nv_mov_b32 v29, 0")
        for e in range(4):
            for u in range(2):
                a(f"v_dot2c_f32_bf16 v{28 + u}, v{K + 4 * u + e}, v{24 + e}")
        a(f"v_add_f32_dpp v{r}, v28, v28 row_ror:8 row_mask:0xf bank_mask:0x3")
        a(f"v_add_f32_dpp v{r}, v29, v29 row_ror:8 row_mask:0xf bank_mask:0xc")
        for m in ("row_half_mirror", "quad_perm:[1,0,3,2]", "quad_perm:[2,3,0,1]"):
            a(f"v_add_f32_dpp v{r}, v{r}, v{r} {m} {FULL}")

    def a_max(self):
        self.a(f"v_max_f32_dpp v31, v30, v30 row_ror:8 {FULL}\nv_mul_f32 v31, s52, v31\nv_max_f32 v31, v31, v60")

    def a_soft(self, with_max=True):
        a = self.a
        if with_max:
            self.a_max()
        a("""v_sub_f32 v32, v60, v31
            v_fma_f32 v30, v30, s52, -v31
            v_exp_f32 v32, v32
            v_exp_f32 v30, v30
            v_mov_b32 v60, v31
            v_fma_f32 v61, v61, v32, v30
            v_cvt_pk_bf16_f32 v34, v30, 0
            v_cvt_pk_bf16_f32 v35, 0, v30""")
        for k in range(4):
            a(f"v_pk_mul_f32 {vr(52 + 2 * k, 2)}, {vr(52 + 2 * k, 2)}, v[32:33] op_sel_hi:[1,0]")

    def a_pv(self, ph, u):
        V = self.KV + 16 * ph + 8 + 4 * u
        for e in range(4):
            self.a(f"v_dot2c_f32_bf16_dpp v{52 + 2 * e}, v34, v{V + e} row_newbcast:{8 * u} {FULL}")
            self.a(f"v_dot2c_f32_bf16_dpp v{53 + 2 * e}, v35, v{V + e} row_newbcast:{8 * u} {FULL}")

    def p1(self):
        a = self.a
        D = self.edepth[0]
        a(f"""s_lshl_b32 s33, s63, 8
            s_lshl_b32 s36, {sW}, 5
            s_add_u32 s61, s33, s36
            s_add_u32 s62, s61, 1024
            s_load_dwordx8 s[64:71], s[30:31], s61
            s_load_dwordx8 s[72:79], s[30:31], s62
            s_load_dwordx8 s[80:87], s[28:29], s61
            s_load_dwordx8 s[88:95], s[28:29], s62
            v_and_b32 v8, 1, v2
            v_lshlrev_b32 v7, 15, v8
            v_lshrrev_b32 v9, 1, v2
            v_lshl_add_u32 v7, v9, 10, v7
            v_lshrrev_b32 v9, 2, v1
            v_lshl_add_u32 v7, v9, 8, v7
            v_and_b32 v10, 3, v0
            v_lshl_add_u32 v7, v10, 3, v7
            v_lshl_or_b32 v9, v8, 2, v9
            v_xor_b32 v9, {sW}, v9
            v_lshl_add_u32 v40, v9, 5, v7
            v_add_u32 v41, 65536, v40
            v_lshrrev_b32 v7, 3, v0
            v_lshlrev_b32 v7, 8, v7
            v_and_b32 v8, 7, v0
            v_lshl_add_u32 v7, v8, 2, v7
            s_add_u32 s36, s36, {XI}
            v_add_u32 v42, s36, v7
            v_and_b32 v7, 1, v0
            v_lshlrev_b32 v8, 8, v7
            v_lshl_add_u32 v8, v2, 4, v8
            v_add_u32 v43, {XI}, v8
            v_lshlrev_b32 v8, 11, v7
            v_lshl_add_u32 v44, v2, 4, v8
            s_lshl_b32 s58, {sH}, 12
            s_lshl_b32 s36, s63, 9
            s_add_u32 s58, s58, s36
            s_lshl_b32 s36, {sW}, 6
            s_add_u32 s58, s58, s36
            s_xor_b32 s59, s58, {self.hxa << 12}
            s_add_u32 s58, s58, {QB}
            s_add_u32 s59, s59, {QA}""")

        def mid():
            for k in range(32):
                a(f"v_writelane_b32 v45, s{64 + k}, {k}")
            self.exec64(0xffffffff, 0)
            a(f"ds_write_b32 v42, v45\ns_mov_b64 exec, -1\nv_mov_b32 v51, {sTAG}")
            if self.n0:
                a(f"""s_cmp_lg_u32 s57, 0
                    s_cbranch_scc1 L_nocnt
                    s_xor_b32 s33, {sH}, {self.hxa}
                    s_lshl_b32 s33, s33, 1
                    s_add_u32 s33, s33, {sB}
                    s_mul_i32 s33, s33, 1280
                    s_add_u32 s33, s33, {CNT}
                    v_mov_b32 v46, {3 * self.n0 + 1}
                    s_mov_b64 exec, 1
                    buffer_store_dword v46, off, {SRDW}, s33 sc1
                    s_mov_b64 exec, -1
                    L_nocnt:""")

        def half(t):
            a("s_waitcnt lgkmcnt(0)\ns_barrier")
            for s in range(4):
                a(f"ds_read_b128 {vr(160 + 4 * s, 4)}, v43 offset:{512 * t + 64 * s}")
                for p in range(2):
                    a(f"ds_read_b64_tr_b16 {vr(176 + 4 * s + 2 * p, 2)}, v{40 + t} offset:{2048 * s + 8192 * p}")
            for s in range(4):
                a(f"s_waitcnt lgkmcnt({9 - 3 * s})")
                a(f"v_mfma_f32_16x16x32_bf16 v[192:195], {vr(176 + 4 * s, 4)}, {vr(160 + 4 * s, 4)}, {'v[192:195]' if s else '0'}")
            self.exec64(0x00030003)
            a("v_cvt_pk_bf16_f32 v48, v192, v193\nv_cvt_pk_bf16_f32 v49, v194, v195")
            a(f"buffer_store_dwordx4 v[48:51], v44, {SRDW}, s{58 + t} offen sc1\ns_mov_b64 exec, -1")

        self.second_batch(mid)
        self.stamp(1)
        half(0)
        self.stamp(2)
        self.load_e2_ptr()
        for k in range(4):
            self.a_first(k, D if k < D else D - 1)
        a("s_waitcnt vmcnt(5)")
        half(1)
        self.stamp(3)
        a("s_branch L_acommon")

    def p2(self):
        a = self.a
        D, pre = self.edepth[0], self.pu_pre
        a(f"""v_lshrrev_b32 v7, 3, v1
            v_lshlrev_b32 v7, 15, v7
            v_bfe_u32 v8, v1, 2, 1
            v_lshl_add_u32 v7, v8, 13, v7
            v_and_b32 v8, 3, v1
            v_lshl_add_u32 v7, v8, 8, v7
            v_add_u32 v7, s44, v7
            v_xor_b32 v8, v2, v1
            v_lshl_add_u32 v216, v8, 4, v7""")
        for s in range(1, 4):
            a(f"v_xor_b32 v{216 + s}, {64 * s}, v216")
        for s in range(4):
            a(f"v_add_u32 v{220 + s}, 65536, v{216 + s}")
        a(f"""v_and_b32 v13, 31, v0
            v_lshlrev_b32 v13, 3, v13
            v_lshrrev_b32 v7, 5, v0
            v_lshl_add_u32 v13, v7, 2, v13
            s_lshl_b32 s33, {sW}, 8
            s_add_u32 s33, s33, {HI}
            v_add_u32 v13, s33, v13
            v_and_b32 v14, 1, v0
            v_lshlrev_b32 v14, 8, v14
            v_lshl_add_u32 v14, v2, 4, v14
            v_add_u32 v14, {HI}, v14
            s_lshl_b32 s49, s63, 12
            s_lshl_b32 s36, {sW}, 11
            s_add_u32 s49, s49, s36
            s_add_u32 s49, s49, {QB}
            v_lshlrev_b32 v15, 15, v1
            v_lshl_add_u32 v15, v2, 4, v15
            s_lshl_b32 s50, s63, 10
            s_lshl_b32 s36, {sB}, 9
            s_add_u32 s50, s50, s36
            s_lshl_b32 s36, {sW}, 6
            s_add_u32 s50, s50, s36
            s_add_u32 s50, s50, {QABS}
            s_lshr_b32 s53, s63, 2
            s_lshl_b32 s53, s53, 7
            s_and_b32 s36, s63, 3
            s_lshl_b32 s36, s36, 3
            s_add_u32 s53, s53, s36
            s_lshl_b32 s36, {sB}, 2
            s_add_u32 s53, s53, s36
            s_add_u32 s53, s53, {F2}
            v_lshlrev_b32 v37, 10, v0""")
        if self.noack:
            for k in range(4):
                a(f"v_mov_b32 v{40 + k}, -1")
            self.exec64(0x00030003)
            a(f"buffer_store_dwordx4 v[40:43], v15, {SRDW}, s50 offen sc1\ns_mov_b64 exec, -1")
        self.second_batch(lambda: a(f"v_mov_b32 v36, {sTAG}"), 1 if self.noack else 0)
        self.load_e2_ptr()
        for k in range(pre):
            self.a_first(k, D - 1)
        skip = self.lab("h1s")
        a(f"s_cmp_gt_u32 {sW}, 1\ns_cbranch_scc1 {skip}")
        if self.pollw:
            a(f"s_waitcnt vmcnt({pre})")
        self.poll_rows("v16", "s49", two=True)
        self.sum_parts(176)
        a(f"ds_write_b32 v13, v176\n{skip}:\ns_waitcnt vmcnt({pre})")
        self.stamp(1)
        for blk in range(2):
            for s in range(4):
                a(f"ds_read_b128 {vr(224 + 16 * blk + 4 * s, 4)}, v{216 + 4 * blk + s}")
        a("s_waitcnt lgkmcnt(0)\ns_barrier")
        self.stamp(2)
        for s in range(4):
            a(f"ds_read_b128 {vr(176 + 4 * s, 4)}, v14 offset:{64 * s}")
        for s in range(4):
            a(f"s_waitcnt lgkmcnt({3 - s})")
            for blk in range(2):
                c = "0" if s == 0 else vr(208 + 4 * blk, 4)
                a(f"v_mfma_f32_16x16x32_bf16 {vr(208 + 4 * blk, 4)}, {vr(224 + 16 * blk + 4 * s, 4)}, {vr(176 + 4 * s, 4)}, {c}")
        for k in range(4):
            a(f"v_cvt_pk_bf16_f32 v{168 + k}, v{208 + 2 * k}, v{209 + 2 * k}")
        self.exec64(0x00030003)
        a(f"buffer_store_dwordx4 v[168:171], v15, {SRDW}, s50 offen sc1")
        a("s_mov_b64 exec, -1")
        if not self.noack:
            a("s_waitcnt vmcnt(0)")
        a("s_barrier")
        skip = self.lab("p2s")
        a(f"""s_cmp_lg_u32 {sW}, 0
            s_cbranch_scc1 {skip}
            buffer_store_dword v36, v37, {SRDW}, s53 offen sc1
            {skip}:""")
        self.stamp(3)
        for k in range(pre, 4):
            self.a_first(k, D + 1)

    def a_common(self):
        a = self.a
        D, E = self.depth, self.edepth
        a("L_acommon:")
        self.e2_dma_setup()
        a(f"""s_lshl_b32 s51, {sH}, 1
            s_add_u32 s51, s51, {sB}
            s_lshl_b32 s51, s51, 11
            s_add_u32 s51, s51, {QA}
            v_and_b32 v36, 31, v0
            v_lshlrev_b32 v36, 3, v36
            v_lshrrev_b32 v7, 5, v0
            v_lshl_add_u32 v36, v7, 2, v36
            s_lshl_b32 s33, {sW}, 8
            s_add_u32 s33, s33, {QL}
            v_add_u32 v36, s33, v36
            v_lshl_add_u32 v37, v1, 4, s33
            v_mov_b32 v60, {NEGBIG:#x}
            v_mov_b32 v61, 0
            v_lshlrev_b32 v38, 5, v1
            v_lshl_add_u32 v38, v2, 3, v38
            s_lshl_b32 s33, {sW}, 9
            s_add_u32 s33, s33, {RED + 1024}
            v_add_u32 v38, s33, v38
            s_lshl_b32 s33, {sW}, 2
            s_add_u32 s33, s33, {MXA}
            v_mov_b32 v39, s33
            v_mov_b32 v43, {MXA}
            v_lshrrev_b32 v44, 5, v0
            v_mul_u32_u24 v44, 1536, v44
            v_add_u32 v44, v44, v16
            v_add_u32 v44, {RED + 1024}, v44
            s_lshl_b32 s61, {sH}, 3
            s_add_u32 s61, s61, {sJ}
            s_lshl_b32 s61, s61, 9
            s_add_u32 s61, s61, {H4A}""")
        for k in range(8):
            a(f"v_mov_b32 v{52 + k}, 0")
        L = self.lo
        a(f"""s_cmp_eq_u32 {sT}, 2
            s_cselect_b32 s55, 0, {24 * self.nlo}
            s_cselect_b32 s33, {self.wlo[1]}, {self.wlo[0]}
            s_cmp_lt_u32 {sW}, s33
            s_cmov_b32 s55, {24 * self.wend}
            s_cmp_lg_u32 s55, 0
            s_cselect_b64 vcc, -1, 0""")
        assert D <= 4 or self.lf
        lo = lambda ph: L - 1 if self.lofrom <= ph < self.nlo else None
        for k in (2, 3):
            self.a_load(0, k, D - 1, lo(1))
        a("s_add_u32 s57, s57, 24")
        self.a_addr()
        for k in range(4):
            self.a_load(2 if k < 2 else 1, k, D - 1, lo(2))
        qld = f"buffer_load_dwordx4 v[20:23], v16, {SRDW}, s51 offen sc1\nbuffer_load_dwordx4 v[24:27], v16, {SRDW}, s51 offen offset:1024 sc1"
        a(qld)
        a("s_add_u32 s57, s57, 24")
        self.a_addr()
        for k in range(4):
            self.a_load(3 if k < 2 else 2, k, D + 1 if k < D else D - 1, (L + 1 if k < L else L - 1) if self.nlo > 3 else None)
        R = self.rounds
        a(f"""s_add_u32 s57, s57, 24
            s_cmp_eq_u32 {sT}, 2
            s_cselect_b32 s56, 256, 16
            s_mov_b32 s60, {24 * R}
            s_cmov_b32 s60, {24 * (R - 1)}
            s_mov_b32 s37, {SPIN}
            s_waitcnt vmcnt(4)
            L_qlp:
            v_bitop3_b32 v8, v23, v27, {sTAG} bitop3:0x7e
            v_cmp_ne_u32 vcc, 0, v8
            s_cbranch_vccz L_qok
            s_sub_u32 s37, s37, 1
            s_cbranch_scc1 L_qok
            {qld}
            s_waitcnt vmcnt(0)
            s_branch L_qlp
            L_qok:""")
        self.sum_parts(20)
        a("ds_write_b32 v36, v20\ns_waitcnt lgkmcnt(0)\nds_read_b128 v[24:27], v37\ns_waitcnt lgkmcnt(0)")
        self.stamp(4)
        if self.n0:
            a(f"""s_lshl_b32 s33, {sH}, 1
                s_add_u32 s33, s33, {sB}
                s_mul_i32 s33, s33, 1280
                s_add_u32 s33, s33, {CNT}
                s_add_u32 s58, s12, s33
                s_addc_u32 s59, s13, 0
                s_mov_b32 s60, 4
                s_sub_u32 s62, {sW}, 8
                s_mov_b32 s37, {SPIN * 16}
                v_mov_b32 v40, {TK}""")
        for ph in range(2):
            self.a_qk(ph); self.a_soft(); self.a_pv(ph, 0); self.a_pv(ph, 1)
        a("L_aloop:")
        for ph in range(4):
            if self.n0:
                n0 = self.n0
                st, nw, nc, rd, go = (self.lab(x) for x in ("st", "nw", "nc", "rd", "go"))
                a(f"""s_cmp_lt_u32 s60, {n0 - 2}
                    s_cbranch_scc1 {go}
                    s_waitcnt lgkmcnt(0)
                    s_cmp_lg_u32 {sW}, 0
                    s_cbranch_scc1 {nc}
                    s_cmp_eq_u32 s60, {n0 - 2}
                    s_cbranch_scc1 {nw}
                    v_mov_b32 v41, s56
                    ds_write_b32 v40, v41 offset:4
                    {nw}:
                    s_mov_b32 s56, 1
                    s_atomic_add s56, s[58:59], 0 glc
                    {nc}:
                    s_cmp_lt_u32 s60, {n0}
                    s_cbranch_scc1 {st}
                    {rd}:
                    v_readfirstlane_b32 s33, v42
                    s_cmp_lg_u32 s33, 0
                    s_cbranch_scc1 {rd}_ok
                    s_sub_u32 s37, s37, 1
                    s_cbranch_scc1 L_drain{ph}
                    ds_read_b32 v42, v40
                    s_waitcnt lgkmcnt(0)
                    s_branch {rd}
                    {rd}_ok:
                    s_cmp_gt_u32 s33, 32
                    s_cbranch_scc1 L_drain{ph}
                    s_lshl_b32 s57, s33, 3
                    s_add_u32 s57, s57, s62
                    {st}:
                    v_add_u32 v40, 4, v40
                    {go}:""")
                self.a_addr()
                a("s_cmp_lt_u32 s57, s55\ns_cselect_b64 vcc, -1, 0\ns_add_u32 s57, s57, 24\ns_add_u32 s60, s60, 1")
            else:
                a(f"s_cmp_ge_u32 s57, 256\ns_cbranch_scc1 L_drain{ph}")
                self.a_addr()
                a("s_cmp_lt_u32 s57, s55\ns_cselect_b64 vcc, -1, 0")
                a(f"s_cmp_lt_u32 s57, s60\ns_cselect_b32 s33, 24, s56\ns_add_u32 s57, s57, s33")
            q, pv = (ph + 2) & 3, (ph + 3) & 3
            if self.lf:
                for k in range(4):
                    self.a_load(ph if k < 2 else pv, k, D - 1, L - 1)
                self.a_qk(q); self.a_soft()
                if D > 4:
                    a("s_waitcnt vmcnt(5)")
                self.a_pv(q, 0)
                if D > 4:
                    a("s_waitcnt vmcnt(4)")
            else:
                self.a_load(ph, 0, D - 1, L - 1); self.a_qk(q)
                self.a_load(ph, 1, D - 1, L - 1); self.a_soft()
                self.a_load(pv, 2, D - 1, L - 1); self.a_pv(q, 0)
                self.a_load(pv, 3, D - 1, L - 1)
            if self.n0:
                a("ds_read_b32 v42, v40")
            self.a_pv(q, 1)
        a("s_branch L_aloop")
        for ph in range(4):
            a(f"L_drain{ph}:")
            self.stamp(5)
            q, n = (ph + 2) & 3, (ph + 3) & 3
            a("s_mov_b32 s54, s48")
            if self.lf == 2:
                self.a_load(n, 2, 5); self.a_load(n, 3, 5)
                self.a_qk(q); self.a_soft()
                a("s_waitcnt vmcnt(4)")
            else:
                self.a_qk(q); self.a_soft()
                self.a_load(n, 2, 3); self.a_load(n, 3, 3)
            self.a_qk(n); self.a_max()
            for sw in ("v_permlane16_swap_b32", "v_permlane32_swap_b32"):
                a(f"v_mov_b32 v32, v31\n{sw} v32, v31\nv_max_f32 v31, v31, v32")
            a("ds_write_b32 v39, v31\ns_waitcnt vmcnt(3)")
            self.e2_dma(0)
            self.a_pv(q, 0)
            a("s_waitcnt vmcnt(3)")
            self.e2_dma(1)
            self.a_pv(q, 1)
            a("s_waitcnt lgkmcnt(0)\ns_barrier")
            if self.e2early:
                self.e2_dma(2); self.e2_dma(3)
            x = 2 if self.e2early else 0
            a(f"""
                ds_read_b128 v[8:11], v43
                ds_read_b128 v[12:15], v43 offset:16
                s_waitcnt lgkmcnt(0)
                v_max3_f32 v31, v8, v9, v10
                v_max3_f32 v12, v12, v13, v14
                v_max3_f32 v31, v31, v11, v15
                v_max_f32 v31, v31, v12""")
            self.a_soft(with_max=False)
            a(f"v_add_f32_dpp v61, v61, v61 row_ror:8 {FULL}")
            for sw in ("v_permlane16_swap_b32", "v_permlane32_swap_b32"):
                a(f"v_mov_b32 v32, v61\n{sw} v32, v61\nv_add_f32 v61, v61, v32")
            a("s_mov_b64 exec, 1\nds_add_f32 v43, v61 offset:32\ns_mov_b64 exec, -1")
            a(f"s_waitcnt vmcnt({3 + x})")
            self.a_pv(n, 0)
            a(f"s_waitcnt vmcnt({2 + x})")
            self.a_pv(n, 1)
            if ph < 3:
                a("s_branch L_afin")
        a("L_afin:\ns_nop 2")
        self.stamp(6)
        for i in range(4):
            a(f"v_permlane32_swap_b32 v{52 + i}, v{56 + i}")
        a("v_pk_add_f32 v[52:53], v[52:53], v[56:57]\nv_pk_add_f32 v[54:55], v[54:55], v[58:59]")
        a(f"""v_permlane16_swap_b32 v52, v54
            v_permlane16_swap_b32 v53, v55
            v_pk_add_f32 v[52:53], v[52:53], v[54:55]
            ds_write_b64 v38, v[52:53]""")
        if not self.e2early:
            self.e2_dma(2); self.e2_dma(3)
        a(f"""s_waitcnt lgkmcnt(0)
            s_barrier
            s_cmp_lg_u32 {sW}, 3
            s_cbranch_scc1 L_stageE2
            ds_read_b128 v[208:211], v44
            ds_read_b128 v[212:215], v44 offset:512
            ds_read_b128 v[216:219], v44 offset:1024
            ds_read_b128 v[220:223], v44 offset:1536
            ds_read_b32 v61, v43 offset:32
            v_and_b32 v8, 1, v0
            v_cmp_eq_u32 vcc, 1, v8
            v_mov_b32 v11, {sTAG}
            s_waitcnt lgkmcnt(3)
            v_pk_add_f32 v[208:209], v[208:209], v[212:213]
            v_pk_add_f32 v[210:211], v[210:211], v[214:215]
            s_waitcnt lgkmcnt(1)
            v_pk_add_f32 v[216:217], v[216:217], v[220:221]
            v_pk_add_f32 v[218:219], v[218:219], v[222:223]
            v_pk_add_f32 v[208:209], v[208:209], v[216:217]
            v_pk_add_f32 v[210:211], v[210:211], v[218:219]
            v_permlane32_swap_b32 v208, v210
            v_permlane32_swap_b32 v209, v211
            v_pk_add_f32 v[208:209], v[208:209], v[210:211]
            v_cvt_pk_bf16_f32 v8, v208, v209
            v_cvt_pk_bf16_f32 v9, v208, v209
            s_waitcnt lgkmcnt(0)
            v_cndmask_b32 v10, v60, v61, vcc
            v_permlane32_swap_b32 v8, v9""")
        self.exec64(0xffffffff, 0)
        a(f"""
            buffer_store_dwordx4 v[8:11], v16, {SRDW}, s61 offen sc1
            s_mov_b64 exec, -1
            s_nop 0""")

    def e2(self):
        a = self.a
        a("L_stageE2:")
        self.stamp(12)
        if self.diag and self.diag != 'cyc':
            a("s_branch L_done")
        a(f"""s_load_dwordx2 s[28:29], s[0:1], 88
            v_lshrrev_b32 v9, 2, v1
            v_lshlrev_b32 v7, 10, v2
            v_lshl_add_u32 v7, v9, 7, v7
            v_and_b32 v10, 3, v0
            v_lshl_add_u32 v7, v10, 3, v7
            v_lshrrev_b32 v9, 1, v9
            v_and_b32 v8, 1, v2
            v_lshl_or_b32 v9, v8, 1, v9
            s_and_b32 s33, {sW}, 3
            v_xor_b32 v9, s33, v9
            v_lshl_add_u32 v7, v9, 5, v7
            s_cmp_lt_u32 {sW}, 4
            s_mov_b32 s36, {E2B[1]}
            s_cmov_b32 s36, {E2B[0]}
            s_mov_b32 s49, {H4B}
            s_cmov_b32 s49, {H4A}
            v_add_u32 v7, s36, v7
            s_lshl_b32 s36, {sH}, 12
            s_add_u32 s49, s49, s36
            s_lshl_b32 s36, s33, 9
            s_add_u32 s49, s49, s36
            v_lshrrev_b32 v9, 5, v0
            v_mul_u32_u24 v14, 1536, v9
            v_add_u32 v14, v14, v16
            s_and_b32 s36, {sW}, 4
            s_lshl_b32 s36, s36, 1
            s_add_u32 s38, s36, s33
            v_lshl_add_u32 v9, v9, 2, s38
            v_and_b32 v10, 31, v0
            v_mul_u32_u24 v12, 272, v9
            v_lshl_add_u32 v12, v10, 3, v12
            v_add_u32 v12, {HI}, v12
            v_lshlrev_b32 v13, 7, v9
            v_lshl_add_u32 v13, v10, 2, v13
            v_add_u32 v13, {HS}, v13
            v_and_b32 v9, 7, v0
            v_add_u32 v9, s36, v9
            v_mul_u32_u24 v20, 272, v9
            v_lshl_add_u32 v20, v2, 4, v20
            v_add_u32 v20, {HI}, v20
            v_lshlrev_b32 v21, 7, v9
            v_add_u32 v21, {HS}, v21
            v_mov_b32 v176, 0
            v_mov_b32 v177, 0
            v_and_b32 v10, 1, v0
            v_cmp_eq_u32 vcc, 0, v10
            v_mov_b32 v9, {NEGBIG:#x}
            v_cndmask_b32 v178, 0, v9, vcc
            s_mov_b32 s30, 4096
            s_mov_b32 s31, 0x20000""")
        a(f"""v_lshlrev_b32 v15, 12, v2
            v_lshl_add_u32 v15, v1, 3, v15
            s_lshl_b32 s50, {sJ}, 3
            s_add_u32 s50, s50, {sW}
            s_lshl_b32 s50, s50, 13
            s_lshl_b32 s36, {sH}, 7
            s_add_u32 s50, s50, s36
            s_add_u32 s50, s50, {H5}
            v_mov_b32 v213, {sTAG}
            s_lshr_b32 s33, 0x37, {sW}
            s_and_b32 s33, s33, 1
            s_cbranch_scc0 L_nopoll""")
        self.poll_rows("v14", "s49")
        a("""L_nopoll:
            ds_write_b64 v12, v[176:177]
            ds_write_b32 v13, v178
            s_waitcnt vmcnt(0) lgkmcnt(0)
            s_barrier""")
        self.stamp(14)
        a("ds_read_b64 v[22:23], v21")
        for s in range(4):
            a(f"ds_read_b128 {vr(176 + 4 * s, 4)}, v20 offset:{64 * s}")
            for p in range(2):
                a(f"ds_read_b64_tr_b16 {vr(160 + 4 * s + 2 * p, 2)}, v7 offset:{4096 * s + 512 * p}")
        chain = [f"v_max_f32_dpp v8, v22, v22 quad_perm:[1,0,3,2] {FULL}\nv_max_f32_dpp v8, v8, v8 quad_perm:[2,3,0,1] {FULL}\nv_sub_f32 v8, v22, v8\nv_exp_f32 v8, v8",
                 "v_mul_f32 v9, v8, v23",
                 f"v_add_f32_dpp v9, v9, v9 quad_perm:[1,0,3,2] {FULL}",
                 f"v_add_f32_dpp v9, v9, v9 quad_perm:[2,3,0,1] {FULL}\nv_rcp_f32 v9, v9"]
        a("s_waitcnt lgkmcnt(12)")
        for s in range(4):
            c = "0" if s == 0 else "v[208:211]"
            a(chain[s])
            a(f"s_waitcnt lgkmcnt({9 - 3 * s})")
            a(f"v_mfma_f32_16x16x32_bf16 v[208:211], {vr(176 + 4 * s, 4)}, {vr(160 + 4 * s, 4)}, {c}")
        a("v_mul_f32 v8, v8, v9")
        for r in range(3):
            op = "v_mul_f32_dpp" if r == 0 else "v_fmac_f32_dpp"
            a(f"{op} v212, v8, v{208 + r} row_newbcast:{r} row_mask:0x1 bank_mask:0xf")
            a(f"{op} v212, v8, v{208 + r} row_newbcast:{4 + r} row_mask:0x2 bank_mask:0xf")
        self.exec64(0xffffffff, 0)
        a(f"buffer_store_dwordx2 v[212:213], v15, {SRDW}, s50 offen sc1")
        a("s_mov_b64 exec, -1")
        self.stamp(15)
        a(f"s_cmp_lg_u32 {sW}, 7\ns_cbranch_scc1 L_done")
        a(f"""v_lshrrev_b32 v7, 2, v0
            v_lshlrev_b32 v7, 7, v7
            v_and_b32 v8, 3, v0
            v_lshl_add_u32 v7, v8, 4, v7
            s_lshl_b32 s33, {sJ}, 4
            s_lshr_b32 s36, {sH}, 1
            s_add_u32 s33, s33, s36
            s_lshl_b32 s33, s33, 12
            s_and_b32 s38, {sH}, 1
            s_lshl_b32 s39, s38, 6
            s_add_u32 s33, s33, s39
            s_add_u32 s33, s33, {H5}
            s_and_b32 s36, s36, 1
            s_lshl_b32 s36, s36, 11
            s_lshr_b32 s39, {sH}, 4
            s_lshl_b32 s39, s39, 10
            s_add_u32 s36, s36, s39
            s_lshl_b32 s39, {sJ}, 7
            s_add_u32 s36, s36, s39
            s_bfe_u32 s39, {sH}, 0x20002
            s_lshl_b32 s39, s39, 5
            s_add_u32 s36, s36, s39
            s_lshl_b32 s39, s38, 4
            s_add_u32 s36, s36, s39
            v_lshlrev_b32 v13, 2, v0
            s_mov_b32 s37, {SPIN}
            L_fp:
            buffer_load_dwordx4 v[20:23], v7, {SRDW}, s33 offen sc1
            buffer_load_dwordx4 v[24:27], v7, {SRDW}, s33 offen offset:2048 sc1
            s_sub_u32 s37, s37, 1
            s_waitcnt vmcnt(0)
            s_cbranch_scc1 L_fok
            v_bitop3_b32 v8, v21, v23, {sTAG} bitop3:0x7e
            v_bitop3_b32 v9, v25, v27, {sTAG} bitop3:0x7e
            v_or_b32 v8, v8, v9
            v_cmp_ne_u32 vcc, 0, v8
            s_cbranch_vccnz L_fp
            L_fok:
            v_add_f32 v8, v20, v24
            v_add_f32 v9, v22, v26""")
        self.stamp(16)
        for sh in (4, 8):
            for r in (8, 9):
                a(f"v_add_f32_dpp v{r}, v{r}, v{r} row_ror:{sh} {FULL}")
        a("""v_permlane32_swap_b32 v8, v9
            v_add_f32 v8, v8, v9
            v_mov_b32 v9, v8
            v_permlane16_swap_b32 v8, v9
            v_add_f32 v8, v8, v9
            v_mov_b32 v9, v8
            v_permlane32_swap_b32 v8, v9
            v_cvt_pk_bf16_f32 v8, v8, v9
            s_mov_b64 exec, 15""")
        a(f"buffer_store_dword v8, v13, {SRDX}, s36 offen {self.outfl}")
        a(f"""s_or_b32 s33, {sH}, {sJ}
            s_cbranch_scc1 L_done
            s_mov_b64 exec, 1
            buffer_store_dword v213, off, {SRDW}, 0 offset:{EPOCH} sc1
            L_done:""")
        if self.calib:
            a(f"""L_cal:
                s_memrealtime s[98:99]
                s_waitcnt lgkmcnt(0)
                s_sub_u32 s98, s98, s96
                s_cmp_lt_u32 s98, {self.calib * 100}
                s_cbranch_scc1 L_cal""")
        if self.amp:
            k, roles = self.amp
            a("s_mov_b64 exec, -1")
            self.stamp(17)
            a(f"""s_nop 1
                v_readlane_b32 s33, v63, {k}
                s_lshr_b32 s36, {roles}, {sT}
                s_and_b32 s36, s36, 1
                s_cselect_b32 s33, s33, 0
                s_cmp_eq_u32 s33, 0
                s_cselect_b32 s33, s96, s33
                s_sub_u32 s33, s33, s96
                s_mul_i32 s33, s33, 10
                s_add_u32 s33, s33, 3000
                L_amp:
                s_memrealtime s[98:99]
                s_waitcnt lgkmcnt(0)
                s_sub_u32 s98, s98, s96
                s_cmp_lt_u32 s98, s33
                s_cbranch_scc1 L_amp""")
        elif self.dbg:
            a("s_mov_b64 exec, -1")
            self.stamp(17)
            a(f"""s_getreg_b32 s33, hwreg(HW_REG_XCC_ID)
                v_writelane_b32 v63, s33, 31
                s_lshl_b32 s33, s2, 3
                s_add_u32 s33, s33, {sW}
                s_lshl_b32 s33, s33, 7
                s_add_u32 s33, s33, {STAMP}
                v_lshlrev_b32 v7, 2, v0""")
            self.exec64(0xffffffff, 0)
            a(f"buffer_store_dword v63, v7, {SRDW}, s33 offen")

    def role_b(self):
        a = self.a
        D = self.bdepth
        QAR, FR, O, S2, S3, PF, S = 64, 128, 160, 192, 224, 32, 48
        a("L_roleB:")
        a("s_load_dwordx2 s[16:17], s[0:1], 72\ns_mov_b32 s18, 0x400000")
        self.second_batch(lambda: None)
        self.load_e2_ptr()
        for i in range(8):
            a(f"s_waitcnt vmcnt({D - 1})\ns_add_u32 m0, s44, {dest(i) + 16384}\ns_nop 0")
            a(f"buffer_load_dwordx4 v{3 + (i & 1)}, {SRD0}, s43 offen nt lds\ns_add_u32 s43, s43, 8192")
        self.stamp(1)

        def stage(i):
            a(f"s_add_u32 s33, s43, {8192 * i}\nbuffer_load_dwordx4 {vr(S2 + 4 * i, 4)}, v{3 + (i & 1)}, {SRD0}, s33 offen nt")

        def late(i, wait=None):
            sk = self.lab("lt")
            a(f"s_cmp_le_u32 s62, {i}\ns_cbranch_scc1 {sk}")
            if wait is not None:
                a(f"s_waitcnt vmcnt({wait})")
            stage(i)
            a(f"{sk}:")

        a(f"""s_and_b32 s54, {sW}, 3
            s_lshr_b32 s55, {sW}, 2
            v_and_b32 v7, 3, v1
            v_lshlrev_b32 v7, 2, v7
            v_lshrrev_b32 v8, 2, v1
            v_or_b32 v7, v7, v8
            v_lshlrev_b32 v7, 4, v7
            v_lshl_add_u32 v7, v2, 8, v7
            v_lshl_add_u32 v7, v1, 10, v7
            s_lshl_b32 s33, s54, 15
            v_add_u32 v28, s33, v7
            v_lshlrev_b32 v7, 4, v1
            v_lshl_add_u32 v7, v2, 8, v7
            v_lshl_add_u32 v7, v1, 10, v7
            s_lshl_b32 s33, s55, 14
            s_add_u32 s33, s33, {AUX}
            v_add_u32 v29, s33, v7
            v_lshrrev_b32 v9, 1, v2
            v_and_b32 v10, 1, v2
            v_bfe_u32 v11, v0, 1, 1
            v_lshl_or_b32 v11, v10, 1, v11
            s_lshl_b32 s33, {sW}, 3
            v_or_b32 v11, s33, v11
            v_lshlrev_b32 v12, 2, v8
            v_lshl_or_b32 v12, v9, 1, v12
            v_xor_b32 v11, v11, v12
            v_lshlrev_b32 v11, 4, v11
            v_lshl_add_u32 v12, v9, 3, v8
            v_lshl_add_u32 v11, v12, 10, v11
            v_and_b32 v12, 1, v0
            v_lshl_add_u32 v20, v12, 3, v11
            v_xor_b32 v21, 16, v20
            v_add_u32 v21, 4096, v21
            v_xor_b32 v22, 64, v20
            v_xor_b32 v23, 64, v21""")
        for k in range(4):
            a(f"v_add_u32 v{24 + k}, 65536, v{20 + k}")
        a(f"""s_lshl_b32 s33, s55, 8
            s_add_u32 s33, s33, {MX}
            v_lshl_add_u32 v30, v1, 4, s33
            s_lshl_b32 s33, s54, 2
            v_add_u32 v31, s33, v30
            v_and_b32 v7, 31, v0
            v_lshlrev_b32 v56, 4, v7
            v_add_u32 v56, {MX}, v56
            v_mul_u32_u24 v60, 272, v7
            v_lshl_add_u32 v60, v9, 4, v60
            v_add_u32 v60, {PB}, v60
            v_mul_u32_u24 v61, 272, v1
            v_lshl_add_u32 v61, v2, 3, v61
            s_mul_i32 s33, s55, {16 * 272}
            s_lshl_b32 s36, s54, 6
            s_add_u32 s33, s33, s36
            s_add_u32 s33, s33, {PB}
            v_add_u32 v61, s33, v61
            v_add_u32 v19, s44, v16
            v_add_u32 v62, 65536, v19
            v_mov_b32 v57, {NEGBIG:#x}
            v_mov_b32 v58, {NEGBIG:#x}
            v_mov_b32 v59, 0
            v_lshlrev_b32 v7, 1, v2
            v_xor_b32 v7, v7, v1
            v_lshlrev_b32 v7, 4, v7
            v_lshl_add_u32 v5, v2, 13, v7
            v_xor_b32 v6, 128, v5
            s_lshl_b32 s45, {sB}, 21
            s_lshl_b32 s36, {sW}, 18
            s_add_u32 s45, s45, s36
            s_lshl_b32 s36, {sH}, 8
            s_add_u32 s45, s45, s36""")
        for k in range(32):
            a(f"v_mov_b32 v{O + k}, 0")
        a(f"""s_lshl_b32 s33, {sH}, 1
            s_add_u32 s33, s33, {sB}
            s_lshl_b32 s33, s33, 3
            s_add_u32 s33, s33, {sW}
            s_lshl_b32 s33, s33, 7
            s_add_u32 s33, s33, {F2}
            s_add_u32 s34, s12, s33
            s_addc_u32 s35, s13, 0
            s_lshl_b32 s49, {sB}, 15
            s_lshl_b32 s36, {sW}, 12
            s_add_u32 s49, s49, s36
            s_add_u32 s49, s49, {QABS}
            s_add_u32 s50, s36, {AUX}
            s_mov_b32 s60, {sTAG}
            s_mov_b32 s61, {sTAG}""")

        def flags_differ():
            for k in range(4):
                a(f"s_xor_b64 s[{64 + 2 * k}:{65 + 2 * k}], s[{64 + 2 * k}:{65 + 2 * k}], s[60:61]")
            a("s_or_b64 s[64:65], s[64:65], s[66:67]\ns_or_b64 s[68:69], s[68:69], s[70:71]\ns_or_b64 s[64:65], s[64:65], s[68:69]")
        for i in range(15, 3, -2):
            chk = 17 - i >= self.bmin
            if chk:
                a("s_load_dwordx8 s[64:71], s[34:35], 0 glc")
            for k in (i, i - 1):
                a(f"s_waitcnt vmcnt({D - 1})")
                stage(k)
            if chk:
                a(f"s_mov_b32 s62, {i - 1}\ns_waitcnt lgkmcnt(0)")
                flags_differ()
                a("s_cbranch_scc0 L_h2ok")
        self.stamp(2)
        a(f"""s_mov_b32 s62, 4
            s_mov_b32 s37, {SPIN}
            L_h2:
            s_load_dwordx8 s[64:71], s[34:35], 0 glc
            s_sub_u32 s37, s37, 1
            s_waitcnt lgkmcnt(0)
            s_cbranch_scc1 L_h2ok""")
        flags_differ()
        a("s_cbranch_scc1 L_h2")
        a("L_h2ok:")
        self.stamp(3)
        def qcopy():
            a(f"""s_lshl_b32 s33, s54, 6
                v_xor_b32 v12, s33, v16
                v_xor_b32 v13, 16, v12
                v_xor_b32 v14, 32, v12
                v_xor_b32 v15, 48, v12
                s_mov_b32 m0, s50""")
            for i in range(4):
                a(f"buffer_load_dwordx4 v{12 + i}, {SRDW}, s49 offen offset:{1024 * i} sc1 lds")

        def qread():
            for s in range(16):
                a(f"v_xor_b32 v7, {s << 4}, v29\nds_read_b128 {vr(QAR + 4 * s, 4)}, v7")
        qcopy()
        a("s_barrier")
        for i in range(4):
            a(f"s_waitcnt vmcnt({D + 1})")
            stage(i)
        a("s_waitcnt vmcnt(4)\ns_barrier")
        self.stamp(4)
        a("s_mov_b32 s37, 4096\nL_qa:")
        qread()
        a("s_waitcnt lgkmcnt(0)\ns_barrier")

        def put(reg, sig):
            for i in range(8):
                d = dest(i) + 16384 * sig
                a(f"ds_write_b128 v{62 if d >> 16 else 19}, {vr(reg + 4 * i, 4)} offset:{d & 0xffff}")

        def step(t, hook):
            def rd(r):
                if r & 1 == 0:
                    a(f"v_xor_b32 v7, {(r >> 1) << 4}, v28")
                a(f"ds_read_b128 {vr(FR + 4 * (r & 7), 4)}, v7 offset:{16384 * (r & 1)}")

            def tr(be, blk):
                for p in range(2):
                    ar = 20 + 4 * (be >> 2) + 2 * blk + p
                    a(f"ds_read_b64_tr_b16 {vr(FR + 8 * (be & 3) + 4 * blk + 2 * p, 2)}, v{ar} offset:{(be & 3) * 16384}")
            if t: self.cyc(0); a("s_waitcnt lgkmcnt(0)")
            for r in range(8):
                rd(r)
            for r in range(32):
                a(f"s_waitcnt lgkmcnt({7 if r <= 24 else r - 17})")
                acc = vr(S + 4 * (r & 1), 4)
                a(f"v_mfma_f32_16x16x32_bf16 {acc}, {vr(FR + 4 * (r & 7), 4)}, {vr(QAR + 4 * (r >> 1), 4)}, {'0' if r < 2 else acc}")
                if r in self.hookpos[t]:
                    hook(self.hookpos[t].index(r))
                if r < 24:
                    rd(r + 8)
                else:
                    tr((r - 24) >> 1, (r - 24) & 1)
            if t: self.cyc(1)
            a(f"""v_max3_f32 v7, v{S}, v{S + 1}, v{S + 2}
                v_max3_f32 v8, v{S + 4}, v{S + 5}, v{S + 6}
                v_max3_f32 v7, v7, v{S + 3}, v{S + 7}
                v_max_f32 v7, v7, v8""")
            for sw in ("v_permlane16_swap_b32", "v_permlane32_swap_b32"):
                a(f"v_mov_b32 v8, v7\n{sw} v8, v7\nv_max_f32 v7, v7, v8")
            a(f"""v_mul_f32 v7, s52, v7
                ds_write_b32 v31, v7
                s_waitcnt lgkmcnt(0)
                {'s_memtime s[68:69]' if t and 'cyc' in self.diag else ''}
                s_barrier
                {'s_memtime s[70:71]' if t and 'cyc' in self.diag else ''}
                {'s_waitcnt lgkmcnt(0)' if t and 'cyc' in self.diag else ''}
                ds_read_b128 v[8:11], v30
                ds_read_b128 v[12:15], v56""")
            if t == 0 and self.noack:
                a("s_waitcnt lgkmcnt(0)\nv_cmp_u_f32 vcc, v12, v12\ns_cbranch_vccnz L_qretry\nL_qaok:")
                if self.dbg is True:
                    a("s_sub_u32 s33, 4096, s37\nv_writelane_b32 v63, s33, 29")
            a(f"""s_waitcnt lgkmcnt(1)
                v_max3_f32 v8, v8, v9, v10
                v_max3_f32 v8, v8, v11, v57
                v_sub_f32 v9, v57, v8
                v_mov_b32 v57, v8""")
            for r in range(8):
                a(f"v_fma_f32 v{S + r}, v{S + r}, s52, -v8")
            for r in range(8):
                a(f"v_exp_f32 v{S + r}, v{S + r}")
            a("v_exp_f32 v9, v9")
            for r in range(4):
                a(f"v_cvt_pk_bf16_f32 v{PF + r}, v{S + 2 * r}, v{S + 2 * r + 1}")
            a(f"""ds_write_b64 v61, {vr(PF, 2)}
                ds_write_b64 v61, {vr(PF + 2, 2)} offset:32
                s_waitcnt lgkmcnt(2)
                v_max3_f32 v12, v12, v13, v14
                v_max3_f32 v12, v12, v15, v58
                v_sub_f32 v14, v58, v12
                v_exp_f32 v14, v14
                v_mov_b32 v58, v12
                s_waitcnt lgkmcnt(0)
                {'s_memtime s[72:73]' if t and 'cyc' in self.diag else ''}
                s_barrier
                {'s_memtime s[74:75]' if t and 'cyc' in self.diag else ''}""")
            for be in range(4):
                a(f"ds_read_b128 {vr(PF + 4 * be, 4)}, v60 offset:{32 * be}")
            a(f"""v_pk_add_f32 {vr(S, 2)}, {vr(S, 2)}, {vr(S + 2, 2)}
                v_pk_add_f32 {vr(S + 4, 2)}, {vr(S + 4, 2)}, {vr(S + 6, 2)}
                v_fma_f32 v59, v59, v9, v{S}
                v_add_f32 v{S + 4}, v{S + 4}, v{S + 5}
                v_add_f32 v59, v59, v{S + 1}
                v_add_f32 v59, v59, v{S + 4}""")
            if t > 0:
                for sw in ("v_permlane16_swap_b32", "v_permlane32_swap_b32"):
                    a(f"v_mov_b32 v8, v59\n{sw} v8, v59\nv_add_f32 v59, v59, v8")
                a(f"ds_write_b32 v31, v59 offset:{LS - MX}")
                for k in range(16):
                    a(f"v_pk_mul_f32 {vr(O + 2 * k, 2)}, {vr(O + 2 * k, 2)}, v[14:15] op_sel_hi:[1,0]")
            for be in range(8):
                if be in (0, 5, 6, 7):
                    a(f"s_waitcnt lgkmcnt({ {0: 0, 5: 10, 6: 5, 7: 0}[be] })")
                if be == 7:
                    a("s_barrier")
                for blk in range(2):
                    a(f"v_mfma_f32_32x32x16_bf16 {vr(O + 16 * blk, 16)}, {vr(FR + 8 * (be & 3) + 4 * blk, 4)}, {vr(PF + 4 * (be & 3), 4)}, {vr(O + 16 * blk, 16)}")
                if t == 0 and be in (0, 2, 4, 6):
                    hook(len(self.hookpos[0]) + be // 2)
                if be < 4:
                    if be == 3:
                        a("s_waitcnt lgkmcnt(10)")
                    a(f"ds_read_b128 {vr(PF + 4 * be, 4)}, v60 offset:{32 * (be + 4)}")
                    tr(be + 4, 0); tr(be + 4, 1)

        def uv(i):
            a(f"buffer_load_dwordx4 {vr(S2 + 4 * i, 4)}, v{5 + (i & 1)}, {SRDK}, s45 offen nt\ns_add_u32 s45, s45, 32768")

        step(0, lambda k: late(4 + k))
        self.stamp(5)
        for i in range(8 + len(self.hookpos[0]), 14):
            late(i, D - 1)
        a("s_sub_u32 s33, s62, 4\ns_lshl_b32 s63, 15, s33\ns_waitcnt vmcnt(4)")
        for rnd in range(2):
            for i in range(16):
                if rnd and i >= 14:
                    continue
                sk = self.lab("pt")
                d = dest(i & 7) + 16384 * (i >> 3)
                if i < 14:
                    a(f"s_bitcmp1_b32 s63, {i}\ns_cbranch_scc{1 - rnd} {sk}")
                a(f"ds_write_b128 v{62 if d >> 16 else 19}, {vr(S2 + 4 * i, 4)} offset:{d & 0xffff}\n{sk}:")
            if rnd == 0:
                a("s_waitcnt vmcnt(0)")
                self.stamp(6)
        a("s_waitcnt lgkmcnt(0)")
        for i in range(4):
            uv(i)
        a(f"""s_lshl_b32 s50, s55, 15
            s_lshl_b32 s36, s54, 12
            s_add_u32 s50, s50, s36
            s_add_u32 s50, s50, {PART[0]}
            v_and_b32 v7, 31, v0
            v_and_b32 v8, 7, v0
            v_lshlrev_b32 v9, 4, v8
            v_lshl_add_u32 v9, v7, 7, v9
            v_lshrrev_b32 v10, 5, v0
            v_lshl_add_u32 v9, v10, 3, v9
            v_lshrrev_b32 v10, 3, v0
            v_xor_b32 v11, v8, v10
            v_lshlrev_b32 v11, 4, v11
            v_lshl_add_u32 v11, v10, 7, v11
            v_lshlrev_b32 v12, 4, v8
            s_lshl_b32 s49, s55, 15
            s_lshl_b32 s36, {sB}, 14
            s_add_u32 s49, s49, s36
            s_lshl_b32 s36, {sH}, 9
            s_add_u32 s49, s49, s36
            s_lshl_b32 s36, s54, 7
            s_add_u32 s49, s49, s36
            s_add_u32 s49, s49, {OP}
            s_lshl_b32 s53, {sB}, 9
            s_lshl_b32 s36, {sH}, 4
            s_add_u32 s53, s53, s36
            s_add_u32 s53, s53, {ST}
            s_waitcnt lgkmcnt(0)
            s_barrier
            v_add_u32 v{S3}, s50, v9
            v_add_u32 v{S3 + 8}, s50, v11
            v_lshl_add_u32 v{S3 + 9}, v10, 16, v12
            v_lshlrev_b32 v{S3 + 10}, 10, v0
            v_mov_b32 v{S3 + 14}, {sTAG}
            v_mov_b32 v{S3 + 15}, {sTAG}
            v_mov_b32 v{S3 + 11}, 0x10001""")
        for k in range(4):
            a(f"s_bfe_u32 s33, {sTAG}, {0x20000 + 2 * k:#x}\ns_mul_i32 s33, s33, 0x8001\ns_and_b32 s{56 + k}, s33, 0x10001")
        for k in range(1, 8):
            a(f"v_xor_b32 v{S3 + k}, {16 * k}, v{S3}")
        self.stamp(7)
        step(1, lambda k: uv(4 + k))
        self.cyc(6)
        self.stamp(8)
        if 'cyc' in self.diag:
            for k in range(1, 7):
                a(f"s_sub_u32 s33, s{64 + 2 * k}, s64\nv_writelane_b32 v63, s33, {23 + k}")

        if 'Bstop8' in self.diag:
            a("s_branch L_done")
        a(f"""s_cmp_lg_u32 {sW}, 0
            s_cbranch_scc1 L_nost
            ds_read_b128 v[8:11], v56 offset:{LS - MX}
            v_mov_b32 v{S3 + 12}, v58
            s_waitcnt lgkmcnt(0)
            v_add_f32 v8, v8, v9
            v_add_f32 v10, v10, v11
            v_add_f32 v{S3 + 13}, v8, v10""")
        self.exec64(0xffffffff, 0)
        a(f"buffer_store_dwordx4 {vr(S3 + 12, 4)}, v{S3 + 10}, {SRDW}, s53 offen sc1\ns_mov_b64 exec, -1\nL_nost:\ns_nop 11")
        for k in range(8):
            a(f"v_cvt_pk_bf16_f32 v{FR + 2 * k}, v{O + 4 * k}, v{O + 4 * k + 1}")
            a(f"v_cvt_pk_bf16_f32 v{FR + 2 * k + 1}, v{O + 4 * k + 2}, v{O + 4 * k + 3}")
            a(f"ds_write_b64 v{S3 + k}, {vr(FR + 2 * k, 2)}")
        for i in range(4):
            a(f"ds_read_b128 {vr(FR + 16 + 4 * i, 4)}, v{S3 + 8} offset:{1024 * i}")
        for i in range(4):
            a(f"s_waitcnt lgkmcnt({3 - i})")
            for k in range(4):
                a(f"v_bfi_b32 v{FR + 16 + 4 * i + k}, v{S3 + 11}, s{56 + k}, v{FR + 16 + 4 * i + k}")
            a(f"{'' if i < self.nst else ';'}buffer_store_dwordx4 {vr(FR + 16 + 4 * i, 4)}, v{S3 + 9}, {SRDW}, s49 offen {self.pfl}\ns_add_u32 s49, s49, {8 * 65536}")
        self.stamp(9)
        self.e2_dma_setup()
        a(f"""s_lshl_b32 s33, {sH}, 10
            s_lshl_b32 s36, {sW}, 7
            s_add_u32 s33, s33, s36
            s_add_u32 s33, s33, {ST}
            s_add_u32 s34, s12, s33
            s_addc_u32 s35, s13, 0
            v_lshrrev_b32 v7, 5, v0
            s_and_b32 s33, {sW}, 1
            s_lshl_b32 s33, s33, 2
            v_or_b32 v7, s33, v7
            v_lshlrev_b32 v7, 5, v7
            v_xor_b32 v3, v7, v16
            v_xor_b32 v4, 64, v3
            s_lshl_b32 s49, {sH}, 16
            s_lshl_b32 s36, {sB}, 15
            s_add_u32 s49, s49, s36
            s_lshl_b32 s36, {sW}, 12
            s_add_u32 s49, s49, s36
            s_add_u32 s49, s49, {OP}
            v_add_u32 v5, s50, v16
            v_lshrrev_b32 v8, 2, v1
            v_lshrrev_b32 v9, 1, v2
            v_and_b32 v10, 1, v2
            v_lshlrev_b32 v7, 15, v9
            v_lshl_add_u32 v7, v10, 13, v7
            v_lshl_add_u32 v7, v8, 8, v7
            v_and_b32 v11, 3, v0
            v_lshl_add_u32 v7, v11, 3, v7
            v_lshl_or_b32 v10, v10, 2, v8
            v_xor_b32 v9, {sW}, v10
            v_lshl_add_u32 v20, v9, 5, v7
            v_add_u32 v21, 65536, v20
            v_lshlrev_b32 v7, 12, v2
            v_lshl_add_u32 v7, v8, 9, v7
            v_lshl_add_u32 v7, v11, 3, v7
            s_lshl_b32 s33, {sW}, 1
            v_xor_b32 v10, s33, v10
            v_lshl_add_u32 v7, v10, 5, v7
            v_add_u32 v24, {PART[0]}, v7
            v_xor_b32 v25, 32, v24
            s_lshl_b32 s33, {sW}, 7
            s_add_u32 s36, s33, {WB}
            v_lshl_add_u32 v22, v0, 1, s36
            v_and_b32 v8, 1, v0
            v_lshlrev_b32 v7, 6, v8
            v_lshl_add_u32 v7, v2, 4, v7
            v_add_u32 v23, s36, v7
            v_add_u32 v27, {CC}, v7
            v_add_u32 v26, s33, v27
            v_lshlrev_b32 v7, 11, v8
            v_lshl_add_u32 v28, v2, 4, v7
            s_lshl_b32 s53, {sH}, 12
            s_lshl_b32 s36, {sB}, 9
            s_add_u32 s53, s53, s36
            s_lshl_b32 s36, {sW}, 6
            s_add_u32 s53, s53, s36
            s_add_u32 s53, s53, {H4B}
            s_add_u32 s36, s36, {SM}
            v_lshl_add_u32 v29, v0, 3, s36
            v_lshlrev_b32 v30, 3, v0
            v_add_u32 v30, {SM}, v30
            v_and_b32 v7, 1, v2
            v_cvt_f32_u32 v54, v7
            v_mul_f32 v54, 0.5, v54
            v_mov_b32 v55, {sTAG}
            s_waitcnt vmcnt(4)""")
        put(S2, 0)
        if 'Bstop9' in self.diag:
            a("s_branch L_done")
        a(f"""s_mov_b32 s37, {SPIN}
            L_h3:
            {f's_sleep {self.ps[1]}' if self.ps[1] else ''}
            s_load_dwordx16 s[64:79], s[34:35], 0 glc
            s_load_dwordx16 s[80:95], s[34:35], 64 glc
            s_sub_u32 s37, s37, 1
            s_waitcnt lgkmcnt(0)
            s_cbranch_scc1 L_h3ok""")
        for k in range(8):
            a(f"s_cmp_lg_u32 s{66 + 4 * k}, {sTAG}\ns_cbranch_scc1 L_h3")
        a("L_h3ok:")
        self.stamp(10)

        def fetch():
            for i in range(4):
                a(f"buffer_load_dwordx4 {vr(O + 4 * i, 4)}, v{3 + (i & 1)}, {SRDW}, s49 offen offset:{1024 * i} {self.gfl}")
        fetch()
        for k in range(8):
            a(f"v_writelane_b32 v8, s{64 + 4 * k}, {k}\nv_writelane_b32 v9, s{65 + 4 * k}, {k}")
        a("""s_mov_b64 exec, 0xff
            ds_write_b64 v29, v[8:9]
            s_mov_b64 exec, -1
            s_waitcnt lgkmcnt(0)
            s_barrier
            ds_read_b64 v[12:13], v30""")
        for s in range(7):
            for p in range(2):
                a(f"ds_read_b64_tr_b16 {vr(QAR + 4 * s + 2 * p, 2)}, v{20 + p} offset:{1024 * s}")
        a("s_waitcnt lgkmcnt(14)\nv_mov_b32 v14, v12")

        def red32(op, r, t):
            for sh in (1, 2, 4, 8):
                a(f"{op}_dpp v{r}, v{r}, v{r} row_ror:{sh} {FULL}")
            a(f"v_mov_b32 v{t}, v{r}\nv_permlane16_swap_b32 v{t}, v{r}\n{op} v{r}, v{r}, v{t}")
        red32("v_max_f32", 14, 15)
        for p in range(2):
            a(f"ds_read_b64_tr_b16 {vr(QAR + 28 + 2 * p, 2)}, v{20 + p} offset:{1024 * 7}")
        a("v_sub_f32 v12, v12, v14\nv_exp_f32 v12, v12\nv_mul_f32 v13, v12, v13")
        red32("v_add_f32", 13, 15)
        a(f"""v_rcp_f32 v13, v13
            v_mul_f32 v12, v12, v13
            v_cvt_pk_bf16_f32 v12, v12, v12
            ds_write_b16 v22, v12
            ds_read_b128 v[12:15], v23
            v_cmp_eq_u32 vcc, 0, v1
            v_cmp_eq_u32 s[38:39], 1, v1
            s_mov_b32 s37, {SPIN}
            s_waitcnt lgkmcnt(0)""")
        for k in range(4):
            a(f"v_cndmask_b32 v{32 + k}, 0, v{12 + k}, vcc")
            a(f"v_cndmask_b32 v{36 + k}, 0, v{12 + k}, s[38:39]")
        a(f"""L_h3p:
            s_waitcnt vmcnt(0)
""")
        for k in range(4):
            a(f"v_bitop3_b32 v{8 + 2 * k}, v{O + k}, v{O + 4 + k}, s{56 + k} bitop3:0x7e")
            a(f"v_bitop3_b32 v{9 + 2 * k}, v{O + 8 + k}, v{O + 12 + k}, s{56 + k} bitop3:0x7e")
        a(f"""v_or3_b32 v8, v8, v9, v10
            v_or3_b32 v11, v11, v12, v13
            v_or3_b32 v8, v8, v14, v15
            v_or_b32 v8, v8, v11
            v_and_b32 v8, 0x10001, v8
            v_cmp_ne_u32 vcc, 0, v8
            s_cbranch_vccz L_h3pok
            s_sub_u32 s37, s37, 1
            s_cbranch_scc1 L_h3pok""")
        fetch()
        a("s_branch L_h3p\nL_h3pok:")
        for i in range(4):
            a(f"ds_write_b128 v5, {vr(O + 4 * i, 4)} offset:{1024 * i}")
        if self.dbg is True:
            a(f"s_sub_u32 s33, {SPIN}, s37\nv_writelane_b32 v63, s33, 30")
        a("s_waitcnt lgkmcnt(0)\ns_barrier")
        self.stamp(11)
        for s in range(2):
            for cb in range(2):
                for p in range(2):
                    a(f"ds_read_b64_tr_b16 {vr(FR + 8 * s + 4 * cb + 2 * p, 2)}, v{24 + cb} offset:{32768 * s + 2048 * p}")
        for i in range(4):
            self.e2_dma(i)
        for s in range(2):
            for cb in range(2):
                a(f"s_waitcnt lgkmcnt({6 - 4 * s - 2 * cb})")
                c = "0" if s == 0 else vr(40 + 4 * cb, 4)
                a(f"v_mfma_f32_16x16x32_bf16 {vr(40 + 4 * cb, 4)}, {vr(FR + 8 * s + 4 * cb, 4)}, {vr(32 + 4 * s, 4)}, {c}")
        for k in range(4):
            a(f"v_cvt_pk_bf16_f32 v{48 + k}, v{40 + 2 * k}, v{41 + 2 * k}")
        self.exec64(0x00030003)
        a("ds_write_b128 v26, v[48:51]\ns_mov_b64 exec, -1\ns_waitcnt lgkmcnt(0)\ns_barrier")
        for s in range(8):
            a(f"ds_read_b128 {vr(FR + 4 * s, 4)}, v27 offset:{128 * s}")
        for s in range(8):
            a(f"s_waitcnt lgkmcnt({7 - s})")
            a(f"v_mfma_f32_16x16x32_bf16 v[40:43], {vr(QAR + 4 * s, 4)}, {vr(FR + 4 * s, 4)}, {'v[40:43]' if s else '0'}")
        self.exec64(0x00030003)
        a("v_cvt_pk_bf16_f32 v52, v40, v41\nv_cvt_pk_bf16_f32 v53, v42, v43")
        a(f"buffer_store_dwordx4 v[52:55], v28, {SRDW}, s53 offen sc1\ns_mov_b64 exec, -1\ns_branch L_stageE2")
        if self.noack:
            a("L_qretry:\ns_sub_u32 s37, s37, 1\ns_cbranch_scc1 L_qaok\ns_barrier")
            qcopy()
            a("s_waitcnt vmcnt(0)\ns_barrier\ns_branch L_qa")

    def build(self):
        a = self.a
        self.entry()
        self.p1()
        a("L_rolePU:")
        self.p2()
        self.a_common()
        self.e2()
        a("s_endpgm")
        self.role_b()
        a("L_end:\ns_endpgm")
        body = a.finalize()
        return f"""{HEADER}; Generated by a script; one persistent launch, 256 workgroups of 8 waves (one per CU).
; @launch grid=(256,1,1) block=(512,1,1) lds={LDS_BYTES}
.amdgcn_target "amdgcn-amd-amdhsa--gfx950"
.text
.globl {NAME}
.p2align 8
.type {NAME},@function
{NAME}:
{body}.section .rodata,"a"
.p2align 6
.amdhsa_kernel {NAME}
  .amdhsa_next_free_vgpr 256
  .amdhsa_next_free_sgpr 102
  .amdhsa_accum_offset 256
  .amdhsa_group_segment_fixed_size 0
  .amdhsa_kernarg_size 112
  .amdhsa_user_sgpr_count 2
  .amdhsa_user_sgpr_kernarg_segment_ptr 1
  .amdhsa_system_sgpr_workgroup_id_x 1
  .amdhsa_float_denorm_mode_32 3
.end_amdhsa_kernel
"""


if __name__ == "__main__":
    out = sys.argv[1]
    kw = eval("dict(" + (sys.argv[2] if len(sys.argv) > 2 else "") + ")")
    open(out, "w").write(Gen(**kw).build())
```

```python
import re

REG = re.compile(r"\b([vsa])(\d+)\b|\b([vsa])\[(\d+):(\d+)\]|\b(vcc|exec|m0)\b")
TRANS = ("v_exp_", "v_log_", "v_rcp_", "v_rsq_", "v_sqrt_", "v_sin_", "v_cos_")


def regs(text):
    out = set()
    for m in REG.finditer(text):
        if m.group(1):
            out.add((m.group(1), int(m.group(2))))
        elif m.group(3):
            out.update((m.group(3), i) for i in range(int(m.group(4)), int(m.group(5)) + 1))
        else:
            out.add(("x", m.group(6)))
    return out


class Ins:
    def __init__(self, text):
        self.text = text
        t = text.split(";")[0].strip()
        self.label = t.endswith(":")
        self.directive = t.startswith(".") and not self.label
        self.op = "" if (self.label or self.directive or not t) else t.split()[0]
        rest = t[len(self.op):].strip() if self.op else ""
        parts = [p.strip() for p in re.split(r",(?![^\[]*\])", rest)] if rest else []
        self.parts = parts
        op = self.op
        self.valu = op.startswith("v_") and not op.startswith("v_mfma")
        self.mfma = op.startswith("v_mfma")
        self.vmem = op.startswith(("buffer_", "global_", "flat_"))
        self.ds = op.startswith("ds_")
        self.salu = op.startswith("s_")
        self.dpp = "_dpp" in op or any(k in rest for k in ("quad_perm", "row_ror", "row_shr", "row_shl", "row_mirror", "row_half_mirror", "row_newbcast", "row_bcast"))
        self.dot = op.startswith("v_dot")
        self.trans = op.startswith(TRANS)
        self.perml = op.startswith("v_permlane")
        self.lane_rd = op.startswith(("v_readlane", "v_readfirstlane"))
        self.lds_dma = self.vmem and (rest.endswith(" lds") or " lds " in rest or "load_lds" in op)
        w, r = set(), set()
        if self.valu or self.mfma:
            w = regs(parts[0])
            for p in parts[1:]:
                r |= regs(p)
            if self.perml:
                w |= regs(parts[1]); r |= regs(parts[0])
            if op.startswith(("v_fmac", "v_dot2c", "v_writelane", "v_pk_fmac")) or self.dpp:
                r |= regs(parts[0])
            if op.startswith(("v_add_co", "v_addc_co", "v_sub_co")):
                w |= regs(parts[1])
        elif self.ds:
            if op.startswith(("ds_read", "ds_bpermute", "ds_permute", "ds_swizzle")) or "_rtn" in op:
                w = regs(parts[0])
                for p in parts[1:]:
                    r |= regs(p)
            else:
                for p in parts:
                    r |= regs(p)
        elif self.vmem:
            if "load" in op and not self.lds_dma:
                w = regs(parts[0])
                for p in parts[1:]:
                    r |= regs(p)
            else:
                for p in parts:
                    r |= regs(p)
            if self.lds_dma:
                r.add(("x", "m0"))
        elif self.salu and parts:
            if op.startswith(("s_cmp", "s_waitcnt", "s_cbranch", "s_branch", "s_nop", "s_sleep", "s_setprio", "s_bitcmp", "s_setpc")):
                for p in parts:
                    r |= regs(p)
            else:
                w = regs(parts[0])
                for p in parts[1:]:
                    r |= regs(p)
        self.w, self.r = w, r
        self.dpp_src = regs(parts[1]) if self.dpp and len(parts) > 1 else set()
        if self.mfma:
            self.passes = 8 if "32x32" in op else 4
            self.d = regs(parts[0]); self.ab = regs(parts[1]) | regs(parts[2]); self.c = regs(parts[3])
        self.wide_store = self.vmem and "store" in op and ("x4" in op or "x3" in op)
        if self.wide_store:
            self.sdata = regs(parts[0]) if op.startswith("buffer_") else regs(parts[1])
        self.states = 0 if not self.op else (int(parts[0], 0) + 1 if op == "s_nop" else 1)


def vonly(s):
    return {x for x in s if x[0] in "va"}


def sonly(s):
    return {x for x in s if x[0] == "s" or x == ("x", "vcc")}


def need(p, c):
    n = 0
    if p.valu:
        pw = vonly(p.w)
        if c.dpp and pw & c.dpp_src: n = max(n, 2)
        if c.perml and pw & c.r: n = max(n, 2)
        if c.mfma and pw & c.r: n = max(n, 2)
        if c.lane_rd and pw & c.r: n = max(n, 1)
        if p.trans and c.valu and not c.trans and pw & c.r: n = max(n, 1)
        if p.dot and (c.valu or c.mfma or c.ds or c.vmem) and pw & (c.r | c.w):
            same = c.dot and c.op.replace("_dpp", "") == p.op.replace("_dpp", "")
            srcs = set()
            for q in c.parts[1:3]:
                srcs |= regs(q)
            if not (same and not (pw & srcs)): n = max(n, 3)
        ps = sonly(p.w)
        if ps & c.r:
            if c.vmem: n = max(n, 5)
            elif c.op.startswith(("v_readlane", "v_writelane")): n = max(n, 4)
            elif c.valu: n = max(n, 2)
        if ("x", "vcc") in ps and c.op.startswith(("v_cndmask", "v_addc")): n = max(n, 2)
    if p.mfma:
        far = 12 if p.passes == 8 else 8
        if c.mfma:
            if p.d & c.ab: n = max(n, far)
            if p.d & c.c and not (p.d == c.c and p.passes == c.passes): n = max(n, far - 2)
        elif (c.valu or c.vmem or c.ds) and p.d & (c.r | c.w): n = max(n, far)
        if c.valu and p.c & c.w: n = max(n, 7 if p.passes == 8 else 3)
    if p.salu and ("x", "m0") in p.w and (c.lds_dma or c.op.startswith("v_writelane")): n = max(n, 1)
    if p.wide_store and p.sdata & c.w: n = max(n, 2 if c.valu else 1)
    return n


class Asm:
    def __init__(self):
        self.ins = []

    def __call__(self, text):
        for line in text.split("\n"):
            line = line.strip()
            if line:
                self.ins.append(Ins(line))

    def stamp_loads(self):
        out = []
        for c in self.ins:
            out.append(c)
            if c.vmem and " nt" in c.text and "load" in c.op:
                for t in ("s_mov_b32 s101, m0", "s_memrealtime s[98:99]", "s_cselect_b32 s97, 1, 0", "s_add_u32 s100, s100, 1", "s_min_u32 s100, s100, 27", "s_mov_b32 m0, s100",
                          "s_waitcnt lgkmcnt(0)", "v_writelane_b32 v63, s98, m0", "s_mov_b32 m0, s101", "s_cmp_eq_u32 s97, 1"):
                    out.append(Ins(t))
        self.ins = out

    def finalize(self):
        out = []
        for c in self.ins:
            if c.op:
                dist = 0; pad = 0
                for p in reversed(out):
                    if dist >= 12: break
                    if p.op:
                        pad = max(pad, need(p, c) - dist)
                        dist += p.states
                if pad > 0:
                    out.append(Ins(f"s_nop {pad - 1}"))
            out.append(c)
        return "\n".join(("" if (i.label or i.directive) else "    ") + i.text for i in out) + "\n"
```

```python
import sys
from asmlib import Asm

NAME = "concat_heads__sliding_block_cached__compressed_kv_cla__decode_kernel"
HEADER = open("concat_heads__sliding_block_cached__compressed_kv_cla__decode.s.ref").read().split("; Override launch")[0]

EPOCH = 0
QA = 0xa0000
QB = 0xc0000
CNT = 0xa00000
QABS = 0x30000
F2 = 0x40000
ST = 0x50000
H4A = 0x60000
H4B = 0x80000
OP = 0x100000
H5 = 0x400000
STAMP = 0x800000
WS_SIZE = 0x1000000

AUX = 131072
RED = AUX
MXA = AUX + 512
LSA = AUX + 8192 + 64
MX = AUX + 9216
LS = AUX + 9216 + 512
PB = AUX + 10240
SM = AUX + 28672
WB = AUX + 29696
TK = AUX + 768
XI = AUX + 12288
CC = AUX + 30720
QL = AUX + 10240
HI = AUX + 20480
HS = AUX + 26624
E2B = (81920, 114688)
PART = (16384, 49152)
LDS_BYTES = 163840

SCALE = 0x3e0293ee
NEGBIG = 0xff7fffff
SPIN = 1 << 18

sW, sH, sJ, sB, sT, sTAG = "s3", "s4", "s5", "s6", "s7", "s32"
SRD0, SRDW, SRDK, SRDV, SRDE, SRDX = "s[8:11]", "s[12:15]", "s[16:19]", "s[20:23]", "s[24:27]", "s[28:31]"
FULL = "row_mask:0xf bank_mask:0xf"


def vr(a, n):
    return f"v[{a}:{a + n - 1}]"


def dest(i):
    return (i >> 1) * 32768 + (i & 1) * 8192


class Gen:
    def __init__(self, dbg=False, depth=4, rot=True, pu_pre=0, calib=0, bdepth=5, nstatic=12, xfl='', pf=True, diag='', xpos=5, edepth=(4, 4, 3, 3), rounds=10, n0=9, lf=2, srot=0, e2pos=(0, 0), pw=2, qplain=True, hperm=0, uva=(4, 2, 2), e2b=0, mix=0, amp=None, pfl='sc1', gfl='sc1', nst=4, jmul=3, outfl='', wlo=(0, 0), wend=12, ps=(0, 0, 0), lo=3, nlo=5, lofrom=1, noack=True, pollw=True, hookpos=(0, 10, 20, 31), bmin=4, e2early=False, hxa=2, hxu=1):
        self.a = Asm()
        self.dbg, self.depth, self.rot, self.pu_pre = dbg, depth, rot, pu_pre
        self.calib, self.bdepth, self.nstatic = calib, bdepth, nstatic
        self.uid = 0
        self.hperm, self.qplain, self.e2pos, self.pw = hperm, qplain, e2pos, pw
        self.mix, self.uva, self.e2b = mix, uva, e2b
        self.bmin, self.e2early, self.amp = bmin, e2early, amp
        self.lf, self.srot, self.pfl, self.gfl, self.nst = lf, srot, pfl, gfl, nst
        self.n0, self.jmul, self.outfl = n0, jmul, outfl
        self.ps, self.wlo, self.wend = ps, wlo, wend
        self.lo, self.nlo, self.lofrom = lo, nlo, lofrom
        self.rounds, self.hookpos, self.noack, self.pollw = rounds, hookpos, noack, pollw
        self.xpos, self.edepth, self.hxa, self.hxu = xpos, edepth, hxa, hxu
        self.xfl, self.pf, self.diag = xfl, pf, diag

    def lab(self, p):
        self.uid += 1
        return f"L_{p}_{self.uid}"

    def stamp(self, k):
        if self.dbg and (self.dbg is True or k in self.dbg or k == 17) and 'fine' not in self.diag:
            self.a(f"s_memrealtime s[98:99]\ns_waitcnt lgkmcnt(0)\nv_writelane_b32 v63, s98, {k}")

    def cyc(self, k):
        if 'cyc' in self.diag:
            self.a(f"s_memtime s[{64 + 2 * k}:{65 + 2 * k}]")

    def exec64(self, lo, hi=None):
        hi = lo if hi is None else hi
        self.a(f"s_mov_b32 exec_lo, {lo:#x}\ns_mov_b32 exec_hi, {hi:#x}")

    def entry(self):
        a = self.a
        a("s_cmp_ge_u32 s2, 256\ns_cbranch_scc1 L_end")
        if self.dbg or self.calib:
            a("s_memrealtime s[96:97]\nv_mov_b32 v63, 0\ns_mov_b32 s100, 0")
        a(f"s_lshr_b32 {sH}, s2, 3")
        if self.rot:
            a(f"s_add_u32 {sJ}, s2, {sH}")
            if self.mix:
                a(f"s_lshr_b32 s33, s2, {4 + self.mix}\ns_add_u32 {sJ}, {sJ}, s33")
            a(f"s_mul_i32 {sJ}, {sJ}, {self.jmul}\ns_and_b32 {sJ}, {sJ}, 7")
        else:
            a(f"s_and_b32 {sJ}, s2, 7")
        if self.hperm:
            a(f"s_xor_b32 {sH}, {sH}, {self.hperm}")
        a(f"""s_and_b32 {sT}, {sJ}, 3
            s_lshl_b32 s33, {sT}, 3
            s_lshr_b32 s36, 0x30403838, s33
            s_and_b32 s36, s36, 0xff
            s_load_dwordx2 s[8:9], s[0:1], s36
            s_lshr_b32 s36, 0x30401818, s33
            s_and_b32 s36, s36, 0xff
            s_load_dwordx2 s[24:25], s[0:1], s36
            s_load_dwordx2 s[12:13], s[0:1], 104
            s_load_dwordx2 s[28:29], s[0:1], 0
            s_load_dwordx2 s[30:31], s[0:1], 40
            s_load_dwordx2 s[16:17], s[0:1], 8
            s_load_dwordx2 s[20:21], s[0:1], 16
            s_getpc_b64 s[34:35]
            L_pc:
            v_lshrrev_b32 v8, 6, v0
            s_lshr_b32 {sB}, {sJ}, 2
            v_readfirstlane_b32 {sW}, v8
            v_and_b32 v0, 63, v0
            v_and_b32 v1, 15, v0
            v_lshrrev_b32 v2, 4, v0
            v_lshlrev_b32 v16, 4, v0
            s_mov_b32 s11, 0x20000
            s_mov_b32 s10, 0x400000
            s_mov_b32 s27, 0x20000
            s_lshl_b32 s44, {sW}, 10
            s_mov_b32 s41, 65536
            s_mov_b32 s38, 64
            s_mov_b32 s39, 0
            s_mov_b32 s42, 32768
            s_cmp_eq_u32 {sT}, 3
            s_cbranch_scc1 L_e3
            v_mov_b32 v9, v2
            v_mov_b32 v10, v1
            s_cmp_eq_u32 {sT}, 2
            s_cbranch_scc1 L_e2
            s_lshl_b32 s63, {sT}, 1
            s_add_u32 s63, s63, {sB}
            s_lshl_b32 s40, s63, 20
            s_lshl_b32 s33, {sW}, 17
            s_add_u32 s40, s40, s33
            s_lshl_b32 s33, {sH}, 8
            s_xor_b32 s42, s33, {self.hxa << 8}
            s_sub_u32 s42, s42, s33
            s_add_u32 s40, s40, s33
            s_mov_b32 s41, 32768
            s_mov_b32 s38, 0
            s_mov_b32 s39, 128
            v_lshlrev_b32 v11, 1, v2
            s_branch L_ej
            L_e2:
            s_xor_b32 s63, {sH}, {self.hxu}
            s_lshl_b32 s40, {sW}, 18
            s_lshl_b32 s33, s63, 8
            s_add_u32 s40, s40, s33
            s_lshl_b32 s33, {sB}, 21
            s_add_u32 s40, s40, s33
            s_mov_b32 s39, 128
            v_mov_b32 v11, v2
            s_branch L_ej
            L_e3:
            s_lshl_b32 s40, {sB}, 23
            s_lshl_b32 s33, {sH}, 18
            s_add_u32 s40, s40, s33
            s_add_u32 s40, s40, s44
            s_mov_b32 s41, 8192
            s_mov_b32 s38, 32
            s_mov_b32 s10, 0x1000000
            s_and_b32 s33, {sW}, 3
            s_lshl_b32 s33, s33, 2
            s_lshr_b32 s36, {sW}, 2
            s_or_b32 s33, s33, s36
            v_mov_b32 v9, 0
            v_mov_b32 v10, v0
            v_mov_b32 v11, s33
            L_ej:
            v_xor_b32 v10, v10, v11
            v_lshlrev_b32 v10, 4, v10
            v_lshl_add_u32 v3, v9, 13, v10
            v_xor_b32 v4, s38, v3
            v_xor_b32 v5, s39, v3
            v_xor_b32 v6, s39, v4
            s_add_u32 s43, s40, s42
            s_mov_b32 s26, s10
            s_mov_b32 m0, s44
            s_waitcnt lgkmcnt(0)""")
        for i in range(4):
            a(f"buffer_load_dwordx4 v{3 + i}, {SRD0}, s40 offen nt lds")
            a(f"s_add_u32 m0, s44, {dest(i + 1)}\ns_add_u32 s40, s40, s41")
        a(f"""s_lshl_b32 s33, {sH}, 3
            s_add_u32 s33, s33, {sW}
            s_lshl_b32 s33, s33, 7
            s_min_u32 s33, s33, L_end-L_pc-64
            s_add_u32 s36, s33, 64
            s_load_dword {'s98' if 'fine' in self.diag else 's100'}, s[34:35], s33
            s_load_dword {'s99' if 'fine' in self.diag else 's101'}, s[34:35], s36
            s_load_dword {sTAG}, s[12:13], {EPOCH}
            s_mov_b32 s14, {WS_SIZE:#x}
            s_mov_b32 s15, 0x20000
            s_mov_b32 s19, 0x20000
            s_mov_b32 s52, {SCALE:#x}""")
        if self.dbg:
            a("v_writelane_b32 v63, s96, 0")
        a(f"""s_cmp_eq_u32 {sT}, 3
            s_cbranch_scc1 L_roleB
            s_mov_b32 s18, 0x8000000
            s_mov_b32 s22, 0x8000000
            s_mov_b32 s23, 0x20000
            s_lshl_b32 s45, {sB}, 5
            s_add_u32 s45, s45, {sH}
            s_mul_i32 s42, s45, {self.srot}
            s_lshl_b32 s45, s45, 21
            s_add_u32 s45, s45, {6144 * 256}
            s_lshl_b32 s57, {sT}, 3
            s_add_u32 s57, s57, {sW}""")
        self.a_addr()
        a(f"v_add_u32 v7, {RED}, v16")
        for k in range(4):
            a(f"v_mov_b32 v{8 + k}, 0")
        a(f"ds_write_b128 v7, v[8:11]")
        a(f"s_cmp_eq_u32 {sT}, 2\ns_cbranch_scc1 L_rolePU")

    def second_batch(self, mid, extra=0):
        a = self.a
        for i in range(4, 8):
            a(f"s_waitcnt vmcnt({3 + extra})\nbuffer_load_dwordx4 v{3 + (i & 3)}, {SRDE}, s43 offen nt lds")
            if i < 7:
                a(f"s_add_u32 m0, s44, {dest(i + 1)}")
            a("s_add_u32 s43, s43, s41")
            if i == self.xpos:
                a(f"s_waitcnt lgkmcnt(0)\ns_add_u32 {sTAG}, {sTAG}, 1")
                mid()

    def load_e2_ptr(self):
        self.a(f"""s_cmp_lt_u32 {sW}, 4
            s_cselect_b32 s33, 32, 80
            s_load_dwordx2 s[24:25], s[0:1], s33
            s_mov_b32 s26, 0x400000""")

    def sum_parts(self, r):
        self.a(f"""v_lshlrev_b32 v8, 16, v{r}
            v_and_b32 v9, 0xffff0000, v{r}
            v_lshlrev_b32 v10, 16, v{r + 1}
            v_and_b32 v11, 0xffff0000, v{r + 1}
            v_lshlrev_b32 v{r}, 16, v{r + 4}
            v_and_b32 v{r + 1}, 0xffff0000, v{r + 4}
            v_lshlrev_b32 v{r + 2}, 16, v{r + 5}
            v_and_b32 v{r + 3}, 0xffff0000, v{r + 5}
            v_pk_add_f32 v[8:9], v[8:9], {vr(r, 2)}
            v_pk_add_f32 v[10:11], v[10:11], {vr(r + 2, 2)}
            v_permlane32_swap_b32 v8, v10
            v_permlane32_swap_b32 v9, v11
            v_pk_add_f32 v[8:9], v[8:9], v[10:11]
            v_cvt_pk_bf16_f32 v{r}, v8, v9""")

    def poll_rows(self, voff, soff, two=False):
        a = self.a
        lp, ok = self.lab("gp"), self.lab("gok")
        a(f"s_mov_b32 s37, {SPIN}\n{lp}:\n{f's_sleep {self.ps[2]}' if self.ps[2] and not two else ''}\nbuffer_load_dwordx4 v[176:179], {voff}, {SRDW}, {soff} offen sc1")
        if two:
            a(f"buffer_load_dwordx4 v[180:183], {voff}, {SRDW}, {soff} offen offset:1024 sc1")
        a(f"s_sub_u32 s37, s37, 1\ns_waitcnt vmcnt(0)\ns_cbranch_scc1 {ok}")
        if two:
            a(f"v_bitop3_b32 v8, v179, v183, {sTAG} bitop3:0x7e\nv_cmp_ne_u32 vcc, 0, v8")
        else:
            a(f"v_cmp_ne_u32 vcc, {sTAG}, v179")
        a(f"s_cbranch_vccnz {lp}\n{ok}:")

    def e2_dma_setup(self):
        self.a(f"""v_lshrrev_b32 v9, 3, v0
            v_and_b32 v10, 7, v0
            v_and_b32 v11, 1, v2
            v_lshlrev_b32 v11, 1, v11
            v_xor_b32 v10, v10, v11
            v_lshlrev_b32 v10, 4, v10
            v_lshl_add_u32 v17, v9, 10, v10
            v_xor_b32 v18, 64, v17
            s_and_b32 s33, {sW}, 3
            s_lshl_b32 s46, {sH}, 17
            s_lshl_b32 s36, s33, 15
            s_add_u32 s46, s46, s36
            s_lshl_b32 s36, {sJ}, 7
            s_add_u32 s46, s46, s36
            s_cmp_lt_u32 {sW}, 4
            s_mov_b32 s47, {E2B[1]}
            s_cmov_b32 s47, {E2B[0]}
            s_lshl_b32 s36, s33, 12
            s_add_u32 s47, s47, s36""")
        if 'noW' in self.diag:
            self.a("s_mov_b32 s26, 0")

    def e2_dma(self, i):
        self.a(f"""s_add_u32 m0, s47, {1024 * i}
            s_nop 0
            buffer_load_dwordx4 v{17 + (i & 1)}, {SRDE}, s46 offen nt lds
            s_add_u32 s46, s46, 8192""")

    KV = 64

    def a_addr(self):
        if self.srot:
            self.a("s_mov_b32 s54, s48\ns_add_u32 s48, s57, s42\ns_and_b32 s48, s48, 255\ns_lshl_b32 s48, s48, 11\ns_add_u32 s48, s48, s45")
        else:
            self.a("s_mov_b32 s54, s48\ns_lshl_b32 s48, s57, 11\ns_add_u32 s48, s48, s45")

    def a_load(self, ph, k, cnt, lo=None):
        srd, so = (SRDK, "s48") if k < 2 else (SRDV, "s54")
        self.a(f"s_waitcnt vmcnt({cnt})")
        if lo is not None and lo < cnt:
            sk = self.lab("lo")
            self.a(f"s_cbranch_vccz {sk}\ns_waitcnt vmcnt({lo})\n{sk}:")
        self.a(f"buffer_load_dwordx4 {vr(self.KV + 16 * ph + 4 * k, 4)}, v16, {srd}, {so} offen offset:{1024 * (k & 1)} nt")

    def a_first(self, k, cnt):
        if k == 2:
            self.a("s_add_u32 s57, s57, 24")
            self.a_addr()
        self.a_load(4 + (k >> 1), k & 1, cnt)

    def a_qk(self, ph, r=30):
        a = self.a
        K = self.KV + 16 * ph
        a("v_mov_b32 v28, 0\nv_mov_b32 v29, 0")
        for e in range(4):
            for u in range(2):
                a(f"v_dot2c_f32_bf16 v{28 + u}, v{K + 4 * u + e}, v{24 + e}")
        a(f"v_add_f32_dpp v{r}, v28, v28 row_ror:8 row_mask:0xf bank_mask:0x3")
        a(f"v_add_f32_dpp v{r}, v29, v29 row_ror:8 row_mask:0xf bank_mask:0xc")
        for m in ("row_half_mirror", "quad_perm:[1,0,3,2]", "quad_perm:[2,3,0,1]"):
            a(f"v_add_f32_dpp v{r}, v{r}, v{r} {m} {FULL}")

    def a_max(self):
        self.a(f"v_max_f32_dpp v31, v30, v30 row_ror:8 {FULL}\nv_mul_f32 v31, s52, v31\nv_max_f32 v31, v31, v60")

    def a_soft(self, with_max=True):
        a = self.a
        if with_max:
            self.a_max()
        a("""v_sub_f32 v32, v60, v31
            v_fma_f32 v30, v30, s52, -v31
            v_exp_f32 v32, v32
            v_exp_f32 v30, v30
            v_mov_b32 v60, v31
            v_fma_f32 v61, v61, v32, v30
            v_cvt_pk_bf16_f32 v34, v30, 0
            v_cvt_pk_bf16_f32 v35, 0, v30""")
        for k in range(4):
            a(f"v_pk_mul_f32 {vr(52 + 2 * k, 2)}, {vr(52 + 2 * k, 2)}, v[32:33] op_sel_hi:[1,0]")

    def a_pv(self, ph, u):
        V = self.KV + 16 * ph + 8 + 4 * u
        for e in range(4):
            self.a(f"v_dot2c_f32_bf16_dpp v{52 + 2 * e}, v34, v{V + e} row_newbcast:{8 * u} {FULL}")
            self.a(f"v_dot2c_f32_bf16_dpp v{53 + 2 * e}, v35, v{V + e} row_newbcast:{8 * u} {FULL}")

    def p1(self):
        a = self.a
        D = self.edepth[0]
        a(f"""s_lshl_b32 s33, s63, 8
            s_lshl_b32 s36, {sW}, 5
            s_add_u32 s49, s33, s36
            s_add_u32 s50, s49, 1024
            s_load_dwordx8 s[64:71], s[30:31], s49
            s_load_dwordx8 s[72:79], s[30:31], s50
            s_load_dwordx8 s[80:87], s[28:29], s49
            s_load_dwordx8 s[88:95], s[28:29], s50
            v_and_b32 v8, 1, v2
            v_lshlrev_b32 v7, 15, v8
            v_lshrrev_b32 v9, 1, v2
            v_lshl_add_u32 v7, v9, 10, v7
            v_lshrrev_b32 v9, 2, v1
            v_lshl_add_u32 v7, v9, 8, v7
            v_and_b32 v10, 3, v0
            v_lshl_add_u32 v7, v10, 3, v7
            v_lshl_or_b32 v9, v8, 2, v9
            v_xor_b32 v9, {sW}, v9
            v_lshl_add_u32 v200, v9, 5, v7
            v_add_u32 v201, 65536, v200
            v_lshrrev_b32 v7, 3, v0
            v_lshlrev_b32 v7, 8, v7
            v_and_b32 v8, 7, v0
            v_lshl_add_u32 v7, v8, 2, v7
            s_add_u32 s36, s36, {XI}
            v_add_u32 v202, s36, v7
            v_and_b32 v7, 1, v0
            v_lshlrev_b32 v8, 8, v7
            v_lshl_add_u32 v8, v2, 4, v8
            v_add_u32 v203, {XI}, v8
            v_lshlrev_b32 v8, 11, v7
            v_lshl_add_u32 v204, v2, 4, v8
            s_lshl_b32 s38, {sH}, 12
            s_lshl_b32 s36, s63, 9
            s_add_u32 s38, s38, s36
            s_lshl_b32 s36, {sW}, 6
            s_add_u32 s38, s38, s36
            s_xor_b32 s39, s38, {self.hxa << 12}
            s_add_u32 s38, s38, {QB}
            s_add_u32 s39, s39, {QA}""")

        def mid():
            for k in range(32):
                a(f"v_writelane_b32 v205, s{64 + k}, {k}")
            self.exec64(0xffffffff, 0)
            a(f"ds_write_b32 v202, v205\ns_mov_b64 exec, -1\nv_mov_b32 v51, {sTAG}")
            if self.n0:
                a(f"""s_cmp_lg_u32 s57, 0
                    s_cbranch_scc1 L_nocnt
                    s_xor_b32 s33, {sH}, {self.hxa}
                    s_lshl_b32 s33, s33, 1
                    s_add_u32 s33, s33, {sB}
                    s_mul_i32 s33, s33, 1280
                    s_add_u32 s33, s33, {CNT}
                    v_mov_b32 v206, {3 * self.n0 + 1}
                    s_mov_b64 exec, 1
                    buffer_store_dword v206, off, {SRDW}, s33 sc1
                    s_mov_b64 exec, -1
                    L_nocnt:""")

        def half(t):
            a("s_waitcnt lgkmcnt(0)\ns_barrier")
            for s in range(4):
                a(f"ds_read_b128 {vr(160 + 4 * s, 4)}, v203 offset:{512 * t + 64 * s}")
                for p in range(2):
                    a(f"ds_read_b64_tr_b16 {vr(176 + 4 * s + 2 * p, 2)}, v{200 + t} offset:{2048 * s + 8192 * p}")
            for s in range(4):
                a(f"s_waitcnt lgkmcnt({9 - 3 * s})")
                a(f"v_mfma_f32_16x16x32_bf16 v[192:195], {vr(176 + 4 * s, 4)}, {vr(160 + 4 * s, 4)}, {'v[192:195]' if s else '0'}")
            self.exec64(0x00030003)
            a("v_cvt_pk_bf16_f32 v48, v192, v193\nv_cvt_pk_bf16_f32 v49, v194, v195")
            a(f"buffer_store_dwordx4 v[48:51], v204, {SRDW}, s{38 + t} offen sc1\ns_mov_b64 exec, -1")

        self.a_setup()
        self.second_batch(mid)
        self.stamp(1)
        half(0)
        self.stamp(2)
        self.load_e2_ptr()
        for k in range(4):
            self.a_first(k, D if k < D else D - 1)
        a("s_waitcnt vmcnt(5)")
        half(1)
        self.stamp(3)
        a("s_branch L_acommon")

    def p2(self):
        a = self.a
        D, pre = self.edepth[0], self.pu_pre
        a(f"""v_lshrrev_b32 v7, 3, v1
            v_lshlrev_b32 v7, 15, v7
            v_bfe_u32 v8, v1, 2, 1
            v_lshl_add_u32 v7, v8, 13, v7
            v_and_b32 v8, 3, v1
            v_lshl_add_u32 v7, v8, 8, v7
            v_add_u32 v7, s44, v7
            v_xor_b32 v8, v2, v1
            v_lshl_add_u32 v216, v8, 4, v7""")
        for s in range(1, 4):
            a(f"v_xor_b32 v{216 + s}, {64 * s}, v216")
        for s in range(4):
            a(f"v_add_u32 v{220 + s}, 65536, v{216 + s}")
        a(f"""v_and_b32 v13, 31, v0
            v_lshlrev_b32 v13, 3, v13
            v_lshrrev_b32 v7, 5, v0
            v_lshl_add_u32 v13, v7, 2, v13
            s_lshl_b32 s33, {sW}, 8
            s_add_u32 s33, s33, {HI}
            v_add_u32 v13, s33, v13
            v_and_b32 v14, 1, v0
            v_lshlrev_b32 v14, 8, v14
            v_lshl_add_u32 v14, v2, 4, v14
            v_add_u32 v14, {HI}, v14
            s_lshl_b32 s49, s63, 12
            s_lshl_b32 s36, {sW}, 11
            s_add_u32 s49, s49, s36
            s_add_u32 s49, s49, {QB}
            v_lshlrev_b32 v15, 15, v1
            v_lshl_add_u32 v15, v2, 4, v15
            s_lshl_b32 s50, s63, 10
            s_lshl_b32 s36, {sB}, 9
            s_add_u32 s50, s50, s36
            s_lshl_b32 s36, {sW}, 6
            s_add_u32 s50, s50, s36
            s_add_u32 s50, s50, {QABS}
            s_lshr_b32 s53, s63, 2
            s_lshl_b32 s53, s53, 7
            s_and_b32 s36, s63, 3
            s_lshl_b32 s36, s36, 3
            s_add_u32 s53, s53, s36
            s_lshl_b32 s36, {sB}, 2
            s_add_u32 s53, s53, s36
            s_add_u32 s53, s53, {F2}
            v_lshlrev_b32 v197, 10, v0""")
        if self.noack:
            for k in range(4):
                a(f"v_mov_b32 v{200 + k}, -1")
            self.exec64(0x00030003)
            a(f"buffer_store_dwordx4 v[200:203], v15, {SRDW}, s50 offen sc1\ns_mov_b64 exec, -1")
        self.a_setup()
        self.second_batch(lambda: a(f"v_mov_b32 v196, {sTAG}"), 1 if self.noack else 0)
        self.load_e2_ptr()
        for k in range(pre):
            self.a_first(k, D - 1)
        skip = self.lab("h1s")
        a(f"s_cmp_gt_u32 {sW}, 1\ns_cbranch_scc1 {skip}")
        if self.pollw:
            a(f"s_waitcnt vmcnt({pre})")
        self.poll_rows("v16", "s49", two=True)
        self.sum_parts(176)
        a(f"ds_write_b32 v13, v176\n{skip}:\ns_waitcnt vmcnt({pre})")
        self.stamp(1)
        for blk in range(2):
            for s in range(4):
                a(f"ds_read_b128 {vr(224 + 16 * blk + 4 * s, 4)}, v{216 + 4 * blk + s}")
        a("s_waitcnt lgkmcnt(0)\ns_barrier")
        self.stamp(2)
        for s in range(4):
            a(f"ds_read_b128 {vr(176 + 4 * s, 4)}, v14 offset:{64 * s}")
        for s in range(4):
            a(f"s_waitcnt lgkmcnt({3 - s})")
            for blk in range(2):
                c = "0" if s == 0 else vr(208 + 4 * blk, 4)
                a(f"v_mfma_f32_16x16x32_bf16 {vr(208 + 4 * blk, 4)}, {vr(224 + 16 * blk + 4 * s, 4)}, {vr(176 + 4 * s, 4)}, {c}")
        for k in range(4):
            a(f"v_cvt_pk_bf16_f32 v{168 + k}, v{208 + 2 * k}, v{209 + 2 * k}")
        self.exec64(0x00030003)
        a(f"buffer_store_dwordx4 v[168:171], v15, {SRDW}, s50 offen sc1")
        a("s_mov_b64 exec, -1")
        if not self.noack:
            a("s_waitcnt vmcnt(0)")
        a("s_barrier")
        skip = self.lab("p2s")
        a(f"""s_cmp_lg_u32 {sW}, 0
            s_cbranch_scc1 {skip}
            buffer_store_dword v196, v197, {SRDW}, s53 offen sc1
            {skip}:""")
        self.stamp(3)
        for k in range(pre, 4):
            self.a_first(k, D + 1)

    def a_setup(self):
        a = self.a
        self.e2_dma_setup()
        a(f"""s_lshl_b32 s51, {sH}, 1
            s_add_u32 s51, s51, {sB}
            s_lshl_b32 s51, s51, 11
            s_add_u32 s51, s51, {QA}
            v_and_b32 v36, 31, v0
            v_lshlrev_b32 v36, 3, v36
            v_lshrrev_b32 v7, 5, v0
            v_lshl_add_u32 v36, v7, 2, v36
            s_lshl_b32 s33, {sW}, 8
            s_add_u32 s33, s33, {QL}
            v_add_u32 v36, s33, v36
            v_lshl_add_u32 v37, v1, 4, s33
            v_mov_b32 v60, {NEGBIG:#x}
            v_mov_b32 v61, 0
            v_lshlrev_b32 v38, 5, v1
            v_lshl_add_u32 v38, v2, 3, v38
            s_lshl_b32 s33, {sW}, 9
            s_add_u32 s33, s33, {RED + 1024}
            v_add_u32 v38, s33, v38
            s_lshl_b32 s33, {sW}, 2
            s_add_u32 s33, s33, {MXA}
            v_mov_b32 v39, s33
            v_mov_b32 v43, {MXA}
            v_lshrrev_b32 v44, 5, v0
            v_mul_u32_u24 v44, 1536, v44
            v_add_u32 v44, v44, v16
            v_add_u32 v44, {RED + 1024}, v44
            s_lshl_b32 s61, {sH}, 3
            s_add_u32 s61, s61, {sJ}
            s_lshl_b32 s61, s61, 9
            s_add_u32 s61, s61, {H4A}""")
        for k in range(8):
            a(f"v_mov_b32 v{52 + k}, 0")
        if self.n0:
            a(f"""s_lshl_b32 s33, {sH}, 1
                s_add_u32 s33, s33, {sB}
                s_mul_i32 s33, s33, 1280
                s_add_u32 s33, s33, {CNT}
                s_add_u32 s58, s12, s33
                s_addc_u32 s59, s13, 0
                s_mov_b32 s60, 6
                s_sub_u32 s62, {sW}, 8
                v_mov_b32 v40, {TK}""")
        else:
            R = self.rounds
            a(f"""s_cmp_eq_u32 {sT}, 2
                s_cselect_b32 s56, 256, 16
                s_mov_b32 s60, {24 * R}
                s_cmov_b32 s60, {24 * (R - 1)}""")
        a(f"""s_cmp_eq_u32 {sT}, 2
            s_cselect_b32 s55, 0, {24 * self.nlo}
            s_cselect_b32 s33, {self.wlo[1]}, {self.wlo[0]}
            s_cmp_lt_u32 {sW}, s33
            s_cmov_b32 s55, {24 * self.wend}""")

    def a_common(self):
        a = self.a
        D, E = self.depth, self.edepth
        a("L_acommon:")
        L = self.lo
        assert D <= 4
        slot = lambda k: 4 + k if k < 2 else k & 3

        def mask(k):
            a(f"s_cmp_gt_u32 s55, {24 * k if k >= self.lofrom else 9999}\ns_cselect_b64 vcc, -1, 0")

        def it(k, extra=0):
            a("s_add_u32 s57, s57, 24")
            self.a_addr()
            mask(k)
            for i in range(4):
                self.a_load(slot(k) if i < 2 else slot(k - 1), i, D - 1 + (extra if i < D else 0), L - 1 + (extra if i < L else 0))

        def proc(k):
            self.a_qk(slot(k)); self.a_soft(); self.a_pv(slot(k), 0); self.a_pv(slot(k), 1)
        mask(1)
        for k in (2, 3):
            self.a_load(slot(0), k, D - 1, L - 1)
        it(2)
        qld = f"buffer_load_dwordx4 v[20:23], v16, {SRDW}, s51 offen sc1\nbuffer_load_dwordx4 v[24:27], v16, {SRDW}, s51 offen offset:1024 sc1"
        a(qld.replace(" sc1", "") if self.qplain else qld)
        it(3, 2)
        it(4)
        a(f"""s_mov_b32 s37, {SPIN}
            L_qlp:
            v_bitop3_b32 v8, v23, v27, {sTAG} bitop3:0x7e
            v_cmp_ne_u32 vcc, 0, v8
            s_cbranch_vccz L_qok
            s_sub_u32 s37, s37, 1
            s_cbranch_scc1 L_qok
            {qld}
            s_waitcnt vmcnt(0)
            s_branch L_qlp
            L_qok:""")
        self.sum_parts(20)
        a(f"ds_write_b32 v36, v20\nds_read_b128 v[24:27], v37\ns_mov_b32 s37, {SPIN * 16}\ns_waitcnt lgkmcnt(0)")
        self.stamp(4)
        proc(2)
        it(5)
        proc(3); proc(0)
        a("s_add_u32 s57, s57, 24\ns_mov_b32 s63, 1")
        if 'iter' in self.diag:
            a("s_mov_b32 s49, 19")
        a("L_aloop:")
        for ph in (2, 3, 0, 1):
            if self.n0:
                n0 = self.n0
                st, nw, nc, rd, go = (self.lab(x) for x in ("st", "nw", "nc", "rd", "go"))
                a(f"""s_cmp_lt_u32 s60, {n0 - 2}
                    s_cbranch_scc1 {go}
                    s_waitcnt lgkmcnt(0)
                    s_cmp_lg_u32 {sW}, 0
                    s_cbranch_scc1 {nc}
                    s_cmp_eq_u32 s60, {n0 - 2}
                    s_cbranch_scc1 {nw}
                    v_mov_b32 v41, s56
                    ds_write_b32 v40, v41 offset:4
                    {nw}:
                    s_mov_b32 s56, 1
                    s_atomic_add s56, s[58:59], 0 glc
                    {nc}:
                    s_cmp_lt_u32 s60, {n0}
                    s_cbranch_scc1 {st}
                    {rd}:
                    v_readfirstlane_b32 s33, v42
                    s_cmp_lg_u32 s33, 0
                    s_cbranch_scc1 {rd}_ok
                    s_sub_u32 s37, s37, 1
                    s_cbranch_scc1 L_drain{ph}
                    ds_read_b32 v42, v40
                    s_waitcnt lgkmcnt(0)
                    s_branch {rd}
                    {rd}_ok:
                    s_cmp_gt_u32 s33, 32
                    s_cbranch_scc1 L_drain{ph}
                    s_lshl_b32 s57, s33, 3
                    s_add_u32 s57, s57, s62
                    {st}:
                    v_add_u32 v40, 4, v40
                    {go}:""")
                self.a_addr()
                a("s_cmp_lt_u32 s57, s55\ns_cselect_b64 vcc, -1, 0\ns_add_u32 s57, s57, 24\ns_add_u32 s60, s60, 1")
            else:
                a(f"s_cmp_ge_u32 s57, 256\ns_cbranch_scc1 L_drain{ph}")
                self.a_addr()
                a("s_cmp_lt_u32 s57, s55\ns_cselect_b64 vcc, -1, 0")
                a(f"s_cmp_lt_u32 s57, s60\ns_cselect_b32 s33, 24, s56\ns_add_u32 s57, s57, s33")
            q, pv = (ph + 2) & 3, (ph + 3) & 3
            if self.lf:
                for k in range(4):
                    self.a_load(ph if k < 2 else pv, k, D - 1, L - 1)
                if 'iter' in self.diag:
                    a("s_memrealtime s[98:99]\ns_add_u32 s49, s49, 1\ns_mov_b32 m0, s49\ns_waitcnt lgkmcnt(0)\nv_writelane_b32 v63, s98, m0")
                self.a_qk(q); self.a_soft()
                if D > 4:
                    a("s_waitcnt vmcnt(5)")
                self.a_pv(q, 0)
                if D > 4:
                    a("s_waitcnt vmcnt(4)")
            else:
                self.a_load(ph, 0, D - 1, L - 1); self.a_qk(q)
                self.a_load(ph, 1, D - 1, L - 1); self.a_soft()
                self.a_load(pv, 2, D - 1, L - 1); self.a_pv(q, 0)
                self.a_load(pv, 3, D - 1, L - 1)
            if self.n0:
                a("ds_read_b32 v42, v40")
            self.a_pv(q, 1)
            if ph == 2:
                a("s_cmp_eq_u32 s63, 0\ns_cbranch_scc1 L_caught\ns_mov_b32 s63, 0")
                proc(1)
                a("L_caught:")
        a("s_branch L_aloop")
        for ph in range(4):
            a(f"L_drain{ph}:")
            self.stamp(5)
            q, n = (ph + 2) & 3, (ph + 3) & 3
            a("s_mov_b32 s54, s48")
            if self.lf == 2:
                self.a_load(n, 2, 5); self.a_load(n, 3, 5)
                self.a_qk(q); self.a_soft()
                a("s_waitcnt vmcnt(4)")
            else:
                self.a_qk(q); self.a_soft()
                self.a_load(n, 2, 3); self.a_load(n, 3, 3)
            self.a_qk(n); self.a_max()
            for sw in ("v_permlane16_swap_b32", "v_permlane32_swap_b32"):
                a(f"v_mov_b32 v32, v31\n{sw} v32, v31\nv_max_f32 v31, v31, v32")
            a("ds_write_b32 v39, v31\ns_waitcnt vmcnt(3)")
            self.a_pv(q, 0)
            a("s_waitcnt vmcnt(2)")
            self.a_pv(q, 1)
            a("s_waitcnt lgkmcnt(0)\ns_barrier")
            x = self.e2pos[0]
            for i in range(x):
                self.e2_dma(i)
            a(f"""
                ds_read_b128 v[8:11], v43
                ds_read_b128 v[12:15], v43 offset:16
                s_waitcnt lgkmcnt(0)
                v_max3_f32 v31, v8, v9, v10
                v_max3_f32 v12, v12, v13, v14
                v_max3_f32 v31, v31, v11, v15
                v_max_f32 v31, v31, v12""")
            self.a_soft(with_max=False)
            a(f"v_add_f32_dpp v61, v61, v61 row_ror:8 {FULL}")
            for sw in ("v_permlane16_swap_b32", "v_permlane32_swap_b32"):
                a(f"v_mov_b32 v32, v61\n{sw} v32, v61\nv_add_f32 v61, v61, v32")
            a("s_mov_b64 exec, 1\nds_add_f32 v43, v61 offset:32\ns_mov_b64 exec, -1")
            a(f"s_waitcnt vmcnt({1 + x})")
            self.a_pv(n, 0)
            a(f"s_waitcnt vmcnt({x})")
            self.a_pv(n, 1)
            if ph < 3:
                a("s_branch L_afin")
        a("L_afin:\ns_nop 2")
        self.stamp(6)
        for i in range(4):
            a(f"v_permlane32_swap_b32 v{52 + i}, v{56 + i}")
        a("v_pk_add_f32 v[52:53], v[52:53], v[56:57]\nv_pk_add_f32 v[54:55], v[54:55], v[58:59]")
        a(f"""v_permlane16_swap_b32 v52, v54
            v_permlane16_swap_b32 v53, v55
            v_pk_add_f32 v[52:53], v[52:53], v[54:55]
            ds_write_b64 v38, v[52:53]""")
        for i in range(x, sum(self.e2pos)):
            self.e2_dma(i)
        a(f"""s_waitcnt lgkmcnt(0)
            s_barrier
            s_cmp_lg_u32 {sW}, 3
            s_cbranch_scc1 L_apost
            ds_read_b128 v[208:211], v44
            ds_read_b128 v[212:215], v44 offset:512
            ds_read_b128 v[216:219], v44 offset:1024
            ds_read_b128 v[220:223], v44 offset:1536
            ds_read_b32 v61, v43 offset:32
            v_and_b32 v8, 1, v0
            v_cmp_eq_u32 vcc, 1, v8
            v_mov_b32 v11, {sTAG}
            s_waitcnt lgkmcnt(3)
            v_pk_add_f32 v[208:209], v[208:209], v[212:213]
            v_pk_add_f32 v[210:211], v[210:211], v[214:215]
            s_waitcnt lgkmcnt(1)
            v_pk_add_f32 v[216:217], v[216:217], v[220:221]
            v_pk_add_f32 v[218:219], v[218:219], v[222:223]
            v_pk_add_f32 v[208:209], v[208:209], v[216:217]
            v_pk_add_f32 v[210:211], v[210:211], v[218:219]
            v_permlane32_swap_b32 v208, v210
            v_permlane32_swap_b32 v209, v211
            v_pk_add_f32 v[208:209], v[208:209], v[210:211]
            v_cvt_pk_bf16_f32 v8, v208, v209
            v_cvt_pk_bf16_f32 v9, v208, v209
            s_waitcnt lgkmcnt(0)
            v_cndmask_b32 v10, v60, v61, vcc
            v_permlane32_swap_b32 v8, v9""")
        self.exec64(0xffffffff, 0)
        a(f"""
            buffer_store_dwordx4 v[8:11], v16, {SRDW}, s61 offen sc1
            s_mov_b64 exec, -1
            L_apost:""")
        self.stamp(12)
        for i in range(sum(self.e2pos), 4):
            self.e2_dma(i)
        a("s_nop 0")

    def e2(self):
        a = self.a
        a("L_stageE2:")
        if self.diag and self.diag not in ('cyc', 'iter', 'fine'):
            a("s_branch L_done")
        a(f"""s_load_dwordx2 s[28:29], s[0:1], 88
            v_lshrrev_b32 v9, 2, v1
            v_lshlrev_b32 v7, 10, v2
            v_lshl_add_u32 v7, v9, 7, v7
            v_and_b32 v10, 3, v0
            v_lshl_add_u32 v7, v10, 3, v7
            v_lshrrev_b32 v9, 1, v9
            v_and_b32 v8, 1, v2
            v_lshl_or_b32 v9, v8, 1, v9
            s_and_b32 s33, {sW}, 3
            v_xor_b32 v9, s33, v9
            v_lshl_add_u32 v7, v9, 5, v7
            s_cmp_lt_u32 {sW}, 4
            s_mov_b32 s36, {E2B[1]}
            s_cmov_b32 s36, {E2B[0]}
            s_mov_b32 s49, {H4B}
            s_cmov_b32 s49, {H4A}
            v_add_u32 v7, s36, v7
            s_lshl_b32 s36, {sH}, 12
            s_add_u32 s49, s49, s36
            s_lshl_b32 s36, s33, 9
            s_add_u32 s49, s49, s36
            v_lshrrev_b32 v9, 5, v0
            v_mul_u32_u24 v14, 1536, v9
            v_add_u32 v14, v14, v16
            s_and_b32 s36, {sW}, 4
            s_lshl_b32 s36, s36, 1
            s_add_u32 s38, s36, s33
            v_lshl_add_u32 v9, v9, 2, s38
            v_and_b32 v10, 31, v0
            v_mul_u32_u24 v12, 272, v9
            v_lshl_add_u32 v12, v10, 3, v12
            v_add_u32 v12, {HI}, v12
            v_lshlrev_b32 v13, 7, v9
            v_lshl_add_u32 v13, v10, 2, v13
            v_add_u32 v13, {HS}, v13
            v_and_b32 v9, 7, v0
            v_add_u32 v9, s36, v9
            v_mul_u32_u24 v20, 272, v9
            v_lshl_add_u32 v20, v2, 4, v20
            v_add_u32 v20, {HI}, v20
            v_lshlrev_b32 v21, 7, v9
            v_add_u32 v21, {HS}, v21
            v_mov_b32 v176, 0
            v_mov_b32 v177, 0
            v_and_b32 v10, 1, v0
            v_cmp_eq_u32 vcc, 0, v10
            v_mov_b32 v9, {NEGBIG:#x}
            v_cndmask_b32 v178, 0, v9, vcc
            s_mov_b32 s30, 4096
            s_mov_b32 s31, 0x20000""")
        a(f"""v_lshlrev_b32 v15, 12, v2
            v_lshl_add_u32 v15, v1, 3, v15
            s_lshl_b32 s50, {sJ}, 3
            s_add_u32 s50, s50, {sW}
            s_lshl_b32 s50, s50, 13
            s_lshl_b32 s36, {sH}, 7
            s_add_u32 s50, s50, s36
            s_add_u32 s50, s50, {H5}
            v_mov_b32 v213, {sTAG}
            s_lshr_b32 s33, 0x37, {sW}
            s_and_b32 s33, s33, 1
""")
        a("s_cbranch_scc0 L_nopoll")
        if self.pw is not None:
            a(f"s_waitcnt vmcnt({self.pw})")
        self.poll_rows("v14", "s49")
        a("""L_nopoll:
            ds_write_b64 v12, v[176:177]
            ds_write_b32 v13, v178
            s_waitcnt vmcnt(0) lgkmcnt(0)
            s_barrier""")
        self.stamp(14)
        a("ds_read_b64 v[22:23], v21")
        for s in range(4):
            a(f"ds_read_b128 {vr(176 + 4 * s, 4)}, v20 offset:{64 * s}")
            for p in range(2):
                a(f"ds_read_b64_tr_b16 {vr(160 + 4 * s + 2 * p, 2)}, v7 offset:{4096 * s + 512 * p}")
        chain = [f"v_max_f32_dpp v8, v22, v22 quad_perm:[1,0,3,2] {FULL}\nv_max_f32_dpp v8, v8, v8 quad_perm:[2,3,0,1] {FULL}\nv_sub_f32 v8, v22, v8\nv_exp_f32 v8, v8",
                 "v_mul_f32 v9, v8, v23",
                 f"v_add_f32_dpp v9, v9, v9 quad_perm:[1,0,3,2] {FULL}",
                 f"v_add_f32_dpp v9, v9, v9 quad_perm:[2,3,0,1] {FULL}\nv_rcp_f32 v9, v9"]
        a("s_waitcnt lgkmcnt(12)")
        for s in range(4):
            c = "0" if s == 0 else "v[208:211]"
            a(chain[s])
            a(f"s_waitcnt lgkmcnt({9 - 3 * s})")
            a(f"v_mfma_f32_16x16x32_bf16 v[208:211], {vr(176 + 4 * s, 4)}, {vr(160 + 4 * s, 4)}, {c}")
        a("v_mul_f32 v8, v8, v9")
        for r in range(3):
            op = "v_mul_f32_dpp" if r == 0 else "v_fmac_f32_dpp"
            a(f"{op} v212, v8, v{208 + r} row_newbcast:{r} row_mask:0x1 bank_mask:0xf")
            a(f"{op} v212, v8, v{208 + r} row_newbcast:{4 + r} row_mask:0x2 bank_mask:0xf")
        self.exec64(0xffffffff, 0)
        a(f"buffer_store_dwordx2 v[212:213], v15, {SRDW}, s50 offen sc1")
        a("s_mov_b64 exec, -1")
        self.stamp(15)
        a(f"s_cmp_lg_u32 {sW}, 7\ns_cbranch_scc1 L_done")
        a(f"""v_lshrrev_b32 v7, 2, v0
            v_lshlrev_b32 v7, 7, v7
            v_and_b32 v8, 3, v0
            v_lshl_add_u32 v7, v8, 4, v7
            s_lshl_b32 s33, {sJ}, 4
            s_lshr_b32 s36, {sH}, 1
            s_add_u32 s33, s33, s36
            s_lshl_b32 s33, s33, 12
            s_and_b32 s38, {sH}, 1
            s_lshl_b32 s39, s38, 6
            s_add_u32 s33, s33, s39
            s_add_u32 s33, s33, {H5}
            s_and_b32 s36, s36, 1
            s_lshl_b32 s36, s36, 11
            s_lshr_b32 s39, {sH}, 4
            s_lshl_b32 s39, s39, 10
            s_add_u32 s36, s36, s39
            s_lshl_b32 s39, {sJ}, 7
            s_add_u32 s36, s36, s39
            s_bfe_u32 s39, {sH}, 0x20002
            s_lshl_b32 s39, s39, 5
            s_add_u32 s36, s36, s39
            s_lshl_b32 s39, s38, 4
            s_add_u32 s36, s36, s39
            v_lshlrev_b32 v13, 2, v0
            s_mov_b32 s37, {SPIN}
            L_fp:
            buffer_load_dwordx4 v[20:23], v7, {SRDW}, s33 offen sc1
            buffer_load_dwordx4 v[24:27], v7, {SRDW}, s33 offen offset:2048 sc1
            s_sub_u32 s37, s37, 1
            s_waitcnt vmcnt(0)
            s_cbranch_scc1 L_fok
            v_bitop3_b32 v8, v21, v23, {sTAG} bitop3:0x7e
            v_bitop3_b32 v9, v25, v27, {sTAG} bitop3:0x7e
            v_or_b32 v8, v8, v9
            v_cmp_ne_u32 vcc, 0, v8
            s_cbranch_vccnz L_fp
            L_fok:
            v_add_f32 v8, v20, v24
            v_add_f32 v9, v22, v26""")
        self.stamp(16)
        for sh in (4, 8):
            for r in (8, 9):
                a(f"v_add_f32_dpp v{r}, v{r}, v{r} row_ror:{sh} {FULL}")
        a("""v_permlane32_swap_b32 v8, v9
            v_add_f32 v8, v8, v9
            v_mov_b32 v9, v8
            v_permlane16_swap_b32 v8, v9
            v_add_f32 v8, v8, v9
            v_mov_b32 v9, v8
            v_permlane32_swap_b32 v8, v9
            v_cvt_pk_bf16_f32 v8, v8, v9
            s_mov_b64 exec, 15""")
        a(f"buffer_store_dword v8, v13, {SRDX}, s36 offen {self.outfl}")
        a(f"""s_or_b32 s33, {sH}, {sJ}
            s_cbranch_scc1 L_done
            s_mov_b64 exec, 1
            buffer_store_dword v213, off, {SRDW}, 0 offset:{EPOCH} sc1
            L_done:""")
        if self.calib:
            a(f"""L_cal:
                s_memrealtime s[98:99]
                s_waitcnt lgkmcnt(0)
                s_sub_u32 s98, s98, s96
                s_cmp_lt_u32 s98, {self.calib * 100}
                s_cbranch_scc1 L_cal""")
        if self.amp:
            k, roles, neg = self.amp
            a("s_mov_b64 exec, -1")
            self.stamp(17)
            a(f"""s_nop 1
                v_readlane_b32 s33, v63, {k}
                s_lshr_b32 s36, {roles}, {sT}
                s_and_b32 s36, s36, 1
                s_cselect_b32 s33, s33, 0
                s_cmp_eq_u32 s33, 0
                s_cselect_b32 s38, 0, 1
                s_cselect_b32 s33, s96, s33
                s_sub_u32 s33, s33, s96
                {'s_sub_u32 s33, 2500, s33' if neg else ''}
                s_mul_i32 s33, s33, s38
                s_mul_i32 s33, s33, 10
                s_add_u32 s33, s33, 3000
                L_amp:
                s_memrealtime s[98:99]
                s_waitcnt lgkmcnt(0)
                s_sub_u32 s98, s98, s96
                s_cmp_lt_u32 s98, s33
                s_cbranch_scc1 L_amp""")
        elif self.dbg:
            a("s_mov_b64 exec, -1")
            self.stamp(17)
            a(f"""s_getreg_b32 s33, hwreg(HW_REG_XCC_ID)
                v_writelane_b32 v63, s33, 31
                s_getreg_b32 s33, hwreg(HW_REG_HW_ID)
                v_writelane_b32 v63, s33, 28
                s_lshl_b32 s33, s2, 3
                s_add_u32 s33, s33, {sW}
                s_lshl_b32 s33, s33, 7
                s_add_u32 s33, s33, {STAMP}
                v_lshlrev_b32 v7, 2, v0""")
            self.exec64(0xffffffff, 0)
            a(f"buffer_store_dword v63, v7, {SRDW}, s33 offen")

    def role_b(self):
        a = self.a
        D = self.bdepth
        QAR, FR, O, S2, S3, PF, S = 64, 128, 160, 192, 224, 32, 48
        a("L_roleB:")
        a("s_load_dwordx2 s[16:17], s[0:1], 72\ns_mov_b32 s18, 0x400000")
        self.second_batch(lambda: None)
        self.load_e2_ptr()
        for i in range(8):
            a(f"s_waitcnt vmcnt({D - 1})\ns_add_u32 m0, s44, {dest(i) + 16384}\ns_nop 0")
            a(f"buffer_load_dwordx4 v{3 + (i & 1)}, {SRD0}, s43 offen nt lds\ns_add_u32 s43, s43, 8192")
        self.stamp(1)

        def stage(i):
            a(f"s_add_u32 s33, s43, {8192 * i}\nbuffer_load_dwordx4 {vr(S2 + 4 * (i if i < 4 else i - 8 if i >= 12 else i + 4), 4)}, v{3 + (i & 1)}, {SRD0}, s33 offen nt")

        def late(i, wait=None):
            sk = self.lab("lt")
            a(f"s_cmp_le_u32 s62, {i}\ns_cbranch_scc1 {sk}")
            if wait is not None:
                a(f"s_waitcnt vmcnt({wait})")
            stage(i)
            a(f"{sk}:")

        a(f"""s_and_b32 s54, {sW}, 3
            s_lshr_b32 s55, {sW}, 2
            v_and_b32 v7, 3, v1
            v_lshlrev_b32 v7, 2, v7
            v_lshrrev_b32 v8, 2, v1
            v_or_b32 v7, v7, v8
            v_lshlrev_b32 v7, 4, v7
            v_lshl_add_u32 v7, v2, 8, v7
            v_lshl_add_u32 v7, v1, 10, v7
            s_lshl_b32 s33, s54, 15
            v_add_u32 v28, s33, v7
            v_lshlrev_b32 v7, 4, v1
            v_lshl_add_u32 v7, v2, 8, v7
            v_lshl_add_u32 v7, v1, 10, v7
            s_lshl_b32 s33, s55, 14
            s_add_u32 s33, s33, {AUX}
            v_add_u32 v29, s33, v7
            v_lshrrev_b32 v9, 1, v2
            v_and_b32 v10, 1, v2
            v_bfe_u32 v11, v0, 1, 1
            v_lshl_or_b32 v11, v10, 1, v11
            s_lshl_b32 s33, {sW}, 3
            v_or_b32 v11, s33, v11
            v_lshlrev_b32 v12, 2, v8
            v_lshl_or_b32 v12, v9, 1, v12
            v_xor_b32 v11, v11, v12
            v_lshlrev_b32 v11, 4, v11
            v_lshl_add_u32 v12, v9, 3, v8
            v_lshl_add_u32 v11, v12, 10, v11
            v_and_b32 v12, 1, v0
            v_lshl_add_u32 v20, v12, 3, v11
            v_xor_b32 v21, 16, v20
            v_add_u32 v21, 4096, v21
            v_xor_b32 v22, 64, v20
            v_xor_b32 v23, 64, v21""")
        for k in range(4):
            a(f"v_add_u32 v{24 + k}, 65536, v{20 + k}")
        a(f"""s_lshl_b32 s33, s55, 8
            s_add_u32 s33, s33, {MX}
            v_lshl_add_u32 v30, v1, 4, s33
            s_lshl_b32 s33, s54, 2
            v_add_u32 v31, s33, v30
            v_and_b32 v7, 31, v0
            v_lshlrev_b32 v56, 4, v7
            v_add_u32 v56, {MX}, v56
            v_mul_u32_u24 v60, 272, v7
            v_lshl_add_u32 v60, v9, 4, v60
            v_add_u32 v60, {PB}, v60
            v_mul_u32_u24 v61, 272, v1
            v_lshl_add_u32 v61, v2, 3, v61
            s_mul_i32 s33, s55, {16 * 272}
            s_lshl_b32 s36, s54, 6
            s_add_u32 s33, s33, s36
            s_add_u32 s33, s33, {PB}
            v_add_u32 v61, s33, v61
            v_add_u32 v19, s44, v16
            v_add_u32 v62, 65536, v19
            v_mov_b32 v57, {NEGBIG:#x}
            v_mov_b32 v58, {NEGBIG:#x}
            v_mov_b32 v59, 0
            v_lshlrev_b32 v7, 1, v2
            v_xor_b32 v7, v7, v1
            v_lshlrev_b32 v7, 4, v7
            v_lshl_add_u32 v5, v2, 13, v7
            v_xor_b32 v6, 128, v5
            s_lshl_b32 s45, {sB}, 21
            s_lshl_b32 s36, {sW}, 18
            s_add_u32 s45, s45, s36
            s_lshl_b32 s36, {sH}, 8
            s_add_u32 s45, s45, s36""")
        for k in range(32):
            a(f"v_mov_b32 v{O + k}, 0")
        a(f"""s_lshl_b32 s33, {sH}, 1
            s_add_u32 s33, s33, {sB}
            s_lshl_b32 s33, s33, 3
            s_add_u32 s33, s33, {sW}
            s_lshl_b32 s33, s33, 7
            s_add_u32 s33, s33, {F2}
            s_add_u32 s34, s12, s33
            s_addc_u32 s35, s13, 0
            s_lshl_b32 s49, {sB}, 15
            s_lshl_b32 s36, {sW}, 12
            s_add_u32 s49, s49, s36
            s_add_u32 s49, s49, {QABS}
            s_add_u32 s50, s36, {AUX}
            s_mov_b32 s60, {sTAG}
            s_mov_b32 s61, {sTAG}""")

        def flags_differ():
            for k in range(4):
                a(f"s_xor_b64 s[{64 + 2 * k}:{65 + 2 * k}], s[{64 + 2 * k}:{65 + 2 * k}], s[60:61]")
            a("s_or_b64 s[64:65], s[64:65], s[66:67]\ns_or_b64 s[68:69], s[68:69], s[70:71]\ns_or_b64 s[64:65], s[64:65], s[68:69]")
        for i in range(15, 3, -2):
            chk = 17 - i >= self.bmin
            if chk:
                a("s_load_dwordx8 s[64:71], s[34:35], 0 glc")
            for k in (i, i - 1):
                a(f"s_waitcnt vmcnt({D - 1})")
                stage(k)
            if chk:
                a(f"s_mov_b32 s62, {i - 1}\ns_waitcnt lgkmcnt(0)")
                flags_differ()
                a("s_cbranch_scc0 L_h2ok")
        self.stamp(2)
        a(f"""s_mov_b32 s62, 4
            s_mov_b32 s37, {SPIN}
            L_h2:
            s_load_dwordx8 s[64:71], s[34:35], 0 glc
            s_sub_u32 s37, s37, 1
            s_waitcnt lgkmcnt(0)
            s_cbranch_scc1 L_h2ok""")
        flags_differ()
        a("s_cbranch_scc1 L_h2")
        a("L_h2ok:")
        self.stamp(3)
        def qcopy():
            a(f"""s_lshl_b32 s33, s54, 6
                v_xor_b32 v12, s33, v16
                v_xor_b32 v13, 16, v12
                v_xor_b32 v14, 32, v12
                v_xor_b32 v15, 48, v12
                s_mov_b32 m0, s50""")
            for i in range(4):
                a(f"buffer_load_dwordx4 v{12 + i}, {SRDW}, s49 offen offset:{1024 * i} sc1 lds")

        def qread():
            for s in range(16):
                a(f"v_xor_b32 v7, {s << 4}, v29\nds_read_b128 {vr(QAR + 4 * s, 4)}, v7")
        qcopy()
        a("s_barrier")
        for i in range(4):
            a(f"s_waitcnt vmcnt({D + 1})")
            stage(i)
        a("s_waitcnt vmcnt(4)\ns_barrier")
        self.stamp(4)
        a("s_mov_b32 s37, 4096\nL_qa:")
        qread()
        a("s_waitcnt lgkmcnt(0)\ns_barrier")

        def put(reg, sig):
            for i in range(8):
                d = dest(i) + 16384 * sig
                a(f"ds_write_b128 v{62 if d >> 16 else 19}, {vr(reg + 4 * i, 4)} offset:{d & 0xffff}")

        def step(t, sigs, hook):
            ns = len(sigs)
            blocks = [2 * kb + sg for kb in range(4) for sg in sigs]

            def rd(r):
                if r % ns == 0:
                    a(f"v_xor_b32 v7, {(r // ns) << 4}, v28")
                a(f"ds_read_b128 {vr(FR + 4 * (r & 7), 4)}, v7 offset:{16384 * sigs[r % ns]}")

            def tr(n, blk):
                be = blocks[n]
                for p in range(2):
                    ar = 20 + 4 * (be >> 2) + 2 * blk + p
                    a(f"ds_read_b64_tr_b16 {vr(FR + 8 * (n & 3) + 4 * blk + 2 * p, 2)}, v{ar} offset:{(be & 3) * 16384}")

            def pread(n):
                a(f"ds_read_b128 {vr(PF + 4 * (n & 3), 4)}, v60 offset:{32 * blocks[n]}")
            nr = 16 * ns
            for r in range(8):
                rd(r)
            for r in range(nr):
                a(f"s_waitcnt lgkmcnt({min(7, nr - 1 - r)})")
                acc = vr(S + 4 * (r % ns), 4)
                a(f"v_mfma_f32_16x16x32_bf16 {acc}, {vr(FR + 4 * (r & 7), 4)}, {vr(QAR + 4 * (r // ns), 4)}, {'0' if r < ns else acc}")
                hook("qk", r)
                if r + 8 < nr:
                    rd(r + 8)
            a(f"v_max3_f32 v7, v{S}, v{S + 1}, v{S + 2}")
            if ns == 2:
                a(f"v_max3_f32 v8, v{S + 4}, v{S + 5}, v{S + 6}\nv_max3_f32 v7, v7, v{S + 3}, v{S + 7}\nv_max_f32 v7, v7, v8")
            else:
                a(f"v_max_f32 v7, v7, v{S + 3}")
            for sw in ("v_permlane16_swap_b32", "v_permlane32_swap_b32"):
                a(f"v_mov_b32 v8, v7\n{sw} v8, v7\nv_max_f32 v7, v7, v8")
            a("""v_mul_f32 v7, s52, v7
                ds_write_b32 v31, v7""")
            for n in range(3):
                tr(n, 0); tr(n, 1)
            a("""s_waitcnt lgkmcnt(12)
                s_barrier
                ds_read_b128 v[8:11], v30
                ds_read_b128 v[12:15], v56
                s_waitcnt lgkmcnt(0)""")
            tr(3, 0); tr(3, 1)
            if t == 0 and self.noack:
                a("v_cmp_u_f32 vcc, v12, v12\ns_cbranch_vccnz L_qretry\nL_qaok:")
                if self.dbg is True:
                    a("s_sub_u32 s33, 4096, s37\nv_writelane_b32 v63, s33, 29")
            a("v_max3_f32 v8, v8, v9, v10\nv_max3_f32 v8, v8, v11, v57")
            for r in range(4 * ns):
                a(f"v_fma_f32 v{S + r}, v{S + r}, s52, -v8")
            for r in range(4 * ns):
                a(f"v_exp_f32 v{S + r}, v{S + r}")
            a("v_max3_f32 v12, v12, v13, v14")
            for r in range(2 * ns):
                a(f"v_cvt_pk_bf16_f32 v{PF + r}, v{S + 2 * r}, v{S + 2 * r + 1}")
            for k, sg in enumerate(sigs):
                a(f"ds_write_b64 v61, {vr(PF + 2 * k, 2)} offset:{32 * sg}")
            a(f"""v_sub_f32 v9, v57, v8
                v_max3_f32 v12, v12, v15, v58
                v_exp_f32 v9, v9
                v_sub_f32 v14, v58, v12
                v_mov_b32 v57, v8
                v_exp_f32 v14, v14
                v_mov_b32 v58, v12
                v_pk_add_f32 {vr(S, 2)}, {vr(S, 2)}, {vr(S + 2, 2)}""")
            if ns == 2:
                a(f"v_pk_add_f32 {vr(S + 4, 2)}, {vr(S + 4, 2)}, {vr(S + 6, 2)}\nv_pk_add_f32 {vr(S, 2)}, {vr(S, 2)}, {vr(S + 4, 2)}")
            a(f"v_fma_f32 v59, v59, v9, v{S}\nv_add_f32 v59, v59, v{S + 1}")
            if t == 2:
                for sw in ("v_permlane16_swap_b32", "v_permlane32_swap_b32"):
                    a(f"v_mov_b32 v8, v59\n{sw} v8, v59\nv_add_f32 v59, v59, v8")
                a(f"ds_write_b32 v31, v59 offset:{LS - MX}")

            def rescale(lo, hi):
                if t:
                    for k in range(lo, hi):
                        a(f"v_pk_mul_f32 {vr(O + 2 * k, 2)}, {vr(O + 2 * k, 2)}, v[14:15] op_sel_hi:[1,0]")
            rescale(0, 6)
            a("s_waitcnt lgkmcnt(0)\ns_barrier")
            for n in range(4):
                pread(n)
            rescale(6, 16)
            for n in range(4 * ns):
                if ns == 1:
                    a(f"s_waitcnt lgkmcnt({3 - n})")
                elif n in (0, 5, 6, 7):
                    a(f"s_waitcnt lgkmcnt({ {0: 0, 5: 10, 6: 5, 7: 0}[n] })")
                if n == 7:
                    a("s_barrier")
                for blk in range(2):
                    a(f"v_mfma_f32_32x32x16_bf16 {vr(O + 16 * blk, 16)}, {vr(FR + 8 * (n & 3) + 4 * blk, 4)}, {vr(PF + 4 * (n & 3), 4)}, {vr(O + 16 * blk, 16)}")
                hook("pv", n)
                if ns == 2 and n < 4:
                    if n == 3:
                        a("s_waitcnt lgkmcnt(10)")
                    pread(n + 4)
                    tr(n + 4, 0); tr(n + 4, 1)

        def uv(i):
            a(f"buffer_load_dwordx4 {vr(S2 + 4 * i, 4)}, v{5 + (i & 1)}, {SRDK}, s45 offen nt\ns_add_u32 s45, s45, 32768")

        def hook0(ph, r):
            if ph == "qk" and r in self.hookpos:
                late(4 + self.hookpos.index(r))
            if ph == "pv" and r in (0, 2, 4, 6):
                late(8 + r // 2)
        step(0, (0, 1), hook0)
        self.stamp(5)
        for n in (8, 6, 4, 2):
            a(f"s_waitcnt vmcnt({n})\ns_cmp_eq_u32 s62, {n + 4}\ns_cbranch_scc1 L_mid")
        a("s_waitcnt vmcnt(0)\nL_mid:")
        put(S2, 0)
        a(f"""s_lshl_b32 s50, s55, 15
            s_lshl_b32 s36, s54, 12
            s_add_u32 s50, s50, s36
            s_add_u32 s50, s50, {PART[0]}
            v_and_b32 v7, 31, v0
            v_and_b32 v8, 7, v0
            v_lshlrev_b32 v9, 4, v8
            v_lshl_add_u32 v9, v7, 7, v9
            v_lshrrev_b32 v10, 5, v0
            v_lshl_add_u32 v9, v10, 3, v9
            v_add_u32 v3, s50, v9
            v_lshrrev_b32 v10, 3, v0
            v_xor_b32 v11, v8, v10
            v_lshlrev_b32 v11, 4, v11
            v_lshl_add_u32 v11, v10, 7, v11
            v_add_u32 v4, s50, v11
            v_lshlrev_b32 v12, 4, v8
            v_lshl_add_u32 v29, v10, 16, v12
            v_lshlrev_b32 v17, 10, v0
            v_mov_b32 v18, 0x10001
            v_mov_b32 v54, {sTAG}
            v_mov_b32 v55, {sTAG}
            s_lshl_b32 s49, s55, 15
            s_lshl_b32 s36, {sB}, 14
            s_add_u32 s49, s49, s36
            s_lshl_b32 s36, {sH}, 9
            s_add_u32 s49, s49, s36
            s_lshl_b32 s36, s54, 7
            s_add_u32 s49, s49, s36
            s_add_u32 s49, s49, {OP}
            s_lshl_b32 s53, {sB}, 9
            s_lshl_b32 s36, {sH}, 4
            s_add_u32 s53, s53, s36
            s_add_u32 s53, s53, {ST}""")
        for k in range(4):
            a(f"s_bfe_u32 s33, {sTAG}, {0x20000 + 2 * k:#x}\ns_mul_i32 s33, s33, 0x8001\ns_and_b32 s{56 + k}, s33, 0x10001")
        a("s_waitcnt lgkmcnt(0)\ns_barrier")
        self.stamp(6)
        u0, u1, u2 = self.uva
        for i in range(u0):
            uv(i)
        step(1, (0,), lambda ph, r: uv(u0 + r - 4 + u1) if ph == "pv" and r >= 4 - u1 else None)
        a(f"s_waitcnt vmcnt({u0 + u1})")
        put(S3, 1)
        for i in range(u2):
            uv(u0 + u1 + i)
        a("s_waitcnt lgkmcnt(0)\ns_barrier")
        self.stamp(7)
        step(2, (1,), lambda ph, r: None)
        self.stamp(8)
        for k in range(1, 8):
            a(f"v_xor_b32 v{S3 + k}, {16 * k}, v3")
        if 'Bstop8' in self.diag:
            a("s_branch L_done")
        a(f"""s_cmp_lg_u32 {sW}, 0
            s_cbranch_scc1 L_nost
            ds_read_b128 v[8:11], v56 offset:{LS - MX}
            v_mov_b32 v52, v58
            s_waitcnt lgkmcnt(0)
            v_add_f32 v8, v8, v9
            v_add_f32 v10, v10, v11
            v_add_f32 v53, v8, v10""")
        self.exec64(0xffffffff, 0)
        a(f"buffer_store_dwordx4 v[52:55], v17, {SRDW}, s53 offen sc1\ns_mov_b64 exec, -1\nL_nost:\ns_nop 3")
        for k in range(8):
            a(f"v_cvt_pk_bf16_f32 v{FR + 2 * k}, v{O + 4 * k}, v{O + 4 * k + 1}")
            a(f"v_cvt_pk_bf16_f32 v{FR + 2 * k + 1}, v{O + 4 * k + 2}, v{O + 4 * k + 3}")
            a(f"ds_write_b64 v{S3 + k if k else 3}, {vr(FR + 2 * k, 2)}")
        for i in range(4):
            a(f"ds_read_b128 {vr(FR + 16 + 4 * i, 4)}, v4 offset:{1024 * i}")
        for i in range(4):
            a(f"s_waitcnt lgkmcnt({3 - i})")
            for k in range(4):
                a(f"v_bfi_b32 v{FR + 16 + 4 * i + k}, v18, s{56 + k}, v{FR + 16 + 4 * i + k}")
            a(f"{'' if i < self.nst else ';'}buffer_store_dwordx4 {vr(FR + 16 + 4 * i, 4)}, v29, {SRDW}, s49 offen {self.pfl}\ns_add_u32 s49, s49, {8 * 65536}")
        self.stamp(9)
        for i in range(sum(self.uva), 8):
            uv(i)
        self.e2_dma_setup()
        a(f"""s_lshl_b32 s33, {sH}, 10
            s_lshl_b32 s36, {sW}, 7
            s_add_u32 s33, s33, s36
            s_add_u32 s33, s33, {ST}
            s_add_u32 s34, s12, s33
            s_addc_u32 s35, s13, 0
            v_lshrrev_b32 v7, 5, v0
            s_and_b32 s33, {sW}, 1
            s_lshl_b32 s33, s33, 2
            v_or_b32 v7, s33, v7
            v_lshlrev_b32 v7, 5, v7
            v_xor_b32 v3, v7, v16
            v_xor_b32 v4, 64, v3
            s_lshl_b32 s49, {sH}, 16
            s_lshl_b32 s36, {sB}, 15
            s_add_u32 s49, s49, s36
            s_lshl_b32 s36, {sW}, 12
            s_add_u32 s49, s49, s36
            s_add_u32 s49, s49, {OP}
            v_add_u32 v5, s50, v16
            v_lshrrev_b32 v8, 2, v1
            v_lshrrev_b32 v9, 1, v2
            v_and_b32 v10, 1, v2
            v_lshlrev_b32 v7, 15, v9
            v_lshl_add_u32 v7, v10, 13, v7
            v_lshl_add_u32 v7, v8, 8, v7
            v_and_b32 v11, 3, v0
            v_lshl_add_u32 v7, v11, 3, v7
            v_lshl_or_b32 v10, v10, 2, v8
            v_xor_b32 v9, {sW}, v10
            v_lshl_add_u32 v20, v9, 5, v7
            v_add_u32 v21, 65536, v20
            v_lshlrev_b32 v7, 12, v2
            v_lshl_add_u32 v7, v8, 9, v7
            v_lshl_add_u32 v7, v11, 3, v7
            s_lshl_b32 s33, {sW}, 1
            v_xor_b32 v10, s33, v10
            v_lshl_add_u32 v7, v10, 5, v7
            v_add_u32 v24, {PART[0]}, v7
            v_xor_b32 v25, 32, v24
            s_lshl_b32 s33, {sW}, 7
            s_add_u32 s36, s33, {WB}
            v_lshl_add_u32 v22, v0, 1, s36
            v_and_b32 v8, 1, v0
            v_lshlrev_b32 v7, 6, v8
            v_lshl_add_u32 v7, v2, 4, v7
            v_add_u32 v23, s36, v7
            v_add_u32 v27, {CC}, v7
            v_add_u32 v26, s33, v27
            v_lshlrev_b32 v7, 11, v8
            v_lshl_add_u32 v28, v2, 4, v7
            s_lshl_b32 s53, {sH}, 12
            s_lshl_b32 s36, {sB}, 9
            s_add_u32 s53, s53, s36
            s_lshl_b32 s36, {sW}, 6
            s_add_u32 s53, s53, s36
            s_add_u32 s53, s53, {H4B}
            s_add_u32 s36, s36, {SM}
            v_lshl_add_u32 v29, v0, 3, s36
            v_lshlrev_b32 v30, 3, v0
            v_add_u32 v30, {SM}, v30
            v_and_b32 v7, 1, v2
            v_cvt_f32_u32 v54, v7
            v_mul_f32 v54, 0.5, v54
""")
        if 'Bstop9' in self.diag:
            a("s_branch L_done")
        a(f"""s_mov_b32 s37, {SPIN}
            L_h3:
            {f's_sleep {self.ps[1]}' if self.ps[1] else ''}
            s_load_dwordx16 s[64:79], s[34:35], 0 glc
            s_load_dwordx16 s[80:95], s[34:35], 64 glc
            s_sub_u32 s37, s37, 1
            s_waitcnt lgkmcnt(0)
            s_cbranch_scc1 L_h3ok""")
        for k in range(8):
            a(f"s_cmp_lg_u32 s{66 + 4 * k}, {sTAG}\ns_cbranch_scc1 L_h3")
        a("L_h3ok:")
        self.stamp(10)

        def fetch():
            for i in range(4):
                a(f"buffer_load_dwordx4 {vr(O + 4 * i, 4)}, v{3 + (i & 1)}, {SRDW}, s49 offen offset:{1024 * i} {self.gfl}")
        fetch()
        a("s_waitcnt vmcnt(4)")
        put(S2, 0)
        for k in range(8):
            a(f"v_writelane_b32 v8, s{64 + 4 * k}, {k}\nv_writelane_b32 v9, s{65 + 4 * k}, {k}")
        a("""s_mov_b64 exec, 0xff
            ds_write_b64 v29, v[8:9]
            s_mov_b64 exec, -1
            s_waitcnt lgkmcnt(0)
            s_barrier
            ds_read_b64 v[12:13], v30""")
        for s in range(7):
            for p in range(2):
                a(f"ds_read_b64_tr_b16 {vr(QAR + 4 * s + 2 * p, 2)}, v{20 + p} offset:{1024 * s}")
        a("s_waitcnt lgkmcnt(14)\nv_mov_b32 v14, v12")

        def red32(op, r, t):
            for sh in (1, 2, 4, 8):
                a(f"{op}_dpp v{r}, v{r}, v{r} row_ror:{sh} {FULL}")
            a(f"v_mov_b32 v{t}, v{r}\nv_permlane16_swap_b32 v{t}, v{r}\n{op} v{r}, v{r}, v{t}")
        red32("v_max_f32", 14, 15)
        for p in range(2):
            a(f"ds_read_b64_tr_b16 {vr(QAR + 28 + 2 * p, 2)}, v{20 + p} offset:{1024 * 7}")
        a("v_sub_f32 v12, v12, v14\nv_exp_f32 v12, v12\nv_mul_f32 v13, v12, v13")
        red32("v_add_f32", 13, 15)
        a(f"""v_rcp_f32 v13, v13
            v_mul_f32 v12, v12, v13
            v_cvt_pk_bf16_f32 v12, v12, v12
            ds_write_b16 v22, v12
            ds_read_b128 v[12:15], v23
            v_cmp_eq_u32 vcc, 0, v1
            v_cmp_eq_u32 s[38:39], 1, v1
            s_mov_b32 s37, {SPIN}
            s_waitcnt lgkmcnt(0)""")
        for k in range(4):
            a(f"v_cndmask_b32 v{32 + k}, 0, v{12 + k}, vcc")
            a(f"v_cndmask_b32 v{36 + k}, 0, v{12 + k}, s[38:39]")
        a(f"""L_h3p:
            s_waitcnt vmcnt(0)
""")
        for k in range(4):
            a(f"v_bitop3_b32 v{8 + 2 * k}, v{O + k}, v{O + 4 + k}, s{56 + k} bitop3:0x7e")
            a(f"v_bitop3_b32 v{9 + 2 * k}, v{O + 8 + k}, v{O + 12 + k}, s{56 + k} bitop3:0x7e")
        a(f"""v_or3_b32 v8, v8, v9, v10
            v_or3_b32 v11, v11, v12, v13
            v_or3_b32 v8, v8, v14, v15
            v_or_b32 v8, v8, v11
            v_and_b32 v8, 0x10001, v8
            v_cmp_ne_u32 vcc, 0, v8
            s_cbranch_vccz L_h3pok
            s_sub_u32 s37, s37, 1
            s_cbranch_scc1 L_h3pok""")
        fetch()
        a("s_branch L_h3p\nL_h3pok:")
        for i in range(4):
            a(f"ds_write_b128 v5, {vr(O + 4 * i, 4)} offset:{1024 * i}")
        if self.dbg is True:
            a(f"s_sub_u32 s33, {SPIN}, s37\nv_writelane_b32 v63, s33, 30")
        a("s_waitcnt lgkmcnt(0)\ns_barrier")
        self.stamp(11)
        for s in range(2):
            for cb in range(2):
                for p in range(2):
                    a(f"ds_read_b64_tr_b16 {vr(FR + 8 * s + 4 * cb + 2 * p, 2)}, v{24 + cb} offset:{32768 * s + 2048 * p}")
        if self.e2b == 0:
            for i in range(4):
                self.e2_dma(i)
        for s in range(2):
            for cb in range(2):
                a(f"s_waitcnt lgkmcnt({6 - 4 * s - 2 * cb})")
                c = "0" if s == 0 else vr(40 + 4 * cb, 4)
                a(f"v_mfma_f32_16x16x32_bf16 {vr(40 + 4 * cb, 4)}, {vr(FR + 8 * s + 4 * cb, 4)}, {vr(32 + 4 * s, 4)}, {c}")
        for k in range(4):
            a(f"v_cvt_pk_bf16_f32 v{48 + k}, v{40 + 2 * k}, v{41 + 2 * k}")
        self.exec64(0x00030003)
        a("ds_write_b128 v26, v[48:51]\ns_mov_b64 exec, -1\ns_waitcnt lgkmcnt(0)\ns_barrier")
        for s in range(8):
            a(f"ds_read_b128 {vr(FR + 4 * s, 4)}, v27 offset:{128 * s}")
        for s in range(8):
            a(f"s_waitcnt lgkmcnt({7 - s})")
            a(f"v_mfma_f32_16x16x32_bf16 v[40:43], {vr(QAR + 4 * s, 4)}, {vr(FR + 4 * s, 4)}, {'v[40:43]' if s else '0'}")
        self.exec64(0x00030003)
        a("v_cvt_pk_bf16_f32 v52, v40, v41\nv_cvt_pk_bf16_f32 v53, v42, v43")
        a(f"buffer_store_dwordx4 v[52:55], v28, {SRDW}, s53 offen sc1\ns_mov_b64 exec, -1")
        self.stamp(12)
        if self.e2b == 1:
            for i in range(4):
                self.e2_dma(i)
        a("s_branch L_stageE2")
        if self.noack:
            a("L_qretry:\ns_sub_u32 s37, s37, 1\ns_cbranch_scc1 L_qaok\ns_waitcnt lgkmcnt(0)\ns_barrier")
            qcopy()
            a("s_waitcnt vmcnt(0)\ns_barrier\ns_branch L_qa")

    def build(self):
        a = self.a
        self.entry()
        self.p1()
        a("L_rolePU:")
        self.p2()
        self.a_common()
        self.e2()
        a("s_endpgm")
        self.role_b()
        a("L_end:\ns_endpgm")
        if 'fine' in self.diag:
            a.stamp_loads()
        body = a.finalize()
        return f"""{HEADER}; Generated by a script; one persistent launch, 256 workgroups of 8 waves (one per CU).
; @launch grid=(256,1,1) block=(512,1,1) lds={LDS_BYTES}
.amdgcn_target "amdgcn-amd-amdhsa--gfx950"
.text
.globl {NAME}
.p2align 8
.type {NAME},@function
{NAME}:
{body}.section .rodata,"a"
.p2align 6
.amdhsa_kernel {NAME}
  .amdhsa_next_free_vgpr 256
  .amdhsa_next_free_sgpr 102
  .amdhsa_accum_offset 256
  .amdhsa_group_segment_fixed_size 0
  .amdhsa_kernarg_size 112
  .amdhsa_user_sgpr_count 2
  .amdhsa_user_sgpr_kernarg_segment_ptr 1
  .amdhsa_system_sgpr_workgroup_id_x 1
  .amdhsa_float_denorm_mode_32 3
.end_amdhsa_kernel
"""


if __name__ == "__main__":
    out = sys.argv[1]
    kw = eval("dict(" + (sys.argv[2] if len(sys.argv) > 2 else "") + ")")
    open(out, "w").write(Gen(**kw).build())
```

```python
import sys
from asmlib import Asm

NAME = "concat_heads__sliding_block_cached__compressed_kv_cla__decode_kernel"
HEADER = open("concat_heads__sliding_block_cached__compressed_kv_cla__decode.s.ref").read().split("; Override launch")[0]

EPOCH = 0
QA = 0xa0000
QB = 0xc0000
CNT = 0xa00000
QABS = 0x30000
F2 = 0x40000
ST = 0x50000
H4A = 0x60000
H4B = 0x80000
OP = 0x100000
H5 = 0x400000
STAMP = 0x800000
WS_SIZE = 0x1000000

AUX = 131072
RED = AUX
MXA = AUX + 512
LSA = AUX + 8192 + 64
MX = AUX + 9216
LS = AUX + 9216 + 512
PB = AUX + 10240
SM = AUX + 28672
WB = AUX + 29696
TK = AUX + 768
XI = AUX + 12288
CC = AUX + 30720
QL = AUX + 10240
HI = AUX + 20480
HS = AUX + 26624
E2B = (81920, 114688)
PART = (16384, 49152)
LDS_BYTES = 163840

SCALE = 0x3e0293ee
NEGBIG = 0xff7fffff
SPIN = 1 << 18

sW, sH, sJ, sB, sT, sTAG = "s3", "s4", "s5", "s6", "s7", "s32"
SRD0, SRDW, SRDK, SRDV, SRDE, SRDX = "s[8:11]", "s[12:15]", "s[16:19]", "s[20:23]", "s[24:27]", "s[28:31]"
FULL = "row_mask:0xf bank_mask:0xf"


def vr(a, n):
    return f"v[{a}:{a + n - 1}]"


def dest(i):
    return (i >> 1) * 32768 + (i & 1) * 8192


class Gen:
    def __init__(self, dbg=False, depth=4, rot=True, pu_pre=0, calib=0, bdepth=5, nstatic=12, xfl='', pf=True, diag='', xpos=5, edepth=(4, 4, 3, 3), rounds=10, n0=9, lf=2, srot=0, skw=None, e2pos=(0, 0), pw=2, qplain=True, hperm=0, uva=(4, 2, 2), e2b=0, mix=0, amp=None, pfl='sc1', gfl='sc1', nst=4, jmul=3, outfl='', wlo=(0, 0), wend=12, ps=(0, 0, 0), lo=3, nlo=5, lofrom=1, noack=True, pollw=True, hookpos=(0, 10, 20, 31), bmin=4, e2early=False, hxa=2, hxu=1):
        self.a = Asm()
        self.dbg, self.depth, self.rot, self.pu_pre = dbg, depth, rot, pu_pre
        self.calib, self.bdepth, self.nstatic = calib, bdepth, nstatic
        self.uid = 0
        self.skw = skw
        self.hperm, self.qplain, self.e2pos, self.pw = hperm, qplain, e2pos, pw
        self.mix, self.uva, self.e2b = mix, uva, e2b
        self.bmin, self.e2early, self.amp = bmin, e2early, amp
        self.lf, self.srot, self.pfl, self.gfl, self.nst = lf, srot, pfl, gfl, nst
        self.n0, self.jmul, self.outfl = n0, jmul, outfl
        self.ps, self.wlo, self.wend = ps, wlo, wend
        self.lo, self.nlo, self.lofrom = lo, nlo, lofrom
        self.rounds, self.hookpos, self.noack, self.pollw = rounds, hookpos, noack, pollw
        self.xpos, self.edepth, self.hxa, self.hxu = xpos, edepth, hxa, hxu
        self.xfl, self.pf, self.diag = xfl, pf, diag

    def lab(self, p):
        self.uid += 1
        return f"L_{p}_{self.uid}"

    def stamp(self, k):
        if self.dbg and (self.dbg is True or k in self.dbg or k == 17) and 'fine' not in self.diag:
            self.a(f"s_memrealtime s[98:99]\ns_waitcnt lgkmcnt(0)\nv_writelane_b32 v63, s98, {k}")

    def cyc(self, k):
        if 'cyc' in self.diag:
            self.a(f"s_memtime s[{64 + 2 * k}:{65 + 2 * k}]")

    def exec64(self, lo, hi=None):
        hi = lo if hi is None else hi
        self.a(f"s_mov_b32 exec_lo, {lo:#x}\ns_mov_b32 exec_hi, {hi:#x}")

    def entry(self):
        a = self.a
        a("s_cmp_ge_u32 s2, 256\ns_cbranch_scc1 L_end")
        if self.dbg or self.calib:
            a("s_memrealtime s[96:97]\nv_mov_b32 v63, 0\ns_mov_b32 s100, 0")
        a(f"s_lshr_b32 {sH}, s2, 3")
        if self.rot:
            a(f"s_add_u32 {sJ}, s2, {sH}")
            if self.mix:
                a(f"s_lshr_b32 s33, s2, {4 + self.mix}\ns_add_u32 {sJ}, {sJ}, s33")
            a(f"s_mul_i32 {sJ}, {sJ}, {self.jmul}\ns_and_b32 {sJ}, {sJ}, 7")
        else:
            a(f"s_and_b32 {sJ}, s2, 7")
        if self.hperm:
            a(f"s_xor_b32 {sH}, {sH}, {self.hperm}")
        a(f"""s_and_b32 {sT}, {sJ}, 3
            s_lshl_b32 s33, {sT}, 3
            s_lshr_b32 s36, 0x30403838, s33
            s_and_b32 s36, s36, 0xff
            s_load_dwordx2 s[8:9], s[0:1], s36
            s_lshr_b32 s36, 0x30401818, s33
            s_and_b32 s36, s36, 0xff
            s_load_dwordx2 s[24:25], s[0:1], s36
            s_load_dwordx2 s[12:13], s[0:1], 104
            s_load_dwordx2 s[28:29], s[0:1], 0
            s_load_dwordx2 s[30:31], s[0:1], 40
            s_load_dwordx2 s[16:17], s[0:1], 8
            s_load_dwordx2 s[20:21], s[0:1], 16
            s_getpc_b64 s[34:35]
            L_pc:
            v_lshrrev_b32 v8, 6, v0
            s_lshr_b32 {sB}, {sJ}, 2
            v_readfirstlane_b32 {sW}, v8
            v_and_b32 v0, 63, v0
            v_and_b32 v1, 15, v0
            v_lshrrev_b32 v2, 4, v0
            v_lshlrev_b32 v16, 4, v0
            s_mov_b32 s11, 0x20000
            s_mov_b32 s10, 0x400000
            s_mov_b32 s27, 0x20000
            s_lshl_b32 s44, {sW}, 10
            s_mov_b32 s41, 65536
            s_mov_b32 s38, 64
            s_mov_b32 s39, 0
            s_mov_b32 s42, 32768
            s_cmp_eq_u32 {sT}, 3
            s_cbranch_scc1 L_e3
            v_mov_b32 v9, v2
            v_mov_b32 v10, v1
            s_cmp_eq_u32 {sT}, 2
            s_cbranch_scc1 L_e2
            s_lshl_b32 s63, {sT}, 1
            s_add_u32 s63, s63, {sB}
            s_lshl_b32 s40, s63, 20
            s_lshl_b32 s33, {sW}, 17
            s_add_u32 s40, s40, s33
            s_lshl_b32 s33, {sH}, 8
            s_xor_b32 s42, s33, {self.hxa << 8}
            s_sub_u32 s42, s42, s33
            s_add_u32 s40, s40, s33
            s_mov_b32 s41, 32768
            s_mov_b32 s38, 0
            s_mov_b32 s39, 128
            v_lshlrev_b32 v11, 1, v2
            s_branch L_ej
            L_e2:
            s_xor_b32 s63, {sH}, {self.hxu}
            s_lshl_b32 s40, {sW}, 18
            s_lshl_b32 s33, s63, 8
            s_add_u32 s40, s40, s33
            s_lshl_b32 s33, {sB}, 21
            s_add_u32 s40, s40, s33
            s_mov_b32 s39, 128
            v_mov_b32 v11, v2
            s_branch L_ej
            L_e3:
            s_lshl_b32 s40, {sB}, 23
            s_lshl_b32 s33, {sH}, 18
            s_add_u32 s40, s40, s33
            s_add_u32 s40, s40, s44
            s_mov_b32 s41, 8192
            s_mov_b32 s38, 32
            s_mov_b32 s10, 0x1000000
            s_and_b32 s33, {sW}, 3
            s_lshl_b32 s33, s33, 2
            s_lshr_b32 s36, {sW}, 2
            s_or_b32 s33, s33, s36
            v_mov_b32 v9, 0
            v_mov_b32 v10, v0
            v_mov_b32 v11, s33
            L_ej:
            v_xor_b32 v10, v10, v11
            v_lshlrev_b32 v10, 4, v10
            v_lshl_add_u32 v3, v9, 13, v10
            v_xor_b32 v4, s38, v3
            v_xor_b32 v5, s39, v3
            v_xor_b32 v6, s39, v4
            s_add_u32 s43, s40, s42
            s_mov_b32 s26, s10
            s_mov_b32 m0, s44
            s_waitcnt lgkmcnt(0)""")
        for i in range(4):
            a(f"buffer_load_dwordx4 v{3 + i}, {SRD0}, s40 offen nt lds")
            a(f"s_add_u32 m0, s44, {dest(i + 1)}\ns_add_u32 s40, s40, s41")
        a(f"""s_lshl_b32 s33, {sH}, 3
            s_add_u32 s33, s33, {sW}
            s_lshl_b32 s33, s33, 7
            s_min_u32 s33, s33, L_end-L_pc-64
            s_add_u32 s36, s33, 64
            s_load_dword {'s98' if 'fine' in self.diag else 's100'}, s[34:35], s33
            s_load_dword {'s99' if 'fine' in self.diag else 's101'}, s[34:35], s36
            s_load_dword {sTAG}, s[12:13], {EPOCH}
            s_mov_b32 s14, {WS_SIZE:#x}
            s_mov_b32 s15, 0x20000
            s_mov_b32 s19, 0x20000
            s_mov_b32 s52, {SCALE:#x}""")
        if self.dbg:
            a("v_writelane_b32 v63, s96, 0")
        if self.skw is not None:
            a(f"""s_cmp_lg_u32 {sW}, 0
                s_cbranch_scc1 L_nsk
                s_load_dwordx2 s[64:65], s[0:1], 96
                s_not_b32 s33, s96
                v_mov_b32 v9, s33
                v_mov_b32 v7, 0
                s_mov_b64 exec, 1
                s_waitcnt lgkmcnt(0)
                global_atomic_umax v7, v9, s[64:65] sc1
                s_mov_b64 exec, -1
                L_nsk:""")
        a(f"""s_cmp_eq_u32 {sT}, 3
            s_cbranch_scc1 L_roleB
            s_mov_b32 s18, 0x8000000
            s_mov_b32 s22, 0x8000000
            s_mov_b32 s23, 0x20000
            s_lshl_b32 s45, {sB}, 5
            s_add_u32 s45, s45, {sH}
            s_mul_i32 s42, s45, {self.srot}
            s_lshl_b32 s45, s45, 21
            s_add_u32 s45, s45, {6144 * 256}
            s_lshl_b32 s57, {sT}, 3
            s_add_u32 s57, s57, {sW}""")
        self.a_addr()
        a(f"v_add_u32 v7, {RED}, v16")
        for k in range(4):
            a(f"v_mov_b32 v{8 + k}, 0")
        a(f"ds_write_b128 v7, v[8:11]")
        a(f"s_cmp_eq_u32 {sT}, 2\ns_cbranch_scc1 L_rolePU")

    def second_batch(self, mid, extra=0):
        a = self.a
        for i in range(4, 8):
            a(f"s_waitcnt vmcnt({3 + extra})\nbuffer_load_dwordx4 v{3 + (i & 3)}, {SRDE}, s43 offen nt lds")
            if i < 7:
                a(f"s_add_u32 m0, s44, {dest(i + 1)}")
            a("s_add_u32 s43, s43, s41")
            if i == self.xpos:
                a(f"s_waitcnt lgkmcnt(0)\ns_add_u32 {sTAG}, {sTAG}, 1")
                mid()

    def load_e2_ptr(self):
        self.a(f"""s_cmp_lt_u32 {sW}, 4
            s_cselect_b32 s33, 32, 80
            s_load_dwordx2 s[24:25], s[0:1], s33
            s_mov_b32 s26, 0x400000""")

    def sum_parts(self, r):
        self.a(f"""v_lshlrev_b32 v8, 16, v{r}
            v_and_b32 v9, 0xffff0000, v{r}
            v_lshlrev_b32 v10, 16, v{r + 1}
            v_and_b32 v11, 0xffff0000, v{r + 1}
            v_lshlrev_b32 v{r}, 16, v{r + 4}
            v_and_b32 v{r + 1}, 0xffff0000, v{r + 4}
            v_lshlrev_b32 v{r + 2}, 16, v{r + 5}
            v_and_b32 v{r + 3}, 0xffff0000, v{r + 5}
            v_pk_add_f32 v[8:9], v[8:9], {vr(r, 2)}
            v_pk_add_f32 v[10:11], v[10:11], {vr(r + 2, 2)}
            v_permlane32_swap_b32 v8, v10
            v_permlane32_swap_b32 v9, v11
            v_pk_add_f32 v[8:9], v[8:9], v[10:11]
            v_cvt_pk_bf16_f32 v{r}, v8, v9""")

    def poll_rows(self, voff, soff, two=False):
        a = self.a
        lp, ok = self.lab("gp"), self.lab("gok")
        a(f"s_mov_b32 s37, {SPIN}\n{lp}:\n{f's_sleep {self.ps[2]}' if self.ps[2] and not two else ''}\nbuffer_load_dwordx4 v[176:179], {voff}, {SRDW}, {soff} offen sc1")
        if two:
            a(f"buffer_load_dwordx4 v[180:183], {voff}, {SRDW}, {soff} offen offset:1024 sc1")
        a(f"s_sub_u32 s37, s37, 1\ns_waitcnt vmcnt(0)\ns_cbranch_scc1 {ok}")
        if two:
            a(f"v_bitop3_b32 v8, v179, v183, {sTAG} bitop3:0x7e\nv_cmp_ne_u32 vcc, 0, v8")
        else:
            a(f"v_cmp_ne_u32 vcc, {sTAG}, v179")
        a(f"s_cbranch_vccnz {lp}\n{ok}:")

    def e2_dma_setup(self):
        self.a(f"""v_lshrrev_b32 v9, 3, v0
            v_and_b32 v10, 7, v0
            v_and_b32 v11, 1, v2
            v_lshlrev_b32 v11, 1, v11
            v_xor_b32 v10, v10, v11
            v_lshlrev_b32 v10, 4, v10
            v_lshl_add_u32 v17, v9, 10, v10
            v_xor_b32 v18, 64, v17
            s_and_b32 s33, {sW}, 3
            s_lshl_b32 s46, {sH}, 17
            s_lshl_b32 s36, s33, 15
            s_add_u32 s46, s46, s36
            s_lshl_b32 s36, {sJ}, 7
            s_add_u32 s46, s46, s36
            s_cmp_lt_u32 {sW}, 4
            s_mov_b32 s47, {E2B[1]}
            s_cmov_b32 s47, {E2B[0]}
            s_lshl_b32 s36, s33, 12
            s_add_u32 s47, s47, s36""")
        if 'noW' in self.diag:
            self.a("s_mov_b32 s26, 0")

    def e2_dma(self, i):
        self.a(f"""s_add_u32 m0, s47, {1024 * i}
            s_nop 0
            buffer_load_dwordx4 v{17 + (i & 1)}, {SRDE}, s46 offen nt lds
            s_add_u32 s46, s46, 8192""")

    KV = 64

    def a_addr(self):
        if self.srot:
            self.a("s_mov_b32 s54, s48\ns_add_u32 s48, s57, s42\ns_and_b32 s48, s48, 255\ns_lshl_b32 s48, s48, 11\ns_add_u32 s48, s48, s45")
        else:
            self.a("s_mov_b32 s54, s48\ns_lshl_b32 s48, s57, 11\ns_add_u32 s48, s48, s45")

    def a_load(self, ph, k, cnt, lo=None):
        srd, so = (SRDK, "s48") if k < 2 else (SRDV, "s54")
        self.a(f"s_waitcnt vmcnt({cnt})")
        if lo is not None and lo < cnt:
            sk = self.lab("lo")
            self.a(f"s_cbranch_vccz {sk}\ns_waitcnt vmcnt({lo})\n{sk}:")
        self.a(f"buffer_load_dwordx4 {vr(self.KV + 16 * ph + 4 * k, 4)}, v16, {srd}, {so} offen offset:{1024 * (k & 1)} nt")

    def a_first(self, k, cnt):
        if k == 2:
            self.a("s_add_u32 s57, s57, 24")
            self.a_addr()
        self.a_load(4 + (k >> 1), k & 1, cnt)

    def a_qk(self, ph, r=30):
        a = self.a
        K = self.KV + 16 * ph
        a("v_mov_b32 v28, 0\nv_mov_b32 v29, 0")
        for e in range(4):
            for u in range(2):
                a(f"v_dot2c_f32_bf16 v{28 + u}, v{K + 4 * u + e}, v{24 + e}")
        a(f"v_add_f32_dpp v{r}, v28, v28 row_ror:8 row_mask:0xf bank_mask:0x3")
        a(f"v_add_f32_dpp v{r}, v29, v29 row_ror:8 row_mask:0xf bank_mask:0xc")
        for m in ("row_half_mirror", "quad_perm:[1,0,3,2]", "quad_perm:[2,3,0,1]"):
            a(f"v_add_f32_dpp v{r}, v{r}, v{r} {m} {FULL}")

    def a_max(self):
        self.a(f"v_max_f32_dpp v31, v30, v30 row_ror:8 {FULL}\nv_mul_f32 v31, s52, v31\nv_max_f32 v31, v31, v60")

    def a_soft(self, with_max=True):
        a = self.a
        if with_max:
            self.a_max()
        a("""v_sub_f32 v32, v60, v31
            v_fma_f32 v30, v30, s52, -v31
            v_exp_f32 v32, v32
            v_exp_f32 v30, v30
            v_mov_b32 v60, v31
            v_fma_f32 v61, v61, v32, v30
            v_cvt_pk_bf16_f32 v34, v30, 0
            v_cvt_pk_bf16_f32 v35, 0, v30""")
        for k in range(4):
            a(f"v_pk_mul_f32 {vr(52 + 2 * k, 2)}, {vr(52 + 2 * k, 2)}, v[32:33] op_sel_hi:[1,0]")

    def a_pv(self, ph, u):
        V = self.KV + 16 * ph + 8 + 4 * u
        for e in range(4):
            self.a(f"v_dot2c_f32_bf16_dpp v{52 + 2 * e}, v34, v{V + e} row_newbcast:{8 * u} {FULL}")
            self.a(f"v_dot2c_f32_bf16_dpp v{53 + 2 * e}, v35, v{V + e} row_newbcast:{8 * u} {FULL}")

    def p1(self):
        a = self.a
        D = self.edepth[0]
        a(f"""s_lshl_b32 s33, s63, 8
            s_lshl_b32 s36, {sW}, 5
            s_add_u32 s49, s33, s36
            s_add_u32 s50, s49, 1024
            s_load_dwordx8 s[64:71], s[30:31], s49
            s_load_dwordx8 s[72:79], s[30:31], s50
            s_load_dwordx8 s[80:87], s[28:29], s49
            s_load_dwordx8 s[88:95], s[28:29], s50
            v_and_b32 v8, 1, v2
            v_lshlrev_b32 v7, 15, v8
            v_lshrrev_b32 v9, 1, v2
            v_lshl_add_u32 v7, v9, 10, v7
            v_lshrrev_b32 v9, 2, v1
            v_lshl_add_u32 v7, v9, 8, v7
            v_and_b32 v10, 3, v0
            v_lshl_add_u32 v7, v10, 3, v7
            v_lshl_or_b32 v9, v8, 2, v9
            v_xor_b32 v9, {sW}, v9
            v_lshl_add_u32 v200, v9, 5, v7
            v_add_u32 v201, 65536, v200
            v_lshrrev_b32 v7, 3, v0
            v_lshlrev_b32 v7, 8, v7
            v_and_b32 v8, 7, v0
            v_lshl_add_u32 v7, v8, 2, v7
            s_add_u32 s36, s36, {XI}
            v_add_u32 v202, s36, v7
            v_and_b32 v7, 1, v0
            v_lshlrev_b32 v8, 8, v7
            v_lshl_add_u32 v8, v2, 4, v8
            v_add_u32 v203, {XI}, v8
            v_lshlrev_b32 v8, 11, v7
            v_lshl_add_u32 v204, v2, 4, v8
            s_lshl_b32 s38, {sH}, 12
            s_lshl_b32 s36, s63, 9
            s_add_u32 s38, s38, s36
            s_lshl_b32 s36, {sW}, 6
            s_add_u32 s38, s38, s36
            s_xor_b32 s39, s38, {self.hxa << 12}
            s_add_u32 s38, s38, {QB}
            s_add_u32 s39, s39, {QA}""")

        def mid():
            for k in range(32):
                a(f"v_writelane_b32 v205, s{64 + k}, {k}")
            self.exec64(0xffffffff, 0)
            a(f"ds_write_b32 v202, v205\ns_mov_b64 exec, -1\nv_mov_b32 v51, {sTAG}")
            if self.n0:
                a(f"""s_cmp_lg_u32 s57, 0
                    s_cbranch_scc1 L_nocnt
                    s_xor_b32 s33, {sH}, {self.hxa}
                    s_lshl_b32 s33, s33, 1
                    s_add_u32 s33, s33, {sB}
                    s_mul_i32 s33, s33, 1280
                    s_add_u32 s33, s33, {CNT}
                    v_mov_b32 v206, {3 * self.n0 + 1}
                    s_mov_b64 exec, 1
                    buffer_store_dword v206, off, {SRDW}, s33 sc1
                    s_mov_b64 exec, -1
                    L_nocnt:""")

        def half(t):
            a("s_waitcnt lgkmcnt(0)\ns_barrier")
            for s in range(4):
                a(f"ds_read_b128 {vr(160 + 4 * s, 4)}, v203 offset:{512 * t + 64 * s}")
                for p in range(2):
                    a(f"ds_read_b64_tr_b16 {vr(176 + 4 * s + 2 * p, 2)}, v{200 + t} offset:{2048 * s + 8192 * p}")
            for s in range(4):
                a(f"s_waitcnt lgkmcnt({9 - 3 * s})")
                a(f"v_mfma_f32_16x16x32_bf16 v[192:195], {vr(176 + 4 * s, 4)}, {vr(160 + 4 * s, 4)}, {'v[192:195]' if s else '0'}")
            self.exec64(0x00030003)
            a("v_cvt_pk_bf16_f32 v48, v192, v193\nv_cvt_pk_bf16_f32 v49, v194, v195")
            a(f"buffer_store_dwordx4 v[48:51], v204, {SRDW}, s{38 + t} offen sc1\ns_mov_b64 exec, -1")

        self.a_setup()
        self.second_batch(mid)
        self.stamp(1)
        half(0)
        self.stamp(2)
        self.load_e2_ptr()
        for k in range(4):
            self.a_first(k, D if k < D else D - 1)
        a("s_waitcnt vmcnt(5)")
        half(1)
        self.stamp(3)
        a("s_branch L_acommon")

    def p2(self):
        a = self.a
        D, pre = self.edepth[0], self.pu_pre
        a(f"""v_lshrrev_b32 v7, 3, v1
            v_lshlrev_b32 v7, 15, v7
            v_bfe_u32 v8, v1, 2, 1
            v_lshl_add_u32 v7, v8, 13, v7
            v_and_b32 v8, 3, v1
            v_lshl_add_u32 v7, v8, 8, v7
            v_add_u32 v7, s44, v7
            v_xor_b32 v8, v2, v1
            v_lshl_add_u32 v216, v8, 4, v7""")
        for s in range(1, 4):
            a(f"v_xor_b32 v{216 + s}, {64 * s}, v216")
        for s in range(4):
            a(f"v_add_u32 v{220 + s}, 65536, v{216 + s}")
        a(f"""v_and_b32 v13, 31, v0
            v_lshlrev_b32 v13, 3, v13
            v_lshrrev_b32 v7, 5, v0
            v_lshl_add_u32 v13, v7, 2, v13
            s_lshl_b32 s33, {sW}, 8
            s_add_u32 s33, s33, {HI}
            v_add_u32 v13, s33, v13
            v_and_b32 v14, 1, v0
            v_lshlrev_b32 v14, 8, v14
            v_lshl_add_u32 v14, v2, 4, v14
            v_add_u32 v14, {HI}, v14
            s_lshl_b32 s49, s63, 12
            s_lshl_b32 s36, {sW}, 11
            s_add_u32 s49, s49, s36
            s_add_u32 s49, s49, {QB}
            v_lshlrev_b32 v15, 15, v1
            v_lshl_add_u32 v15, v2, 4, v15
            s_lshl_b32 s50, s63, 10
            s_lshl_b32 s36, {sB}, 9
            s_add_u32 s50, s50, s36
            s_lshl_b32 s36, {sW}, 6
            s_add_u32 s50, s50, s36
            s_add_u32 s50, s50, {QABS}
            s_lshr_b32 s53, s63, 2
            s_lshl_b32 s53, s53, 7
            s_and_b32 s36, s63, 3
            s_lshl_b32 s36, s36, 3
            s_add_u32 s53, s53, s36
            s_lshl_b32 s36, {sB}, 2
            s_add_u32 s53, s53, s36
            s_add_u32 s53, s53, {F2}
            v_lshlrev_b32 v197, 10, v0""")
        if self.noack:
            for k in range(4):
                a(f"v_mov_b32 v{200 + k}, -1")
            self.exec64(0x00030003)
            a(f"buffer_store_dwordx4 v[200:203], v15, {SRDW}, s50 offen sc1\ns_mov_b64 exec, -1")
        self.a_setup()
        self.second_batch(lambda: a(f"v_mov_b32 v196, {sTAG}"), 1 if self.noack else 0)
        self.load_e2_ptr()
        for k in range(pre):
            self.a_first(k, D - 1)
        skip = self.lab("h1s")
        a(f"s_cmp_gt_u32 {sW}, 1\ns_cbranch_scc1 {skip}")
        if self.pollw:
            a(f"s_waitcnt vmcnt({pre})")
        self.poll_rows("v16", "s49", two=True)
        self.sum_parts(176)
        a(f"ds_write_b32 v13, v176\n{skip}:\ns_waitcnt vmcnt({pre})")
        self.stamp(1)
        for blk in range(2):
            for s in range(4):
                a(f"ds_read_b128 {vr(224 + 16 * blk + 4 * s, 4)}, v{216 + 4 * blk + s}")
        a("s_waitcnt lgkmcnt(0)\ns_barrier")
        self.stamp(2)
        for s in range(4):
            a(f"ds_read_b128 {vr(176 + 4 * s, 4)}, v14 offset:{64 * s}")
        for s in range(4):
            a(f"s_waitcnt lgkmcnt({3 - s})")
            for blk in range(2):
                c = "0" if s == 0 else vr(208 + 4 * blk, 4)
                a(f"v_mfma_f32_16x16x32_bf16 {vr(208 + 4 * blk, 4)}, {vr(224 + 16 * blk + 4 * s, 4)}, {vr(176 + 4 * s, 4)}, {c}")
        for k in range(4):
            a(f"v_cvt_pk_bf16_f32 v{168 + k}, v{208 + 2 * k}, v{209 + 2 * k}")
        self.exec64(0x00030003)
        a(f"buffer_store_dwordx4 v[168:171], v15, {SRDW}, s50 offen sc1")
        a("s_mov_b64 exec, -1")
        if not self.noack:
            a("s_waitcnt vmcnt(0)")
        a("s_barrier")
        skip = self.lab("p2s")
        a(f"""s_cmp_lg_u32 {sW}, 0
            s_cbranch_scc1 {skip}
            buffer_store_dword v196, v197, {SRDW}, s53 offen sc1
            {skip}:""")
        self.stamp(3)
        for k in range(pre, 4):
            self.a_first(k, D + 1)

    def a_setup(self):
        a = self.a
        self.e2_dma_setup()
        a(f"""s_lshl_b32 s51, {sH}, 1
            s_add_u32 s51, s51, {sB}
            s_lshl_b32 s51, s51, 11
            s_add_u32 s51, s51, {QA}
            v_and_b32 v36, 31, v0
            v_lshlrev_b32 v36, 3, v36
            v_lshrrev_b32 v7, 5, v0
            v_lshl_add_u32 v36, v7, 2, v36
            s_lshl_b32 s33, {sW}, 8
            s_add_u32 s33, s33, {QL}
            v_add_u32 v36, s33, v36
            v_lshl_add_u32 v37, v1, 4, s33
            v_mov_b32 v60, {NEGBIG:#x}
            v_mov_b32 v61, 0
            v_lshlrev_b32 v38, 5, v1
            v_lshl_add_u32 v38, v2, 3, v38
            s_lshl_b32 s33, {sW}, 9
            s_add_u32 s33, s33, {RED + 1024}
            v_add_u32 v38, s33, v38
            s_lshl_b32 s33, {sW}, 2
            s_add_u32 s33, s33, {MXA}
            v_mov_b32 v39, s33
            v_mov_b32 v43, {MXA}
            v_lshrrev_b32 v44, 5, v0
            v_mul_u32_u24 v44, 1536, v44
            v_add_u32 v44, v44, v16
            v_add_u32 v44, {RED + 1024}, v44
            s_lshl_b32 s61, {sH}, 3
            s_add_u32 s61, s61, {sJ}
            s_lshl_b32 s61, s61, 9
            s_add_u32 s61, s61, {H4A}""")
        for k in range(8):
            a(f"v_mov_b32 v{52 + k}, 0")
        if self.n0:
            a(f"""s_lshl_b32 s33, {sH}, 1
                s_add_u32 s33, s33, {sB}
                s_mul_i32 s33, s33, 1280
                s_add_u32 s33, s33, {CNT}
                s_add_u32 s58, s12, s33
                s_addc_u32 s59, s13, 0
                s_mov_b32 s60, 6
                s_sub_u32 s62, {sW}, 8
                v_mov_b32 v40, {TK}""")
        else:
            R = self.rounds
            a(f"""s_cmp_eq_u32 {sT}, 2
                s_cselect_b32 s56, 256, 16
                s_mov_b32 s60, {24 * R}
                s_cmov_b32 s60, {24 * (R - 1)}""")
        a(f"""s_cmp_eq_u32 {sT}, 2
            s_cselect_b32 s55, 0, {24 * self.nlo}
            s_cselect_b32 s33, {self.wlo[1]}, {self.wlo[0]}
            s_cmp_lt_u32 {sW}, s33
            s_cmov_b32 s55, {24 * self.wend}""")

    def a_common(self):
        a = self.a
        D, E = self.depth, self.edepth
        a("L_acommon:")
        L = self.lo
        assert D <= 4
        slot = lambda k: 4 + k if k < 2 else k & 3

        def mask(k):
            a(f"s_cmp_gt_u32 s55, {24 * k if k >= self.lofrom else 9999}\ns_cselect_b64 vcc, -1, 0")

        def it(k, extra=0):
            a("s_add_u32 s57, s57, 24")
            self.a_addr()
            mask(k)
            for i in range(4):
                self.a_load(slot(k) if i < 2 else slot(k - 1), i, D - 1 + (extra if i < D else 0), L - 1 + (extra if i < L else 0))

        def proc(k):
            self.a_qk(slot(k)); self.a_soft(); self.a_pv(slot(k), 0); self.a_pv(slot(k), 1)
        mask(1)
        for k in (2, 3):
            self.a_load(slot(0), k, D - 1, L - 1)
        it(2)
        qld = f"buffer_load_dwordx4 v[20:23], v16, {SRDW}, s51 offen sc1\nbuffer_load_dwordx4 v[24:27], v16, {SRDW}, s51 offen offset:1024 sc1"
        a(qld.replace(" sc1", "") if self.qplain else qld)
        it(3, 2)
        it(4)
        a(f"""s_mov_b32 s37, {SPIN}
            L_qlp:
            v_bitop3_b32 v8, v23, v27, {sTAG} bitop3:0x7e
            v_cmp_ne_u32 vcc, 0, v8
            s_cbranch_vccz L_qok
            s_sub_u32 s37, s37, 1
            s_cbranch_scc1 L_qok
            {qld}
            s_waitcnt vmcnt(0)
            s_branch L_qlp
            L_qok:""")
        self.sum_parts(20)
        a(f"ds_write_b32 v36, v20\nds_read_b128 v[24:27], v37\ns_mov_b32 s37, {SPIN * 16}\ns_waitcnt lgkmcnt(0)")
        self.stamp(4)
        proc(2)
        it(5)
        proc(3); proc(0)
        a("s_add_u32 s57, s57, 24\ns_mov_b32 s63, 1")
        if 'iter' in self.diag:
            a("s_mov_b32 s49, 19")
        a("L_aloop:")
        for ph in (2, 3, 0, 1):
            if self.n0:
                n0 = self.n0
                st, nw, nc, rd, go = (self.lab(x) for x in ("st", "nw", "nc", "rd", "go"))
                a(f"""s_cmp_lt_u32 s60, {n0 - 2}
                    s_cbranch_scc1 {go}
                    s_waitcnt lgkmcnt(0)
                    s_cmp_lg_u32 {sW}, 0
                    s_cbranch_scc1 {nc}
                    s_cmp_eq_u32 s60, {n0 - 2}
                    s_cbranch_scc1 {nw}
                    v_mov_b32 v41, s56
                    ds_write_b32 v40, v41 offset:4
                    {nw}:
                    s_mov_b32 s56, 1
                    s_atomic_add s56, s[58:59], 0 glc
                    {nc}:
                    s_cmp_lt_u32 s60, {n0}
                    s_cbranch_scc1 {st}
                    {rd}:
                    v_readfirstlane_b32 s33, v42
                    s_cmp_lg_u32 s33, 0
                    s_cbranch_scc1 {rd}_ok
                    s_sub_u32 s37, s37, 1
                    s_cbranch_scc1 L_drain{ph}
                    ds_read_b32 v42, v40
                    s_waitcnt lgkmcnt(0)
                    s_branch {rd}
                    {rd}_ok:
                    s_cmp_gt_u32 s33, 32
                    s_cbranch_scc1 L_drain{ph}
                    s_lshl_b32 s57, s33, 3
                    s_add_u32 s57, s57, s62
                    {st}:
                    v_add_u32 v40, 4, v40
                    {go}:""")
                self.a_addr()
                a("s_cmp_lt_u32 s57, s55\ns_cselect_b64 vcc, -1, 0\ns_add_u32 s57, s57, 24\ns_add_u32 s60, s60, 1")
            else:
                a(f"s_cmp_ge_u32 s57, 256\ns_cbranch_scc1 L_drain{ph}")
                self.a_addr()
                a("s_cmp_lt_u32 s57, s55\ns_cselect_b64 vcc, -1, 0")
                a(f"s_cmp_lt_u32 s57, s60\ns_cselect_b32 s33, 24, s56\ns_add_u32 s57, s57, s33")
            q, pv = (ph + 2) & 3, (ph + 3) & 3
            if self.lf:
                for k in range(4):
                    self.a_load(ph if k < 2 else pv, k, D - 1, L - 1)
                if 'iter' in self.diag:
                    a("s_memrealtime s[98:99]\ns_add_u32 s49, s49, 1\ns_mov_b32 m0, s49\ns_waitcnt lgkmcnt(0)\nv_writelane_b32 v63, s98, m0")
                self.a_qk(q); self.a_soft()
                if D > 4:
                    a("s_waitcnt vmcnt(5)")
                self.a_pv(q, 0)
                if D > 4:
                    a("s_waitcnt vmcnt(4)")
            else:
                self.a_load(ph, 0, D - 1, L - 1); self.a_qk(q)
                self.a_load(ph, 1, D - 1, L - 1); self.a_soft()
                self.a_load(pv, 2, D - 1, L - 1); self.a_pv(q, 0)
                self.a_load(pv, 3, D - 1, L - 1)
            if self.n0:
                a("ds_read_b32 v42, v40")
            self.a_pv(q, 1)
            if ph == 2:
                a("s_cmp_eq_u32 s63, 0\ns_cbranch_scc1 L_caught\ns_mov_b32 s63, 0")
                proc(1)
                a("L_caught:")
        a("s_branch L_aloop")
        for ph in range(4):
            a(f"L_drain{ph}:")
            self.stamp(5)
            q, n = (ph + 2) & 3, (ph + 3) & 3
            a("s_mov_b32 s54, s48")
            if self.lf == 2:
                self.a_load(n, 2, 5); self.a_load(n, 3, 5)
                self.a_qk(q); self.a_soft()
                a("s_waitcnt vmcnt(4)")
            else:
                self.a_qk(q); self.a_soft()
                self.a_load(n, 2, 3); self.a_load(n, 3, 3)
            self.a_qk(n); self.a_max()
            for sw in ("v_permlane16_swap_b32", "v_permlane32_swap_b32"):
                a(f"v_mov_b32 v32, v31\n{sw} v32, v31\nv_max_f32 v31, v31, v32")
            a("ds_write_b32 v39, v31\ns_waitcnt vmcnt(3)")
            self.a_pv(q, 0)
            a("s_waitcnt vmcnt(2)")
            self.a_pv(q, 1)
            a("s_waitcnt lgkmcnt(0)\ns_barrier")
            x = self.e2pos[0]
            for i in range(x):
                self.e2_dma(i)
            a(f"""
                ds_read_b128 v[8:11], v43
                ds_read_b128 v[12:15], v43 offset:16
                s_waitcnt lgkmcnt(0)
                v_max3_f32 v31, v8, v9, v10
                v_max3_f32 v12, v12, v13, v14
                v_max3_f32 v31, v31, v11, v15
                v_max_f32 v31, v31, v12""")
            self.a_soft(with_max=False)
            a(f"v_add_f32_dpp v61, v61, v61 row_ror:8 {FULL}")
            for sw in ("v_permlane16_swap_b32", "v_permlane32_swap_b32"):
                a(f"v_mov_b32 v32, v61\n{sw} v32, v61\nv_add_f32 v61, v61, v32")
            a("s_mov_b64 exec, 1\nds_add_f32 v43, v61 offset:32\ns_mov_b64 exec, -1")
            a(f"s_waitcnt vmcnt({1 + x})")
            self.a_pv(n, 0)
            a(f"s_waitcnt vmcnt({x})")
            self.a_pv(n, 1)
            if ph < 3:
                a("s_branch L_afin")
        a("L_afin:\ns_nop 2")
        self.stamp(6)
        for i in range(4):
            a(f"v_permlane32_swap_b32 v{52 + i}, v{56 + i}")
        a("v_pk_add_f32 v[52:53], v[52:53], v[56:57]\nv_pk_add_f32 v[54:55], v[54:55], v[58:59]")
        a(f"""v_permlane16_swap_b32 v52, v54
            v_permlane16_swap_b32 v53, v55
            v_pk_add_f32 v[52:53], v[52:53], v[54:55]
            ds_write_b64 v38, v[52:53]""")
        for i in range(x, sum(self.e2pos)):
            self.e2_dma(i)
        a(f"""s_waitcnt lgkmcnt(0)
            s_barrier
            s_cmp_lg_u32 {sW}, 3
            s_cbranch_scc1 L_apost
            ds_read_b128 v[208:211], v44
            ds_read_b128 v[212:215], v44 offset:512
            ds_read_b128 v[216:219], v44 offset:1024
            ds_read_b128 v[220:223], v44 offset:1536
            ds_read_b32 v61, v43 offset:32
            v_and_b32 v8, 1, v0
            v_cmp_eq_u32 vcc, 1, v8
            v_mov_b32 v11, {sTAG}
            s_waitcnt lgkmcnt(3)
            v_pk_add_f32 v[208:209], v[208:209], v[212:213]
            v_pk_add_f32 v[210:211], v[210:211], v[214:215]
            s_waitcnt lgkmcnt(1)
            v_pk_add_f32 v[216:217], v[216:217], v[220:221]
            v_pk_add_f32 v[218:219], v[218:219], v[222:223]
            v_pk_add_f32 v[208:209], v[208:209], v[216:217]
            v_pk_add_f32 v[210:211], v[210:211], v[218:219]
            v_permlane32_swap_b32 v208, v210
            v_permlane32_swap_b32 v209, v211
            v_pk_add_f32 v[208:209], v[208:209], v[210:211]
            v_cvt_pk_bf16_f32 v8, v208, v209
            v_cvt_pk_bf16_f32 v9, v208, v209
            s_waitcnt lgkmcnt(0)
            v_cndmask_b32 v10, v60, v61, vcc
            v_permlane32_swap_b32 v8, v9""")
        self.exec64(0xffffffff, 0)
        a(f"""
            buffer_store_dwordx4 v[8:11], v16, {SRDW}, s61 offen sc1
            s_mov_b64 exec, -1
            L_apost:""")
        self.stamp(12)
        for i in range(sum(self.e2pos), 4):
            self.e2_dma(i)
        a("s_nop 0")

    def e2(self):
        a = self.a
        a("L_stageE2:")
        if self.diag and self.diag not in ('cyc', 'iter', 'fine'):
            a("s_branch L_done")
        a(f"""s_load_dwordx2 s[28:29], s[0:1], 88
            v_lshrrev_b32 v9, 2, v1
            v_lshlrev_b32 v7, 10, v2
            v_lshl_add_u32 v7, v9, 7, v7
            v_and_b32 v10, 3, v0
            v_lshl_add_u32 v7, v10, 3, v7
            v_lshrrev_b32 v9, 1, v9
            v_and_b32 v8, 1, v2
            v_lshl_or_b32 v9, v8, 1, v9
            s_and_b32 s33, {sW}, 3
            v_xor_b32 v9, s33, v9
            v_lshl_add_u32 v7, v9, 5, v7
            s_cmp_lt_u32 {sW}, 4
            s_mov_b32 s36, {E2B[1]}
            s_cmov_b32 s36, {E2B[0]}
            s_mov_b32 s49, {H4B}
            s_cmov_b32 s49, {H4A}
            v_add_u32 v7, s36, v7
            s_lshl_b32 s36, {sH}, 12
            s_add_u32 s49, s49, s36
            s_lshl_b32 s36, s33, 9
            s_add_u32 s49, s49, s36
            v_lshrrev_b32 v9, 5, v0
            v_mul_u32_u24 v14, 1536, v9
            v_add_u32 v14, v14, v16
            s_and_b32 s36, {sW}, 4
            s_lshl_b32 s36, s36, 1
            s_add_u32 s38, s36, s33
            v_lshl_add_u32 v9, v9, 2, s38
            v_and_b32 v10, 31, v0
            v_mul_u32_u24 v12, 272, v9
            v_lshl_add_u32 v12, v10, 3, v12
            v_add_u32 v12, {HI}, v12
            v_lshlrev_b32 v13, 7, v9
            v_lshl_add_u32 v13, v10, 2, v13
            v_add_u32 v13, {HS}, v13
            v_and_b32 v9, 7, v0
            v_add_u32 v9, s36, v9
            v_mul_u32_u24 v20, 272, v9
            v_lshl_add_u32 v20, v2, 4, v20
            v_add_u32 v20, {HI}, v20
            v_lshlrev_b32 v21, 7, v9
            v_add_u32 v21, {HS}, v21
            v_mov_b32 v176, 0
            v_mov_b32 v177, 0
            v_and_b32 v10, 1, v0
            v_cmp_eq_u32 vcc, 0, v10
            v_mov_b32 v9, {NEGBIG:#x}
            v_cndmask_b32 v178, 0, v9, vcc
            s_mov_b32 s30, 4096
            s_mov_b32 s31, 0x20000""")
        a(f"""v_lshlrev_b32 v15, 12, v2
            v_lshl_add_u32 v15, v1, 3, v15
            s_lshl_b32 s50, {sJ}, 3
            s_add_u32 s50, s50, {sW}
            s_lshl_b32 s50, s50, 13
            s_lshl_b32 s36, {sH}, 7
            s_add_u32 s50, s50, s36
            s_add_u32 s50, s50, {H5}
            v_mov_b32 v213, {sTAG}
            s_lshr_b32 s33, 0x37, {sW}
            s_and_b32 s33, s33, 1
""")
        a("s_cbranch_scc0 L_nopoll")
        if self.pw is not None:
            a(f"s_waitcnt vmcnt({self.pw})")
        self.poll_rows("v14", "s49")
        a("""L_nopoll:
            ds_write_b64 v12, v[176:177]
            ds_write_b32 v13, v178
            s_waitcnt vmcnt(0) lgkmcnt(0)
            s_barrier""")
        self.stamp(14)
        a("ds_read_b64 v[22:23], v21")
        for s in range(4):
            a(f"ds_read_b128 {vr(176 + 4 * s, 4)}, v20 offset:{64 * s}")
            for p in range(2):
                a(f"ds_read_b64_tr_b16 {vr(160 + 4 * s + 2 * p, 2)}, v7 offset:{4096 * s + 512 * p}")
        chain = [f"v_max_f32_dpp v8, v22, v22 quad_perm:[1,0,3,2] {FULL}\nv_max_f32_dpp v8, v8, v8 quad_perm:[2,3,0,1] {FULL}\nv_sub_f32 v8, v22, v8\nv_exp_f32 v8, v8",
                 "v_mul_f32 v9, v8, v23",
                 f"v_add_f32_dpp v9, v9, v9 quad_perm:[1,0,3,2] {FULL}",
                 f"v_add_f32_dpp v9, v9, v9 quad_perm:[2,3,0,1] {FULL}\nv_rcp_f32 v9, v9"]
        a("s_waitcnt lgkmcnt(12)")
        for s in range(4):
            c = "0" if s == 0 else "v[208:211]"
            a(chain[s])
            a(f"s_waitcnt lgkmcnt({9 - 3 * s})")
            a(f"v_mfma_f32_16x16x32_bf16 v[208:211], {vr(176 + 4 * s, 4)}, {vr(160 + 4 * s, 4)}, {c}")
        a("v_mul_f32 v8, v8, v9")
        for r in range(3):
            op = "v_mul_f32_dpp" if r == 0 else "v_fmac_f32_dpp"
            a(f"{op} v212, v8, v{208 + r} row_newbcast:{r} row_mask:0x1 bank_mask:0xf")
            a(f"{op} v212, v8, v{208 + r} row_newbcast:{4 + r} row_mask:0x2 bank_mask:0xf")
        self.exec64(0xffffffff, 0)
        a(f"buffer_store_dwordx2 v[212:213], v15, {SRDW}, s50 offen sc1")
        a("s_mov_b64 exec, -1")
        self.stamp(15)
        a(f"s_cmp_lg_u32 {sW}, 7\ns_cbranch_scc1 L_done")
        a(f"""v_lshrrev_b32 v7, 2, v0
            v_lshlrev_b32 v7, 7, v7
            v_and_b32 v8, 3, v0
            v_lshl_add_u32 v7, v8, 4, v7
            s_lshl_b32 s33, {sJ}, 4
            s_lshr_b32 s36, {sH}, 1
            s_add_u32 s33, s33, s36
            s_lshl_b32 s33, s33, 12
            s_and_b32 s38, {sH}, 1
            s_lshl_b32 s39, s38, 6
            s_add_u32 s33, s33, s39
            s_add_u32 s33, s33, {H5}
            s_and_b32 s36, s36, 1
            s_lshl_b32 s36, s36, 11
            s_lshr_b32 s39, {sH}, 4
            s_lshl_b32 s39, s39, 10
            s_add_u32 s36, s36, s39
            s_lshl_b32 s39, {sJ}, 7
            s_add_u32 s36, s36, s39
            s_bfe_u32 s39, {sH}, 0x20002
            s_lshl_b32 s39, s39, 5
            s_add_u32 s36, s36, s39
            s_lshl_b32 s39, s38, 4
            s_add_u32 s36, s36, s39
            v_lshlrev_b32 v13, 2, v0
            s_mov_b32 s37, {SPIN}
            L_fp:
            buffer_load_dwordx4 v[20:23], v7, {SRDW}, s33 offen sc1
            buffer_load_dwordx4 v[24:27], v7, {SRDW}, s33 offen offset:2048 sc1
            s_sub_u32 s37, s37, 1
            s_waitcnt vmcnt(0)
            s_cbranch_scc1 L_fok
            v_bitop3_b32 v8, v21, v23, {sTAG} bitop3:0x7e
            v_bitop3_b32 v9, v25, v27, {sTAG} bitop3:0x7e
            v_or_b32 v8, v8, v9
            v_cmp_ne_u32 vcc, 0, v8
            s_cbranch_vccnz L_fp
            L_fok:
            v_add_f32 v8, v20, v24
            v_add_f32 v9, v22, v26""")
        self.stamp(16)
        for sh in (4, 8):
            for r in (8, 9):
                a(f"v_add_f32_dpp v{r}, v{r}, v{r} row_ror:{sh} {FULL}")
        a("""v_permlane32_swap_b32 v8, v9
            v_add_f32 v8, v8, v9
            v_mov_b32 v9, v8
            v_permlane16_swap_b32 v8, v9
            v_add_f32 v8, v8, v9
            v_mov_b32 v9, v8
            v_permlane32_swap_b32 v8, v9
            v_cvt_pk_bf16_f32 v8, v8, v9
            s_mov_b64 exec, 15""")
        a(f"buffer_store_dword v8, v13, {SRDX}, s36 offen {self.outfl}")
        a(f"""s_or_b32 s33, {sH}, {sJ}
            s_cbranch_scc1 L_done
            s_mov_b64 exec, 1
            buffer_store_dword v213, off, {SRDW}, 0 offset:{EPOCH} sc1
            L_done:""")
        if self.calib:
            a(f"""L_cal:
                s_memrealtime s[98:99]
                s_waitcnt lgkmcnt(0)
                s_sub_u32 s98, s98, s96
                s_cmp_lt_u32 s98, {self.calib * 100}
                s_cbranch_scc1 L_cal""")
        if self.skw is not None:
            a(f"""s_cmp_lg_u32 {sW}, 7
                s_cbranch_scc1 L_end
                s_load_dwordx2 s[64:65], s[0:1], 96
                s_waitcnt lgkmcnt(0)
                s_load_dword s33, s[64:65], 0 glc
                s_getreg_b32 s36, hwreg(HW_REG_XCC_ID)
                s_and_b32 s36, s36, 7
                s_lshr_b32 s36, {self.skw}, s36
                s_and_b32 s36, s36, 1
                s_waitcnt lgkmcnt(0)
                s_not_b32 s38, s33
                s_sub_u32 s33, s96, s38
                s_mul_i32 s33, s33, s36
                s_mul_i32 s33, s33, 20
                s_add_u32 s33, s33, 4000
                L_amp:
                s_memrealtime s[98:99]
                s_waitcnt lgkmcnt(0)
                s_sub_u32 s98, s98, s38
                s_cmp_lt_u32 s98, s33
                s_cbranch_scc1 L_amp""")
        elif self.amp:
            k, roles, neg = self.amp
            a("s_mov_b64 exec, -1")
            self.stamp(17)
            a(f"""s_nop 1
                v_readlane_b32 s33, v63, {k}
                s_lshr_b32 s36, {roles}, {sT}
                s_and_b32 s36, s36, 1
                s_cselect_b32 s33, s33, 0
                s_cmp_eq_u32 s33, 0
                s_cselect_b32 s38, 0, 1
                s_cselect_b32 s33, s96, s33
                s_sub_u32 s33, s33, s96
                {'s_sub_u32 s33, 2500, s33' if neg else ''}
                s_mul_i32 s33, s33, s38
                s_mul_i32 s33, s33, 10
                s_add_u32 s33, s33, 3000
                L_amp:
                s_memrealtime s[98:99]
                s_waitcnt lgkmcnt(0)
                s_sub_u32 s98, s98, s96
                s_cmp_lt_u32 s98, s33
                s_cbranch_scc1 L_amp""")
        elif self.dbg:
            a("s_mov_b64 exec, -1")
            self.stamp(17)
            a(f"""s_getreg_b32 s33, hwreg(HW_REG_XCC_ID)
                v_writelane_b32 v63, s33, 31
                s_getreg_b32 s33, hwreg(HW_REG_HW_ID)
                v_writelane_b32 v63, s33, 28
                s_lshl_b32 s33, s2, 3
                s_add_u32 s33, s33, {sW}
                s_lshl_b32 s33, s33, 7
                s_add_u32 s33, s33, {STAMP}
                v_lshlrev_b32 v7, 2, v0""")
            self.exec64(0xffffffff, 0)
            a(f"buffer_store_dword v63, v7, {SRDW}, s33 offen")

    def role_b(self):
        a = self.a
        D = self.bdepth
        QAR, FR, O, S2, S3, PF, S = 64, 128, 160, 192, 224, 32, 48
        a("L_roleB:")
        a("s_load_dwordx2 s[16:17], s[0:1], 72\ns_mov_b32 s18, 0x400000")
        self.second_batch(lambda: None)
        self.load_e2_ptr()
        for i in range(8):
            a(f"s_waitcnt vmcnt({D - 1})\ns_add_u32 m0, s44, {dest(i) + 16384}\ns_nop 0")
            a(f"buffer_load_dwordx4 v{3 + (i & 1)}, {SRD0}, s43 offen nt lds\ns_add_u32 s43, s43, 8192")
        self.stamp(1)

        def stage(i):
            a(f"s_add_u32 s33, s43, {8192 * i}\nbuffer_load_dwordx4 {vr(S2 + 4 * (i if i < 4 else i - 8 if i >= 12 else i + 4), 4)}, v{3 + (i & 1)}, {SRD0}, s33 offen nt")

        def late(i, wait=None):
            sk = self.lab("lt")
            a(f"s_cmp_le_u32 s62, {i}\ns_cbranch_scc1 {sk}")
            if wait is not None:
                a(f"s_waitcnt vmcnt({wait})")
            stage(i)
            a(f"{sk}:")

        a(f"""s_and_b32 s54, {sW}, 3
            s_lshr_b32 s55, {sW}, 2
            v_and_b32 v7, 3, v1
            v_lshlrev_b32 v7, 2, v7
            v_lshrrev_b32 v8, 2, v1
            v_or_b32 v7, v7, v8
            v_lshlrev_b32 v7, 4, v7
            v_lshl_add_u32 v7, v2, 8, v7
            v_lshl_add_u32 v7, v1, 10, v7
            s_lshl_b32 s33, s54, 15
            v_add_u32 v28, s33, v7
            v_lshlrev_b32 v7, 4, v1
            v_lshl_add_u32 v7, v2, 8, v7
            v_lshl_add_u32 v7, v1, 10, v7
            s_lshl_b32 s33, s55, 14
            s_add_u32 s33, s33, {AUX}
            v_add_u32 v29, s33, v7
            v_lshrrev_b32 v9, 1, v2
            v_and_b32 v10, 1, v2
            v_bfe_u32 v11, v0, 1, 1
            v_lshl_or_b32 v11, v10, 1, v11
            s_lshl_b32 s33, {sW}, 3
            v_or_b32 v11, s33, v11
            v_lshlrev_b32 v12, 2, v8
            v_lshl_or_b32 v12, v9, 1, v12
            v_xor_b32 v11, v11, v12
            v_lshlrev_b32 v11, 4, v11
            v_lshl_add_u32 v12, v9, 3, v8
            v_lshl_add_u32 v11, v12, 10, v11
            v_and_b32 v12, 1, v0
            v_lshl_add_u32 v20, v12, 3, v11
            v_xor_b32 v21, 16, v20
            v_add_u32 v21, 4096, v21
            v_xor_b32 v22, 64, v20
            v_xor_b32 v23, 64, v21""")
        for k in range(4):
            a(f"v_add_u32 v{24 + k}, 65536, v{20 + k}")
        a(f"""s_lshl_b32 s33, s55, 8
            s_add_u32 s33, s33, {MX}
            v_lshl_add_u32 v30, v1, 4, s33
            s_lshl_b32 s33, s54, 2
            v_add_u32 v31, s33, v30
            v_and_b32 v7, 31, v0
            v_lshlrev_b32 v56, 4, v7
            v_add_u32 v56, {MX}, v56
            v_mul_u32_u24 v60, 272, v7
            v_lshl_add_u32 v60, v9, 4, v60
            v_add_u32 v60, {PB}, v60
            v_mul_u32_u24 v61, 272, v1
            v_lshl_add_u32 v61, v2, 3, v61
            s_mul_i32 s33, s55, {16 * 272}
            s_lshl_b32 s36, s54, 6
            s_add_u32 s33, s33, s36
            s_add_u32 s33, s33, {PB}
            v_add_u32 v61, s33, v61
            v_add_u32 v19, s44, v16
            v_add_u32 v62, 65536, v19
            v_mov_b32 v57, {NEGBIG:#x}
            v_mov_b32 v58, {NEGBIG:#x}
            v_mov_b32 v59, 0
            v_lshlrev_b32 v7, 1, v2
            v_xor_b32 v7, v7, v1
            v_lshlrev_b32 v7, 4, v7
            v_lshl_add_u32 v5, v2, 13, v7
            v_xor_b32 v6, 128, v5
            s_lshl_b32 s45, {sB}, 21
            s_lshl_b32 s36, {sW}, 18
            s_add_u32 s45, s45, s36
            s_lshl_b32 s36, {sH}, 8
            s_add_u32 s45, s45, s36""")
        for k in range(32):
            a(f"v_mov_b32 v{O + k}, 0")
        a(f"""s_lshl_b32 s33, {sH}, 1
            s_add_u32 s33, s33, {sB}
            s_lshl_b32 s33, s33, 3
            s_add_u32 s33, s33, {sW}
            s_lshl_b32 s33, s33, 7
            s_add_u32 s33, s33, {F2}
            s_add_u32 s34, s12, s33
            s_addc_u32 s35, s13, 0
            s_lshl_b32 s49, {sB}, 15
            s_lshl_b32 s36, {sW}, 12
            s_add_u32 s49, s49, s36
            s_add_u32 s49, s49, {QABS}
            s_add_u32 s50, s36, {AUX}
            s_mov_b32 s60, {sTAG}
            s_mov_b32 s61, {sTAG}""")

        def flags_differ():
            for k in range(4):
                a(f"s_xor_b64 s[{64 + 2 * k}:{65 + 2 * k}], s[{64 + 2 * k}:{65 + 2 * k}], s[60:61]")
            a("s_or_b64 s[64:65], s[64:65], s[66:67]\ns_or_b64 s[68:69], s[68:69], s[70:71]\ns_or_b64 s[64:65], s[64:65], s[68:69]")
        for i in range(15, 3, -2):
            chk = 17 - i >= self.bmin
            if chk:
                a("s_load_dwordx8 s[64:71], s[34:35], 0 glc")
            for k in (i, i - 1):
                a(f"s_waitcnt vmcnt({D - 1})")
                stage(k)
            if chk:
                a(f"s_mov_b32 s62, {i - 1}\ns_waitcnt lgkmcnt(0)")
                flags_differ()
                a("s_cbranch_scc0 L_h2ok")
        self.stamp(2)
        a(f"""s_mov_b32 s62, 4
            s_mov_b32 s37, {SPIN}
            L_h2:
            s_load_dwordx8 s[64:71], s[34:35], 0 glc
            s_sub_u32 s37, s37, 1
            s_waitcnt lgkmcnt(0)
            s_cbranch_scc1 L_h2ok""")
        flags_differ()
        a("s_cbranch_scc1 L_h2")
        a("L_h2ok:")
        self.stamp(3)
        def qcopy():
            a(f"""s_lshl_b32 s33, s54, 6
                v_xor_b32 v12, s33, v16
                v_xor_b32 v13, 16, v12
                v_xor_b32 v14, 32, v12
                v_xor_b32 v15, 48, v12
                s_mov_b32 m0, s50""")
            for i in range(4):
                a(f"buffer_load_dwordx4 v{12 + i}, {SRDW}, s49 offen offset:{1024 * i} sc1 lds")

        def qread():
            for s in range(16):
                a(f"v_xor_b32 v7, {s << 4}, v29\nds_read_b128 {vr(QAR + 4 * s, 4)}, v7")
        qcopy()
        a("s_barrier")
        for i in range(4):
            a(f"s_waitcnt vmcnt({D + 1})")
            stage(i)
        a("s_waitcnt vmcnt(4)\ns_barrier")
        self.stamp(4)
        a("s_mov_b32 s37, 4096\nL_qa:")
        qread()
        a("s_waitcnt lgkmcnt(0)\ns_barrier")

        def put(reg, sig):
            for i in range(8):
                d = dest(i) + 16384 * sig
                a(f"ds_write_b128 v{62 if d >> 16 else 19}, {vr(reg + 4 * i, 4)} offset:{d & 0xffff}")

        def step(t, sigs, hook):
            ns = len(sigs)
            blocks = [2 * kb + sg for kb in range(4) for sg in sigs]

            def rd(r):
                if r % ns == 0:
                    a(f"v_xor_b32 v7, {(r // ns) << 4}, v28")
                a(f"ds_read_b128 {vr(FR + 4 * (r & 7), 4)}, v7 offset:{16384 * sigs[r % ns]}")

            def tr(n, blk):
                be = blocks[n]
                for p in range(2):
                    ar = 20 + 4 * (be >> 2) + 2 * blk + p
                    a(f"ds_read_b64_tr_b16 {vr(FR + 8 * (n & 3) + 4 * blk + 2 * p, 2)}, v{ar} offset:{(be & 3) * 16384}")

            def pread(n):
                a(f"ds_read_b128 {vr(PF + 4 * (n & 3), 4)}, v60 offset:{32 * blocks[n]}")
            nr = 16 * ns
            for r in range(8):
                rd(r)
            for r in range(nr):
                a(f"s_waitcnt lgkmcnt({min(7, nr - 1 - r)})")
                acc = vr(S + 4 * (r % ns), 4)
                a(f"v_mfma_f32_16x16x32_bf16 {acc}, {vr(FR + 4 * (r & 7), 4)}, {vr(QAR + 4 * (r // ns), 4)}, {'0' if r < ns else acc}")
                hook("qk", r)
                if r + 8 < nr:
                    rd(r + 8)
            a(f"v_max3_f32 v7, v{S}, v{S + 1}, v{S + 2}")
            if ns == 2:
                a(f"v_max3_f32 v8, v{S + 4}, v{S + 5}, v{S + 6}\nv_max3_f32 v7, v7, v{S + 3}, v{S + 7}\nv_max_f32 v7, v7, v8")
            else:
                a(f"v_max_f32 v7, v7, v{S + 3}")
            for sw in ("v_permlane16_swap_b32", "v_permlane32_swap_b32"):
                a(f"v_mov_b32 v8, v7\n{sw} v8, v7\nv_max_f32 v7, v7, v8")
            a("""v_mul_f32 v7, s52, v7
                ds_write_b32 v31, v7""")
            for n in range(3):
                tr(n, 0); tr(n, 1)
            a("""s_waitcnt lgkmcnt(12)
                s_barrier
                ds_read_b128 v[8:11], v30
                ds_read_b128 v[12:15], v56
                s_waitcnt lgkmcnt(0)""")
            tr(3, 0); tr(3, 1)
            if t == 0 and self.noack:
                a("v_cmp_u_f32 vcc, v12, v12\ns_cbranch_vccnz L_qretry\nL_qaok:")
                if self.dbg is True:
                    a("s_sub_u32 s33, 4096, s37\nv_writelane_b32 v63, s33, 29")
            a("v_max3_f32 v8, v8, v9, v10\nv_max3_f32 v8, v8, v11, v57")
            for r in range(4 * ns):
                a(f"v_fma_f32 v{S + r}, v{S + r}, s52, -v8")
            for r in range(4 * ns):
                a(f"v_exp_f32 v{S + r}, v{S + r}")
            a("v_max3_f32 v12, v12, v13, v14")
            for r in range(2 * ns):
                a(f"v_cvt_pk_bf16_f32 v{PF + r}, v{S + 2 * r}, v{S + 2 * r + 1}")
            for k, sg in enumerate(sigs):
                a(f"ds_write_b64 v61, {vr(PF + 2 * k, 2)} offset:{32 * sg}")
            a(f"""v_sub_f32 v9, v57, v8
                v_max3_f32 v12, v12, v15, v58
                v_exp_f32 v9, v9
                v_sub_f32 v14, v58, v12
                v_mov_b32 v57, v8
                v_exp_f32 v14, v14
                v_mov_b32 v58, v12
                v_pk_add_f32 {vr(S, 2)}, {vr(S, 2)}, {vr(S + 2, 2)}""")
            if ns == 2:
                a(f"v_pk_add_f32 {vr(S + 4, 2)}, {vr(S + 4, 2)}, {vr(S + 6, 2)}\nv_pk_add_f32 {vr(S, 2)}, {vr(S, 2)}, {vr(S + 4, 2)}")
            a(f"v_fma_f32 v59, v59, v9, v{S}\nv_add_f32 v59, v59, v{S + 1}")
            if t == 2:
                for sw in ("v_permlane16_swap_b32", "v_permlane32_swap_b32"):
                    a(f"v_mov_b32 v8, v59\n{sw} v8, v59\nv_add_f32 v59, v59, v8")
                a(f"ds_write_b32 v31, v59 offset:{LS - MX}")

            def rescale(lo, hi):
                if t:
                    for k in range(lo, hi):
                        a(f"v_pk_mul_f32 {vr(O + 2 * k, 2)}, {vr(O + 2 * k, 2)}, v[14:15] op_sel_hi:[1,0]")
            rescale(0, 6)
            a("s_waitcnt lgkmcnt(0)\ns_barrier")
            for n in range(4):
                pread(n)
            rescale(6, 16)
            for n in range(4 * ns):
                if ns == 1:
                    a(f"s_waitcnt lgkmcnt({3 - n})")
                elif n in (0, 5, 6, 7):
                    a(f"s_waitcnt lgkmcnt({ {0: 0, 5: 10, 6: 5, 7: 0}[n] })")
                if n == 7:
                    a("s_barrier")
                for blk in range(2):
                    a(f"v_mfma_f32_32x32x16_bf16 {vr(O + 16 * blk, 16)}, {vr(FR + 8 * (n & 3) + 4 * blk, 4)}, {vr(PF + 4 * (n & 3), 4)}, {vr(O + 16 * blk, 16)}")
                hook("pv", n)
                if ns == 2 and n < 4:
                    if n == 3:
                        a("s_waitcnt lgkmcnt(10)")
                    pread(n + 4)
                    tr(n + 4, 0); tr(n + 4, 1)

        def uv(i):
            a(f"buffer_load_dwordx4 {vr(S2 + 4 * i, 4)}, v{5 + (i & 1)}, {SRDK}, s45 offen nt\ns_add_u32 s45, s45, 32768")

        def hook0(ph, r):
            if ph == "qk" and r in self.hookpos:
                late(4 + self.hookpos.index(r))
            if ph == "pv" and r in (0, 2, 4, 6):
                late(8 + r // 2)
        step(0, (0, 1), hook0)
        self.stamp(5)
        for n in (8, 6, 4, 2):
            a(f"s_waitcnt vmcnt({n})\ns_cmp_eq_u32 s62, {n + 4}\ns_cbranch_scc1 L_mid")
        a("s_waitcnt vmcnt(0)\nL_mid:")
        put(S2, 0)
        a(f"""s_lshl_b32 s50, s55, 15
            s_lshl_b32 s36, s54, 12
            s_add_u32 s50, s50, s36
            s_add_u32 s50, s50, {PART[0]}
            v_and_b32 v7, 31, v0
            v_and_b32 v8, 7, v0
            v_lshlrev_b32 v9, 4, v8
            v_lshl_add_u32 v9, v7, 7, v9
            v_lshrrev_b32 v10, 5, v0
            v_lshl_add_u32 v9, v10, 3, v9
            v_add_u32 v3, s50, v9
            v_lshrrev_b32 v10, 3, v0
            v_xor_b32 v11, v8, v10
            v_lshlrev_b32 v11, 4, v11
            v_lshl_add_u32 v11, v10, 7, v11
            v_add_u32 v4, s50, v11
            v_lshlrev_b32 v12, 4, v8
            v_lshl_add_u32 v29, v10, 16, v12
            v_lshlrev_b32 v17, 10, v0
            v_mov_b32 v18, 0x10001
            v_mov_b32 v54, {sTAG}
            v_mov_b32 v55, {sTAG}
            s_lshl_b32 s49, s55, 15
            s_lshl_b32 s36, {sB}, 14
            s_add_u32 s49, s49, s36
            s_lshl_b32 s36, {sH}, 9
            s_add_u32 s49, s49, s36
            s_lshl_b32 s36, s54, 7
            s_add_u32 s49, s49, s36
            s_add_u32 s49, s49, {OP}
            s_lshl_b32 s53, {sB}, 9
            s_lshl_b32 s36, {sH}, 4
            s_add_u32 s53, s53, s36
            s_add_u32 s53, s53, {ST}""")
        for k in range(4):
            a(f"s_bfe_u32 s33, {sTAG}, {0x20000 + 2 * k:#x}\ns_mul_i32 s33, s33, 0x8001\ns_and_b32 s{56 + k}, s33, 0x10001")
        a("s_waitcnt lgkmcnt(0)\ns_barrier")
        self.stamp(6)
        u0, u1, u2 = self.uva
        for i in range(u0):
            uv(i)
        step(1, (0,), lambda ph, r: uv(u0 + r - 4 + u1) if ph == "pv" and r >= 4 - u1 else None)
        a(f"s_waitcnt vmcnt({u0 + u1})")
        put(S3, 1)
        for i in range(u2):
            uv(u0 + u1 + i)
        a("s_waitcnt lgkmcnt(0)\ns_barrier")
        self.stamp(7)
        step(2, (1,), lambda ph, r: None)
        self.stamp(8)
        for k in range(1, 8):
            a(f"v_xor_b32 v{S3 + k}, {16 * k}, v3")
        if 'Bstop8' in self.diag:
            a("s_branch L_done")
        a(f"""s_cmp_lg_u32 {sW}, 0
            s_cbranch_scc1 L_nost
            ds_read_b128 v[8:11], v56 offset:{LS - MX}
            v_mov_b32 v52, v58
            s_waitcnt lgkmcnt(0)
            v_add_f32 v8, v8, v9
            v_add_f32 v10, v10, v11
            v_add_f32 v53, v8, v10""")
        self.exec64(0xffffffff, 0)
        a(f"buffer_store_dwordx4 v[52:55], v17, {SRDW}, s53 offen sc1\ns_mov_b64 exec, -1\nL_nost:\ns_nop 3")
        for k in range(8):
            a(f"v_cvt_pk_bf16_f32 v{FR + 2 * k}, v{O + 4 * k}, v{O + 4 * k + 1}")
            a(f"v_cvt_pk_bf16_f32 v{FR + 2 * k + 1}, v{O + 4 * k + 2}, v{O + 4 * k + 3}")
            a(f"ds_write_b64 v{S3 + k if k else 3}, {vr(FR + 2 * k, 2)}")
        for i in range(4):
            a(f"ds_read_b128 {vr(FR + 16 + 4 * i, 4)}, v4 offset:{1024 * i}")
        for i in range(4):
            a(f"s_waitcnt lgkmcnt({3 - i})")
            for k in range(4):
                a(f"v_bfi_b32 v{FR + 16 + 4 * i + k}, v18, s{56 + k}, v{FR + 16 + 4 * i + k}")
            a(f"{'' if i < self.nst else ';'}buffer_store_dwordx4 {vr(FR + 16 + 4 * i, 4)}, v29, {SRDW}, s49 offen {self.pfl}\ns_add_u32 s49, s49, {8 * 65536}")
        self.stamp(9)
        for i in range(sum(self.uva), 8):
            uv(i)
        self.e2_dma_setup()
        a(f"""s_lshl_b32 s33, {sH}, 10
            s_lshl_b32 s36, {sW}, 7
            s_add_u32 s33, s33, s36
            s_add_u32 s33, s33, {ST}
            s_add_u32 s34, s12, s33
            s_addc_u32 s35, s13, 0
            v_lshrrev_b32 v7, 5, v0
            s_and_b32 s33, {sW}, 1
            s_lshl_b32 s33, s33, 2
            v_or_b32 v7, s33, v7
            v_lshlrev_b32 v7, 5, v7
            v_xor_b32 v3, v7, v16
            v_xor_b32 v4, 64, v3
            s_lshl_b32 s49, {sH}, 16
            s_lshl_b32 s36, {sB}, 15
            s_add_u32 s49, s49, s36
            s_lshl_b32 s36, {sW}, 12
            s_add_u32 s49, s49, s36
            s_add_u32 s49, s49, {OP}
            v_add_u32 v5, s50, v16
            v_lshrrev_b32 v8, 2, v1
            v_lshrrev_b32 v9, 1, v2
            v_and_b32 v10, 1, v2
            v_lshlrev_b32 v7, 15, v9
            v_lshl_add_u32 v7, v10, 13, v7
            v_lshl_add_u32 v7, v8, 8, v7
            v_and_b32 v11, 3, v0
            v_lshl_add_u32 v7, v11, 3, v7
            v_lshl_or_b32 v10, v10, 2, v8
            v_xor_b32 v9, {sW}, v10
            v_lshl_add_u32 v20, v9, 5, v7
            v_add_u32 v21, 65536, v20
            v_lshlrev_b32 v7, 12, v2
            v_lshl_add_u32 v7, v8, 9, v7
            v_lshl_add_u32 v7, v11, 3, v7
            s_lshl_b32 s33, {sW}, 1
            v_xor_b32 v10, s33, v10
            v_lshl_add_u32 v7, v10, 5, v7
            v_add_u32 v24, {PART[0]}, v7
            v_xor_b32 v25, 32, v24
            s_lshl_b32 s33, {sW}, 7
            s_add_u32 s36, s33, {WB}
            v_lshl_add_u32 v22, v0, 1, s36
            v_and_b32 v8, 1, v0
            v_lshlrev_b32 v7, 6, v8
            v_lshl_add_u32 v7, v2, 4, v7
            v_add_u32 v23, s36, v7
            v_add_u32 v27, {CC}, v7
            v_add_u32 v26, s33, v27
            v_lshlrev_b32 v7, 11, v8
            v_lshl_add_u32 v28, v2, 4, v7
            s_lshl_b32 s53, {sH}, 12
            s_lshl_b32 s36, {sB}, 9
            s_add_u32 s53, s53, s36
            s_lshl_b32 s36, {sW}, 6
            s_add_u32 s53, s53, s36
            s_add_u32 s53, s53, {H4B}
            s_add_u32 s36, s36, {SM}
            v_lshl_add_u32 v29, v0, 3, s36
            v_lshlrev_b32 v30, 3, v0
            v_add_u32 v30, {SM}, v30
            v_and_b32 v7, 1, v2
            v_cvt_f32_u32 v54, v7
            v_mul_f32 v54, 0.5, v54
""")
        if 'Bstop9' in self.diag:
            a("s_branch L_done")
        a(f"""s_mov_b32 s37, {SPIN}
            L_h3:
            {f's_sleep {self.ps[1]}' if self.ps[1] else ''}
            s_load_dwordx16 s[64:79], s[34:35], 0 glc
            s_load_dwordx16 s[80:95], s[34:35], 64 glc
            s_sub_u32 s37, s37, 1
            s_waitcnt lgkmcnt(0)
            s_cbranch_scc1 L_h3ok""")
        for k in range(8):
            a(f"s_cmp_lg_u32 s{66 + 4 * k}, {sTAG}\ns_cbranch_scc1 L_h3")
        a("L_h3ok:")
        self.stamp(10)

        def fetch():
            for i in range(4):
                a(f"buffer_load_dwordx4 {vr(O + 4 * i, 4)}, v{3 + (i & 1)}, {SRDW}, s49 offen offset:{1024 * i} {self.gfl}")
        fetch()
        a("s_waitcnt vmcnt(4)")
        put(S2, 0)
        for k in range(8):
            a(f"v_writelane_b32 v8, s{64 + 4 * k}, {k}\nv_writelane_b32 v9, s{65 + 4 * k}, {k}")
        a("""s_mov_b64 exec, 0xff
            ds_write_b64 v29, v[8:9]
            s_mov_b64 exec, -1
            s_waitcnt lgkmcnt(0)
            s_barrier
            ds_read_b64 v[12:13], v30""")
        for s in range(7):
            for p in range(2):
                a(f"ds_read_b64_tr_b16 {vr(QAR + 4 * s + 2 * p, 2)}, v{20 + p} offset:{1024 * s}")
        a("s_waitcnt lgkmcnt(14)\nv_mov_b32 v14, v12")

        def red32(op, r, t):
            for sh in (1, 2, 4, 8):
                a(f"{op}_dpp v{r}, v{r}, v{r} row_ror:{sh} {FULL}")
            a(f"v_mov_b32 v{t}, v{r}\nv_permlane16_swap_b32 v{t}, v{r}\n{op} v{r}, v{r}, v{t}")
        red32("v_max_f32", 14, 15)
        for p in range(2):
            a(f"ds_read_b64_tr_b16 {vr(QAR + 28 + 2 * p, 2)}, v{20 + p} offset:{1024 * 7}")
        a("v_sub_f32 v12, v12, v14\nv_exp_f32 v12, v12\nv_mul_f32 v13, v12, v13")
        red32("v_add_f32", 13, 15)
        a(f"""v_rcp_f32 v13, v13
            v_mul_f32 v12, v12, v13
            v_cvt_pk_bf16_f32 v12, v12, v12
            ds_write_b16 v22, v12
            ds_read_b128 v[12:15], v23
            v_cmp_eq_u32 vcc, 0, v1
            v_cmp_eq_u32 s[38:39], 1, v1
            s_mov_b32 s37, {SPIN}
            s_waitcnt lgkmcnt(0)""")
        for k in range(4):
            a(f"v_cndmask_b32 v{32 + k}, 0, v{12 + k}, vcc")
            a(f"v_cndmask_b32 v{36 + k}, 0, v{12 + k}, s[38:39]")
        a(f"""L_h3p:
            s_waitcnt vmcnt(0)
""")
        for k in range(4):
            a(f"v_bitop3_b32 v{8 + 2 * k}, v{O + k}, v{O + 4 + k}, s{56 + k} bitop3:0x7e")
            a(f"v_bitop3_b32 v{9 + 2 * k}, v{O + 8 + k}, v{O + 12 + k}, s{56 + k} bitop3:0x7e")
        a(f"""v_or3_b32 v8, v8, v9, v10
            v_or3_b32 v11, v11, v12, v13
            v_or3_b32 v8, v8, v14, v15
            v_or_b32 v8, v8, v11
            v_and_b32 v8, 0x10001, v8
            v_cmp_ne_u32 vcc, 0, v8
            s_cbranch_vccz L_h3pok
            s_sub_u32 s37, s37, 1
            s_cbranch_scc1 L_h3pok""")
        fetch()
        a("s_branch L_h3p\nL_h3pok:")
        for i in range(4):
            a(f"ds_write_b128 v5, {vr(O + 4 * i, 4)} offset:{1024 * i}")
        if self.dbg is True:
            a(f"s_sub_u32 s33, {SPIN}, s37\nv_writelane_b32 v63, s33, 30")
        a("s_waitcnt lgkmcnt(0)\ns_barrier")
        self.stamp(11)
        for s in range(2):
            for cb in range(2):
                for p in range(2):
                    a(f"ds_read_b64_tr_b16 {vr(FR + 8 * s + 4 * cb + 2 * p, 2)}, v{24 + cb} offset:{32768 * s + 2048 * p}")
        if self.e2b == 0:
            for i in range(4):
                self.e2_dma(i)
        for s in range(2):
            for cb in range(2):
                a(f"s_waitcnt lgkmcnt({6 - 4 * s - 2 * cb})")
                c = "0" if s == 0 else vr(40 + 4 * cb, 4)
                a(f"v_mfma_f32_16x16x32_bf16 {vr(40 + 4 * cb, 4)}, {vr(FR + 8 * s + 4 * cb, 4)}, {vr(32 + 4 * s, 4)}, {c}")
        for k in range(4):
            a(f"v_cvt_pk_bf16_f32 v{48 + k}, v{40 + 2 * k}, v{41 + 2 * k}")
        self.exec64(0x00030003)
        a("ds_write_b128 v26, v[48:51]\ns_mov_b64 exec, -1\ns_waitcnt lgkmcnt(0)\ns_barrier")
        for s in range(8):
            a(f"ds_read_b128 {vr(FR + 4 * s, 4)}, v27 offset:{128 * s}")
        for s in range(8):
            a(f"s_waitcnt lgkmcnt({7 - s})")
            a(f"v_mfma_f32_16x16x32_bf16 v[40:43], {vr(QAR + 4 * s, 4)}, {vr(FR + 4 * s, 4)}, {'v[40:43]' if s else '0'}")
        self.exec64(0x00030003)
        a("v_cvt_pk_bf16_f32 v52, v40, v41\nv_cvt_pk_bf16_f32 v53, v42, v43")
        a(f"buffer_store_dwordx4 v[52:55], v28, {SRDW}, s53 offen sc1\ns_mov_b64 exec, -1")
        self.stamp(12)
        if self.e2b == 1:
            for i in range(4):
                self.e2_dma(i)
        a("s_branch L_stageE2")
        if self.noack:
            a("L_qretry:\ns_sub_u32 s37, s37, 1\ns_cbranch_scc1 L_qaok\ns_waitcnt lgkmcnt(0)\ns_barrier")
            qcopy()
            a("s_waitcnt vmcnt(0)\ns_barrier\ns_branch L_qa")

    def build(self):
        a = self.a
        self.entry()
        self.p1()
        a("L_rolePU:")
        self.p2()
        self.a_common()
        self.e2()
        a("s_endpgm")
        self.role_b()
        a("L_end:\ns_endpgm")
        if 'fine' in self.diag:
            a.stamp_loads()
        body = a.finalize()
        return f"""{HEADER}; Generated by a script; one persistent launch, 256 workgroups of 8 waves (one per CU).
; @launch grid=(256,1,1) block=(512,1,1) lds={LDS_BYTES}
.amdgcn_target "amdgcn-amd-amdhsa--gfx950"
.text
.globl {NAME}
.p2align 8
.type {NAME},@function
{NAME}:
{body}.section .rodata,"a"
.p2align 6
.amdhsa_kernel {NAME}
  .amdhsa_next_free_vgpr 256
  .amdhsa_next_free_sgpr 102
  .amdhsa_accum_offset 256
  .amdhsa_group_segment_fixed_size 0
  .amdhsa_kernarg_size 112
  .amdhsa_user_sgpr_count 2
  .amdhsa_user_sgpr_kernarg_segment_ptr 1
  .amdhsa_system_sgpr_workgroup_id_x 1
  .amdhsa_float_denorm_mode_32 3
.end_amdhsa_kernel
"""


if __name__ == "__main__":
    out = sys.argv[1]
    kw = eval("dict(" + (sys.argv[2] if len(sys.argv) > 2 else "") + ")")
    open(out, "w").write(Gen(**kw).build())
```

```python
import re

REG = re.compile(r"\b([vsa])(\d+)\b|\b([vsa])\[(\d+):(\d+)\]|\b(vcc|exec|m0)\b")
TRANS = ("v_exp_", "v_log_", "v_rcp_", "v_rsq_", "v_sqrt_", "v_sin_", "v_cos_")


def regs(text):
    out = set()
    for m in REG.finditer(text):
        if m.group(1):
            out.add((m.group(1), int(m.group(2))))
        elif m.group(3):
            out.update((m.group(3), i) for i in range(int(m.group(4)), int(m.group(5)) + 1))
        else:
            out.add(("x", m.group(6)))
    return out


class Ins:
    def __init__(self, text):
        self.text = text
        t = text.split(";")[0].strip()
        self.label = t.endswith(":")
        self.directive = t.startswith(".") and not self.label
        self.op = "" if (self.label or self.directive or not t) else t.split()[0]
        rest = t[len(self.op):].strip() if self.op else ""
        parts = [p.strip() for p in re.split(r",(?![^\[]*\])", rest)] if rest else []
        self.parts = parts
        op = self.op
        self.valu = op.startswith("v_") and not op.startswith("v_mfma")
        self.mfma = op.startswith("v_mfma")
        self.vmem = op.startswith(("buffer_", "global_", "flat_"))
        self.ds = op.startswith("ds_")
        self.salu = op.startswith("s_")
        self.dpp = "_dpp" in op or any(k in rest for k in ("quad_perm", "row_ror", "row_shr", "row_shl", "row_mirror", "row_half_mirror", "row_newbcast", "row_bcast"))
        self.dot = op.startswith("v_dot")
        self.trans = op.startswith(TRANS)
        self.perml = op.startswith("v_permlane")
        self.lane_rd = op.startswith(("v_readlane", "v_readfirstlane"))
        self.lds_dma = self.vmem and (rest.endswith(" lds") or " lds " in rest or "load_lds" in op)
        w, r = set(), set()
        if self.valu or self.mfma:
            w = regs(parts[0])
            for p in parts[1:]:
                r |= regs(p)
            if self.perml:
                w |= regs(parts[1]); r |= regs(parts[0])
            if op.startswith(("v_fmac", "v_dot2c", "v_writelane", "v_pk_fmac")) or self.dpp:
                r |= regs(parts[0])
            if op.startswith(("v_add_co", "v_addc_co", "v_sub_co")):
                w |= regs(parts[1])
        elif self.ds:
            if op.startswith(("ds_read", "ds_bpermute", "ds_permute", "ds_swizzle")) or "_rtn" in op:
                w = regs(parts[0])
                for p in parts[1:]:
                    r |= regs(p)
            else:
                for p in parts:
                    r |= regs(p)
        elif self.vmem:
            if "load" in op and not self.lds_dma:
                w = regs(parts[0])
                for p in parts[1:]:
                    r |= regs(p)
            else:
                for p in parts:
                    r |= regs(p)
            if self.lds_dma:
                r.add(("x", "m0"))
        elif self.salu and parts:
            if op.startswith(("s_cmp", "s_waitcnt", "s_cbranch", "s_branch", "s_nop", "s_sleep", "s_setprio", "s_bitcmp", "s_setpc")):
                for p in parts:
                    r |= regs(p)
            else:
                w = regs(parts[0])
                for p in parts[1:]:
                    r |= regs(p)
        self.w, self.r = w, r
        self.dpp_src = regs(parts[1]) if self.dpp and len(parts) > 1 else set()
        if self.mfma:
            self.passes = 8 if "32x32" in op else 4
            self.d = regs(parts[0]); self.ab = regs(parts[1]) | regs(parts[2]); self.c = regs(parts[3])
        self.wide_store = self.vmem and "store" in op and ("x4" in op or "x3" in op)
        if self.wide_store:
            self.sdata = regs(parts[0]) if op.startswith("buffer_") else regs(parts[1])
        self.states = 0 if not self.op else (int(parts[0], 0) + 1 if op == "s_nop" else 1)


def vonly(s):
    return {x for x in s if x[0] in "va"}


def sonly(s):
    return {x for x in s if x[0] == "s" or x == ("x", "vcc")}


def need(p, c):
    n = 0
    if p.valu:
        pw = vonly(p.w)
        if c.dpp and pw & c.dpp_src: n = max(n, 2)
        if c.perml and pw & c.r: n = max(n, 2)
        if c.mfma and pw & c.r: n = max(n, 2)
        if c.lane_rd and pw & c.r: n = max(n, 1)
        if p.trans and c.valu and not c.trans and pw & c.r: n = max(n, 1)
        if p.dot and (c.valu or c.mfma or c.ds or c.vmem) and pw & (c.r | c.w):
            same = c.dot and c.op.replace("_dpp", "") == p.op.replace("_dpp", "")
            srcs = set()
            for q in c.parts[1:3]:
                srcs |= regs(q)
            if not (same and not (pw & srcs)): n = max(n, 3)
        ps = sonly(p.w)
        if ps & c.r:
            if c.vmem: n = max(n, 5)
            elif c.op.startswith(("v_readlane", "v_writelane")): n = max(n, 4)
            elif c.valu: n = max(n, 2)
        if ("x", "vcc") in ps and c.op.startswith(("v_cndmask", "v_addc")): n = max(n, 2)
    if p.mfma:
        far = 12 if p.passes == 8 else 8
        if c.mfma:
            if p.d & c.ab: n = max(n, far)
            if p.d & c.c and not (p.d == c.c and p.passes == c.passes): n = max(n, far - 2)
        elif (c.valu or c.vmem or c.ds) and p.d & (c.r | c.w): n = max(n, far)
        if c.valu and p.c & c.w: n = max(n, 7 if p.passes == 8 else 3)
    if p.salu and ("x", "m0") in p.w and (c.lds_dma or c.op.startswith("v_writelane")): n = max(n, 1)
    if p.wide_store and p.sdata & c.w: n = max(n, 2 if c.valu else 1)
    return n


def pad_paths(ins):
    while True:
        lab = {x.text[:-1]: i for i, x in enumerate(ins) if x.label}

        def succ(i):
            x = ins[i]
            if x.op == "s_endpgm":
                return []
            if x.op == "s_branch":
                return [lab[x.parts[0]]]
            if x.op.startswith("s_cbranch"):
                return [i + 1, lab[x.parts[0]]]
            return [i + 1]
        fix = None
        for i, p in enumerate(ins):
            if not (p.valu or p.mfma or p.wide_store or p.salu):
                continue
            best = {}
            stack = [(s, 0) for s in succ(i)]
            while stack and fix is None:
                k, d = stack.pop()
                if d >= 12 or best.get(k, 99) <= d:
                    continue
                best[k] = d
                c = ins[k]
                if c.op and need(p, c) > d:
                    fix = (k, need(p, c) - d)
                stack += [(s, d + c.states) for s in succ(k)]
            if fix:
                break
        if fix is None:
            return ins
        ins = ins[:fix[0]] + [Ins(f"s_nop {fix[1] - 1}")] + ins[fix[0]:]


class Asm:
    def __init__(self):
        self.ins = []

    def __call__(self, text):
        for line in text.split("\n"):
            line = line.strip()
            if line:
                self.ins.append(Ins(line))

    def stamp_loads(self):
        out = []
        for c in self.ins:
            out.append(c)
            if c.vmem and " nt" in c.text and "load" in c.op:
                for t in ("s_mov_b32 s101, m0", "s_memrealtime s[98:99]", "s_cselect_b32 s97, 1, 0", "s_add_u32 s100, s100, 1", "s_min_u32 s100, s100, 27", "s_mov_b32 m0, s100",
                          "s_waitcnt lgkmcnt(0)", "v_writelane_b32 v63, s98, m0", "s_mov_b32 m0, s101", "s_cmp_eq_u32 s97, 1"):
                    out.append(Ins(t))
        self.ins = out

    def finalize(self):
        out = []
        for c in self.ins:
            if c.op:
                dist = 0; pad = 0
                for p in reversed(out):
                    if dist >= 12: break
                    if p.op:
                        pad = max(pad, need(p, c) - dist)
                        dist += p.states
                if pad > 0:
                    out.append(Ins(f"s_nop {pad - 1}"))
            out.append(c)
        out = pad_paths(out)
        return "\n".join(("" if (i.label or i.directive) else "    ") + i.text for i in out) + "\n"
```

```python
import sys
from asmlib import Asm

NAME = "concat_heads__sliding_block_cached__compressed_kv_cla__decode_kernel"
HEADER = open("concat_heads__sliding_block_cached__compressed_kv_cla__decode.s.ref").read().split("; Override launch")[0]

EPOCH = 0
QA = 0xa0000
QB = 0xc0000
CNT = 0xa00000
QABS = 0x30000
F2 = 0x40000
ST = 0x50000
H4A = 0x60000
H4B = 0x80000
OP = 0x100000
H5 = 0x400000
STAMP = 0x800000
WS_SIZE = 0x1000000

AUX = 131072
RED = AUX
MXA = AUX + 512
LSA = AUX + 8192 + 64
MX = AUX + 9216
LS = AUX + 9216 + 512
PB = AUX + 10240
SM = AUX + 28672
WB = AUX + 29696
TK = AUX + 768
XI = AUX + 12288
CC = AUX + 30720
QL = AUX + 10240
HI = AUX + 20480
HS = AUX + 25088
E2B = (81920, 114688)
PART = (16384, 49152)
LDS_BYTES = 163840

SCALE = 0x3e0293ee
NEGBIG = 0xff7fffff
SPIN = 1 << 18

sW, sH, sJ, sB, sT, sTAG = "s3", "s4", "s5", "s6", "s7", "s32"
SRD0, SRDW, SRDK, SRDV, SRDE, SRDX = "s[8:11]", "s[12:15]", "s[16:19]", "s[20:23]", "s[24:27]", "s[28:31]"
FULL = "row_mask:0xf bank_mask:0xf"


def vr(a, n):
    return f"v[{a}:{a + n - 1}]"


def dest(i):
    return (i >> 1) * 32768 + (i & 1) * 8192


class Gen:
    def __init__(self, dbg=False, calib=0, amp=None, diag='', depth=4, lo=3, win=((3, 12), (4, 12)), edepth=(4,), bdepth=4,
                 pu_pre=0, xpos=5, rounds=10, hxa=2, hxu=1, jmul=3, hookpos=(0, 9, 18, 27), bmin=4, uva=(4, 4, 0), e2b=1,
                 e2pos=(2, 0), pw=None, noack=True, pollw=True, qplain=True, outfl='', lf=2, stlate=True, test='', nak=True, late=0, pbar=False, jx=(0, 0), e2mid=0, prio=0, kmul=1, pmul=1, srot=0, bx=0, wsoff=0, bmax=12, hold=0, sd=(4, 4, 4), hint=False, pmask=False, ps=(0, 0, 0, 0)):
        self.__dict__.update(locals())
        self.a = Asm()
        self.uid = 0
        self.pfl, self.gfl, self.nst = 'sc1', 'sc1', 4

    def lab(self, p):
        self.uid += 1
        return f"L_{p}_{self.uid}"

    def stamp(self, k):
        if self.dbg and (self.dbg is True or k in self.dbg or k == 17) and 'fine' not in self.diag:
            self.a(f"s_memrealtime s[98:99]\ns_waitcnt lgkmcnt(0)\nv_writelane_b32 v63, s98, {k}")

    def cyc(self, k):
        if 'cyc' in self.diag:
            self.a(f"s_memtime s[{64 + 2 * k}:{65 + 2 * k}]")

    def exec64(self, lo, hi=None):
        hi = lo if hi is None else hi
        self.a(f"s_mov_b32 exec_lo, {lo:#x}\ns_mov_b32 exec_hi, {hi:#x}")

    def entry(self):
        a = self.a

        def pack(sw, sh, sb, st, rs, kmul, k1, k2):
            return sw | sh << 5 | sb << 10 | st << 15 | rs << 20 | kmul << 25 | (k1 >> 5) << 27 | (k2 >> 7) << 29
        if self.dbg or self.calib:
            a("s_memrealtime s[96:97]\nv_mov_b32 v63, 0\ns_mov_b32 s100, 0")
        a(f"""s_load_dwordx8 s[64:71], s[0:1], 48
            v_lshrrev_b32 v8, 6, v0
            s_cmp_ge_u32 s2, 256
            s_cbranch_scc1 L_end
            v_readfirstlane_b32 {sW}, v8
            s_lshr_b32 {sH}, s2, 3
            s_add_u32 {sJ}, s2, {sH}
            s_mul_i32 {sJ}, {sJ}, {self.jmul}
            s_bfe_u32 {sB}, {sJ}, 0x10002
            s_and_b32 {sT}, {sJ}, 3
            v_and_b32 v1, 15, v0
            v_bfe_u32 v2, v0, 4, 2
            s_mul_i32 s38, {sW}, 17
            s_bfe_u32 s38, s38, 0x40002
            s_mov_b32 s33, {pack(17, 8, 20, 15, 13, 2, 0, 128):#x}
            s_cmp_eq_u32 {sT}, 2
            s_cmov_b32 s33, {pack(18, 8, 21, 16, 13, 1, 64, 128):#x}
            s_cselect_b32 s63, {self.hxu}, 0
            s_xor_b32 s63, s63, {sH}
            s_cmp_eq_u32 {sT}, 3
            s_cmov_b32 s33, {pack(10, 13 if self.bx else 18, 23, 18 if self.bx else 13, 8, 0, 32, 0):#x}
            s_cselect_b32 s38, s38, 0
            s_cselect_b32 s10, 24, 22
            s_lshl_b32 s10, 1, s10
            s_cmp_eq_u32 {sT}, 1
            s_cselect_b32 s36, 2, 0
            s_or_b32 s42, s36, {sB}
            s_lshl_b32 s40, {sW}, s33
            s_lshr_b32 s33, s33, 5
            s_lshl_b32 s36, s63, s33
            s_add_u32 s40, s40, s36
            s_lshr_b32 s33, s33, 5
            s_lshl_b32 s36, s42, s33
            s_add_u32 s40, s40, s36
            s_lshr_b32 s33, s33, 5
            s_lshl_b32 s41, 1, s33
            s_lshr_b32 s33, s33, 5
            s_bfe_u32 s36, s33, 0x20005
            v_mul_u32_u24 v11, s36, v2
            v_xor_b32 v10, s38, v1
            v_lshlrev_b32 v9, s33, v2
            v_xor_b32 v10, v10, v11
            s_lshr_b32 s33, s33, 2
            s_and_b32 s38, s33, 0x60
            s_and_b32 s39, s33, 0x80
            v_lshl_add_u32 v3, v10, 4, v9
            s_lshl_b32 s44, {sW}, 10
            s_mov_b32 s11, 0x20000
            v_xor_b32 v4, s38, v3
            v_xor_b32 v5, s39, v3
            s_mov_b32 m0, s44
            v_xor_b32 v6, s39, v4
            s_mov_b32 s43, s40
            s_cmp_eq_u32 {sT}, 2
            s_waitcnt lgkmcnt(0)
            s_cselect_b64 s[8:9], s[68:69], s[66:67]
            s_cmp_eq_u32 {sT}, 3
            s_cselect_b64 s[8:9], s[64:65], s[8:9]""")
        for i in range(4):
            a(f"buffer_load_dwordx4 v{3 + i}, {SRD0}, s40 offen nt lds")
            a(f"s_add_u32 m0, s44, {dest(i + 1)}\ns_add_u32 s40, s40, s41")
        a(f"""s_load_dwordx2 s[12:13], s[0:1], 104
            s_load_dwordx2 s[28:29], s[0:1], 0
            s_load_dwordx2 s[30:31], s[0:1], 40
            s_load_dwordx2 s[16:17], s[0:1], 8
            s_load_dwordx2 s[20:21], s[0:1], 16
            s_load_dwordx2 s[24:25], s[0:1], 24
            s_getpc_b64 s[34:35]
            L_pc:
            s_and_b32 {sJ}, {sJ}, 7
            v_and_b32 v0, 63, v0
            v_lshlrev_b32 v16, 4, v0
            s_mov_b32 s27, 0x20000
            s_mov_b32 s26, s10
            s_xor_b32 s36, s43, {self.hxa << 8}
            s_add_u32 s43, s43, 32768
            s_cmp_eq_u32 {sT}, 3
            s_cselect_b32 s43, s40, s43
            s_cmp_lt_u32 {sT}, 2
            s_cselect_b32 s43, s36, s43
            s_cselect_b32 s63, s42, s63
            s_waitcnt lgkmcnt(0)
            s_cselect_b64 s[24:25], s[24:25], s[8:9]""")
        if self.wsoff:
            a(f"s_add_u32 s12, s12, {self.wsoff}\ns_addc_u32 s13, s13, 0")
        a(f"""s_lshl_b32 s33, {sH}, 3
            s_add_u32 s33, s33, {sW}
            s_lshl_b32 s33, s33, 7
            s_min_u32 s33, s33, L_end-L_pc-64
            s_add_u32 s36, s33, 64
            s_load_dword {'s98' if 'fine' in self.diag else 's100'}, s[34:35], s33
            s_load_dword {'s99' if 'fine' in self.diag else 's101'}, s[34:35], s36
            s_load_dword {sTAG}, s[12:13], {EPOCH}
            s_mov_b32 s14, {WS_SIZE:#x}
            s_mov_b32 s15, 0x20000
            s_mov_b32 s19, 0x20000
            s_mov_b32 s52, {SCALE:#x}""")
        if self.dbg:
            a("v_writelane_b32 v63, s96, 0")
        a(f"""s_cmp_eq_u32 {sT}, 3
            s_cbranch_scc1 L_roleB
            s_mov_b32 s18, 0x8000000
            s_mov_b32 s22, 0x8000000
            s_mov_b32 s23, 0x20000
            s_lshl_b32 s45, {sB}, 5
            s_add_u32 s45, s45, {sH}
            s_lshl_b32 s45, s45, 21
            s_add_u32 s45, s45, {6144 * 256}
            s_lshl_b32 s57, {sT}, 3
            s_add_u32 s57, s57, {sW}""")
        self.a_addr()
        a(f"v_add_u32 v7, {RED}, v16")
        for k in range(4):
            a(f"v_mov_b32 v{8 + k}, 0")
        a(f"ds_write_b128 v7, v[8:11]")
        a(f"s_cmp_eq_u32 {sT}, 2\ns_cbranch_scc1 L_rolePU")

    def second_batch(self, mid, extra=0, depth=4, lo=4, hi=8):
        a = self.a
        for i in range(lo, hi):
            a(f"s_waitcnt vmcnt({depth - 1 + extra})\nbuffer_load_dwordx4 v{3 + (i & 3)}, {SRDE}, s43 offen nt lds")
            if i < 7:
                a(f"s_add_u32 m0, s44, {dest(i + 1)}")
            a("s_add_u32 s43, s43, s41")
            if i == self.xpos:
                a(f"s_waitcnt lgkmcnt(0)\ns_add_u32 {sTAG}, {sTAG}, 1")
                mid()

    def load_e2_ptr(self):
        self.a(f"""s_cmp_lt_u32 {sW}, 4
            s_cselect_b32 s33, 32, 80
            s_load_dwordx2 s[24:25], s[0:1], s33
            s_mov_b32 s26, {0 if 'noW' in self.diag else 0x400000}""")

    def sum_parts(self, r):
        self.a(f"""v_lshlrev_b32 v8, 16, v{r}
            v_and_b32 v9, 0xffff0000, v{r}
            v_lshlrev_b32 v10, 16, v{r + 1}
            v_and_b32 v11, 0xffff0000, v{r + 1}
            v_lshlrev_b32 v{r}, 16, v{r + 4}
            v_and_b32 v{r + 1}, 0xffff0000, v{r + 4}
            v_lshlrev_b32 v{r + 2}, 16, v{r + 5}
            v_and_b32 v{r + 3}, 0xffff0000, v{r + 5}
            v_pk_add_f32 v[8:9], v[8:9], {vr(r, 2)}
            v_pk_add_f32 v[10:11], v[10:11], {vr(r + 2, 2)}
            v_permlane32_swap_b32 v8, v10
            v_permlane32_swap_b32 v9, v11
            v_pk_add_f32 v[8:9], v[8:9], v[10:11]
            v_cvt_pk_bf16_f32 v{r}, v8, v9""")

    def poll_rows(self, voff, soff, two=False):
        a = self.a
        lp, ok = self.lab("gp"), self.lab("gok")
        back = self.ps[0 if two else 2]
        a(f"s_mov_b32 s37, {SPIN}\n{lp}:\nbuffer_load_dwordx4 v[176:179], {voff}, {SRDW}, {soff} offen sc1")
        if two:
            a(f"buffer_load_dwordx4 v[180:183], {voff}, {SRDW}, {soff} offen offset:1024 sc1")
        a(f"s_sub_u32 s37, s37, 1\ns_waitcnt vmcnt(0)\ns_cbranch_scc1 {ok}")
        if two:
            a(f"v_bitop3_b32 v8, v179, v183, {sTAG} bitop3:0x7e\nv_cmp_ne_u32 vcc, 0, v8")
        else:
            a(f"v_cmp_ne_u32 vcc, {sTAG}, v179")
        if self.pmask or back:
            a(f"s_cbranch_vccz {ok}")
            if self.pmask:
                a("s_mov_b64 exec, vcc")
            if back:
                a(f"s_sleep {back}")
            a(f"s_branch {lp}\n{ok}:\ns_mov_b64 exec, -1")
        else:
            a(f"s_cbranch_vccnz {lp}\n{ok}:")

    def e2_dma_setup(self):
        self.a(f"""v_lshrrev_b32 v9, 3, v0
            v_and_b32 v10, 7, v0
            v_and_b32 v11, 1, v2
            v_lshlrev_b32 v11, 1, v11
            v_xor_b32 v10, v10, v11
            v_lshlrev_b32 v10, 4, v10
            v_lshl_add_u32 v17, v9, 10, v10
            v_xor_b32 v18, 64, v17
            s_and_b32 s33, {sW}, 3
            s_lshl_b32 s46, {sH}, 17
            s_lshl_b32 s36, s33, 15
            s_add_u32 s46, s46, s36
            s_cmp_lt_u32 {sW}, 4
            s_cselect_b32 s36, {self.jx[0]}, {self.jx[1]}
            s_xor_b32 s36, s36, {sJ}
            s_lshl_b32 s36, s36, 7
            s_add_u32 s46, s46, s36
            s_cmp_lt_u32 {sW}, 4
            s_mov_b32 s47, {E2B[1]}
            s_cmov_b32 s47, {E2B[0]}
            s_lshl_b32 s36, s33, 12
            s_add_u32 s47, s47, s36""")


    def e2_dma(self, i):
        self.a(f"""s_add_u32 m0, s47, {1024 * i}
            s_nop 0
            buffer_load_dwordx4 v{17 + (i & 1)}, {SRDE}, s46 offen nt lds
            s_add_u32 s46, s46, 8192""")

    KV = 64

    def a_addr(self):
        self.a("s_mov_b32 s54, s48\ns_lshl_b32 s48, s57, 11\ns_add_u32 s48, s48, s45")

    def a_load(self, ph, k, cnt, lo=None):
        srd, so = (SRDK, "s48") if k < 2 else (SRDV, "s54")
        self.a(f"s_waitcnt vmcnt({cnt})")
        if lo is not None and lo < cnt:
            sk = self.lab("lo")
            self.a(f"s_cbranch_vccz {sk}\ns_waitcnt vmcnt({lo})")
            self.a(f"{sk}:")
        self.a(f"buffer_load_dwordx4 {vr(self.KV + 16 * ph + 4 * k, 4)}, v16, {srd}, {so} offen offset:{1024 * (k & 1)} nt")

    def a_first(self, k, cnt):
        if k == 2:
            self.a("s_add_u32 s57, s57, 24")
            self.a_addr()
        self.a_load(4 + (k >> 1), k & 1, cnt)

    def a_qk(self, ph, r=30):
        a = self.a
        K = self.KV + 16 * ph
        a("v_mov_b32 v28, 0\nv_mov_b32 v29, 0")
        for e in range(4):
            for u in range(2):
                a(f"v_dot2c_f32_bf16 v{28 + u}, v{K + 4 * u + e}, v{24 + e}")
        a(f"v_add_f32_dpp v{r}, v28, v28 row_ror:8 row_mask:0xf bank_mask:0x3")
        a(f"v_add_f32_dpp v{r}, v29, v29 row_ror:8 row_mask:0xf bank_mask:0xc")
        for m in ("row_half_mirror", "quad_perm:[1,0,3,2]", "quad_perm:[2,3,0,1]"):
            a(f"v_add_f32_dpp v{r}, v{r}, v{r} {m} {FULL}")

    def a_max(self):
        self.a(f"v_max_f32_dpp v31, v30, v30 row_ror:8 {FULL}\nv_mul_f32 v31, s52, v31\nv_max_f32 v31, v31, v60")

    def a_soft(self, with_max=True):
        a = self.a
        if with_max:
            self.a_max()
        a("""v_sub_f32 v32, v60, v31
            v_fma_f32 v30, v30, s52, -v31
            v_exp_f32 v32, v32
            v_exp_f32 v30, v30
            v_mov_b32 v60, v31
            v_fma_f32 v61, v61, v32, v30
            v_cvt_pk_bf16_f32 v34, v30, 0
            v_cvt_pk_bf16_f32 v35, 0, v30""")
        for k in range(4):
            a(f"v_pk_mul_f32 {vr(52 + 2 * k, 2)}, {vr(52 + 2 * k, 2)}, v[32:33] op_sel_hi:[1,0]")

    def a_pv(self, ph, u):
        V = self.KV + 16 * ph + 8 + 4 * u
        for e in range(4):
            self.a(f"v_dot2c_f32_bf16_dpp v{52 + 2 * e}, v34, v{V + e} row_newbcast:{8 * u} {FULL}")
            self.a(f"v_dot2c_f32_bf16_dpp v{53 + 2 * e}, v35, v{V + e} row_newbcast:{8 * u} {FULL}")

    def p1(self):
        a = self.a
        D = self.edepth[0]
        a(f"""s_lshl_b32 s33, s63, 8
            s_lshl_b32 s36, {sW}, 5
            s_add_u32 s49, s33, s36
            s_add_u32 s50, s49, 1024
            s_load_dwordx8 s[64:71], s[30:31], s49
            s_load_dwordx8 s[72:79], s[30:31], s50
            s_load_dwordx8 s[80:87], s[28:29], s49
            s_load_dwordx8 s[88:95], s[28:29], s50
            v_and_b32 v8, 1, v2
            v_lshlrev_b32 v7, 15, v8
            v_lshrrev_b32 v9, 1, v2
            v_lshl_add_u32 v7, v9, 10, v7
            v_lshrrev_b32 v9, 2, v1
            v_lshl_add_u32 v7, v9, 8, v7
            v_and_b32 v10, 3, v0
            v_lshl_add_u32 v7, v10, 3, v7
            v_lshl_or_b32 v9, v8, 2, v9
            v_xor_b32 v9, {sW}, v9
            v_lshl_add_u32 v200, v9, 5, v7
            v_add_u32 v201, 65536, v200
            v_lshrrev_b32 v7, 3, v0
            v_lshlrev_b32 v7, 8, v7
            v_and_b32 v8, 7, v0
            v_lshl_add_u32 v7, v8, 2, v7
            s_add_u32 s36, s36, {XI}
            v_add_u32 v202, s36, v7
            v_and_b32 v7, 1, v0
            v_lshlrev_b32 v8, 8, v7
            v_lshl_add_u32 v8, v2, 4, v8
            v_add_u32 v203, {XI}, v8
            v_lshlrev_b32 v8, 11, v7
            v_lshl_add_u32 v204, v2, 4, v8
            s_lshl_b32 s38, {sH}, 12
            s_lshl_b32 s36, s63, 9
            s_add_u32 s38, s38, s36
            s_lshl_b32 s36, {sW}, 6
            s_add_u32 s38, s38, s36
            s_xor_b32 s39, s38, {self.hxa << 12}
            s_add_u32 s38, s38, {QB}
            s_add_u32 s39, s39, {QA}""")

        def mid():
            for k in range(32):
                a(f"v_writelane_b32 v205, s{64 + k}, {k}")
            self.exec64(0xffffffff, 0)
            a(f"ds_write_b32 v202, v205\ns_mov_b64 exec, -1\nv_mov_b32 v51, {sTAG}")

        def half(t):
            a("s_waitcnt lgkmcnt(0)\ns_barrier")
            for s in range(4):
                a(f"ds_read_b128 {vr(160 + 4 * s, 4)}, v203 offset:{512 * t + 64 * s}")
                for p in range(2):
                    a(f"ds_read_b64_tr_b16 {vr(176 + 4 * s + 2 * p, 2)}, v{200 + t} offset:{2048 * s + 8192 * p}")
            for s in range(4):
                a(f"s_waitcnt lgkmcnt({9 - 3 * s})")
                a(f"v_mfma_f32_16x16x32_bf16 v[192:195], {vr(176 + 4 * s, 4)}, {vr(160 + 4 * s, 4)}, {'v[192:195]' if s else '0'}")
            self.exec64(0x00030003)
            a("v_cvt_pk_bf16_f32 v48, v192, v193\nv_cvt_pk_bf16_f32 v49, v194, v195")
            a(f"buffer_store_dwordx4 v[48:51], v204, {SRDW}, s{38 + t} offen sc1\ns_mov_b64 exec, -1")

        self.a_setup()
        H = self.hold
        self.second_batch(mid, 0, self.sd[0], 4, 8 - H)
        a(f"s_waitcnt vmcnt({4 - H})")
        self.stamp(1)
        half(0)
        self.stamp(2)
        self.second_batch(None, 1, 4, 8 - H, 8)
        self.load_e2_ptr()
        for k in range(4):
            self.a_first(k, D if k < D - H else D - 1)
        a(f"s_waitcnt vmcnt({4 if H else 5})")
        if 'slowa' in self.test:
            a(f"s_and_b32 s33, {sH}, 1\ns_cbranch_scc0 L_ta\ns_sleep 127\ns_sleep 127\ns_sleep 127\nL_ta:")
        half(1)
        self.stamp(3)
        a("s_branch L_acommon")

    def p2(self):
        a = self.a
        D, pre = self.edepth[0], self.pu_pre
        a(f"""v_lshrrev_b32 v7, 3, v1
            v_lshlrev_b32 v7, 15, v7
            v_bfe_u32 v8, v1, 2, 1
            v_lshl_add_u32 v7, v8, 13, v7
            v_and_b32 v8, 3, v1
            v_lshl_add_u32 v7, v8, 8, v7
            v_add_u32 v7, s44, v7
            v_xor_b32 v8, v2, v1
            v_lshl_add_u32 v216, v8, 4, v7""")
        for s in range(1, 4):
            a(f"v_xor_b32 v{216 + s}, {64 * s}, v216")
        for s in range(4):
            a(f"v_add_u32 v{220 + s}, 65536, v{216 + s}")
        a(f"""v_and_b32 v13, 31, v0
            v_lshlrev_b32 v13, 3, v13
            v_lshrrev_b32 v7, 5, v0
            v_lshl_add_u32 v13, v7, 2, v13
            s_lshl_b32 s33, {sW}, 8
            s_add_u32 s33, s33, {HI}
            v_add_u32 v13, s33, v13
            v_and_b32 v14, 1, v0
            v_lshlrev_b32 v14, 8, v14
            v_lshl_add_u32 v14, v2, 4, v14
            v_add_u32 v14, {HI}, v14
            s_lshl_b32 s49, s63, 12
            s_lshl_b32 s36, {sW}, 11
            s_add_u32 s49, s49, s36
            s_add_u32 s49, s49, {QB}
            v_lshlrev_b32 v15, 15, v1
            v_lshl_add_u32 v15, v2, 4, v15
            s_lshl_b32 s50, s63, 10
            s_lshl_b32 s36, {sB}, 9
            s_add_u32 s50, s50, s36
            s_lshl_b32 s36, {sW}, 6
            s_add_u32 s50, s50, s36
            s_add_u32 s50, s50, {QABS}
            s_lshr_b32 s53, s63, 2
            s_lshl_b32 s53, s53, 7
            s_and_b32 s36, s63, 3
            s_lshl_b32 s36, s36, 3
            s_add_u32 s53, s53, s36
            s_lshl_b32 s36, {sB}, 2
            s_add_u32 s53, s53, s36
            s_add_u32 s53, s53, {F2}
            v_lshlrev_b32 v197, 10, v0""")
        if self.noack:
            for k in range(4):
                a(f"v_mov_b32 v{200 + k}, -1")
            self.exec64(0x00030003)
            a(f"buffer_store_dwordx4 v[200:203], v15, {SRDW}, s50 offen sc1\ns_mov_b64 exec, -1")
        self.a_setup()
        self.second_batch(lambda: a(f"v_mov_b32 v196, {sTAG}"), 1 if self.noack else 0, self.sd[1])
        self.load_e2_ptr()
        for k in range(pre):
            self.a_first(k, D - 1)
        self.stamp(7)
        if self.hint:
            a(f"""s_lshl_b32 s33, s63, 12
                s_lshl_b32 s36, {sW}, 9
                s_add_u32 s33, s33, s36
                s_add_u32 s33, s33, {QB}
                s_add_u32 s34, s12, s33
                s_addc_u32 s35, s13, 0
                s_mov_b32 s38, {sTAG}
                s_mov_b32 s39, {sTAG}
                s_mov_b32 s37, {SPIN}
                L_h1h:""")
            for k in range(8):
                a(f"s_load_dword s{64 + k}, s[34:35], {64 * k + 12} glc")
            a("s_sub_u32 s37, s37, 1\ns_waitcnt lgkmcnt(0)\ns_cbranch_scc1 L_h1k")
            for k in range(4):
                a(f"s_xor_b64 s[{64 + 2 * k}:{65 + 2 * k}], s[{64 + 2 * k}:{65 + 2 * k}], s[38:39]")
            a("s_or_b64 s[64:65], s[64:65], s[66:67]\ns_or_b64 s[68:69], s[68:69], s[70:71]\ns_or_b64 s[64:65], s[64:65], s[68:69]")
            a("s_cbranch_scc1 L_h1h\nL_h1k:")
            self.stamp(13)
            if self.dbg is True:
                a(f"s_sub_u32 s33, {SPIN}, s37\nv_writelane_b32 v63, s33, 30")
            a("s_barrier")
        skip = self.lab("h1s")
        a(f"s_cmp_gt_u32 {sW}, 1\n{'s_branch' if 'nowait' in self.diag else 's_cbranch_scc1'} {skip}")
        if self.pollw:
            a(f"s_waitcnt vmcnt({pre})")
        self.poll_rows("v16", "s49", two=True)
        self.sum_parts(176)
        a(f"ds_write_b32 v13, v176\n{skip}:\ns_waitcnt vmcnt({pre})")
        self.stamp(1)
        for blk in range(2):
            for s in range(4):
                a(f"ds_read_b128 {vr(224 + 16 * blk + 4 * s, 4)}, v{216 + 4 * blk + s}")
        a("s_waitcnt lgkmcnt(0)\ns_barrier")
        self.stamp(2)
        for s in range(4):
            a(f"ds_read_b128 {vr(176 + 4 * s, 4)}, v14 offset:{64 * s}")
        for s in range(4):
            a(f"s_waitcnt lgkmcnt({3 - s})")
            for blk in range(2):
                c = "0" if s == 0 else vr(208 + 4 * blk, 4)
                a(f"v_mfma_f32_16x16x32_bf16 {vr(208 + 4 * blk, 4)}, {vr(224 + 16 * blk + 4 * s, 4)}, {vr(176 + 4 * s, 4)}, {c}")
        for k in range(4):
            a(f"v_cvt_pk_bf16_f32 v{168 + k}, v{208 + 2 * k}, v{209 + 2 * k}")
        self.exec64(0x00030003)
        if 'slowq' in self.test:
            a(f"s_mov_b64 exec, -1\ns_cmp_lg_u32 {sW}, 0\ns_cbranch_scc1 L_tq\nbuffer_store_dword v196, v197, {SRDW}, s53 offen sc1\nL_tq:\ns_sleep 127\ns_sleep 127\ns_sleep 127")
            self.exec64(0x00030003)
        a(f"buffer_store_dwordx4 v[168:171], v15, {SRDW}, s50 offen sc1")
        a("s_mov_b64 exec, -1")
        if not self.noack:
            a("s_waitcnt vmcnt(0)")
        a("s_barrier")
        skip = self.lab("p2s")
        a(f"""s_cmp_lg_u32 {sW}, 0
            s_cbranch_scc1 {skip}
            buffer_store_dword v196, v197, {SRDW}, s53 offen sc1
            {skip}:""")
        self.stamp(3)
        for k in range(pre, 4):
            self.a_first(k, D + 1)

    def a_setup(self):
        a = self.a
        self.e2_dma_setup()
        a(f"""s_lshl_b32 s51, {sH}, 1
            s_add_u32 s51, s51, {sB}
            s_lshl_b32 s51, s51, 11
            s_add_u32 s51, s51, {QA}
            v_and_b32 v36, 31, v0
            v_lshlrev_b32 v36, 3, v36
            v_lshrrev_b32 v7, 5, v0
            v_lshl_add_u32 v36, v7, 2, v36
            s_lshl_b32 s33, {sW}, 8
            s_add_u32 s33, s33, {QL}
            v_add_u32 v36, s33, v36
            v_lshl_add_u32 v37, v1, 4, s33
            v_mov_b32 v60, {NEGBIG:#x}
            v_mov_b32 v61, 0
            v_lshlrev_b32 v38, 5, v1
            v_lshl_add_u32 v38, v2, 3, v38
            s_lshl_b32 s33, {sW}, 9
            s_add_u32 s33, s33, {RED + 1024}
            v_add_u32 v38, s33, v38
            s_lshl_b32 s33, {sW}, 2
            s_add_u32 s33, s33, {MXA}
            v_mov_b32 v39, s33
            v_mov_b32 v43, {MXA}
            v_lshrrev_b32 v44, 5, v0
            v_mul_u32_u24 v44, 1536, v44
            v_add_u32 v44, v44, v16
            v_add_u32 v44, {RED + 1024}, v44
            s_lshl_b32 s61, {sH}, 3
            s_add_u32 s61, s61, {sJ}
            s_lshl_b32 s61, s61, 9
            s_add_u32 s61, s61, {H4A}""")
        for k in range(8):
            a(f"v_mov_b32 v{52 + k}, 0")
        R = self.rounds
        (a0, a1), (c0, c1) = self.win
        a(f"""s_cmp_eq_u32 {sT}, 2
            s_cselect_b32 s56, 256, 16
            s_mov_b32 s60, {24 * R}
            s_cmov_b32 s60, {24 * (R - 1)}
            s_mov_b32 s62, {24 * a0}
            s_cmov_b32 s62, {24 * c0}
            s_mov_b32 s55, {24 * (a1 - a0)}
            s_cmov_b32 s55, {24 * (c1 - c0)}""")

    def a_mask(self):
        self.a("s_sub_u32 s33, s57, s62\ns_cmp_lt_u32 s33, s55\ns_cselect_b64 vcc, -1, 0")

    def a_common(self):
        a = self.a
        D, E = self.depth, self.edepth
        a("L_acommon:")
        L = self.lo
        assert D <= 4
        slot = lambda k: 4 + k if k < 2 else k & 3

        def it(k, extra=0):
            a("s_add_u32 s57, s57, 24")
            self.a_addr()
            self.a_mask()
            for i in range(4):
                self.a_load(slot(k) if i < 2 else slot(k - 1), i, D - 1 + (extra if i < D else 0), L - 1 + (extra if i < L else 0))

        def proc(k):
            self.a_qk(slot(k)); self.a_soft(); self.a_pv(slot(k), 0); self.a_pv(slot(k), 1)
        self.a_mask()
        for k in (2, 3):
            self.a_load(slot(0), k, D - 1, L - 1)
        it(2)
        qld = f"buffer_load_dwordx4 v[20:23], v16, {SRDW}, s51 offen sc1\nbuffer_load_dwordx4 v[24:27], v16, {SRDW}, s51 offen offset:1024 sc1"
        a(qld.replace(" sc1", "") if self.qplain else qld)
        it(3, 2)
        self.e2_setup(False)
        if self.late:
            a(f"s_lshl_b32 s33, {sH}, 12\ns_add_u32 s33, s33, {H4A}\ns_add_u32 s34, s12, s33\ns_addc_u32 s35, s13, 0")
        it(4)
        a(f"""s_mov_b32 s37, {SPIN}
            L_qlp:
            v_bitop3_b32 v8, v23, v27, {sTAG} bitop3:0x7e
            v_cmp_ne_u32 vcc, 0, v8
            s_cbranch_vccz L_qok
            s_sub_u32 s37, s37, 1
            s_cbranch_scc1 L_qok
            {qld}
            s_waitcnt vmcnt(0)
            s_branch L_qlp
            L_qok:""")
        self.sum_parts(20)
        a(f"ds_write_b32 v36, v20\nds_read_b128 v[24:27], v37\ns_mov_b32 s37, {SPIN * 16}\ns_waitcnt lgkmcnt(0)")
        self.stamp(4)
        proc(2)
        it(5)
        proc(3); proc(0)
        a("s_add_u32 s57, s57, 24\ns_mov_b32 s63, 1")
        if 'iter' in self.diag:
            a("s_mov_b32 s49, 19")
        a("L_aloop:")
        for ph in (2, 3, 0, 1):
            a(f"s_cmp_ge_u32 s57, 256\ns_cbranch_scc1 L_drain{ph}")
            self.a_addr()
            self.a_mask()
            a("s_cmp_lt_u32 s57, s60\ns_cselect_b32 s33, 24, s56\ns_add_u32 s57, s57, s33")
            q, pv = (ph + 2) & 3, (ph + 3) & 3
            for k in range(4):
                self.a_load(ph if k < 2 else pv, k, D - 1, L - 1)
            if 'iter' in self.diag:
                a("s_memrealtime s[98:99]\ns_add_u32 s49, s49, 1\ns_mov_b32 m0, s49\ns_waitcnt lgkmcnt(0)\nv_writelane_b32 v63, s98, m0")
            self.a_qk(q); self.a_soft(); self.a_pv(q, 0); self.a_pv(q, 1)
            if ph == 2:
                a("s_cmp_eq_u32 s63, 0\ns_cbranch_scc1 L_caught\ns_mov_b32 s63, 0")
                proc(1)
                a("L_caught:")
        a("s_branch L_aloop")
        for ph in range(4):
            a(f"L_drain{ph}:")
            self.stamp(5)
            q, n = (ph + 2) & 3, (ph + 3) & 3
            a("s_mov_b32 s54, s48")
            if self.late:
                sk = self.lab("lh")
                a(f"s_cmp_lg_u32 {sW}, 0\ns_cbranch_scc1 {sk}")
                for k, row in enumerate((0, 1, 2, 4, 5, 6)):
                    a(f"s_load_dword s{64 + k}, s[34:35], {512 * row + 12} glc")
                a(f"{sk}:")
            if self.lf == 2:
                self.a_load(n, 2, 5); self.a_load(n, 3, 5)
                self.a_qk(q); self.a_soft()
                a("s_waitcnt vmcnt(4)")
            else:
                self.a_qk(q); self.a_soft()
                self.a_load(n, 2, 3); self.a_load(n, 3, 3)
            self.a_qk(n); self.a_max()
            for sw in ("v_permlane16_swap_b32", "v_permlane32_swap_b32"):
                a(f"v_mov_b32 v32, v31\n{sw} v32, v31\nv_max_f32 v31, v31, v32")
            a("ds_write_b32 v39, v31\ns_waitcnt vmcnt(3)")
            self.a_pv(q, 0)
            a("s_waitcnt vmcnt(2)")
            self.a_pv(q, 1)
            if self.late:
                sk = self.lab("lh")
                a(f"s_cmp_lg_u32 {sW}, 0\ns_cbranch_scc1 {sk}\ns_mov_b32 s33, 0\ns_waitcnt lgkmcnt(0)")
                for k in range(6):
                    a(f"s_cmp_eq_u32 s{64 + k}, {sTAG}\ns_addc_u32 s33, s33, 0")
                a(f"v_mov_b32 v7, s33\nds_write_b32 v43, v7 offset:36\n{sk}:")
            a("s_waitcnt lgkmcnt(0)\ns_barrier")
            x = self.e2pos[0]
            for i in range(x):
                self.e2_dma(i)
            if self.nak and x < 4:
                sk = self.lab("pe")
                a(f"s_cmp_lg_u32 {sW}, 3\ns_cselect_b64 vcc, -1, 0\ns_cbranch_scc1 {sk}")
                for i in range(x, 4):
                    self.e2_dma(i)
                a(f"{sk}:")
            if self.late:
                a("ds_read_b32 v7, v43 offset:36")
            a(f"""
                ds_read_b128 v[8:11], v43
                ds_read_b128 v[12:15], v43 offset:16
                s_waitcnt lgkmcnt(0)
                v_max3_f32 v31, v8, v9, v10
                v_max3_f32 v12, v12, v13, v14
                v_max3_f32 v31, v31, v11, v15
                v_max_f32 v31, v31, v12""")
            if self.late:
                sk = self.lab("le")
                a(f"v_cmp_gt_u32 vcc, {self.late}, v7\ns_cbranch_vccnz {sk}")
                for i in range(x, 4):
                    self.e2_dma(i)
                a(f"{sk}:")
            self.a_soft(with_max=False)
            a(f"v_add_f32_dpp v61, v61, v61 row_ror:8 {FULL}")
            for sw in ("v_permlane16_swap_b32", "v_permlane32_swap_b32"):
                a(f"v_mov_b32 v32, v61\n{sw} v32, v61\nv_add_f32 v61, v61, v32")
            a("s_mov_b64 exec, 1\nds_add_f32 v43, v61 offset:32\ns_mov_b64 exec, -1")
            def wait2(k):
                if self.late or (self.nak and x < 4):
                    sk = self.lab("lw")
                    a(f"s_waitcnt vmcnt({k + 4})\ns_cbranch_vccz {sk}\ns_waitcnt vmcnt({k + x})\n{sk}:")
                else:
                    a(f"s_waitcnt vmcnt({k + x})")
            wait2(1)
            self.a_pv(n, 0)
            wait2(0)
            self.a_pv(n, 1)
            if ph < 3:
                a("s_branch L_afin")
        a("L_afin:\ns_nop 2")
        self.stamp(6)
        for i in range(4):
            a(f"v_permlane32_swap_b32 v{52 + i}, v{56 + i}")
        a("v_pk_add_f32 v[52:53], v[52:53], v[56:57]\nv_pk_add_f32 v[54:55], v[54:55], v[58:59]")
        a(f"""v_permlane16_swap_b32 v52, v54
            v_permlane16_swap_b32 v53, v55
            v_pk_add_f32 v[52:53], v[52:53], v[54:55]
            ds_write_b64 v38, v[52:53]""")
        for i in range(x, sum(self.e2pos)):
            self.e2_dma(i)
        a(f"""s_waitcnt lgkmcnt(0)
            s_barrier
            s_cmp_lg_u32 {sW}, 3
            s_cbranch_scc1 L_amid
            {f's_setprio {self.prio}' if self.prio else ''}
            ds_read_b128 v[208:211], v44
            ds_read_b128 v[212:215], v44 offset:512
            ds_read_b128 v[216:219], v44 offset:1024
            ds_read_b128 v[220:223], v44 offset:1536
            ds_read_b32 v61, v43 offset:32
            s_mov_b32 s38, 0xaaaaaaaa
            s_mov_b32 s39, s38
            v_mov_b32 v11, {sTAG}
            s_waitcnt lgkmcnt(3)
            v_pk_add_f32 v[208:209], v[208:209], v[212:213]
            v_pk_add_f32 v[210:211], v[210:211], v[214:215]
            s_waitcnt lgkmcnt(1)
            v_pk_add_f32 v[216:217], v[216:217], v[220:221]
            v_pk_add_f32 v[218:219], v[218:219], v[222:223]
            v_pk_add_f32 v[208:209], v[208:209], v[216:217]
            v_pk_add_f32 v[210:211], v[210:211], v[218:219]
            v_permlane32_swap_b32 v208, v210
            v_permlane32_swap_b32 v209, v211
            v_pk_add_f32 v[208:209], v[208:209], v[210:211]
            v_cvt_pk_bf16_f32 v8, v208, v209
            v_cvt_pk_bf16_f32 v9, v208, v209
            s_waitcnt lgkmcnt(0)
            v_cndmask_b32 v10, v60, v61, s[38:39]
            v_permlane32_swap_b32 v8, v9""")
        self.exec64(0xffffffff, 0)
        a(f"""
            buffer_store_dwordx4 v[8:11], v16, {SRDW}, s61 offen sc1
            ds_write_b64 v238, v[8:9]
            ds_write_b32 v239, v10
            s_mov_b64 exec, -1""")
        if self.nak:
            assert self.e2pos[1] == 0
            self.stamp(12)
            if self.pbar and x < 4:
                a("s_barrier")
            a("ds_write_b64 v246, v[240:241]\nds_write_b32 v247, v242\ns_waitcnt vmcnt(1)\ns_branch L_e2bar")
        a("L_amid:")
        self.stamp(12)
        y = sum(self.e2pos)
        for i in range(y, y + self.e2mid):
            self.e2_dma(i)
        if self.late:
            assert self.e2pos[1] == 0 and self.e2mid == 0
            a("s_cbranch_vccz L_stageE2")
        if self.pbar and (x < 4 or not self.nak):
            a("s_barrier")
        for i in range(y + self.e2mid, 4):
            self.e2_dma(i)
        a("s_nop 0")

    def e2_setup(self, role_b):
        self.a(f"""s_load_dwordx2 s[28:29], s[0:1], 88
            v_lshrrev_b32 v9, 2, v1
            v_lshlrev_b32 v7, 10, v2
            v_lshl_add_u32 v7, v9, 7, v7
            v_and_b32 v10, 3, v0
            v_lshl_add_u32 v7, v10, 3, v7
            v_lshrrev_b32 v9, 1, v9
            v_and_b32 v8, 1, v2
            v_lshl_or_b32 v9, v8, 1, v9
            s_and_b32 s33, {sW}, 3
            v_xor_b32 v9, s33, v9
            v_lshl_add_u32 v7, v9, 5, v7
            s_cmp_lt_u32 {sW}, 4
            s_mov_b32 s36, {E2B[1]}
            s_cmov_b32 s36, {E2B[0]}
            s_mov_b32 s40, {H4B}
            s_cmov_b32 s40, {H4A}
            v_add_u32 v244, s36, v7
            s_lshl_b32 s36, {sH}, 12
            s_add_u32 s40, s40, s36
            s_lshl_b32 s36, s33, 9
            s_add_u32 s40, s40, s36
            v_lshrrev_b32 v9, 5, v0
            v_mul_u32_u24 v245, 1536, v9
            v_add_u32 v245, v245, v16
            s_and_b32 s36, {sW}, 4
            s_lshl_b32 s36, s36, 1
            s_add_u32 s33, s36, s33
            v_lshl_add_u32 v9, v9, 2, s33
            v_and_b32 v8, 31, v0
            v_mul_u32_u24 v246, 272, v9
            v_lshl_add_u32 v246, v8, 3, v246
            v_add_u32 v246, {HI}, v246
            v_mul_u32_u24 v247, 136, v9
            v_lshl_add_u32 v247, v8, 2, v247
            v_add_u32 v247, {HS}, v247
            v_and_b32 v9, 7, v0
            v_add_u32 v9, s36, v9
            v_mul_u32_u24 v248, 272, v9
            v_lshl_add_u32 v248, v2, 4, v248
            v_add_u32 v248, {HI}, v248
            v_mul_u32_u24 v249, 136, v9
            v_add_u32 v249, {HS}, v249
            v_mov_b32 v240, 0
            v_mov_b32 v241, 0
            v_and_b32 v8, 1, v0
            v_add_u32 v8, -1, v8
            v_and_b32 v242, {NEGBIG:#x}, v8
            s_mov_b32 s30, 4096
            s_mov_b32 s31, 0x20000
            v_lshlrev_b32 v250, 12, v2
            v_lshl_add_u32 v250, v1, 3, v250
            s_cmp_lt_u32 {sW}, 4
            s_cselect_b32 s41, {self.jx[0]}, {self.jx[1]}
            s_xor_b32 s41, s41, {sJ}
            s_lshl_b32 s41, s41, 3
            s_add_u32 s41, s41, {sW}
            s_lshl_b32 s41, s41, 13
            s_lshl_b32 s36, {sH}, 7
            s_add_u32 s41, s41, s36
            s_add_u32 s41, s41, {H5}
            v_mov_b32 v253, {sTAG}
            v_lshrrev_b32 v7, 2, v0
            v_lshlrev_b32 v7, 7, v7
            v_lshl_add_u32 v251, v10, 4, v7
            s_lshl_b32 s42, {sJ}, 4
            s_lshr_b32 s36, {sH}, 1
            s_add_u32 s42, s42, s36
            s_lshl_b32 s42, s42, 12
            s_and_b32 s33, {sH}, 1
            s_lshl_b32 s43, s33, 6
            s_add_u32 s42, s42, s43
            s_add_u32 s42, s42, {H5}
            s_lshl_b32 s43, s33, 4
            s_and_b32 s36, s36, 1
            s_lshl_b32 s36, s36, 11
            s_add_u32 s43, s43, s36
            s_lshr_b32 s36, {sH}, 4
            s_lshl_b32 s36, s36, 10
            s_add_u32 s43, s43, s36
            s_lshl_b32 s36, {sJ}, 7
            s_add_u32 s43, s43, s36
            s_bfe_u32 s36, {sH}, 0x20002
            s_lshl_b32 s36, s36, 5
            s_add_u32 s43, s43, s36
            v_lshlrev_b32 v254, 2, v0""")
        if role_b:
            self.a(f"""v_and_b32 v8, 1, v0
                s_add_u32 s33, {sB}, 8
                v_lshl_add_u32 v8, v8, 2, s33
                v_lshl_add_u32 v9, {sW}, 2, v2
                s_add_u32 s33, {sB}, 4
                s_cmp_eq_u32 {sW}, s33
                s_cselect_b64 s[60:61], 0, -1""")
        else:
            self.a(f"""v_mov_b32 v8, {sJ}
                v_mov_b32 v9, v0
                s_sub_u32 s59, {sB}, 1
                s_not_b32 s58, s59
                s_cmp_eq_u32 {sW}, {sT}
                s_cselect_b64 s[58:59], s[58:59], -1""")
        self.a(f"""v_mul_u32_u24 v238, 272, v8
            v_lshl_add_u32 v238, v9, 3, v238
            v_add_u32 v238, {HI}, v238
            v_mul_u32_u24 v239, 136, v8
            v_lshl_add_u32 v239, v9, 2, v239
            v_add_u32 v239, {HS}, v239""")

    def e2(self):
        a = self.a
        a("L_stageE2:")
        if self.diag and self.diag not in ('cyc', 'iter', 'fine', 'nowait'):
            a("s_branch L_done")
        a(f"""s_cmp_eq_u64 s[58:59], 0
            s_cbranch_scc1 L_nowr
            s_mov_b64 exec, s[58:59]
            s_bitcmp1_b32 0x37, {sW}
            s_cbranch_scc0 L_nopoll
            {f's_waitcnt vmcnt({self.pw})' if self.pw is not None else ''}
            s_mov_b32 s37, {SPIN}
            L_h4:
            buffer_load_dwordx4 v[240:243], v245, {SRDW}, s40 offen sc1
            s_sub_u32 s37, s37, 1
            s_waitcnt vmcnt(0)
            s_cbranch_scc1 L_nopoll
            v_cmp_ne_u32 vcc, {sTAG}, v243
            s_cbranch_vccnz L_h4
            L_nopoll:
            ds_write_b64 v246, v[240:241]
            ds_write_b32 v247, v242
            s_mov_b64 exec, -1
            L_nowr:
            s_waitcnt vmcnt(0)
            L_e2bar:
            s_waitcnt lgkmcnt(0)
            s_barrier""")
        self.stamp(14)
        a("ds_read_b64 v[22:23], v249")
        for s in range(4):
            a(f"ds_read_b128 {vr(176 + 4 * s, 4)}, v248 offset:{64 * s}")
            for p in range(2):
                a(f"ds_read_b64_tr_b16 {vr(160 + 4 * s + 2 * p, 2)}, v244 offset:{4096 * s + 512 * p}")
        chain = [f"v_max_f32_dpp v8, v22, v22 quad_perm:[1,0,3,2] {FULL}\nv_max_f32_dpp v8, v8, v8 quad_perm:[2,3,0,1] {FULL}\nv_sub_f32 v8, v22, v8\nv_exp_f32 v8, v8",
                 "v_mul_f32 v9, v8, v23",
                 f"v_add_f32_dpp v9, v9, v9 quad_perm:[1,0,3,2] {FULL}",
                 f"v_add_f32_dpp v9, v9, v9 quad_perm:[2,3,0,1] {FULL}\nv_rcp_f32 v9, v9"]
        a("s_waitcnt lgkmcnt(12)")
        for s in range(4):
            c = "0" if s == 0 else "v[208:211]"
            a(chain[s])
            a(f"s_waitcnt lgkmcnt({9 - 3 * s})")
            a(f"v_mfma_f32_16x16x32_bf16 v[208:211], {vr(176 + 4 * s, 4)}, {vr(160 + 4 * s, 4)}, {c}")
        a("v_mul_f32 v8, v8, v9")
        for r in range(3):
            a(f"v_mov_b32_dpp v{10 + r}, v8 row_newbcast:{r} row_mask:0x1 bank_mask:0xf")
            a(f"v_mov_b32_dpp v{10 + r}, v8 row_newbcast:{4 + r} row_mask:0x2 bank_mask:0xf")
        self.exec64(0xffffffff, 0)
        a(f"""v_mul_f32 v252, v10, v208
            v_fmac_f32 v252, v11, v209
            v_fmac_f32 v252, v12, v210
            buffer_store_dwordx2 v[252:253], v250, {SRDW}, s41 offen sc1
            s_mov_b64 exec, -1""")
        self.stamp(15)
        a(f"""s_cmp_lg_u32 {sW}, 7
            s_cbranch_scc1 L_done
            s_mov_b32 s37, {SPIN}
            L_fp:
            buffer_load_dwordx4 v[20:23], v251, {SRDW}, s42 offen sc1
            buffer_load_dwordx4 v[24:27], v251, {SRDW}, s42 offen offset:2048 sc1
            s_sub_u32 s37, s37, 1
            s_waitcnt vmcnt(0)
            s_cbranch_scc1 L_fok
            v_bitop3_b32 v10, v21, v23, {sTAG} bitop3:0x7e
            v_bitop3_b32 v11, v25, v27, {sTAG} bitop3:0x7e
            v_add_f32 v8, v20, v24
            v_or_b32 v10, v10, v11
            v_add_f32 v9, v22, v26
            v_cmp_ne_u32 vcc, 0, v10
            s_cbranch_vccnz L_fp
            L_fok:""")
        self.stamp(16)
        a(f"""v_permlane32_swap_b32 v8, v9
            v_add_f32 v8, v8, v9
            v_add_f32_dpp v8, v8, v8 row_ror:4 {FULL}
            v_add_f32_dpp v8, v8, v8 row_ror:8 {FULL}
            v_mov_b32 v9, v8
            v_permlane16_swap_b32 v8, v9
            v_add_f32 v10, v8, v9
            v_add_f32 v11, v8, v9
            v_permlane32_swap_b32 v10, v11
            s_mov_b64 exec, 15
            v_cvt_pk_bf16_f32 v8, v10, v11
            buffer_store_dword v8, v254, {SRDX}, s43 offen {self.outfl}
            s_or_b32 s33, {sH}, {sJ}
            s_cbranch_scc1 L_done
            s_mov_b64 exec, 1
            buffer_store_dword v253, off, {SRDW}, 0 offset:{EPOCH} sc1
            L_done:""")
        if self.calib:
            a(f"""L_cal:
                s_memrealtime s[98:99]
                s_waitcnt lgkmcnt(0)
                s_sub_u32 s98, s98, s96
                s_cmp_lt_u32 s98, {self.calib * 100}
                s_cbranch_scc1 L_cal""")
        if self.amp:
            k, roles, neg = self.amp
            a("s_mov_b64 exec, -1")
            self.stamp(17)
            a(f"""s_nop 1
                v_readlane_b32 s33, v63, {k}
                s_lshr_b32 s36, {roles}, {sT}
                s_and_b32 s36, s36, 1
                s_cselect_b32 s33, s33, 0
                s_cmp_eq_u32 s33, 0
                s_cselect_b32 s38, 0, 1
                s_cselect_b32 s33, s96, s33
                s_sub_u32 s33, s33, s96
                {'s_sub_u32 s33, 2500, s33' if neg else ''}
                s_mul_i32 s33, s33, s38
                s_mul_i32 s33, s33, 10
                s_add_u32 s33, s33, 3000
                L_amp:
                s_memrealtime s[98:99]
                s_waitcnt lgkmcnt(0)
                s_sub_u32 s98, s98, s96
                s_cmp_lt_u32 s98, s33
                s_cbranch_scc1 L_amp""")
        elif self.dbg:
            a("s_mov_b64 exec, -1")
            self.stamp(17)
            a(f"""s_getreg_b32 s33, hwreg(HW_REG_XCC_ID)
                v_writelane_b32 v63, s33, 31
                s_getreg_b32 s33, hwreg(HW_REG_HW_ID)
                v_writelane_b32 v63, s33, 28
                s_lshl_b32 s33, s2, 3
                s_add_u32 s33, s33, {sW}
                s_lshl_b32 s33, s33, 7
                s_add_u32 s33, s33, {STAMP}
                v_lshlrev_b32 v7, 2, v0""")
            self.exec64(0xffffffff, 0)
            a(f"buffer_store_dword v63, v7, {SRDW}, s33 offen")

    def role_b(self):
        a = self.a
        D = self.bdepth
        QAR, FR, O, S2, S3, PF, S = 64, 128, 160, 192, 224, 32, 48
        a("L_roleB:")
        a("s_mov_b64 s[16:17], s[70:71]\ns_mov_b32 s18, 0x400000")
        self.second_batch(lambda: None, 0, self.sd[2])
        self.load_e2_ptr()
        for i in range(8):
            a(f"s_waitcnt vmcnt({D - 1})\ns_add_u32 m0, s44, {dest(i) + 16384}\ns_nop 0")
            a(f"buffer_load_dwordx4 v{3 + (i & 1)}, {SRD0}, s43 offen nt lds\ns_add_u32 s43, s43, s41")
        self.stamp(1)

        def stage(i):
            a(f"s_add_u32 s33, s43, {(262144 if self.bx else 8192) * i}\nbuffer_load_dwordx4 {vr(S2 + 4 * (i if i < 4 else i - 8 if i >= 12 else i + 4), 4)}, v{3 + (i & 1)}, {SRD0}, s33 offen nt")

        def late(i, wait=None):
            sk = self.lab("lt")
            a(f"s_cmp_le_u32 s62, {i}\ns_cbranch_scc1 {sk}")
            if wait is not None:
                a(f"s_waitcnt vmcnt({wait})")
            stage(i)
            a(f"{sk}:")

        a(f"""s_and_b32 s54, {sW}, 3
            s_lshr_b32 s55, {sW}, 2
            v_and_b32 v7, 3, v1
            v_lshlrev_b32 v7, 2, v7
            v_lshrrev_b32 v8, 2, v1
            v_or_b32 v7, v7, v8
            v_lshlrev_b32 v7, 4, v7
            v_lshl_add_u32 v7, v2, 8, v7
            v_lshl_add_u32 v7, v1, 10, v7
            s_lshl_b32 s33, s54, 15
            v_add_u32 v28, s33, v7
            v_lshlrev_b32 v7, 4, v1
            v_lshl_add_u32 v7, v2, 8, v7
            v_lshl_add_u32 v7, v1, 10, v7
            s_lshl_b32 s33, s55, 14
            s_add_u32 s33, s33, {AUX}
            v_add_u32 v29, s33, v7
            v_lshrrev_b32 v9, 1, v2
            v_and_b32 v10, 1, v2
            v_bfe_u32 v11, v0, 1, 1
            v_lshl_or_b32 v11, v10, 1, v11
            s_lshl_b32 s33, {sW}, 3
            v_or_b32 v11, s33, v11
            v_lshlrev_b32 v12, 2, v8
            v_lshl_or_b32 v12, v9, 1, v12
            v_xor_b32 v11, v11, v12
            v_lshlrev_b32 v11, 4, v11
            v_lshl_add_u32 v12, v9, 3, v8
            v_lshl_add_u32 v11, v12, 10, v11
            v_and_b32 v12, 1, v0
            v_lshl_add_u32 v20, v12, 3, v11
            v_xor_b32 v21, 16, v20
            v_add_u32 v21, 4096, v21
            v_xor_b32 v22, 64, v20
            v_xor_b32 v23, 64, v21""")
        for k in range(4):
            a(f"v_add_u32 v{24 + k}, 65536, v{20 + k}")
        a(f"""s_lshl_b32 s33, s55, 8
            s_add_u32 s33, s33, {MX}
            v_lshl_add_u32 v30, v1, 4, s33
            s_lshl_b32 s33, s54, 2
            v_add_u32 v31, s33, v30
            v_and_b32 v7, 31, v0
            v_lshlrev_b32 v56, 4, v7
            v_add_u32 v56, {MX}, v56
            v_mul_u32_u24 v60, 272, v7
            v_lshl_add_u32 v60, v9, 4, v60
            v_add_u32 v60, {PB}, v60
            v_mul_u32_u24 v61, 272, v1
            v_lshl_add_u32 v61, v2, 3, v61
            s_mul_i32 s33, s55, {16 * 272}
            s_lshl_b32 s36, s54, 6
            s_add_u32 s33, s33, s36
            s_add_u32 s33, s33, {PB}
            v_add_u32 v61, s33, v61
            v_add_u32 v19, s44, v16
            v_add_u32 v62, 65536, v19
            v_mov_b32 v57, {NEGBIG:#x}
            v_mov_b32 v58, {NEGBIG:#x}
            v_mov_b32 v59, 0
            v_lshlrev_b32 v7, 1, v2
            v_xor_b32 v7, v7, v1
            v_lshlrev_b32 v7, 4, v7
            v_lshl_add_u32 v5, v2, 13, v7
            v_xor_b32 v6, 128, v5
            s_lshl_b32 s45, {sB}, 21
            s_lshl_b32 s36, {sW}, 18
            s_add_u32 s45, s45, s36
            s_lshl_b32 s36, {sH}, 8
            s_add_u32 s45, s45, s36""")
        for k in range(32):
            a(f"v_mov_b32 v{O + k}, 0")
        a(f"""s_lshl_b32 s33, {sH}, 1
            s_add_u32 s33, s33, {sB}
            s_lshl_b32 s33, s33, 3
            s_add_u32 s33, s33, {sW}
            s_lshl_b32 s33, s33, 7
            s_add_u32 s33, s33, {F2}
            s_add_u32 s34, s12, s33
            s_addc_u32 s35, s13, 0
            s_lshl_b32 s49, {sB}, 15
            s_lshl_b32 s36, {sW}, 12
            s_add_u32 s49, s49, s36
            s_add_u32 s49, s49, {QABS}
            s_add_u32 s50, s36, {AUX}
            s_mov_b32 s60, {sTAG}
            s_mov_b32 s61, {sTAG}""")

        def flags_differ():
            for k in range(4):
                a(f"s_xor_b64 s[{64 + 2 * k}:{65 + 2 * k}], s[{64 + 2 * k}:{65 + 2 * k}], s[60:61]")
            a("s_or_b64 s[64:65], s[64:65], s[66:67]\ns_or_b64 s[68:69], s[68:69], s[70:71]\ns_or_b64 s[64:65], s[64:65], s[68:69]")
        for i in range(15, 15 - self.bmax, -2):
            chk = 17 - i >= self.bmin
            if chk:
                a("s_load_dwordx8 s[64:71], s[34:35], 0 glc")
            for k in (i, i - 1):
                a(f"s_waitcnt vmcnt({D - 1})")
                stage(k)
            if chk:
                a(f"s_mov_b32 s62, {i - 1}\ns_waitcnt lgkmcnt(0)")
                flags_differ()
                a("s_cbranch_scc0 L_h2ok")
        self.stamp(2)
        a(f"""s_mov_b32 s62, {16 - self.bmax}
            s_mov_b32 s37, {SPIN}
            L_h2:
            s_load_dwordx8 s[64:71], s[34:35], 0 glc
            s_sub_u32 s37, s37, 1
            s_waitcnt lgkmcnt(0)
            s_cbranch_scc1 L_h2ok""")
        flags_differ()
        a("s_cbranch_scc1 L_h2")
        a("L_h2ok:")
        self.stamp(3)
        def qcopy():
            a(f"""s_lshl_b32 s33, s54, 6
                v_xor_b32 v12, s33, v16
                v_xor_b32 v13, 16, v12
                v_xor_b32 v14, 32, v12
                v_xor_b32 v15, 48, v12
                s_mov_b32 m0, s50""")
            for i in range(4):
                a(f"buffer_load_dwordx4 v{12 + i}, {SRDW}, s49 offen offset:{1024 * i} sc1 lds")

        def qread():
            for s in range(16):
                a(f"v_xor_b32 v7, {s << 4}, v29\nds_read_b128 {vr(QAR + 4 * s, 4)}, v7")
        qcopy()
        a("s_barrier")
        for i in range(4):
            a(f"s_waitcnt vmcnt({D + 1})")
            stage(i)
        a("s_waitcnt vmcnt(4)\ns_barrier")
        self.stamp(4)
        a("s_mov_b32 s37, 4096\nL_qa:")
        qread()
        a("s_waitcnt lgkmcnt(0)\ns_barrier")

        def put(reg, sig):
            for i in range(8):
                d = dest(i) + 16384 * sig
                a(f"ds_write_b128 v{62 if d >> 16 else 19}, {vr(reg + 4 * i, 4)} offset:{d & 0xffff}")

        def step(t, sigs, hook):
            ns = len(sigs)
            blocks = [2 * kb + sg for kb in range(4) for sg in sigs]

            def rd(r):
                if r % ns == 0:
                    a(f"v_xor_b32 v7, {(r // ns) << 4}, v28")
                a(f"ds_read_b128 {vr(FR + 4 * (r & 7), 4)}, v7 offset:{16384 * sigs[r % ns]}")

            def tr(n, blk):
                be = blocks[n]
                for p in range(2):
                    ar = 20 + 4 * (be >> 2) + 2 * blk + p
                    a(f"ds_read_b64_tr_b16 {vr(FR + 8 * (n & 3) + 4 * blk + 2 * p, 2)}, v{ar} offset:{(be & 3) * 16384}")

            def pread(n):
                a(f"ds_read_b128 {vr(PF + 4 * (n & 3), 4)}, v60 offset:{32 * blocks[n]}")
            nr = 16 * ns
            for r in range(8):
                rd(r)
            for r in range(nr):
                a(f"s_waitcnt lgkmcnt({min(7, nr - 1 - r)})")
                acc = vr(S + 4 * (r % ns), 4)
                a(f"v_mfma_f32_16x16x32_bf16 {acc}, {vr(FR + 4 * (r & 7), 4)}, {vr(QAR + 4 * (r // ns), 4)}, {'0' if r < ns else acc}")
                hook("qk", r)
                if r + 8 < nr:
                    rd(r + 8)
            a(f"v_max3_f32 v7, v{S}, v{S + 1}, v{S + 2}")
            if ns == 2:
                a(f"v_max3_f32 v8, v{S + 4}, v{S + 5}, v{S + 6}\nv_max3_f32 v7, v7, v{S + 3}, v{S + 7}\nv_max_f32 v7, v7, v8")
            else:
                a(f"v_max_f32 v7, v7, v{S + 3}")
            for sw in ("v_permlane16_swap_b32", "v_permlane32_swap_b32"):
                a(f"v_mov_b32 v8, v7\n{sw} v8, v7\nv_max_f32 v7, v7, v8")
            a("""v_mul_f32 v7, s52, v7
                ds_write_b32 v31, v7""")
            for n in range(3):
                tr(n, 0); tr(n, 1)
            a("""s_waitcnt lgkmcnt(12)
                s_barrier
                ds_read_b128 v[8:11], v30
                ds_read_b128 v[12:15], v56
                s_waitcnt lgkmcnt(0)""")
            tr(3, 0); tr(3, 1)
            if t == 0 and self.noack and 'nowait' not in self.diag:
                a("v_cmp_u_f32 vcc, v12, v12\ns_cbranch_vccnz L_qretry\nL_qaok:")
                if self.dbg is True:
                    a("s_sub_u32 s33, 4096, s37\nv_writelane_b32 v63, s33, 29")
            a("v_max3_f32 v8, v8, v9, v10\nv_max3_f32 v8, v8, v11, v57")
            for r in range(4 * ns):
                a(f"v_fma_f32 v{S + r}, v{S + r}, s52, -v8")
            for r in range(4 * ns):
                a(f"v_exp_f32 v{S + r}, v{S + r}")
            a("v_max3_f32 v12, v12, v13, v14")
            for r in range(2 * ns):
                a(f"v_cvt_pk_bf16_f32 v{PF + r}, v{S + 2 * r}, v{S + 2 * r + 1}")
            for k, sg in enumerate(sigs):
                a(f"ds_write_b64 v61, {vr(PF + 2 * k, 2)} offset:{32 * sg}")
            a(f"""v_sub_f32 v9, v57, v8
                v_max3_f32 v12, v12, v15, v58
                v_exp_f32 v9, v9
                v_sub_f32 v14, v58, v12
                v_mov_b32 v57, v8
                v_exp_f32 v14, v14
                v_mov_b32 v58, v12
                v_pk_add_f32 {vr(S, 2)}, {vr(S, 2)}, {vr(S + 2, 2)}""")
            if ns == 2:
                a(f"v_pk_add_f32 {vr(S + 4, 2)}, {vr(S + 4, 2)}, {vr(S + 6, 2)}\nv_pk_add_f32 {vr(S, 2)}, {vr(S, 2)}, {vr(S + 4, 2)}")
            a(f"v_fma_f32 v59, v59, v9, v{S}\nv_add_f32 v59, v59, v{S + 1}")
            if t == 2:
                for sw in ("v_permlane16_swap_b32", "v_permlane32_swap_b32"):
                    a(f"v_mov_b32 v8, v59\n{sw} v8, v59\nv_add_f32 v59, v59, v8")
                a(f"ds_write_b32 v31, v59 offset:{LS - MX}")

            def rescale(lo, hi):
                if t:
                    for k in range(lo, hi):
                        a(f"v_pk_mul_f32 {vr(O + 2 * k, 2)}, {vr(O + 2 * k, 2)}, v[14:15] op_sel_hi:[1,0]")
            rescale(0, 6)
            a("s_waitcnt lgkmcnt(0)\ns_barrier")
            for n in range(4):
                pread(n)
            rescale(6, 16)
            for n in range(4 * ns):
                if ns == 1:
                    a(f"s_waitcnt lgkmcnt({3 - n})")
                elif n in (0, 5, 6, 7):
                    a(f"s_waitcnt lgkmcnt({ {0: 0, 5: 10, 6: 5, 7: 0}[n] })")
                if n == 7:
                    a("s_barrier")
                for blk in range(2):
                    a(f"v_mfma_f32_32x32x16_bf16 {vr(O + 16 * blk, 16)}, {vr(FR + 8 * (n & 3) + 4 * blk, 4)}, {vr(PF + 4 * (n & 3), 4)}, {vr(O + 16 * blk, 16)}")
                hook("pv", n)
                if ns == 2 and n < 4:
                    if n == 3:
                        a("s_waitcnt lgkmcnt(10)")
                    pread(n + 4)
                    tr(n + 4, 0); tr(n + 4, 1)

        def uv(i):
            a(f"buffer_load_dwordx4 {vr(S2 + 4 * i, 4)}, v{5 + (i & 1)}, {SRDK}, s45 offen nt\ns_add_u32 s45, s45, 32768")

        def hook0(ph, r):
            if ph == "qk" and r in self.hookpos:
                late(4 + self.hookpos.index(r))
            if ph == "pv" and r in (0, 2, 4, 6):
                late(8 + r // 2)
        step(0, (0, 1), hook0)
        self.stamp(5)
        for n in (8, 6, 4, 2):
            a(f"s_waitcnt vmcnt({n})\ns_cmp_eq_u32 s62, {n + 4}\ns_cbranch_scc1 L_mid")
        a("s_waitcnt vmcnt(0)\nL_mid:")
        put(S2, 0)
        a(f"""s_lshl_b32 s50, s55, 15
            s_lshl_b32 s36, s54, 12
            s_add_u32 s50, s50, s36
            s_add_u32 s50, s50, {PART[0]}
            v_and_b32 v7, 31, v0
            v_and_b32 v8, 7, v0
            v_lshlrev_b32 v9, 4, v8
            v_lshl_add_u32 v9, v7, 7, v9
            v_lshrrev_b32 v10, 5, v0
            v_lshl_add_u32 v9, v10, 3, v9
            v_add_u32 v3, s50, v9
            v_lshrrev_b32 v10, 3, v0
            v_xor_b32 v11, v8, v10
            v_lshlrev_b32 v11, 4, v11
            v_lshl_add_u32 v11, v10, 7, v11
            v_add_u32 v4, s50, v11
            v_lshlrev_b32 v12, 4, v8
            v_lshl_add_u32 v29, v10, 16, v12
            v_lshlrev_b32 v17, 10, v0
            v_mov_b32 v18, 0x10001
            v_mov_b32 v54, {sTAG}
            v_mov_b32 v55, {sTAG}
            s_lshl_b32 s49, s55, 15
            s_lshl_b32 s36, {sB}, 14
            s_add_u32 s49, s49, s36
            s_lshl_b32 s36, {sH}, 9
            s_add_u32 s49, s49, s36
            s_lshl_b32 s36, s54, 7
            s_add_u32 s49, s49, s36
            s_add_u32 s49, s49, {OP}
            s_lshl_b32 s53, {sB}, 9
            s_lshl_b32 s36, {sH}, 4
            s_add_u32 s53, s53, s36
            s_add_u32 s53, s53, {ST}""")
        for k in range(4):
            a(f"s_bfe_u32 s33, {sTAG}, {0x20000 + 2 * k:#x}\ns_mul_i32 s33, s33, 0x8001\ns_and_b32 s{56 + k}, s33, 0x10001")
        a("s_waitcnt lgkmcnt(0)\ns_barrier")
        self.stamp(6)
        u0, u1, u2 = self.uva
        for i in range(u0):
            uv(i)
        step(1, (0,), lambda ph, r: uv(u0 + r - 4 + u1) if ph == "pv" and r >= 4 - u1 else None)
        a(f"s_waitcnt vmcnt({u0 + u1})")
        put(S3, 1)
        for i in range(u2):
            uv(u0 + u1 + i)
        a("s_waitcnt lgkmcnt(0)\ns_barrier")
        self.stamp(7)
        step(2, (1,), lambda ph, r: None)
        self.stamp(8)
        for k in range(1, 8):
            a(f"v_xor_b32 v{S3 + k}, {16 * k}, v3")
        if 'Bstop8' in self.diag:
            a("s_branch L_done")
        def stats():
            a(f"""s_cmp_lg_u32 {sW}, 0
                s_cbranch_scc1 L_nost
                ds_read_b128 v[8:11], v56 offset:{LS - MX}
                v_mov_b32 v52, v58
                s_waitcnt lgkmcnt(0)
                v_add_f32 v8, v8, v9
                v_add_f32 v10, v10, v11
                v_add_f32 v53, v8, v10""")
            self.exec64(0xffffffff, 0)
            a(f"buffer_store_dwordx4 v[52:55], v17, {SRDW}, s53 offen sc1\ns_mov_b64 exec, -1\nL_nost:")
        if not self.stlate:
            stats()
        a("s_nop 5")
        if 'slowp' in self.test:
            a(f"s_and_b32 s33, {sW}, {sH}\ns_cbranch_scc0 L_tp\ns_sleep 127\ns_sleep 127\nL_tp:")
        for k in range(8):
            a(f"v_cvt_pk_bf16_f32 v{FR + 2 * k}, v{O + 4 * k}, v{O + 4 * k + 1}")
            a(f"v_cvt_pk_bf16_f32 v{FR + 2 * k + 1}, v{O + 4 * k + 2}, v{O + 4 * k + 3}")
            a(f"ds_write_b64 v{S3 + k if k else 3}, {vr(FR + 2 * k, 2)}")
        for i in range(4):
            a(f"ds_read_b128 {vr(FR + 16 + 4 * i, 4)}, v4 offset:{1024 * i}")
        for i in range(4):
            a(f"s_waitcnt lgkmcnt({3 - i})")
            for k in range(4):
                a(f"v_bfi_b32 v{FR + 16 + 4 * i + k}, v18, s{56 + k}, v{FR + 16 + 4 * i + k}")
            a(f"{'' if i < self.nst else ';'}buffer_store_dwordx4 {vr(FR + 16 + 4 * i, 4)}, v29, {SRDW}, s49 offen {self.pfl}\ns_add_u32 s49, s49, {8 * 65536}")
        if self.stlate:
            stats()
        self.stamp(9)
        for i in range(sum(self.uva), 8):
            uv(i)
        self.e2_dma_setup()
        a(f"""s_lshl_b32 s33, {sH}, 10
            s_lshl_b32 s36, {sW}, 7
            s_add_u32 s33, s33, s36
            s_add_u32 s33, s33, {ST}
            s_add_u32 s34, s12, s33
            s_addc_u32 s35, s13, 0
            v_lshrrev_b32 v7, 5, v0
            s_and_b32 s33, {sW}, 1
            s_lshl_b32 s33, s33, 2
            v_or_b32 v7, s33, v7
            v_lshlrev_b32 v7, 5, v7
            v_xor_b32 v3, v7, v16
            v_xor_b32 v4, 64, v3
            s_lshl_b32 s49, {sH}, 16
            s_lshl_b32 s36, {sB}, 15
            s_add_u32 s49, s49, s36
            s_lshl_b32 s36, {sW}, 12
            s_add_u32 s49, s49, s36
            s_add_u32 s49, s49, {OP}
            v_add_u32 v5, s50, v16
            v_lshrrev_b32 v8, 2, v1
            v_lshrrev_b32 v9, 1, v2
            v_and_b32 v10, 1, v2
            v_lshlrev_b32 v7, 15, v9
            v_lshl_add_u32 v7, v10, 13, v7
            v_lshl_add_u32 v7, v8, 8, v7
            v_and_b32 v11, 3, v0
            v_lshl_add_u32 v7, v11, 3, v7
            v_lshl_or_b32 v10, v10, 2, v8
            v_xor_b32 v9, {sW}, v10
            v_lshl_add_u32 v20, v9, 5, v7
            v_add_u32 v21, 65536, v20
            v_lshlrev_b32 v7, 12, v2
            v_lshl_add_u32 v7, v8, 9, v7
            v_lshl_add_u32 v7, v11, 3, v7
            s_lshl_b32 s33, {sW}, 1
            v_xor_b32 v10, s33, v10
            v_lshl_add_u32 v7, v10, 5, v7
            v_add_u32 v24, {PART[0]}, v7
            v_xor_b32 v25, 32, v24
            s_lshl_b32 s33, {sW}, 7
            s_add_u32 s36, s33, {WB}
            v_lshl_add_u32 v22, v0, 1, s36
            v_and_b32 v8, 1, v0
            v_lshlrev_b32 v7, 6, v8
            v_lshl_add_u32 v7, v2, 4, v7
            v_add_u32 v23, s36, v7
            v_add_u32 v27, {CC}, v7
            v_add_u32 v26, s33, v27
            v_lshlrev_b32 v7, 11, v8
            v_lshl_add_u32 v28, v2, 4, v7
            s_lshl_b32 s53, {sH}, 12
            s_lshl_b32 s36, {sB}, 9
            s_add_u32 s53, s53, s36
            s_lshl_b32 s36, {sW}, 6
            s_add_u32 s53, s53, s36
            s_add_u32 s53, s53, {H4B}
            s_add_u32 s36, s36, {SM}
            v_lshl_add_u32 v29, v0, 3, s36
            v_lshlrev_b32 v30, 3, v0
            v_add_u32 v30, {SM}, v30
            v_and_b32 v7, 1, v2
            v_cvt_f32_u32 v54, v7
            v_mul_f32 v54, 0.5, v54
""")
        if 'Bstop9' in self.diag:
            a("s_branch L_done")
        self.e2_setup(True)
        a(f"""s_mov_b32 s37, {SPIN}
            L_h3:
            {f's_sleep {self.ps[1]}' if self.ps[1] else ''}
            s_load_dwordx16 s[64:79], s[34:35], 0 glc
            s_load_dwordx16 s[80:95], s[34:35], 64 glc
            s_sub_u32 s37, s37, 1
            s_waitcnt lgkmcnt(0)
            s_cbranch_scc1 L_h3ok""")
        for k in range(8):
            a(f"s_cmp_lg_u32 s{66 + 4 * k}, {sTAG}\ns_cbranch_scc1 L_h3")
        a("L_h3ok:")
        self.stamp(10)

        def fetch():
            for i in range(4):
                a(f"buffer_load_dwordx4 {vr(O + 4 * i, 4)}, v{3 + (i & 1)}, {SRDW}, s49 offen offset:{1024 * i} {self.gfl}")
        fetch()
        a("s_waitcnt vmcnt(4)")
        put(S2, 0)
        for k in range(8):
            a(f"v_writelane_b32 v8, s{64 + 4 * k}, {k}\nv_writelane_b32 v9, s{65 + 4 * k}, {k}")
        a("""s_mov_b64 exec, 0xff
            ds_write_b64 v29, v[8:9]
            s_mov_b64 exec, -1
            s_waitcnt lgkmcnt(0)
            s_barrier
            ds_read_b64 v[12:13], v30""")
        for s in range(7):
            for p in range(2):
                a(f"ds_read_b64_tr_b16 {vr(QAR + 4 * s + 2 * p, 2)}, v{20 + p} offset:{1024 * s}")
        a("s_waitcnt lgkmcnt(14)\nv_mov_b32 v14, v12")

        def red32(op, r, t):
            for sh in (1, 2, 4, 8):
                a(f"{op}_dpp v{r}, v{r}, v{r} row_ror:{sh} {FULL}")
            a(f"v_mov_b32 v{t}, v{r}\nv_permlane16_swap_b32 v{t}, v{r}\n{op} v{r}, v{r}, v{t}")
        red32("v_max_f32", 14, 15)
        for p in range(2):
            a(f"ds_read_b64_tr_b16 {vr(QAR + 28 + 2 * p, 2)}, v{20 + p} offset:{1024 * 7}")
        a("v_sub_f32 v12, v12, v14\nv_exp_f32 v12, v12\nv_mul_f32 v13, v12, v13")
        red32("v_add_f32", 13, 15)
        a(f"""v_rcp_f32 v13, v13
            v_mul_f32 v12, v12, v13
            v_cvt_pk_bf16_f32 v12, v12, v12
            ds_write_b16 v22, v12
            ds_read_b128 v[12:15], v23
            v_cmp_eq_u32 vcc, 0, v1
            v_cmp_eq_u32 s[38:39], 1, v1
            s_mov_b32 s37, {SPIN}
            s_waitcnt lgkmcnt(0)""")
        for k in range(4):
            a(f"v_cndmask_b32 v{32 + k}, 0, v{12 + k}, vcc")
            a(f"v_cndmask_b32 v{36 + k}, 0, v{12 + k}, s[38:39]")
        a(f"""L_h3p:
            s_waitcnt vmcnt(0)
""")
        for k in range(4):
            a(f"v_bitop3_b32 v{8 + 2 * k}, v{O + k}, v{O + 4 + k}, s{56 + k} bitop3:0x7e")
            a(f"v_bitop3_b32 v{9 + 2 * k}, v{O + 8 + k}, v{O + 12 + k}, s{56 + k} bitop3:0x7e")
        a(f"""v_or3_b32 v8, v8, v9, v10
            v_or3_b32 v11, v11, v12, v13
            v_or3_b32 v8, v8, v14, v15
            v_or_b32 v8, v8, v11
            v_and_b32 v8, 0x10001, v8
            v_cmp_ne_u32 vcc, 0, v8
            s_cbranch_vccz L_h3pok
            s_sub_u32 s37, s37, 1
            s_cbranch_scc1 L_h3pok""")
        fetch()
        a("s_branch L_h3p\nL_h3pok:")
        for i in range(4):
            a(f"ds_write_b128 v5, {vr(O + 4 * i, 4)} offset:{1024 * i}")
        if self.dbg is True:
            a(f"s_sub_u32 s33, {SPIN}, s37\nv_writelane_b32 v63, s33, 30")
        a("s_waitcnt lgkmcnt(0)\ns_barrier")
        self.stamp(11)
        for s in range(2):
            for cb in range(2):
                for p in range(2):
                    a(f"ds_read_b64_tr_b16 {vr(FR + 8 * s + 4 * cb + 2 * p, 2)}, v{24 + cb} offset:{32768 * s + 2048 * p}")
        if self.e2b == 0:
            for i in range(4):
                self.e2_dma(i)
        for s in range(2):
            for cb in range(2):
                a(f"s_waitcnt lgkmcnt({6 - 4 * s - 2 * cb})")
                c = "0" if s == 0 else vr(40 + 4 * cb, 4)
                a(f"v_mfma_f32_16x16x32_bf16 {vr(40 + 4 * cb, 4)}, {vr(FR + 8 * s + 4 * cb, 4)}, {vr(32 + 4 * s, 4)}, {c}")
        for k in range(4):
            a(f"v_cvt_pk_bf16_f32 v{48 + k}, v{40 + 2 * k}, v{41 + 2 * k}")
        self.exec64(0x00030003)
        a("ds_write_b128 v26, v[48:51]\ns_mov_b64 exec, -1\ns_waitcnt lgkmcnt(0)\ns_barrier")
        for s in range(8):
            a(f"ds_read_b128 {vr(FR + 4 * s, 4)}, v27 offset:{128 * s}")
        for s in range(8):
            a(f"s_waitcnt lgkmcnt({7 - s})")
            a(f"v_mfma_f32_16x16x32_bf16 v[40:43], {vr(QAR + 4 * s, 4)}, {vr(FR + 4 * s, 4)}, {'v[40:43]' if s else '0'}")
        self.exec64(0x00030003)
        a("v_cvt_pk_bf16_f32 v52, v40, v41\nv_cvt_pk_bf16_f32 v53, v42, v43")
        a(f"buffer_store_dwordx4 v[52:55], v28, {SRDW}, s53 offen sc1")
        a("ds_write_b64 v238, v[52:53]\nds_write_b32 v239, v54\ns_mov_b64 exec, -1\ns_mov_b64 s[58:59], s[60:61]")
        self.stamp(12)
        if self.e2b == 1:
            for i in range(4):
                self.e2_dma(i)
        a("s_branch L_stageE2")
        if self.noack and 'nowait' not in self.diag:
            a("L_qretry:\ns_sub_u32 s37, s37, 1\ns_cbranch_scc1 L_qaok\ns_waitcnt lgkmcnt(0)\ns_barrier")
            qcopy()
            a("s_waitcnt vmcnt(0)\ns_barrier\ns_branch L_qa")

    def build(self):
        a = self.a
        self.entry()
        self.p1()
        a("L_rolePU:")
        self.p2()
        self.a_common()
        self.e2()
        a("s_endpgm")
        self.role_b()
        a("L_end:\ns_endpgm")
        if 'fine' in self.diag:
            a.stamp_loads()
        body = a.finalize()
        return f"""{HEADER}; Generated by a script; one persistent launch, 256 workgroups of 8 waves (one per CU).
; @launch grid=(256,1,1) block=(512,1,1) lds={LDS_BYTES}
.amdgcn_target "amdgcn-amd-amdhsa--gfx950"
.text
.globl {NAME}
.p2align 8
.type {NAME},@function
{NAME}:
{body}.section .rodata,"a"
.p2align 6
.amdhsa_kernel {NAME}
  .amdhsa_next_free_vgpr 256
  .amdhsa_next_free_sgpr 102
  .amdhsa_accum_offset 256
  .amdhsa_group_segment_fixed_size 0
  .amdhsa_kernarg_size 112
  .amdhsa_user_sgpr_count 2
  .amdhsa_user_sgpr_kernarg_segment_ptr 1
  .amdhsa_system_sgpr_workgroup_id_x 1
  .amdhsa_float_denorm_mode_32 3
.end_amdhsa_kernel
"""


if __name__ == "__main__":
    out = sys.argv[1]
    kw = eval("dict(" + (sys.argv[2] if len(sys.argv) > 2 else "") + ")")
    open(out, "w").write(Gen(**kw).build())
```

```python
import sys
from asmlib import Asm

NAME = "concat_heads__sliding_block_cached__compressed_kv_cla__decode_kernel"
HEADER = open("concat_heads__sliding_block_cached__compressed_kv_cla__decode.s.ref").read().split("; Override launch")[0]

EPOCH = 0
QA = 0xa0000
QB = 0xc0000
CNT = 0xa00000
QABS = 0x30000
F2 = 0x40000
ST = 0x50000
H4A = 0x60000
H4B = 0x80000
OP = 0x100000
H5 = 0x400000
STAMP = 0x800000
WS_SIZE = 0x1000000

AUX = 131072
RED = AUX
MXA = AUX + 512
LSA = AUX + 8192 + 64
MX = AUX + 9216
LS = AUX + 9216 + 512
PB = AUX + 10240
SM = AUX + 28672
WB = AUX + 29696
TK = AUX + 768
XI = AUX + 12288
CC = AUX + 30720
QL = AUX + 10240
HI = AUX + 20480
HS = AUX + 25088
E2B = (81920, 114688)
PART = (16384, 49152)
LDS_BYTES = 163840

SCALE = 0x3e0293ee
NEGBIG = 0xff7fffff
SPIN = 1 << 18

sW, sH, sJ, sB, sT, sTAG = "s3", "s4", "s5", "s6", "s7", "s32"
SRD0, SRDW, SRDK, SRDV, SRDE, SRDX = "s[8:11]", "s[12:15]", "s[16:19]", "s[20:23]", "s[24:27]", "s[28:31]"
FULL = "row_mask:0xf bank_mask:0xf"


def vr(a, n):
    return f"v[{a}:{a + n - 1}]"


def dest(i):
    return (i >> 1) * 32768 + (i & 1) * 8192


class Gen:
    def __init__(self, dbg=False, calib=0, amp=None, diag='', depth=4, lo=3, win=((3, 12), (4, 12)), edepth=(4,), bdepth=4,
                 pu_pre=3, xpos=5, rounds=10, hxa=2, hxu=1, jmul=3, hookpos=(0, 9, 18, 27), bmin=4, uva=(4, 4, 0), e2b=1, e2s=0, sbar=True,
                 e2pos=(1, 0), pw=None, noack=True, pollw=False, qplain=True, outfl='sc1', warm=0, wide=2, rw=7, jr=0, fmask=True, ddepth=4, t0=False, qat=3, stlate=True, sfl='nt', test='', nak=True, late=0, pbar=False, jx=(0, 0), e2mid=0, prio=0, kmul=1, pmul=1, srot=0, bx=0, wsoff=0, bmax=12, hold=1, sd=(4, 4, 4), hint=True, pmask=False, ps=(0, 0, 0, 0)):
        self.__dict__.update(locals())
        self.a = Asm()
        self.uid = 0
        self.pfl, self.gfl, self.nst = 'sc1', 'sc1', 4

    def lab(self, p):
        self.uid += 1
        return f"L_{p}_{self.uid}"

    def stamp(self, k):
        if self.dbg and (self.dbg is True or k in self.dbg or k == 17) and 'fine' not in self.diag:
            self.a(f"s_memrealtime s[98:99]\ns_waitcnt lgkmcnt(0)\nv_writelane_b32 v63, s98, {k}")

    def cyc(self, k):
        if 'cyc' in self.diag:
            self.a(f"s_memtime s[{64 + 2 * k}:{65 + 2 * k}]")

    def exec64(self, lo, hi=None):
        hi = lo if hi is None else hi
        self.a(f"s_mov_b32 exec_lo, {lo:#x}\ns_mov_b32 exec_hi, {hi:#x}")

    def entry(self):
        a = self.a

        def pack(sw, sh, sb, st, rs, kmul, k1, k2):
            return sw | sh << 5 | sb << 10 | st << 15 | rs << 20 | kmul << 25 | (k1 >> 5) << 27 | (k2 >> 7) << 29
        if self.dbg or self.calib or self.t0:
            a("s_memrealtime s[96:97]\nv_mov_b32 v63, 0\ns_mov_b32 s100, 0")
        a("; ---- role decode and first four 1 KiB copies into LDS")
        a(f"""s_load_dwordx8 s[64:71], s[0:1], 48
            v_lshrrev_b32 v8, 6, v0
            s_cmp_ge_u32 s2, 256
            s_cbranch_scc1 L_end
            v_readfirstlane_b32 {sW}, v8
            s_lshr_b32 {sH}, s2, 3
            s_add_u32 {sJ}, s2, {sH}
            s_mul_i32 {sJ}, {sJ}, {self.jmul}
            s_bfe_u32 {sB}, {sJ}, 0x10002
            s_and_b32 {sT}, {sJ}, 3
            v_and_b32 v1, 15, v0
            v_bfe_u32 v2, v0, 4, 2
            s_mul_i32 s38, {sW}, 17
            s_bfe_u32 s38, s38, 0x40002
            s_mov_b32 s33, {pack(17, 8, 20, 15, 13, 2, 0, 128):#x}
            s_cmp_eq_u32 {sT}, 2
            s_cmov_b32 s33, {pack(18, 8, 21, 16, 13, 1, 64, 128):#x}
            s_cselect_b32 s63, {self.hxu}, 0
            s_xor_b32 s63, s63, {sH}
            s_cmp_eq_u32 {sT}, 3
            s_cmov_b32 s33, {pack(10, 13 if self.bx else 18, 23, 18 if self.bx else 13, 8, 0, 32, 0):#x}
            s_cselect_b32 s38, s38, 0
            s_cselect_b32 s10, 24, 22
            s_lshl_b32 s10, 1, s10
            s_cmp_eq_u32 {sT}, 1
            s_cselect_b32 s36, 2, 0
            s_or_b32 s42, s36, {sB}
            s_lshl_b32 s40, {sW}, s33
            s_lshr_b32 s33, s33, 5
            s_lshl_b32 s36, s63, s33
            s_add_u32 s40, s40, s36
            s_lshr_b32 s33, s33, 5
            s_lshl_b32 s36, s42, s33
            s_add_u32 s40, s40, s36
            s_lshr_b32 s33, s33, 5
            s_lshl_b32 s41, 1, s33
            s_lshr_b32 s33, s33, 5
            s_bfe_u32 s36, s33, 0x20005
            v_mul_u32_u24 v11, s36, v2
            v_xor_b32 v10, s38, v1
            v_lshlrev_b32 v9, s33, v2
            v_xor_b32 v10, v10, v11
            s_lshr_b32 s33, s33, 2
            s_and_b32 s38, s33, 0x60
            s_and_b32 s39, s33, 0x80
            v_lshl_add_u32 v3, v10, 4, v9
            s_lshl_b32 s44, {sW}, 10
            s_mov_b32 s11, 0x20000
            v_xor_b32 v4, s38, v3
            v_xor_b32 v5, s39, v3
            s_mov_b32 m0, s44
            v_xor_b32 v6, s39, v4
            s_mov_b32 s43, s40
            s_cmp_eq_u32 {sT}, 2
            s_waitcnt lgkmcnt(0)
            s_cselect_b64 s[8:9], s[68:69], s[66:67]
            s_cmp_eq_u32 {sT}, 3
            s_cselect_b64 s[8:9], s[64:65], s[8:9]""")
        for i in range(4):
            a(f"buffer_load_dwordx4 v{3 + i}, {SRD0}, s40 offen nt lds")
            a(f"s_add_u32 m0, s44, {dest(i + 1)}\ns_add_u32 s40, s40, s41")
        a("; ---- remaining pointers, code prefetch into L2, launch tag")
        a(f"""s_load_dwordx2 s[12:13], s[0:1], 104
            s_load_dwordx2 s[28:29], s[0:1], 0
            s_load_dwordx2 s[30:31], s[0:1], 40
            s_load_dwordx2 s[16:17], s[0:1], 8
            s_load_dwordx2 s[20:21], s[0:1], 16
            s_load_dwordx2 s[24:25], s[0:1], 24
            s_getpc_b64 s[34:35]
            L_pc:
            s_and_b32 {sJ}, {sJ}, 7
            v_and_b32 v0, 63, v0
            v_lshlrev_b32 v16, 4, v0
            s_mov_b32 s27, 0x20000
            s_mov_b32 s26, s10
            s_xor_b32 s36, s43, {self.hxa << 8}
            s_add_u32 s43, s43, 32768
            s_cmp_eq_u32 {sT}, 3
            s_cselect_b32 s43, s40, s43
            s_cmp_lt_u32 {sT}, 2
            s_cselect_b32 s43, s36, s43
            s_cselect_b32 s63, s42, s63
            s_waitcnt lgkmcnt(0)
            s_cselect_b64 s[24:25], s[24:25], s[8:9]""")
        if self.wsoff:
            a(f"s_add_u32 s12, s12, {self.wsoff}\ns_addc_u32 s13, s13, 0")
        a(f"""s_lshl_b32 s33, {sH}, 3
            s_add_u32 s33, s33, {sW}
            s_lshl_b32 s33, s33, 7
            s_min_u32 s33, s33, L_end-L_pc-64
            s_add_u32 s36, s33, 64
            s_load_dword {'s98' if 'fine' in self.diag else 's100'}, s[34:35], s33
            s_load_dword {'s99' if 'fine' in self.diag else 's101'}, s[34:35], s36
            s_load_dword {sTAG}, s[12:13], {EPOCH}
            s_mov_b32 s14, {WS_SIZE:#x}
            s_mov_b32 s15, 0x20000
            s_mov_b32 s19, 0x20000
            s_mov_b32 s52, {SCALE:#x}""")
        if self.dbg:
            a("v_writelane_b32 v63, s96, 0")
        if self.t0:
            a(f"""s_or_b32 s33, {sH}, {sW}
                s_cbranch_scc1 L_nt0
                s_lshl_b32 s33, s2, 7
                s_add_u32 s33, s33, {STAMP}
                v_mov_b32 v63, s96
                s_mov_b64 exec, 1
                buffer_store_dword v63, off, {SRDW}, s33 sc1
                s_mov_b64 exec, -1
                L_nt0:""")
        a(f"""s_cmp_eq_u32 {sT}, 3
            s_cbranch_scc1 L_roleB
            s_mov_b32 s18, 0x8000000
            s_mov_b32 s22, 0x8000000
            s_mov_b32 s23, 0x20000
            s_lshl_b32 s45, {sB}, 5
            s_add_u32 s45, s45, {sH}
            s_lshl_b32 s45, s45, 21
            s_add_u32 s45, s45, {6144 * 256}
            s_lshl_b32 s57, {sT}, 3
            s_add_u32 s57, s57, {sW}""")
        a("s_lshl_b32 s48, s57, 11\ns_add_u32 s48, s48, s45")
        a(f"v_add_u32 v7, {RED}, v16")
        for k in range(4):
            a(f"v_mov_b32 v{8 + k}, 0")
        a(f"ds_write_b128 v7, v[8:11]")
        a(f"s_cmp_eq_u32 {sT}, 2\ns_cbranch_scc1 L_rolePU")

    def second_batch(self, mid, extra=0, depth=4, lo=4, hi=8):
        a = self.a
        for i in range(lo, hi):
            a(f"s_waitcnt vmcnt({depth - 1 + extra})\nbuffer_load_dwordx4 v{3 + (i & 3)}, {SRDE}, s43 offen nt lds")
            if i < 7:
                a(f"s_add_u32 m0, s44, {dest(i + 1)}")
            a("s_add_u32 s43, s43, s41")
            if i == self.xpos:
                a(f"s_waitcnt lgkmcnt(0)\ns_add_u32 {sTAG}, {sTAG}, 1")
                mid()

    def load_e2_ptr(self):
        self.a(f"""s_cmp_lt_u32 {sW}, 4
            s_cselect_b32 s33, 32, 80
            s_load_dwordx2 s[24:25], s[0:1], s33
            s_mov_b32 s26, {0 if 'noW' in self.diag else 0x400000}""")

    def sum_parts(self, r):
        self.a(f"""v_lshlrev_b32 v8, 16, v{r}
            v_and_b32 v9, 0xffff0000, v{r}
            v_lshlrev_b32 v10, 16, v{r + 1}
            v_and_b32 v11, 0xffff0000, v{r + 1}
            v_lshlrev_b32 v{r}, 16, v{r + 4}
            v_and_b32 v{r + 1}, 0xffff0000, v{r + 4}
            v_lshlrev_b32 v{r + 2}, 16, v{r + 5}
            v_and_b32 v{r + 3}, 0xffff0000, v{r + 5}
            v_pk_add_f32 v[8:9], v[8:9], {vr(r, 2)}
            v_pk_add_f32 v[10:11], v[10:11], {vr(r + 2, 2)}
            v_permlane32_swap_b32 v8, v10
            v_permlane32_swap_b32 v9, v11
            v_pk_add_f32 v[8:9], v[8:9], v[10:11]
            v_cvt_pk_bf16_f32 v{r}, v8, v9""")

    def poll_rows(self, voff, soff, two=False):
        a = self.a
        lp, ok = self.lab("gp"), self.lab("gok")
        back = self.ps[0 if two else 2]
        a(f"s_mov_b32 s37, {SPIN}\n{lp}:\nbuffer_load_dwordx4 v[176:179], {voff}, {SRDW}, {soff} offen sc1")
        if two:
            a(f"buffer_load_dwordx4 v[180:183], {voff}, {SRDW}, {soff} offen offset:1024 sc1")
        a(f"s_sub_u32 s37, s37, 1\ns_waitcnt vmcnt(0)\ns_cbranch_scc1 {ok}")
        if two:
            a(f"v_bitop3_b32 v8, v179, v183, {sTAG} bitop3:0x7e\nv_cmp_ne_u32 vcc, 0, v8")
        else:
            a(f"v_cmp_ne_u32 vcc, {sTAG}, v179")
        if self.pmask or back:
            a(f"s_cbranch_vccz {ok}")
            if self.pmask:
                a("s_mov_b64 exec, vcc")
            if back:
                a(f"s_sleep {back}")
            a(f"s_branch {lp}\n{ok}:\ns_mov_b64 exec, -1")
        else:
            a(f"s_cbranch_vccnz {lp}\n{ok}:")

    def e2_dma_setup(self):
        self.a(f"""v_lshrrev_b32 v9, 3, v0
            v_and_b32 v10, 7, v0
            v_and_b32 v11, 1, v2
            v_lshlrev_b32 v11, 1, v11
            v_xor_b32 v10, v10, v11
            v_lshlrev_b32 v10, 4, v10
            v_lshl_add_u32 v17, v9, 10, v10
            v_xor_b32 v18, 64, v17
            s_and_b32 s33, {sW}, 3
            s_lshl_b32 s46, {sH}, 17
            s_lshl_b32 s36, s33, 15
            s_add_u32 s46, s46, s36
            s_cmp_lt_u32 {sW}, 4
            s_cselect_b32 s36, {self.jx[0]}, {self.jx[1]}
            s_xor_b32 s36, s36, {sJ}
            s_lshl_b32 s36, s36, 7
            s_add_u32 s46, s46, s36
            s_cmp_lt_u32 {sW}, 4
            s_mov_b32 s47, {E2B[1]}
            s_cmov_b32 s47, {E2B[0]}
            s_lshl_b32 s36, s33, 12
            s_add_u32 s47, s47, s36""")


    def e2_dma(self, i):
        self.a(f"""s_add_u32 m0, s47, {1024 * i}
            s_nop 0
            buffer_load_dwordx4 v{17 + (i & 1)}, {SRDE}, s46 offen nt lds
            s_add_u32 s46, s46, 8192""")

    KV = 64

    def slot(self, k):
        return 4 + k if k < 2 else k & 3

    def a_load(self, kind, k, u, cnt, other=None):
        a = self.a
        if u == 0:
            a(f"s_add_u32 s54, s48, {49152 * k}")
        a(f"s_waitcnt vmcnt({cnt})")
        if other is not None:
            sk = self.lab("lo")
            a(f"s_cbranch_vccz {sk}\ns_waitcnt vmcnt({other})\n{sk}:")
        r = self.KV + 16 * self.slot(k) + 4 * u + (8 if kind == "V" else 0)
        a(f"buffer_load_dwordx4 {vr(r, 4)}, v16, {SRDK if kind == 'K' else SRDV}, s54 offen offset:{1024 * u} nt")

    def a_first(self, k, cnt):
        self.a_load("K", k >> 1, k & 1, cnt)

    def a_qk(self, ph, r=30):
        a = self.a
        K = self.KV + 16 * ph
        a("v_mov_b32 v28, 0\nv_mov_b32 v29, 0")
        for e in range(4):
            for u in range(2):
                a(f"v_dot2c_f32_bf16 v{28 + u}, v{K + 4 * u + e}, v{24 + e}")
        a(f"v_add_f32_dpp v{r}, v28, v28 row_ror:8 row_mask:0xf bank_mask:0x3")
        a(f"v_add_f32_dpp v{r}, v29, v29 row_ror:8 row_mask:0xf bank_mask:0xc")
        for m in ("row_half_mirror", "quad_perm:[1,0,3,2]", "quad_perm:[2,3,0,1]"):
            a(f"v_add_f32_dpp v{r}, v{r}, v{r} {m} {FULL}")

    def a_max(self):
        self.a(f"v_max_f32_dpp v31, v30, v30 row_ror:8 {FULL}\nv_mul_f32 v31, s52, v31\nv_max_f32 v31, v31, v60")

    def a_soft(self, with_max=True):
        a = self.a
        if with_max:
            self.a_max()
        a("""v_sub_f32 v32, v60, v31
            v_fma_f32 v30, v30, s52, -v31
            v_exp_f32 v32, v32
            v_exp_f32 v30, v30
            v_mov_b32 v60, v31
            v_fma_f32 v61, v61, v32, v30
            v_cvt_pk_bf16_f32 v34, v30, 0
            v_cvt_pk_bf16_f32 v35, 0, v30""")
        for k in range(4):
            a(f"v_pk_mul_f32 {vr(52 + 2 * k, 2)}, {vr(52 + 2 * k, 2)}, v[32:33] op_sel_hi:[1,0]")

    def a_pv(self, ph, u, p=34):
        V = self.KV + 16 * ph + 8 + 4 * u
        for e in range(4):
            self.a(f"v_dot2c_f32_bf16_dpp v{52 + 2 * e}, v{p}, v{V + e} row_newbcast:{8 * u} {FULL}")
            self.a(f"v_dot2c_f32_bf16_dpp v{53 + 2 * e}, v{p + 1}, v{V + e} row_newbcast:{8 * u} {FULL}")

    def p1(self):
        a = self.a
        D = self.edepth[0]
        a(f"""s_lshl_b32 s33, s63, 8
            s_lshl_b32 s36, {sW}, 5
            s_add_u32 s49, s33, s36
            s_add_u32 s50, s49, 1024
            s_load_dwordx8 s[64:71], s[30:31], s49
            s_load_dwordx8 s[72:79], s[30:31], s50
            s_load_dwordx8 s[80:87], s[28:29], s49
            s_load_dwordx8 s[88:95], s[28:29], s50
            v_and_b32 v8, 1, v2
            v_lshlrev_b32 v7, 15, v8
            v_lshrrev_b32 v9, 1, v2
            v_lshl_add_u32 v7, v9, 10, v7
            v_lshrrev_b32 v9, 2, v1
            v_lshl_add_u32 v7, v9, 8, v7
            v_and_b32 v10, 3, v0
            v_lshl_add_u32 v7, v10, 3, v7
            v_lshl_or_b32 v9, v8, 2, v9
            v_xor_b32 v9, {sW}, v9
            v_lshl_add_u32 v200, v9, 5, v7
            v_add_u32 v201, 65536, v200
            v_lshrrev_b32 v7, 3, v0
            v_lshlrev_b32 v7, 8, v7
            v_and_b32 v8, 7, v0
            v_lshl_add_u32 v7, v8, 2, v7
            s_add_u32 s36, s36, {XI}
            v_add_u32 v202, s36, v7
            v_and_b32 v7, 1, v0
            v_lshlrev_b32 v8, 8, v7
            v_lshl_add_u32 v8, v2, 4, v8
            v_add_u32 v203, {XI}, v8
            v_lshlrev_b32 v8, 11, v7
            v_lshl_add_u32 v204, v2, 4, v8
            s_lshl_b32 s38, {sH}, 12
            s_lshl_b32 s36, s63, 9
            s_add_u32 s38, s38, s36
            s_lshl_b32 s36, {sW}, 6
            s_add_u32 s38, s38, s36
            s_xor_b32 s39, s38, {self.hxa << 12}
            s_add_u32 s38, s38, {QB}
            s_add_u32 s39, s39, {QA}""")

        def mid():
            for k in range(32):
                a(f"v_writelane_b32 v205, s{64 + k}, {k}")
            self.exec64(0xffffffff, 0)
            a(f"ds_write_b32 v202, v205\ns_mov_b64 exec, -1\nv_mov_b32 v51, {sTAG}")

        def half(t):
            a(f"; ---- partial query of part {'A' if t else 'B'}: 16 columns per wave over 128 rows")
            a("s_waitcnt lgkmcnt(0)\ns_barrier")
            for s in range(4):
                a(f"ds_read_b128 {vr(160 + 4 * s, 4)}, v203 offset:{512 * t + 64 * s}")
                for p in range(2):
                    a(f"ds_read_b64_tr_b16 {vr(176 + 4 * s + 2 * p, 2)}, v{200 + t} offset:{2048 * s + 8192 * p}")
            for s in range(4):
                a(f"s_waitcnt lgkmcnt({9 - 3 * s})")
                a(f"v_mfma_f32_16x16x32_bf16 v[192:195], {vr(176 + 4 * s, 4)}, {vr(160 + 4 * s, 4)}, {'v[192:195]' if s else '0'}")
            self.exec64(0x00030003)
            a("v_cvt_pk_bf16_f32 v48, v192, v193\nv_cvt_pk_bf16_f32 v49, v194, v195")
            a(f"buffer_store_dwordx4 v[48:51], v204, {SRDW}, s{38 + t} offen sc1\ns_mov_b64 exec, -1")

        self.a_setup()
        H = self.hold
        self.second_batch(mid, 0, self.sd[0], 4, 8 - H)
        a(f"s_waitcnt vmcnt({4 - H})")
        self.stamp(1)
        half(0)
        self.stamp(2)
        self.second_batch(None, 1, 4, 8 - H, 8)
        self.load_e2_ptr()
        for k in range(4):
            self.a_first(k, D if k < D - H else D - 1)
        a(f"s_waitcnt vmcnt({4 if H else 5})")
        if 'slowa' in self.test:
            a(f"s_and_b32 s33, {sH}, 1\ns_cbranch_scc0 L_ta\ns_sleep 127\ns_sleep 127\ns_sleep 127\nL_ta:")
        half(1)
        self.stamp(3)
        a("s_branch L_acommon")

    def p2(self):
        a = self.a
        D, pre = self.edepth[0], self.pu_pre
        a(f"""v_lshrrev_b32 v7, 3, v1
            v_lshlrev_b32 v7, 15, v7
            v_bfe_u32 v8, v1, 2, 1
            v_lshl_add_u32 v7, v8, 13, v7
            v_and_b32 v8, 3, v1
            v_lshl_add_u32 v7, v8, 8, v7
            v_add_u32 v7, s44, v7
            v_xor_b32 v8, v2, v1
            v_lshl_add_u32 v216, v8, 4, v7""")
        for s in range(1, 4):
            a(f"v_xor_b32 v{216 + s}, {64 * s}, v216")
        for s in range(4):
            a(f"v_add_u32 v{220 + s}, 65536, v{216 + s}")
        a(f"""v_and_b32 v13, 31, v0
            v_lshlrev_b32 v13, 3, v13
            v_lshrrev_b32 v7, 5, v0
            v_lshl_add_u32 v13, v7, 2, v13
            s_lshl_b32 s33, {sW}, 8
            s_add_u32 s33, s33, {HI}
            v_add_u32 v13, s33, v13
            v_and_b32 v14, 1, v0
            v_lshlrev_b32 v14, 8, v14
            v_lshl_add_u32 v14, v2, 4, v14
            v_add_u32 v14, {HI}, v14
            s_lshl_b32 s49, s63, 12
            s_lshl_b32 s36, {sW}, 11
            s_add_u32 s49, s49, s36
            s_add_u32 s49, s49, {QB}
            v_lshlrev_b32 v15, 15, v1
            v_lshl_add_u32 v15, v2, 4, v15
            s_lshl_b32 s50, s63, 10
            s_lshl_b32 s36, {sB}, 9
            s_add_u32 s50, s50, s36
            s_lshl_b32 s36, {sW}, 6
            s_add_u32 s50, s50, s36
            s_add_u32 s50, s50, {QABS}
            s_lshr_b32 s53, s63, 2
            s_lshl_b32 s53, s53, 7
            s_and_b32 s36, s63, 3
            s_lshl_b32 s36, s36, 3
            s_add_u32 s53, s53, s36
            s_lshl_b32 s36, {sB}, 2
            s_add_u32 s53, s53, s36
            s_add_u32 s53, s53, {F2}
            v_lshlrev_b32 v197, 10, v0""")
        if self.noack:
            for k in range(4):
                a(f"v_mov_b32 v{200 + k}, -1")
            self.exec64(0x00030003)
            a(f"buffer_store_dwordx4 v[200:203], v15, {SRDW}, s50 offen sc1\ns_mov_b64 exec, -1")
        self.a_setup()
        self.second_batch(lambda: a(f"v_mov_b32 v196, {sTAG}"), 1 if self.noack else 0, self.sd[1])
        self.load_e2_ptr()
        for k in range(pre):
            self.a_first(k, D - 1)
        self.stamp(7)
        if self.hint:
            a(f"""s_lshl_b32 s33, s63, 12
                s_lshl_b32 s36, {sW}, 9
                s_add_u32 s33, s33, s36
                s_add_u32 s33, s33, {QB}
                s_add_u32 s34, s12, s33
                s_addc_u32 s35, s13, 0
                s_mov_b32 s38, {sTAG}
                s_mov_b32 s39, {sTAG}
                s_mov_b32 s37, {SPIN}
                L_h1h:""")
            for k in range(8):
                a(f"s_load_dword s{64 + k}, s[34:35], {64 * k + 12} glc")
            a("s_sub_u32 s37, s37, 1\ns_waitcnt lgkmcnt(0)\ns_cbranch_scc1 L_h1k")
            for k in range(4):
                a(f"s_xor_b64 s[{64 + 2 * k}:{65 + 2 * k}], s[{64 + 2 * k}:{65 + 2 * k}], s[38:39]")
            a("s_or_b64 s[64:65], s[64:65], s[66:67]\ns_or_b64 s[68:69], s[68:69], s[70:71]\ns_or_b64 s[64:65], s[64:65], s[68:69]")
            a("s_cbranch_scc1 L_h1h\nL_h1k:")
            self.stamp(13)
            if self.dbg is True:
                a(f"s_sub_u32 s33, {SPIN}, s37\nv_writelane_b32 v63, s33, 30")
            a("s_barrier")
        skip = self.lab("h1s")
        a(f"s_cmp_gt_u32 {sW}, 1\n{'s_branch' if 'nowait' in self.diag else 's_cbranch_scc1'} {skip}")
        if self.pollw:
            a(f"s_waitcnt vmcnt({pre})")
        self.poll_rows("v16", "s49", two=True)
        self.sum_parts(176)
        a(f"ds_write_b32 v13, v176\n{skip}:\ns_waitcnt vmcnt({pre})")
        self.stamp(1)
        for blk in range(2):
            for s in range(4):
                a(f"ds_read_b128 {vr(224 + 16 * blk + 4 * s, 4)}, v{216 + 4 * blk + s}")
        a("s_waitcnt lgkmcnt(0)\ns_barrier")
        self.stamp(2)
        for s in range(4):
            a(f"ds_read_b128 {vr(176 + 4 * s, 4)}, v14 offset:{64 * s}")
        for s in range(4):
            a(f"s_waitcnt lgkmcnt({3 - s})")
            for blk in range(2):
                c = "0" if s == 0 else vr(208 + 4 * blk, 4)
                a(f"v_mfma_f32_16x16x32_bf16 {vr(208 + 4 * blk, 4)}, {vr(224 + 16 * blk + 4 * s, 4)}, {vr(176 + 4 * s, 4)}, {c}")
        for k in range(4):
            a(f"v_cvt_pk_bf16_f32 v{168 + k}, v{208 + 2 * k}, v{209 + 2 * k}")
        self.exec64(0x00030003)
        if 'slowq' in self.test:
            a(f"s_mov_b64 exec, -1\ns_cmp_lg_u32 {sW}, 0\ns_cbranch_scc1 L_tq\nbuffer_store_dword v196, v197, {SRDW}, s53 offen sc1\nL_tq:\ns_sleep 127\ns_sleep 127\ns_sleep 127")
            self.exec64(0x00030003)
        a(f"buffer_store_dwordx4 v[168:171], v15, {SRDW}, s50 offen sc1")
        a("s_mov_b64 exec, -1")
        if not self.noack:
            a("s_waitcnt vmcnt(0)")
        a("s_barrier")
        skip = self.lab("p2s")
        a(f"""s_cmp_lg_u32 {sW}, 0
            s_cbranch_scc1 {skip}
            buffer_store_dword v196, v197, {SRDW}, s53 offen sc1
            {skip}:""")
        self.stamp(3)
        for k in range(pre, 4):
            self.a_first(k, D + 1)

    def a_setup(self):
        a = self.a
        self.e2_dma_setup()
        a(f"""s_lshl_b32 s51, {sH}, 1
            s_add_u32 s51, s51, {sB}
            s_lshl_b32 s51, s51, 11
            s_add_u32 s51, s51, {QA}
            v_and_b32 v36, 31, v0
            v_lshlrev_b32 v36, 3, v36
            v_lshrrev_b32 v7, 5, v0
            v_lshl_add_u32 v36, v7, 2, v36
            s_lshl_b32 s33, {sW}, 8
            s_add_u32 s33, s33, {QL}
            v_add_u32 v36, s33, v36
            v_lshl_add_u32 v37, v1, 4, s33
            v_mov_b32 v60, {NEGBIG:#x}
            v_mov_b32 v61, 0
            v_lshlrev_b32 v38, 5, v1
            v_lshl_add_u32 v38, v2, 3, v38
            s_lshl_b32 s33, {sW}, 9
            s_add_u32 s33, s33, {RED + 1024}
            v_add_u32 v38, s33, v38
            s_lshl_b32 s33, {sW}, 2
            s_add_u32 s33, s33, {MXA}
            v_mov_b32 v39, s33
            v_mov_b32 v43, {MXA}
            v_lshrrev_b32 v44, 5, v0
            v_mul_u32_u24 v44, 1536, v44
            v_add_u32 v44, v44, v16
            v_add_u32 v44, {RED + 1024}, v44
            s_lshl_b32 s61, {sH}, 3
            s_add_u32 s61, s61, {sJ}
            s_lshl_b32 s61, s61, 9
            s_add_u32 s61, s61, {H4A}""")
        for k in range(8):
            a(f"v_mov_b32 v{52 + k}, 0")

    def a_common(self):
        a = self.a
        D, L, slot, x = self.depth, self.lo, self.slot, self.e2pos[0]
        assert D <= 4
        a("L_acommon:")

        def it(k, extra=0):
            da, dc = (L if lo <= k < hi else D for lo, hi in self.win)
            if da != dc:
                a(f"s_cmp_{'lg' if da < dc else 'eq'}_u32 {sT}, 2\ns_cselect_b64 vcc, -1, 0")
            for i in range(4):
                cnt = lambda d: d - 1 + (extra if i < d else 0)
                self.a_load("K" if i < 2 else "V", k if i < 2 else k - 2, i & 1, cnt(max(da, dc)), cnt(min(da, dc)) if da != dc else None)

        def proc(k):
            self.a_qk(slot(k)); self.a_soft(); self.a_pv(slot(k), 0); self.a_pv(slot(k), 1)
        qld = f"buffer_load_dwordx4 v[20:23], v16, {SRDW}, s51 offen sc1\nbuffer_load_dwordx4 v[24:27], v16, {SRDW}, s51 offen offset:1024 sc1"
        for k in (2, 3, 4):
            it(k, 2 if k == self.qat + 1 else 0)
            if k == self.qat:
                a(qld.replace(" sc1", "") if self.qplain else qld)
            if k == 3:
                self.e2_setup(False)
        a(f"""s_mov_b32 s37, {SPIN}
            s_waitcnt vmcnt(4)
            L_qlp:
            v_bitop3_b32 v8, v23, v27, {sTAG} bitop3:0x7e
            v_cmp_ne_u32 vcc, 0, v8
            s_cbranch_vccz L_qok
            s_sub_u32 s37, s37, 1
            s_cbranch_scc1 L_qok
            {qld}
            s_waitcnt vmcnt(0)
            s_branch L_qlp
            L_qok:""")
        self.sum_parts(20)
        a("ds_write_b32 v36, v20\nds_read_b128 v[24:27], v37\ns_waitcnt lgkmcnt(0)")
        self.stamp(4)
        proc(0)
        it(5)
        proc(1); proc(2)
        for k in range(6, 10):
            it(k)
            proc(k - 3)

        def drain(n):
            a("; ---- last round: workgroup maximum, last two weighted sums")
            self.stamp(5)
            self.a_qk(slot(n - 1), 33)
            for i in range(4):
                self.a_load("V", n - 1 + (i >> 1), i & 1, self.ddepth - 1)
            a("s_waitcnt vmcnt(4)")
            proc(n - 2)
            self.a_qk(slot(n))
            a(f"v_max_f32 v31, v30, v33\nv_max_f32_dpp v31, v31, v31 row_ror:8 {FULL}\nv_mul_f32 v31, s52, v31\nv_max_f32 v31, v31, v60")
            for sw in ("v_permlane16_swap_b32", "v_permlane32_swap_b32"):
                a(f"v_mov_b32 v32, v31\n{sw} v32, v31\nv_max_f32 v31, v31, v32")
            a("ds_write_b32 v39, v31\ns_waitcnt lgkmcnt(0)\ns_barrier\nds_read_b128 v[8:11], v43\nds_read_b128 v[12:15], v43 offset:16")
            for i in range(x):
                self.e2_dma(i)
            if x < 4:
                sk = self.lab("pe")
                a(f"s_cmp_lg_u32 {sW}, 3\ns_cselect_b64 vcc, -1, 0\ns_cbranch_scc1 {sk}")
                for i in range(x, 4):
                    self.e2_dma(i)
                a(f"{sk}:")
            a("""s_waitcnt lgkmcnt(0)
                v_max3_f32 v31, v8, v9, v10
                v_max3_f32 v12, v12, v13, v14
                v_max3_f32 v31, v31, v11, v15
                v_max_f32 v31, v31, v12
                v_fma_f32 v12, v33, s52, -v31
                v_exp_f32 v12, v12""")
            self.a_soft(with_max=False)
            a(f"""v_add_f32 v61, v61, v12
                v_cvt_pk_bf16_f32 v28, v12, 0
                v_cvt_pk_bf16_f32 v29, 0, v12
                v_add_f32_dpp v61, v61, v61 row_ror:8 {FULL}""")
            for sw in ("v_permlane16_swap_b32", "v_permlane32_swap_b32"):
                a(f"v_mov_b32 v32, v61\n{sw} v32, v61\nv_add_f32 v61, v61, v32")
            a("s_mov_b64 exec, 1\nds_add_f32 v43, v61 offset:32\ns_mov_b64 exec, -1")
            for i in range(4):
                a(f"s_waitcnt vmcnt({7 - i})")
                if x < 4:
                    sk = self.lab("lw")
                    a(f"s_cbranch_vccz {sk}\ns_waitcnt vmcnt({3 - i + x})\n{sk}:")
                self.a_pv(slot(n - 1 + (i >> 1)), i & 1, 28 if i < 2 else 34)
        a(f"s_cmp_lg_u32 {sT}, 2\ns_cbranch_scc1 L_more")
        drain(9)
        a("s_branch L_afin\nL_more:")
        it(10)
        proc(7)
        drain(10)
        a("L_afin:\ns_nop 2")
        self.stamp(6)
        for i in range(4):
            a(f"v_permlane32_swap_b32 v{52 + i}, v{56 + i}")
        a("v_pk_add_f32 v[52:53], v[52:53], v[56:57]\nv_pk_add_f32 v[54:55], v[54:55], v[58:59]")
        a(f"""v_permlane16_swap_b32 v52, v54
            v_permlane16_swap_b32 v53, v55
            v_pk_add_f32 v[52:53], v[52:53], v[54:55]
            ds_write_b64 v38, v[52:53]""")
        for i in range(x, sum(self.e2pos)):
            self.e2_dma(i)
        a(f"""s_waitcnt lgkmcnt(0)
            s_barrier
            s_cmp_lg_u32 {sW}, 3
            s_cbranch_scc1 L_amid
            {f's_setprio {self.prio}' if self.prio else ''}
            ds_read_b128 v[208:211], v44
            ds_read_b128 v[212:215], v44 offset:512
            ds_read_b128 v[216:219], v44 offset:1024
            ds_read_b128 v[220:223], v44 offset:1536
            ds_read_b32 v61, v43 offset:32
            s_mov_b32 s38, 0xaaaaaaaa
            s_mov_b32 s39, s38
            v_mov_b32 v11, {sTAG}
            s_waitcnt lgkmcnt(3)
            v_pk_add_f32 v[208:209], v[208:209], v[212:213]
            v_pk_add_f32 v[210:211], v[210:211], v[214:215]
            s_waitcnt lgkmcnt(1)
            v_pk_add_f32 v[216:217], v[216:217], v[220:221]
            v_pk_add_f32 v[218:219], v[218:219], v[222:223]
            v_pk_add_f32 v[208:209], v[208:209], v[216:217]
            v_pk_add_f32 v[210:211], v[210:211], v[218:219]
            v_permlane32_swap_b32 v208, v210
            v_permlane32_swap_b32 v209, v211
            v_pk_add_f32 v[208:209], v[208:209], v[210:211]
            v_cvt_pk_bf16_f32 v8, v208, v209
            v_cvt_pk_bf16_f32 v9, v208, v209
            s_waitcnt lgkmcnt(0)
            v_cndmask_b32 v10, v60, v61, s[38:39]
            v_permlane32_swap_b32 v8, v9""")
        self.exec64(0xffffffff, 0)
        a(f"""
            buffer_store_dwordx4 v[8:11], v16, {SRDW}, s61 offen sc1
            ds_write_b64 v238, v[8:9]
            ds_write_b32 v239, v10
            s_mov_b64 exec, -1""")
        if self.nak:
            assert self.e2pos[1] == 0
            self.stamp(12)
            if self.pbar and x < 4:
                a("s_barrier")
            a("ds_write_b64 v246, v[240:241]\nds_write_b32 v247, v242\ns_waitcnt vmcnt(1)\ns_branch L_e2bar")
        a("L_amid:")
        self.stamp(12)
        y = sum(self.e2pos)
        for i in range(y, y + self.e2mid):
            self.e2_dma(i)
        if self.pbar and (x < 4 or not self.nak):
            a("s_barrier")
        for i in range(y + self.e2mid, 4):
            self.e2_dma(i)
        a("s_nop 0")

    def e2_setup(self, role_b):
        self.a(f"""s_load_dwordx2 s[28:29], s[0:1], 88
            v_lshrrev_b32 v9, 2, v1
            v_lshlrev_b32 v7, 10, v2
            v_lshl_add_u32 v7, v9, 7, v7
            v_and_b32 v10, 3, v0
            v_lshl_add_u32 v7, v10, 3, v7
            v_lshrrev_b32 v9, 1, v9
            v_and_b32 v8, 1, v2
            v_lshl_or_b32 v9, v8, 1, v9
            s_and_b32 s33, {sW}, 3
            v_xor_b32 v9, s33, v9
            v_lshl_add_u32 v7, v9, 5, v7
            s_cmp_lt_u32 {sW}, 4
            s_mov_b32 s36, {E2B[1]}
            s_cmov_b32 s36, {E2B[0]}
            s_mov_b32 s40, {H4B}
            s_cmov_b32 s40, {H4A}
            v_add_u32 v244, s36, v7
            s_lshl_b32 s36, {sH}, 12
            s_add_u32 s40, s40, s36
            s_lshl_b32 s36, s33, 9
            s_add_u32 s40, s40, s36
            v_lshrrev_b32 v9, 5, v0
            v_mul_u32_u24 v245, 1536, v9
            v_add_u32 v245, v245, v16
            s_and_b32 s36, {sW}, 4
            s_lshl_b32 s36, s36, 1
            s_add_u32 s33, s36, s33
            v_lshl_add_u32 v9, v9, 2, s33
            v_and_b32 v8, 31, v0
            v_mul_u32_u24 v246, 272, v9
            v_lshl_add_u32 v246, v8, 3, v246
            v_add_u32 v246, {HI}, v246
            v_mul_u32_u24 v247, 136, v9
            v_lshl_add_u32 v247, v8, 2, v247
            v_add_u32 v247, {HS}, v247
            v_and_b32 v9, 7, v0
            v_add_u32 v9, s36, v9
            v_mul_u32_u24 v248, 272, v9
            v_lshl_add_u32 v248, v2, 4, v248
            v_add_u32 v248, {HI}, v248
            v_mul_u32_u24 v249, 136, v9
            v_add_u32 v249, {HS}, v249
            v_mov_b32 v240, 0
            v_mov_b32 v241, 0
            v_and_b32 v8, 1, v0
            v_add_u32 v8, -1, v8
            v_and_b32 v242, {NEGBIG:#x}, v8
            s_mov_b32 s30, 4096
            s_mov_b32 s31, 0x20000
            v_lshlrev_b32 v250, 12, v2
            v_lshl_add_u32 v250, v1, 3, v250
            s_cmp_lt_u32 {sW}, 4
            s_cselect_b32 s41, {self.jx[0]}, {self.jx[1]}
            s_xor_b32 s41, s41, {sJ}
            s_lshl_b32 s41, s41, 3
            s_add_u32 s41, s41, {sW}
            s_lshl_b32 s41, s41, 13
            s_lshl_b32 s36, {sH}, 7
            s_add_u32 s41, s41, s36
            s_add_u32 s41, s41, {H5}
            v_mov_b32 v253, {sTAG}
            s_xor_b32 s38, {sJ}, {self.jr}
            s_lshl_b32 s42, s38, 4
            s_lshr_b32 s36, {sH}, 1
            s_add_u32 s42, s42, s36
            s_lshl_b32 s42, s42, 12
            s_and_b32 s33, {sH}, 1
            s_lshl_b32 s43, s33, 6
            s_add_u32 s42, s42, s43
            s_add_u32 s42, s42, {H5}
            s_lshl_b32 s43, s33, 4
            s_and_b32 s36, s36, 1
            s_lshl_b32 s36, s36, 11
            s_add_u32 s43, s43, s36
            s_lshr_b32 s36, {sH}, 4
            s_lshl_b32 s36, s36, 10
            s_add_u32 s43, s43, s36
            s_lshl_b32 s36, s38, 7
            s_add_u32 s43, s43, s36
            s_bfe_u32 s36, {sH}, 0x20002
            s_lshl_b32 s36, s36, 5
            s_add_u32 s43, s43, s36
            v_lshlrev_b32 v254, 2, v0""")
        if self.warm:
            sk = self.lab("wm")
            self.a(f"""s_cmp_lg_u32 {sW}, 7
                s_cbranch_scc1 {sk}
                s_and_b32 s33, s43, {0x70 if self.warm == 1 else 0x30}
                s_cbranch_scc1 {sk}
                s_waitcnt lgkmcnt(0)
                s_load_dword s33, s[28:29], s43 glc
                s_waitcnt lgkmcnt(0)
                {sk}:""")
        if role_b:
            self.a(f"""v_and_b32 v8, 1, v0
                s_add_u32 s33, {sB}, 8
                v_lshl_add_u32 v8, v8, 2, s33
                v_lshl_add_u32 v9, {sW}, 2, v2
                s_add_u32 s33, {sB}, 4
                s_cmp_eq_u32 {sW}, s33
                s_cselect_b64 s[60:61], 0, -1""")
        else:
            self.a(f"""v_mov_b32 v8, {sJ}
                v_mov_b32 v9, v0
                s_sub_u32 s59, {sB}, 1
                s_not_b32 s58, s59
                s_cmp_eq_u32 {sW}, {sT}
                s_cselect_b64 s[58:59], s[58:59], -1""")
        self.a(f"""v_mul_u32_u24 v238, 272, v8
            v_lshl_add_u32 v238, v9, 3, v238
            v_add_u32 v238, {HI}, v238
            v_mul_u32_u24 v239, 136, v8
            v_lshl_add_u32 v239, v9, 2, v239
            v_add_u32 v239, {HS}, v239""")

    def e2(self):
        a = self.a
        a("L_stageE2:")
        if self.diag and self.diag not in ('cyc', 'iter', 'fine', 'nowait', 'noW'):
            a("s_branch L_done")
        a(f"""s_cmp_eq_u64 s[58:59], 0
            s_cbranch_scc1 L_nowr
            s_mov_b64 exec, s[58:59]
            s_bitcmp1_b32 0x37, {sW}
            s_cbranch_scc0 L_nopoll
            {f's_waitcnt vmcnt({self.pw})' if self.pw is not None else ''}
            s_mov_b32 s37, {SPIN}
            L_h4:
            buffer_load_dwordx4 v[240:243], v245, {SRDW}, s40 offen sc1
            s_sub_u32 s37, s37, 1
            s_waitcnt vmcnt(0)
            s_cbranch_scc1 L_nopoll
            v_cmp_ne_u32 vcc, {sTAG}, v243
            s_cbranch_vccnz L_h4
            L_nopoll:
            ds_write_b64 v246, v[240:241]
            ds_write_b32 v247, v242
            s_mov_b64 exec, -1
            L_nowr:
            s_waitcnt vmcnt(0)
            L_e2bar:
            s_waitcnt lgkmcnt(0)
            s_barrier""")
        self.stamp(14)
        a("ds_read_b64 v[22:23], v249")
        for s in range(4):
            a(f"ds_read_b128 {vr(176 + 4 * s, 4)}, v248 offset:{64 * s}")
            for p in range(2):
                a(f"ds_read_b64_tr_b16 {vr(160 + 4 * s + 2 * p, 2)}, v244 offset:{4096 * s + 512 * p}")
        chain = [f"v_max_f32_dpp v8, v22, v22 quad_perm:[1,0,3,2] {FULL}\nv_max_f32_dpp v8, v8, v8 quad_perm:[2,3,0,1] {FULL}\nv_sub_f32 v8, v22, v8\nv_exp_f32 v8, v8",
                 "v_mul_f32 v9, v8, v23",
                 f"v_add_f32_dpp v9, v9, v9 quad_perm:[1,0,3,2] {FULL}",
                 f"v_add_f32_dpp v9, v9, v9 quad_perm:[2,3,0,1] {FULL}\nv_rcp_f32 v9, v9"]
        a("s_waitcnt lgkmcnt(12)")
        for s in range(4):
            c = "0" if s == 0 else "v[208:211]"
            a(chain[s])
            a(f"s_waitcnt lgkmcnt({9 - 3 * s})")
            a(f"v_mfma_f32_16x16x32_bf16 v[208:211], {vr(176 + 4 * s, 4)}, {vr(160 + 4 * s, 4)}, {c}")
        a("v_mul_f32 v8, v8, v9")
        for r in range(3):
            a(f"v_mov_b32_dpp v{10 + r}, v8 row_newbcast:{r} row_mask:0x1 bank_mask:0xf")
            a(f"v_mov_b32_dpp v{10 + r}, v8 row_newbcast:{4 + r} row_mask:0x2 bank_mask:0xf")
        self.exec64(0xffffffff, 0)
        a(f"""v_mul_f32 v252, v10, v208
            v_fmac_f32 v252, v11, v209
            v_fmac_f32 v252, v12, v210
            buffer_store_dwordx2 v[252:253], v250, {SRDW}, s41 offen sc1
            s_mov_b64 exec, -1""")
        self.stamp(15)
        Wd = self.wide
        a(f"""s_cmp_lg_u32 {sW}, {self.rw}
            s_cbranch_scc1 L_done
            s_and_b32 s33, {sH}, {1 | (Wd - 1) << 2}
            s_cbranch_scc1 L_done
            s_mov_b32 s37, {SPIN}""")
        for k in range(1, Wd):
            a(f"s_add_u32 s{63 + k}, s42, {8192 * k}")
        a("L_fp:")
        for k in range(4 * Wd):
            a(f"buffer_load_dwordx4 {vr(64 + 4 * k, 4)}, v16, {SRDW}, {f's{63 + k // 4}' if k > 3 else 's42'} offen offset:{1024 * (k & 3)} sc1")
        a("s_sub_u32 s37, s37, 1")
        for b in range(Wd):
            r = 64 + 16 * b
            a(f"""s_waitcnt vmcnt({4 * (Wd - 1 - b)})
                v_bitop3_b32 v10, v{r + 1}, v{r + 3}, {sTAG} bitop3:0x7e
                v_bitop3_b32 v11, v{r + 5}, v{r + 7}, {sTAG} bitop3:0x7e
                v_bitop3_b32 v12, v{r + 9}, v{r + 11}, {sTAG} bitop3:0x7e
                v_bitop3_b32 v13, v{r + 13}, v{r + 15}, {sTAG} bitop3:0x7e
                v_add_f32 v{20 + 2 * b}, v{r}, v{r + 4}
                v_or3_b32 v10, v10, v11, v12
                v_add_f32 v{21 + 2 * b}, v{r + 2}, v{r + 6}
                {'v_or3_b32 v9, v9, v10, v13' if b else 'v_or_b32 v9, v10, v13'}
                v_add_f32 v14, v{r + 8}, v{r + 12}
                v_add_f32 v15, v{r + 10}, v{r + 14}""")
            if b == Wd - 1:
                a("v_cmp_ne_u32 vcc, 0, v9")
            a(f"v_pk_add_f32 {vr(20 + 2 * b, 2)}, {vr(20 + 2 * b, 2)}, v[14:15]")
        if self.fmask:
            a("s_cbranch_scc1 L_fok\ns_cbranch_vccz L_fok\ns_mov_b64 exec, vcc\ns_branch L_fp\nL_fok:\ns_mov_b64 exec, -1")
        else:
            a("s_cbranch_scc1 L_fok\ns_cbranch_vccnz L_fp\nL_fok:")
        self.stamp(16)
        for b in range(Wd):
            a(f"v_permlane32_swap_b32 v{20 + 2 * b}, v{21 + 2 * b}")
        for b in range(Wd):
            a(f"v_add_f32 v{20 + 2 * b}, v{20 + 2 * b}, v{21 + 2 * b}")
        if Wd == 1:
            a(f"v_add_f32_dpp v8, v20, v20 row_ror:8 {FULL}\nv_mov_b32 v9, v8")
        else:
            for k in range(Wd // 2):
                a(f"v_add_f32_dpp v{8 + k}, v{20 + 4 * k}, v{20 + 4 * k} row_ror:8 row_mask:0xf bank_mask:0x3")
                a(f"v_add_f32_dpp v{8 + k}, v{22 + 4 * k}, v{22 + 4 * k} row_ror:8 row_mask:0xf bank_mask:0xc")
            if Wd == 2:
                a("v_mov_b32 v9, v8")
        a(f"""v_permlane16_swap_b32 v8, v9
            v_add_f32 v10, v8, v9
            v_add_f32 v11, v8, v9
            v_permlane32_swap_b32 v10, v11""")
        self.exec64((1 << 8 * Wd) - 1, 0)
        a(f"""v_cvt_pk_bf16_f32 v8, v10, v11
            buffer_store_dword v8, v254, {SRDX}, s43 offen {self.outfl}
            L_done:""")
        if self.calib:
            a(f"""L_cal:
                s_memrealtime s[98:99]
                s_waitcnt lgkmcnt(0)
                s_sub_u32 s98, s98, s96
                s_cmp_lt_u32 s98, {self.calib * 100}
                s_cbranch_scc1 L_cal""")
        if self.amp:
            k, roles, neg = self.amp
            a("s_mov_b64 exec, -1")
            self.stamp(17)
            a(f"""s_nop 1
                v_readlane_b32 s33, v63, {k}
                s_lshr_b32 s36, {roles}, {sT}
                s_and_b32 s36, s36, 1
                s_cselect_b32 s33, s33, 0
                s_cmp_eq_u32 s33, 0
                s_cselect_b32 s38, 0, 1
                s_cselect_b32 s33, s96, s33
                s_sub_u32 s33, s33, s96
                {'s_sub_u32 s33, 2500, s33' if neg else ''}
                s_mul_i32 s33, s33, s38
                s_mul_i32 s33, s33, 10
                s_add_u32 s33, s33, 3000
                L_amp:
                s_memrealtime s[98:99]
                s_waitcnt lgkmcnt(0)
                s_sub_u32 s98, s98, s96
                s_cmp_lt_u32 s98, s33
                s_cbranch_scc1 L_amp""")
        elif self.dbg:
            a("s_mov_b64 exec, -1")
            self.stamp(17)
            a(f"""s_getreg_b32 s33, hwreg(HW_REG_XCC_ID)
                v_writelane_b32 v63, s33, 31
                s_getreg_b32 s33, hwreg(HW_REG_HW_ID)
                v_writelane_b32 v63, s33, 28
                s_lshl_b32 s33, s2, 3
                s_add_u32 s33, s33, {sW}
                s_lshl_b32 s33, s33, 7
                s_add_u32 s33, s33, {STAMP}
                v_lshlrev_b32 v7, 2, v0""")
            self.exec64(0xffffffff, 0)
            a(f"buffer_store_dword v63, v7, {SRDW}, s33 offen")

    def role_b(self):
        a = self.a
        D = self.bdepth
        QAR, FR, O, S2, S3, PF, S = 64, 128, 160, 192, 224, 32, 48
        a("L_roleB:")
        a("s_mov_b64 s[16:17], s[70:71]\ns_mov_b32 s18, 0x400000")
        self.second_batch(lambda: None, 0, self.sd[2])
        self.load_e2_ptr()
        for i in range(8):
            a(f"s_waitcnt vmcnt({D - 1})\ns_add_u32 m0, s44, {dest(i) + 16384}\ns_nop 0")
            a(f"buffer_load_dwordx4 v{3 + (i & 1)}, {SRD0}, s43 offen nt lds\ns_add_u32 s43, s43, s41")
        self.stamp(1)

        def stage(i):
            a(f"s_add_u32 s33, s43, {(262144 if self.bx else 8192) * i}\nbuffer_load_dwordx4 {vr(S2 + 4 * (i if i < 4 else i - 8 if i >= 12 else i + 4), 4)}, v{3 + (i & 1)}, {SRD0}, s33 offen nt")

        def late(i, wait=None):
            sk = self.lab("lt")
            a(f"s_cmp_le_u32 s62, {i}\ns_cbranch_scc1 {sk}")
            if wait is not None:
                a(f"s_waitcnt vmcnt({wait})")
            stage(i)
            a(f"{sk}:")

        a(f"""s_and_b32 s54, {sW}, 3
            s_lshr_b32 s55, {sW}, 2
            v_and_b32 v7, 3, v1
            v_lshlrev_b32 v7, 2, v7
            v_lshrrev_b32 v8, 2, v1
            v_or_b32 v7, v7, v8
            v_lshlrev_b32 v7, 4, v7
            v_lshl_add_u32 v7, v2, 8, v7
            v_lshl_add_u32 v7, v1, 10, v7
            s_lshl_b32 s33, s54, 15
            v_add_u32 v28, s33, v7
            v_lshlrev_b32 v7, 4, v1
            v_lshl_add_u32 v7, v2, 8, v7
            v_lshl_add_u32 v7, v1, 10, v7
            s_lshl_b32 s33, s55, 14
            s_add_u32 s33, s33, {AUX}
            v_add_u32 v29, s33, v7
            v_lshrrev_b32 v9, 1, v2
            v_and_b32 v10, 1, v2
            v_bfe_u32 v11, v0, 1, 1
            v_lshl_or_b32 v11, v10, 1, v11
            s_lshl_b32 s33, {sW}, 3
            v_or_b32 v11, s33, v11
            v_lshlrev_b32 v12, 2, v8
            v_lshl_or_b32 v12, v9, 1, v12
            v_xor_b32 v11, v11, v12
            v_lshlrev_b32 v11, 4, v11
            v_lshl_add_u32 v12, v9, 3, v8
            v_lshl_add_u32 v11, v12, 10, v11
            v_and_b32 v12, 1, v0
            v_lshl_add_u32 v20, v12, 3, v11
            v_xor_b32 v21, 16, v20
            v_add_u32 v21, 4096, v21
            v_xor_b32 v22, 64, v20
            v_xor_b32 v23, 64, v21""")
        for k in range(4):
            a(f"v_add_u32 v{24 + k}, 65536, v{20 + k}")
        a(f"""s_lshl_b32 s33, s55, 8
            s_add_u32 s33, s33, {MX}
            v_lshl_add_u32 v30, v1, 4, s33
            s_lshl_b32 s33, s54, 2
            v_add_u32 v31, s33, v30
            v_and_b32 v7, 31, v0
            v_lshlrev_b32 v56, 4, v7
            v_add_u32 v56, {MX}, v56
            v_mul_u32_u24 v60, 272, v7
            v_lshl_add_u32 v60, v9, 4, v60
            v_add_u32 v60, {PB}, v60
            v_mul_u32_u24 v61, 272, v1
            v_lshl_add_u32 v61, v2, 3, v61
            s_mul_i32 s33, s55, {16 * 272}
            s_lshl_b32 s36, s54, 6
            s_add_u32 s33, s33, s36
            s_add_u32 s33, s33, {PB}
            v_add_u32 v61, s33, v61
            v_add_u32 v19, s44, v16
            v_add_u32 v62, 65536, v19
            v_mov_b32 v57, {NEGBIG:#x}
            v_mov_b32 v58, {NEGBIG:#x}
            v_mov_b32 v59, 0
            v_lshlrev_b32 v7, 1, v2
            v_xor_b32 v7, v7, v1
            v_lshlrev_b32 v7, 4, v7
            v_lshl_add_u32 v5, v2, 13, v7
            v_xor_b32 v6, 128, v5
            s_lshl_b32 s45, {sB}, 21
            s_lshl_b32 s36, {sW}, 18
            s_add_u32 s45, s45, s36
            s_lshl_b32 s36, {sH}, 8
            s_add_u32 s45, s45, s36""")
        for k in range(32):
            a(f"v_mov_b32 v{O + k}, 0")
        a("; ---- keep streaming until the absorbed queries are flagged, then copy them into LDS")
        a(f"""s_lshl_b32 s33, {sH}, 1
            s_add_u32 s33, s33, {sB}
            s_lshl_b32 s33, s33, 3
            s_add_u32 s33, s33, {sW}
            s_lshl_b32 s33, s33, 7
            s_add_u32 s33, s33, {F2}
            s_add_u32 s34, s12, s33
            s_addc_u32 s35, s13, 0
            s_lshl_b32 s49, {sB}, 15
            s_lshl_b32 s36, {sW}, 12
            s_add_u32 s49, s49, s36
            s_add_u32 s49, s49, {QABS}
            s_add_u32 s50, s36, {AUX}
            s_mov_b32 s60, {sTAG}
            s_mov_b32 s61, {sTAG}""")

        def flags_differ():
            for k in range(4):
                a(f"s_xor_b64 s[{64 + 2 * k}:{65 + 2 * k}], s[{64 + 2 * k}:{65 + 2 * k}], s[60:61]")
            a("s_or_b64 s[64:65], s[64:65], s[66:67]\ns_or_b64 s[68:69], s[68:69], s[70:71]\ns_or_b64 s[64:65], s[64:65], s[68:69]")
        for i in range(15, 15 - self.bmax, -2):
            chk = 17 - i >= self.bmin
            if chk:
                a("s_load_dwordx8 s[64:71], s[34:35], 0 glc")
            for k in (i, i - 1):
                a(f"s_waitcnt vmcnt({D - 1})")
                stage(k)
            if chk:
                a(f"s_mov_b32 s62, {i - 1}\ns_waitcnt lgkmcnt(0)")
                flags_differ()
                a("s_cbranch_scc0 L_h2ok")
        self.stamp(2)
        a(f"""s_mov_b32 s62, {16 - self.bmax}
            s_mov_b32 s37, {SPIN}
            L_h2:
            s_load_dwordx8 s[64:71], s[34:35], 0 glc
            s_sub_u32 s37, s37, 1
            s_waitcnt lgkmcnt(0)
            s_cbranch_scc1 L_h2ok""")
        flags_differ()
        a("s_cbranch_scc1 L_h2")
        a("L_h2ok:")
        self.stamp(3)
        def qcopy():
            a(f"""s_lshl_b32 s33, s54, 6
                v_xor_b32 v12, s33, v16
                v_xor_b32 v13, 16, v12
                v_xor_b32 v14, 32, v12
                v_xor_b32 v15, 48, v12
                s_mov_b32 m0, s50""")
            for i in range(4):
                a(f"buffer_load_dwordx4 v{12 + i}, {SRDW}, s49 offen offset:{1024 * i} sc1 lds")

        def qread():
            for s in range(16):
                a(f"v_xor_b32 v7, {s << 4}, v29\nds_read_b128 {vr(QAR + 4 * s, 4)}, v7")
        qcopy()
        a("s_barrier")
        for i in range(4):
            a(f"s_waitcnt vmcnt({D + 1})")
            stage(i)
        a("s_waitcnt vmcnt(4)\ns_barrier")
        self.stamp(4)
        a("s_mov_b32 s37, 4096\nL_qa:")
        qread()
        a("s_waitcnt lgkmcnt(0)\ns_barrier")

        def put(reg, sig):
            for i in range(8):
                d = dest(i) + 16384 * sig
                a(f"ds_write_b128 v{62 if d >> 16 else 19}, {vr(reg + 4 * i, 4)} offset:{d & 0xffff}")

        def step(t, sigs, hook):
            ns = len(sigs)
            a(f"; ---- {64 * ns} keys: scores, online softmax, weighted sum of latents")
            blocks = [2 * kb + sg for kb in range(4) for sg in sigs]

            def rd(r):
                if r % ns == 0:
                    a(f"v_xor_b32 v7, {(r // ns) << 4}, v28")
                a(f"ds_read_b128 {vr(FR + 4 * (r & 7), 4)}, v7 offset:{16384 * sigs[r % ns]}")

            def tr(n, blk):
                be = blocks[n]
                for p in range(2):
                    ar = 20 + 4 * (be >> 2) + 2 * blk + p
                    a(f"ds_read_b64_tr_b16 {vr(FR + 8 * (n & 3) + 4 * blk + 2 * p, 2)}, v{ar} offset:{(be & 3) * 16384}")

            def pread(n):
                a(f"ds_read_b128 {vr(PF + 4 * (n & 3), 4)}, v60 offset:{32 * blocks[n]}")
            nr = 16 * ns
            for r in range(8):
                rd(r)
            for r in range(nr):
                a(f"s_waitcnt lgkmcnt({min(7, nr - 1 - r)})")
                acc = vr(S + 4 * (r % ns), 4)
                a(f"v_mfma_f32_16x16x32_bf16 {acc}, {vr(FR + 4 * (r & 7), 4)}, {vr(QAR + 4 * (r // ns), 4)}, {'0' if r < ns else acc}")
                hook("qk", r)
                if r + 8 < nr:
                    rd(r + 8)
            a(f"v_max3_f32 v7, v{S}, v{S + 1}, v{S + 2}")
            if ns == 2:
                a(f"v_max3_f32 v8, v{S + 4}, v{S + 5}, v{S + 6}\nv_max3_f32 v7, v7, v{S + 3}, v{S + 7}\nv_max_f32 v7, v7, v8")
            else:
                a(f"v_max_f32 v7, v7, v{S + 3}")
            for sw in ("v_permlane16_swap_b32", "v_permlane32_swap_b32"):
                a(f"v_mov_b32 v8, v7\n{sw} v8, v7\nv_max_f32 v7, v7, v8")
            a("""v_mul_f32 v7, s52, v7
                ds_write_b32 v31, v7""")
            for n in range(3):
                tr(n, 0); tr(n, 1)
            a("""s_waitcnt lgkmcnt(12)
                s_barrier
                ds_read_b128 v[8:11], v30
                ds_read_b128 v[12:15], v56
                s_waitcnt lgkmcnt(0)""")
            tr(3, 0); tr(3, 1)
            if t == 0 and self.noack and 'nowait' not in self.diag:
                a("v_cmp_u_f32 vcc, v12, v12\ns_cbranch_vccnz L_qretry\nL_qaok:")
                if self.dbg is True:
                    a("s_sub_u32 s33, 4096, s37\nv_writelane_b32 v63, s33, 29")
            a("v_max3_f32 v8, v8, v9, v10\nv_max3_f32 v8, v8, v11, v57")
            for r in range(4 * ns):
                a(f"v_fma_f32 v{S + r}, v{S + r}, s52, -v8")
            for r in range(4 * ns):
                a(f"v_exp_f32 v{S + r}, v{S + r}")
            a("v_max3_f32 v12, v12, v13, v14")
            for r in range(2 * ns):
                a(f"v_cvt_pk_bf16_f32 v{PF + r}, v{S + 2 * r}, v{S + 2 * r + 1}")
            for k, sg in enumerate(sigs):
                a(f"ds_write_b64 v61, {vr(PF + 2 * k, 2)} offset:{32 * sg}")
            a(f"""v_sub_f32 v9, v57, v8
                v_max3_f32 v12, v12, v15, v58
                v_exp_f32 v9, v9
                v_sub_f32 v14, v58, v12
                v_mov_b32 v57, v8
                v_exp_f32 v14, v14
                v_mov_b32 v58, v12
                v_pk_add_f32 {vr(S, 2)}, {vr(S, 2)}, {vr(S + 2, 2)}""")
            if ns == 2:
                a(f"v_pk_add_f32 {vr(S + 4, 2)}, {vr(S + 4, 2)}, {vr(S + 6, 2)}\nv_pk_add_f32 {vr(S, 2)}, {vr(S, 2)}, {vr(S + 4, 2)}")
            a(f"v_fma_f32 v59, v59, v9, v{S}\nv_add_f32 v59, v59, v{S + 1}")
            if t == 2:
                for sw in ("v_permlane16_swap_b32", "v_permlane32_swap_b32"):
                    a(f"v_mov_b32 v8, v59\n{sw} v8, v59\nv_add_f32 v59, v59, v8")
                a(f"ds_write_b32 v31, v59 offset:{LS - MX}")

            def rescale(lo, hi):
                if t:
                    for k in range(lo, hi):
                        a(f"v_pk_mul_f32 {vr(O + 2 * k, 2)}, {vr(O + 2 * k, 2)}, v[14:15] op_sel_hi:[1,0]")
            rescale(0, 6)
            a("s_waitcnt lgkmcnt(0)\ns_barrier")
            for n in range(4):
                pread(n)
            rescale(6, 16)
            for n in range(4 * ns):
                if ns == 1:
                    a(f"s_waitcnt lgkmcnt({3 - n})")
                elif n in (0, 5, 6, 7):
                    a(f"s_waitcnt lgkmcnt({ {0: 0, 5: 10, 6: 5, 7: 0}[n] })")
                if n == 7:
                    a("s_barrier")
                for blk in range(2):
                    a(f"v_mfma_f32_32x32x16_bf16 {vr(O + 16 * blk, 16)}, {vr(FR + 8 * (n & 3) + 4 * blk, 4)}, {vr(PF + 4 * (n & 3), 4)}, {vr(O + 16 * blk, 16)}")
                hook("pv", n)
                if ns == 2 and n < 4:
                    if n == 3:
                        a("s_waitcnt lgkmcnt(10)")
                    pread(n + 4)
                    tr(n + 4, 0); tr(n + 4, 1)

        def uv(i):
            a(f"buffer_load_dwordx4 {vr(S2 + 4 * i, 4)}, v{5 + (i & 1)}, {SRDK}, s45 offen nt\ns_add_u32 s45, s45, 32768")

        def hook0(ph, r):
            if ph == "qk" and r in self.hookpos:
                late(4 + self.hookpos.index(r))
            if ph == "pv" and r in (0, 2, 4, 6):
                late(8 + r // 2)
        step(0, (0, 1), hook0)
        self.stamp(5)
        for n in (8, 6, 4, 2):
            a(f"s_waitcnt vmcnt({n})\ns_cmp_eq_u32 s62, {n + 4}\ns_cbranch_scc1 L_mid")
        a("s_waitcnt vmcnt(0)\nL_mid:")
        put(S2, 0)
        a(f"""s_lshl_b32 s50, s55, 15
            s_lshl_b32 s36, s54, 12
            s_add_u32 s50, s50, s36
            s_add_u32 s50, s50, {PART[0]}
            v_and_b32 v7, 31, v0
            v_and_b32 v8, 7, v0
            v_lshlrev_b32 v9, 4, v8
            v_lshl_add_u32 v9, v7, 7, v9
            v_lshrrev_b32 v10, 5, v0
            v_lshl_add_u32 v9, v10, 3, v9
            v_add_u32 v3, s50, v9
            v_lshrrev_b32 v10, 3, v0
            v_xor_b32 v11, v8, v10
            v_lshlrev_b32 v11, 4, v11
            v_lshl_add_u32 v11, v10, 7, v11
            v_add_u32 v4, s50, v11
            v_lshlrev_b32 v12, 4, v8
            v_lshl_add_u32 v29, v10, 16, v12
            v_lshlrev_b32 v17, 10, v0
            v_mov_b32 v18, 0x10001
            v_mov_b32 v54, {sTAG}
            v_mov_b32 v55, {sTAG}
            s_lshl_b32 s49, s55, 15
            s_lshl_b32 s36, {sB}, 14
            s_add_u32 s49, s49, s36
            s_lshl_b32 s36, {sH}, 9
            s_add_u32 s49, s49, s36
            s_lshl_b32 s36, s54, 7
            s_add_u32 s49, s49, s36
            s_add_u32 s49, s49, {OP}
            s_lshl_b32 s53, {sB}, 9
            s_lshl_b32 s36, {sH}, 4
            s_add_u32 s53, s53, s36
            s_add_u32 s53, s53, {ST}""")
        for k in range(4):
            a(f"s_bfe_u32 s33, {sTAG}, {0x20000 + 2 * k:#x}\ns_mul_i32 s33, s33, 0x8001\ns_and_b32 s{56 + k}, s33, 0x10001")
        a("s_waitcnt lgkmcnt(0)\ns_barrier")
        self.stamp(6)
        u0, u1, u2 = self.uva
        for i in range(u0):
            uv(i)
        step(1, (0,), lambda ph, r: uv(u0 + r - 4 + u1) if ph == "pv" and r >= 4 - u1 else None)
        a(f"s_waitcnt vmcnt({u0 + u1})")
        put(S3, 1)
        for i in range(u2):
            uv(u0 + u1 + i)
        a("s_waitcnt lgkmcnt(0)\ns_barrier")
        self.stamp(7)
        step(2, (1,), lambda ph, r: None)
        self.stamp(8)
        for k in range(1, 8):
            a(f"v_xor_b32 v{S3 + k}, {16 * k}, v3")
        if 'Bstop8' in self.diag:
            a("s_branch L_done")
        def stats():
            a(f"""s_cmp_lg_u32 {sW}, 0
                s_cbranch_scc1 L_nost
                ds_read_b128 v[8:11], v56 offset:{LS - MX}
                v_mov_b32 v52, v58
                s_waitcnt lgkmcnt(0)
                v_add_f32 v8, v8, v9
                v_add_f32 v10, v10, v11
                v_add_f32 v53, v8, v10""")
            self.exec64(0xffffffff, 0)
            a(f"buffer_store_dwordx4 v[52:55], v17, {SRDW}, s53 offen sc1\ns_mov_b64 exec, -1\nL_nost:")
        if not self.stlate:
            stats()
        a("s_nop 5")
        if 'slowp' in self.test:
            a(f"s_and_b32 s33, {sW}, {sH}\ns_cbranch_scc0 L_tp\ns_sleep 127\ns_sleep 127\nL_tp:")
        for k in range(8):
            a(f"v_cvt_pk_bf16_f32 v{FR + 2 * k}, v{O + 4 * k}, v{O + 4 * k + 1}")
            a(f"v_cvt_pk_bf16_f32 v{FR + 2 * k + 1}, v{O + 4 * k + 2}, v{O + 4 * k + 3}")
            a(f"ds_write_b64 v{S3 + k if k else 3}, {vr(FR + 2 * k, 2)}")
        for i in range(4):
            a(f"ds_read_b128 {vr(FR + 16 + 4 * i, 4)}, v4 offset:{1024 * i}")
        for i in range(4):
            a(f"s_waitcnt lgkmcnt({3 - i})")
            for k in range(4):
                a(f"v_bfi_b32 v{FR + 16 + 4 * i + k}, v18, s{56 + k}, v{FR + 16 + 4 * i + k}")
            a(f"{'' if i < self.nst else ';'}buffer_store_dwordx4 {vr(FR + 16 + 4 * i, 4)}, v29, {SRDW}, s49 offen {self.pfl}\ns_add_u32 s49, s49, {8 * 65536}")
        if self.stlate:
            stats()
        self.stamp(9)
        for i in range(sum(self.uva), 8):
            uv(i)
        self.e2_dma_setup()
        if self.e2s and self.sbar:
            a("s_barrier")
        for i in range(self.e2s):
            self.e2_dma(i)
        a(f"""s_lshl_b32 s33, {sH}, 10
            s_lshl_b32 s36, {sW}, 7
            s_add_u32 s33, s33, s36
            s_add_u32 s33, s33, {ST}
            s_add_u32 s34, s12, s33
            s_addc_u32 s35, s13, 0
            v_lshrrev_b32 v7, 5, v0
            s_and_b32 s33, {sW}, 1
            s_lshl_b32 s33, s33, 2
            v_or_b32 v7, s33, v7
            v_lshlrev_b32 v7, 5, v7
            v_xor_b32 v3, v7, v16
            v_xor_b32 v4, 64, v3
            s_lshl_b32 s49, {sH}, 16
            s_lshl_b32 s36, {sB}, 15
            s_add_u32 s49, s49, s36
            s_lshl_b32 s36, {sW}, 12
            s_add_u32 s49, s49, s36
            s_add_u32 s49, s49, {OP}
            v_add_u32 v5, s50, v16
            v_lshrrev_b32 v8, 2, v1
            v_lshrrev_b32 v9, 1, v2
            v_and_b32 v10, 1, v2
            v_lshlrev_b32 v7, 15, v9
            v_lshl_add_u32 v7, v10, 13, v7
            v_lshl_add_u32 v7, v8, 8, v7
            v_and_b32 v11, 3, v0
            v_lshl_add_u32 v7, v11, 3, v7
            v_lshl_or_b32 v10, v10, 2, v8
            v_xor_b32 v9, {sW}, v10
            v_lshl_add_u32 v20, v9, 5, v7
            v_add_u32 v21, 65536, v20
            v_lshlrev_b32 v7, 12, v2
            v_lshl_add_u32 v7, v8, 9, v7
            v_lshl_add_u32 v7, v11, 3, v7
            s_lshl_b32 s33, {sW}, 1
            v_xor_b32 v10, s33, v10
            v_lshl_add_u32 v7, v10, 5, v7
            v_add_u32 v24, {PART[0]}, v7
            v_xor_b32 v25, 32, v24
            s_lshl_b32 s33, {sW}, 7
            s_add_u32 s36, s33, {WB}
            v_lshl_add_u32 v22, v0, 1, s36
            v_and_b32 v8, 1, v0
            v_lshlrev_b32 v7, 6, v8
            v_lshl_add_u32 v7, v2, 4, v7
            v_add_u32 v23, s36, v7
            v_add_u32 v27, {CC}, v7
            v_add_u32 v26, s33, v27
            v_lshlrev_b32 v7, 11, v8
            v_lshl_add_u32 v28, v2, 4, v7
            s_lshl_b32 s53, {sH}, 12
            s_lshl_b32 s36, {sB}, 9
            s_add_u32 s53, s53, s36
            s_lshl_b32 s36, {sW}, 6
            s_add_u32 s53, s53, s36
            s_add_u32 s53, s53, {H4B}
            s_add_u32 s36, s36, {SM}
            v_lshl_add_u32 v29, v0, 3, s36
            v_lshlrev_b32 v30, 3, v0
            v_add_u32 v30, {SM}, v30
            v_and_b32 v7, 1, v2
            v_cvt_f32_u32 v54, v7
            v_mul_f32 v54, 0.5, v54
""")
        if 'Bstop9' in self.diag:
            a("s_branch L_done")
        self.e2_setup(True)
        a(f"""s_mov_b32 s37, {SPIN}
            L_h3:
            {f's_sleep {self.ps[1]}' if self.ps[1] else ''}
            s_load_dwordx16 s[64:79], s[34:35], 0 glc
            s_load_dwordx16 s[80:95], s[34:35], 64 glc
            s_sub_u32 s37, s37, 1
            s_waitcnt lgkmcnt(0)
            s_cbranch_scc1 L_h3ok""")
        for k in range(8):
            a(f"s_cmp_lg_u32 s{66 + 4 * k}, {sTAG}\ns_cbranch_scc1 L_h3")
        a("L_h3ok:")
        self.stamp(10)

        def fetch():
            for i in range(4):
                a(f"buffer_load_dwordx4 {vr(O + 4 * i, 4)}, v{3 + (i & 1)}, {SRDW}, s49 offen offset:{1024 * i} {self.gfl}")
        fetch()
        a("s_waitcnt vmcnt(4)")
        put(S2, 0)
        for k in range(8):
            a(f"v_writelane_b32 v8, s{64 + 4 * k}, {k}\nv_writelane_b32 v9, s{65 + 4 * k}, {k}")
        a("""s_mov_b64 exec, 0xff
            ds_write_b64 v29, v[8:9]
            s_mov_b64 exec, -1
            s_waitcnt lgkmcnt(0)
            s_barrier
            ds_read_b64 v[12:13], v30""")
        for s in range(7):
            for p in range(2):
                a(f"ds_read_b64_tr_b16 {vr(QAR + 4 * s + 2 * p, 2)}, v{20 + p} offset:{1024 * s}")
        a("s_waitcnt lgkmcnt(14)\nv_mov_b32 v14, v12")

        def red32(op, r, t):
            for sh in (1, 2, 4, 8):
                a(f"{op}_dpp v{r}, v{r}, v{r} row_ror:{sh} {FULL}")
            a(f"v_mov_b32 v{t}, v{r}\nv_permlane16_swap_b32 v{t}, v{r}\n{op} v{r}, v{r}, v{t}")
        red32("v_max_f32", 14, 15)
        for p in range(2):
            a(f"ds_read_b64_tr_b16 {vr(QAR + 28 + 2 * p, 2)}, v{20 + p} offset:{1024 * 7}")
        a("v_sub_f32 v12, v12, v14\nv_exp_f32 v12, v12\nv_mul_f32 v13, v12, v13")
        red32("v_add_f32", 13, 15)
        a(f"""v_rcp_f32 v13, v13
            v_mul_f32 v12, v12, v13
            v_cvt_pk_bf16_f32 v12, v12, v12
            ds_write_b16 v22, v12
            ds_read_b128 v[12:15], v23
            v_cmp_eq_u32 vcc, 0, v1
            v_cmp_eq_u32 s[38:39], 1, v1
            s_mov_b32 s37, {SPIN}
            s_waitcnt lgkmcnt(0)""")
        for k in range(4):
            a(f"v_cndmask_b32 v{32 + k}, 0, v{12 + k}, vcc")
            a(f"v_cndmask_b32 v{36 + k}, 0, v{12 + k}, s[38:39]")
        a(f"""L_h3p:
            s_waitcnt vmcnt(0)
""")
        for k in range(4):
            a(f"v_bitop3_b32 v{8 + 2 * k}, v{O + k}, v{O + 4 + k}, s{56 + k} bitop3:0x7e")
            a(f"v_bitop3_b32 v{9 + 2 * k}, v{O + 8 + k}, v{O + 12 + k}, s{56 + k} bitop3:0x7e")
        a(f"""v_or3_b32 v8, v8, v9, v10
            v_or3_b32 v11, v11, v12, v13
            v_or3_b32 v8, v8, v14, v15
            v_or_b32 v8, v8, v11
            v_and_b32 v8, 0x10001, v8
            v_cmp_ne_u32 vcc, 0, v8
            s_cbranch_vccz L_h3pok
            s_sub_u32 s37, s37, 1
            s_cbranch_scc1 L_h3pok""")
        fetch()
        a("s_branch L_h3p\nL_h3pok:")
        for i in range(4):
            a(f"ds_write_b128 v5, {vr(O + 4 * i, 4)} offset:{1024 * i}")
        if self.dbg is True:
            a(f"s_sub_u32 s33, {SPIN}, s37\nv_writelane_b32 v63, s33, 30")
        a("s_waitcnt lgkmcnt(0)\ns_barrier")
        self.stamp(11)
        for s in range(2):
            for cb in range(2):
                for p in range(2):
                    a(f"ds_read_b64_tr_b16 {vr(FR + 8 * s + 4 * cb + 2 * p, 2)}, v{24 + cb} offset:{32768 * s + 2048 * p}")
        if self.e2b == 0:
            for i in range(self.e2s, 4):
                self.e2_dma(i)
        for s in range(2):
            for cb in range(2):
                a(f"s_waitcnt lgkmcnt({6 - 4 * s - 2 * cb})")
                c = "0" if s == 0 else vr(40 + 4 * cb, 4)
                a(f"v_mfma_f32_16x16x32_bf16 {vr(40 + 4 * cb, 4)}, {vr(FR + 8 * s + 4 * cb, 4)}, {vr(32 + 4 * s, 4)}, {c}")
        for k in range(4):
            a(f"v_cvt_pk_bf16_f32 v{48 + k}, v{40 + 2 * k}, v{41 + 2 * k}")
        self.exec64(0x00030003)
        a("ds_write_b128 v26, v[48:51]\ns_mov_b64 exec, -1\ns_waitcnt lgkmcnt(0)\ns_barrier")
        for s in range(8):
            a(f"ds_read_b128 {vr(FR + 4 * s, 4)}, v27 offset:{128 * s}")
        for s in range(8):
            a(f"s_waitcnt lgkmcnt({7 - s})")
            a(f"v_mfma_f32_16x16x32_bf16 v[40:43], {vr(QAR + 4 * s, 4)}, {vr(FR + 4 * s, 4)}, {'v[40:43]' if s else '0'}")
        self.exec64(0x00030003)
        a("v_cvt_pk_bf16_f32 v52, v40, v41\nv_cvt_pk_bf16_f32 v53, v42, v43")
        a(f"buffer_store_dwordx4 v[52:55], v28, {SRDW}, s53 offen sc1")
        a("ds_write_b64 v238, v[52:53]\nds_write_b32 v239, v54\ns_mov_b64 exec, -1\ns_mov_b64 s[58:59], s[60:61]")
        a(f"""s_or_b32 s33, {sH}, {sB}
            s_xor_b32 s36, {sW}, 6
            s_or_b32 s33, s33, s36
            s_cbranch_scc1 L_noep
            s_mov_b64 exec, 1
            buffer_store_dword v253, off, {SRDW}, 0 offset:{EPOCH} sc1
            s_mov_b64 exec, -1
            L_noep:""")
        self.stamp(12)
        if self.e2b == 1:
            for i in range(self.e2s, 4):
                self.e2_dma(i)
        a("s_branch L_stageE2")
        if self.noack and 'nowait' not in self.diag:
            a("L_qretry:\ns_sub_u32 s37, s37, 1\ns_cbranch_scc1 L_qaok\ns_waitcnt lgkmcnt(0)\ns_barrier")
            qcopy()
            a("s_waitcnt vmcnt(0)\ns_barrier\ns_branch L_qa")

    def build(self):
        a = self.a
        self.entry()
        self.p1()
        a("L_rolePU:")
        self.p2()
        self.a_common()
        self.e2()
        a("s_endpgm")
        a("; ==== type 3: latent attention")
        self.role_b()
        a("L_end:\ns_endpgm")
        if 'fine' in self.diag:
            a.stamp_loads()
        body = a.finalize().replace(" nt lds", f" {self.sfl} lds").replace(" nt\n", f" {self.sfl}\n")
        return f"""{HEADER};
; One persistent launch: 256 workgroups of 8 waves, one per CU, 8 workgroups per head h; j = 4*b + type.
;   type 2    absorbed query q.W_uk^T for one half of the latent axis, then a third of the K/V window of (b, h)
;   type 3    latent attention of batch b over 256 keys for all heads, then combine + W_uv for one latent half
; @launch grid=(256,1,1) block=(512,1,1) lds={LDS_BYTES}
.amdgcn_target "amdgcn-amd-amdhsa--gfx950"
.text
.globl {NAME}
.p2align 8
.type {NAME},@function
{NAME}:
{body}.section .rodata,"a"
.p2align 6
.amdhsa_kernel {NAME}
  .amdhsa_next_free_vgpr 256
  .amdhsa_next_free_sgpr 102
  .amdhsa_accum_offset 256
  .amdhsa_group_segment_fixed_size 0
  .amdhsa_kernarg_size 112
  .amdhsa_user_sgpr_count 2
  .amdhsa_user_sgpr_kernarg_segment_ptr 1
  .amdhsa_system_sgpr_workgroup_id_x 1
  .amdhsa_float_denorm_mode_32 3
.end_amdhsa_kernel
"""


if __name__ == "__main__":
    out = sys.argv[1]
    kw = eval("dict(" + (sys.argv[2] if len(sys.argv) > 2 else "") + ")")
    open(out, "w").write(Gen(**kw).build())
```

```python
import sys
from asmlib import Asm

NAME = "concat_heads__sliding_block_cached__compressed_kv_cla__decode_kernel"
HEADER = open("concat_heads__sliding_block_cached__compressed_kv_cla__decode.s.ref").read().split("; Override launch")[0]

EPOCH = 0
QA = 0xa0000
QB = 0xc0000
CNT = 0xa00000
QABS = 0x30000
F2 = 0x40000
ST = 0x50000
H4A = 0x60000
H4B = 0x80000
OP = 0x100000
H5 = 0x400000
STAMP = 0x800000
WS_SIZE = 0x1000000

AUX = 131072
RED = AUX
MXA = AUX + 512
LSA = AUX + 8192 + 64
MX = AUX + 9216
LS = AUX + 9216 + 512
PB = AUX + 10240
SM = AUX + 28672
WB = AUX + 29696
TK = AUX + 768
XI = AUX + 12288
CC = AUX + 30720
QL = AUX + 10240
HI = AUX + 20480
HS = AUX + 25088
E2B = (81920, 114688)
PART = (16384, 49152)
LDS_BYTES = 163840

SCALE = 0x3e0293ee
NEGBIG = 0xff7fffff
SPIN = 1 << 18

sW, sH, sJ, sB, sT, sTAG = "s3", "s4", "s5", "s6", "s7", "s32"
SRD0, SRDW, SRDK, SRDV, SRDE, SRDX = "s[8:11]", "s[12:15]", "s[16:19]", "s[20:23]", "s[24:27]", "s[28:31]"
FULL = "row_mask:0xf bank_mask:0xf"


def vr(a, n):
    return f"v[{a}:{a + n - 1}]"


def dest(i):
    return (i >> 1) * 32768 + (i & 1) * 8192


class Gen:
    def __init__(self, dbg=False, calib=0, amp=None, diag='', depth=4, lo=3, win=((12, 12), (12, 12)), edepth=(4,), bdepth=4,
                 pu_pre=4, xpos=5, rounds=10, hxa=2, hxu=1, jmul=3, hookpos=(0, 9, 18, 27), bmin=4, uva=(4, 4, 0), e2b=1, e2s=0, sbar=True,
                 e2pos=(1, 0), pw=None, noack=True, pollw=False, qplain=True, outfl='sc1', warm=0, wide=2, rw=7, jr=0, fmask=True, ddepth=4, l2c=(6, 4), l2u=(0, 0), l2pre=4, l2fl='', t0=False, qat=3, stlate=True, sfl='nt', test='', nak=True, late=0, pbar=False, jx=(0, 0), e2mid=0, prio=0, kmul=1, pmul=1, srot=0, bx=0, wsoff=0, bmax=12, hold=1, sd=(4, 4, 4), hint=True, pmask=False, ps=(0, 0, 0, 0)):
        self.__dict__.update(locals())
        self.a = Asm()
        self.uid = 0
        self.pfl, self.gfl, self.nst = 'sc1', 'sc1', 4

    def lab(self, p):
        self.uid += 1
        return f"L_{p}_{self.uid}"

    def stamp(self, k):
        if self.dbg and (self.dbg is True or k in self.dbg or k == 17) and 'fine' not in self.diag:
            self.a(f"s_memrealtime s[98:99]\ns_waitcnt lgkmcnt(0)\nv_writelane_b32 v63, s98, {k}")

    def cyc(self, k):
        if 'cyc' in self.diag:
            self.a(f"s_memtime s[{64 + 2 * k}:{65 + 2 * k}]")

    def exec64(self, lo, hi=None):
        hi = lo if hi is None else hi
        self.a(f"s_mov_b32 exec_lo, {lo:#x}\ns_mov_b32 exec_hi, {hi:#x}")

    def entry(self):
        a = self.a

        def pack(sw, sh, sb, st, rs, kmul, k1, k2):
            return sw | sh << 5 | sb << 10 | st << 15 | rs << 20 | kmul << 25 | (k1 >> 5) << 27 | (k2 >> 7) << 29
        if self.dbg or self.calib or self.t0:
            a("s_memrealtime s[96:97]\nv_mov_b32 v63, 0\ns_mov_b32 s100, 0")
        a("; ---- role decode and first four 1 KiB copies into LDS")
        a(f"""s_load_dwordx8 s[64:71], s[0:1], 48
            v_lshrrev_b32 v8, 6, v0
            s_cmp_ge_u32 s2, 256
            s_cbranch_scc1 L_end
            v_readfirstlane_b32 {sW}, v8
            s_lshr_b32 {sH}, s2, 3
            s_add_u32 {sJ}, s2, {sH}
            s_mul_i32 {sJ}, {sJ}, {self.jmul}
            s_bfe_u32 {sB}, {sJ}, 0x10002
            s_and_b32 {sT}, {sJ}, 3
            v_and_b32 v1, 15, v0
            v_bfe_u32 v2, v0, 4, 2
            s_mul_i32 s38, {sW}, 17
            s_bfe_u32 s38, s38, 0x40002
            s_mov_b32 s33, {pack(17, 8, 20, 15, 13, 2, 0, 128):#x}
            s_cmp_eq_u32 {sT}, 2
            s_cmov_b32 s33, {pack(18, 8, 21, 16, 13, 1, 64, 128):#x}
            s_cselect_b32 s63, {self.hxu}, 0
            s_xor_b32 s63, s63, {sH}
            s_cmp_eq_u32 {sT}, 3
            s_cmov_b32 s33, {pack(10, 13 if self.bx else 18, 23, 18 if self.bx else 13, 8, 0, 32, 0):#x}
            s_cselect_b32 s38, s38, 0
            s_cselect_b32 s10, 24, 22
            s_lshl_b32 s10, 1, s10
            s_cmp_eq_u32 {sT}, 1
            s_cselect_b32 s36, 2, 0
            s_or_b32 s42, s36, {sB}
            s_lshl_b32 s40, {sW}, s33
            s_lshr_b32 s33, s33, 5
            s_lshl_b32 s36, s63, s33
            s_add_u32 s40, s40, s36
            s_lshr_b32 s33, s33, 5
            s_lshl_b32 s36, s42, s33
            s_add_u32 s40, s40, s36
            s_lshr_b32 s33, s33, 5
            s_lshl_b32 s41, 1, s33
            s_lshr_b32 s33, s33, 5
            s_bfe_u32 s36, s33, 0x20005
            v_mul_u32_u24 v11, s36, v2
            v_xor_b32 v10, s38, v1
            v_lshlrev_b32 v9, s33, v2
            v_xor_b32 v10, v10, v11
            s_lshr_b32 s33, s33, 2
            s_and_b32 s38, s33, 0x60
            s_and_b32 s39, s33, 0x80
            v_lshl_add_u32 v3, v10, 4, v9
            s_lshl_b32 s44, {sW}, 10
            s_mov_b32 s11, 0x20000
            v_xor_b32 v4, s38, v3
            v_xor_b32 v5, s39, v3
            s_mov_b32 m0, s44
            v_xor_b32 v6, s39, v4
            s_mov_b32 s43, s40
            s_cmp_eq_u32 {sT}, 2
            s_waitcnt lgkmcnt(0)
            s_cselect_b64 s[8:9], s[68:69], s[66:67]
            s_cmp_eq_u32 {sT}, 3
            s_cselect_b64 s[8:9], s[64:65], s[8:9]""")
        for i in range(4):
            a(f"buffer_load_dwordx4 v{3 + i}, {SRD0}, s40 offen nt lds")
            a(f"s_add_u32 m0, s44, {dest(i + 1)}\ns_add_u32 s40, s40, s41")
        a("; ---- remaining pointers, code prefetch into L2, launch tag")
        a(f"""s_load_dwordx2 s[12:13], s[0:1], 104
            s_load_dwordx2 s[28:29], s[0:1], 0
            s_load_dwordx2 s[30:31], s[0:1], 40
            s_load_dwordx2 s[16:17], s[0:1], 8
            s_load_dwordx2 s[20:21], s[0:1], 16
            s_load_dwordx2 s[24:25], s[0:1], 24
            s_getpc_b64 s[34:35]
            L_pc:
            s_and_b32 {sJ}, {sJ}, 7
            v_and_b32 v0, 63, v0
            v_lshlrev_b32 v16, 4, v0
            s_mov_b32 s27, 0x20000
            s_mov_b32 s26, s10
            s_xor_b32 s36, s43, {self.hxa << 8}
            s_add_u32 s43, s43, 32768
            s_cmp_eq_u32 {sT}, 3
            s_cselect_b32 s43, s40, s43
            s_cmp_lt_u32 {sT}, 2
            s_cselect_b32 s43, s36, s43
            s_cselect_b32 s63, s42, s63
            s_waitcnt lgkmcnt(0)
            s_cselect_b64 s[24:25], s[24:25], s[8:9]""")
        if self.wsoff:
            a(f"s_add_u32 s12, s12, {self.wsoff}\ns_addc_u32 s13, s13, 0")
        a(f"""s_lshl_b32 s33, {sH}, 3
            s_add_u32 s33, s33, {sW}
            s_lshl_b32 s33, s33, 7
            s_min_u32 s33, s33, L_end-L_pc-64
            s_add_u32 s36, s33, 64
            s_load_dword {'s98' if 'fine' in self.diag else 's100'}, s[34:35], s33
            s_load_dword {'s99' if 'fine' in self.diag else 's101'}, s[34:35], s36
            s_load_dword {sTAG}, s[12:13], {EPOCH}
            s_mov_b32 s14, {WS_SIZE:#x}
            s_mov_b32 s15, 0x20000
            s_mov_b32 s19, 0x20000
            s_mov_b32 s52, {SCALE:#x}""")
        if self.dbg:
            a("v_writelane_b32 v63, s96, 0")
        if self.t0:
            a(f"""s_or_b32 s33, {sH}, {sW}
                s_cbranch_scc1 L_nt0
                s_lshl_b32 s33, s2, 7
                s_add_u32 s33, s33, {STAMP}
                v_mov_b32 v63, s96
                s_mov_b64 exec, 1
                buffer_store_dword v63, off, {SRDW}, s33 sc1
                s_mov_b64 exec, -1
                L_nt0:""")
        a(f"""s_cmp_eq_u32 {sT}, 3
            s_cbranch_scc1 L_roleB
            s_mov_b32 s18, 0x8000000
            s_mov_b32 s22, 0x8000000
            s_mov_b32 s23, 0x20000
            s_lshl_b32 s45, {sB}, 5
            s_add_u32 s45, s45, {sH}
            s_lshl_b32 s45, s45, 21
            s_add_u32 s45, s45, {6144 * 256}
            s_lshl_b32 s57, {sT}, 3
            s_add_u32 s57, s57, {sW}""")
        a("s_lshl_b32 s48, s57, 11\ns_add_u32 s48, s48, s45")
        a(f"s_cmp_eq_u32 {sT}, 2\ns_cbranch_scc1 L_rolePU")

    def second_batch(self, mid, extra=0, depth=4, lo=4, hi=8):
        a = self.a
        for i in range(lo, hi):
            a(f"s_waitcnt vmcnt({depth - 1 + extra})\nbuffer_load_dwordx4 v{3 + (i & 3)}, {SRDE}, s43 offen nt lds")
            if i < 7:
                a(f"s_add_u32 m0, s44, {dest(i + 1)}")
            a("s_add_u32 s43, s43, s41")
            if i == self.xpos:
                a(f"s_waitcnt lgkmcnt(0)\ns_add_u32 {sTAG}, {sTAG}, 1")
                mid()

    def load_e2_ptr(self):
        self.a(f"""s_cmp_lt_u32 {sW}, 4
            s_cselect_b32 s33, 32, 80
            s_load_dwordx2 s[24:25], s[0:1], s33
            s_mov_b32 s26, {0 if 'noW' in self.diag else 0x400000}""")

    def sum_parts(self, r):
        self.a(f"""v_lshlrev_b32 v8, 16, v{r}
            v_and_b32 v9, 0xffff0000, v{r}
            v_lshlrev_b32 v10, 16, v{r + 1}
            v_and_b32 v11, 0xffff0000, v{r + 1}
            v_lshlrev_b32 v{r}, 16, v{r + 4}
            v_and_b32 v{r + 1}, 0xffff0000, v{r + 4}
            v_lshlrev_b32 v{r + 2}, 16, v{r + 5}
            v_and_b32 v{r + 3}, 0xffff0000, v{r + 5}
            v_pk_add_f32 v[8:9], v[8:9], {vr(r, 2)}
            v_pk_add_f32 v[10:11], v[10:11], {vr(r + 2, 2)}
            v_permlane32_swap_b32 v8, v10
            v_permlane32_swap_b32 v9, v11
            v_pk_add_f32 v[8:9], v[8:9], v[10:11]
            v_cvt_pk_bf16_f32 v{r}, v8, v9""")

    def poll_rows(self, voff, soff, two=False):
        a = self.a
        lp, ok = self.lab("gp"), self.lab("gok")
        back = self.ps[0 if two else 2]
        a(f"s_mov_b32 s37, {SPIN}\n{lp}:\nbuffer_load_dwordx4 v[176:179], {voff}, {SRDW}, {soff} offen sc1")
        if two:
            a(f"buffer_load_dwordx4 v[180:183], {voff}, {SRDW}, {soff} offen offset:1024 sc1")
        a(f"s_sub_u32 s37, s37, 1\ns_waitcnt vmcnt(0)\ns_cbranch_scc1 {ok}")
        if two:
            a(f"v_bitop3_b32 v8, v179, v183, {sTAG} bitop3:0x7e\nv_cmp_ne_u32 vcc, 0, v8")
        else:
            a(f"v_cmp_ne_u32 vcc, {sTAG}, v179")
        if self.pmask or back:
            a(f"s_cbranch_vccz {ok}")
            if self.pmask:
                a("s_mov_b64 exec, vcc")
            if back:
                a(f"s_sleep {back}")
            a(f"s_branch {lp}\n{ok}:\ns_mov_b64 exec, -1")
        else:
            a(f"s_cbranch_vccnz {lp}\n{ok}:")

    def e2_dma_setup(self):
        self.a(f"""v_lshrrev_b32 v9, 3, v0
            v_and_b32 v10, 7, v0
            v_and_b32 v11, 1, v2
            v_lshlrev_b32 v11, 1, v11
            v_xor_b32 v10, v10, v11
            v_lshlrev_b32 v10, 4, v10
            v_lshl_add_u32 v17, v9, 10, v10
            v_xor_b32 v18, 64, v17
            s_and_b32 s33, {sW}, 3
            s_lshl_b32 s46, {sH}, 17
            s_lshl_b32 s36, s33, 15
            s_add_u32 s46, s46, s36
            s_cmp_lt_u32 {sW}, 4
            s_cselect_b32 s36, {self.jx[0]}, {self.jx[1]}
            s_xor_b32 s36, s36, {sJ}
            s_lshl_b32 s36, s36, 7
            s_add_u32 s46, s46, s36
            s_cmp_lt_u32 {sW}, 4
            s_mov_b32 s47, {E2B[1]}
            s_cmov_b32 s47, {E2B[0]}
            s_lshl_b32 s36, s33, 12
            s_add_u32 s47, s47, s36""")


    def e2_dma(self, i):
        self.a(f"""s_add_u32 m0, s47, {1024 * i}
            s_nop 0
            buffer_load_dwordx4 v{17 + (i & 1)}, {SRDE}, s46 offen nt lds
            s_add_u32 s46, s46, 8192""")

    KV = 64

    def slot(self, k):
        return 4 + k if k < 2 else k & 3

    def a_load(self, kind, k, u, cnt, other=None):
        a = self.a
        if u == 0:
            a(f"s_add_u32 s54, s48, {49152 * k}")
        a(f"s_waitcnt vmcnt({cnt})")
        if other is not None:
            sk = self.lab("lo")
            a(f"s_cbranch_vccz {sk}\ns_waitcnt vmcnt({other})\n{sk}:")
        r = self.KV + 16 * self.slot(k) + 4 * u + (8 if kind == "V" else 0)
        a(f"buffer_load_dwordx4 {vr(r, 4)}, v16, {SRDK if kind == 'K' else SRDV}, s54 offen offset:{1024 * u} nt")

    def l2_setup(self):
        self.a(f"""s_sub_u32 s33, 1, s2
            s_and_b32 s33, s33, 3
            s_and_b32 s36, {sH}, 28
            s_or_b32 s33, s33, s36
            s_add_u32 s36, s33, s2
            s_mul_i32 s36, s36, 3
            s_bfe_u32 s36, s36, 0x10002
            s_lshl_b32 s55, s36, 23
            s_lshl_b32 s36, s33, 18
            s_add_u32 s55, s55, s36
            s_add_u32 s55, s55, s44
            s_mul_i32 s36, {sT}, {8192 * self.l2c[0]}
            s_sub_u32 s55, s55, s36
            s_add_u32 s55, s55, {31 * 8192}""")

    def l2_ptrs(self):
        self.a("""; ---- pull later c_kv rows of the type-3 workgroup with the same id modulo 8 into L2 (speed only)
            s_load_dwordx2 s[8:9], s[0:1], 48
            s_mov_b32 s10, 0x1000000
            s_waitcnt lgkmcnt(0)""")

    def l2_list(self, role):
        return ["c"] * self.l2c[role] + ["u"] * self.l2u[role] + [0, 1, 2, 3]

    def l2_item(self, it, cnt):
        a = self.a
        if it == "c":
            a(f"s_waitcnt vmcnt({cnt})\nbuffer_load_dwordx4 v[64:67], v16, {SRD0}, s55 offen {self.l2fl}\ns_sub_u32 s55, s55, 8192")
        elif it == "u":
            a(f"s_waitcnt vmcnt({cnt})\nbuffer_load_dwordx4 v[64:67], v46, {SRDX}, s56 offen {self.l2fl}\ns_add_u32 s56, s56, 32768")
        else:
            self.a_first(it, cnt)

    def a_first(self, k, cnt):
        self.a_load("K", k >> 1, k & 1, cnt)

    def a_qk(self, ph, r=30):
        a = self.a
        K = self.KV + 16 * ph
        a("v_mov_b32 v28, 0\nv_mov_b32 v29, 0")
        for e in range(4):
            for u in range(2):
                a(f"v_dot2c_f32_bf16 v{28 + u}, v{K + 4 * u + e}, v{24 + e}")
        a(f"v_add_f32_dpp v{r}, v28, v28 row_ror:8 row_mask:0xf bank_mask:0x3")
        a(f"v_add_f32_dpp v{r}, v29, v29 row_ror:8 row_mask:0xf bank_mask:0xc")
        for m in ("row_half_mirror", "quad_perm:[1,0,3,2]", "quad_perm:[2,3,0,1]"):
            a(f"v_add_f32_dpp v{r}, v{r}, v{r} {m} {FULL}")

    def a_max(self):
        self.a(f"v_max_f32_dpp v31, v30, v30 row_ror:8 {FULL}\nv_mul_f32 v31, s52, v31\nv_max_f32 v31, v31, v60")

    def a_soft(self, with_max=True):
        a = self.a
        if with_max:
            self.a_max()
        a("""v_sub_f32 v32, v60, v31
            v_fma_f32 v30, v30, s52, -v31
            v_exp_f32 v32, v32
            v_exp_f32 v30, v30
            v_mov_b32 v60, v31
            v_fma_f32 v61, v61, v32, v30
            v_cvt_pk_bf16_f32 v34, v30, 0
            v_cvt_pk_bf16_f32 v35, 0, v30""")
        for k in range(4):
            a(f"v_pk_mul_f32 {vr(52 + 2 * k, 2)}, {vr(52 + 2 * k, 2)}, v[32:33] op_sel_hi:[1,0]")

    def a_pv(self, ph, u, p=34):
        V = self.KV + 16 * ph + 8 + 4 * u
        for e in range(4):
            self.a(f"v_dot2c_f32_bf16_dpp v{52 + 2 * e}, v{p}, v{V + e} row_newbcast:{8 * u} {FULL}")
            self.a(f"v_dot2c_f32_bf16_dpp v{53 + 2 * e}, v{p + 1}, v{V + e} row_newbcast:{8 * u} {FULL}")

    def p1(self):
        a = self.a
        D = self.edepth[0]
        a(f"""s_lshl_b32 s33, s63, 8
            s_lshl_b32 s36, {sW}, 5
            s_add_u32 s49, s33, s36
            s_add_u32 s50, s49, 1024
            s_load_dwordx8 s[64:71], s[30:31], s49
            s_load_dwordx8 s[72:79], s[30:31], s50
            s_load_dwordx8 s[80:87], s[28:29], s49
            s_load_dwordx8 s[88:95], s[28:29], s50
            v_and_b32 v8, 1, v2
            v_lshlrev_b32 v7, 15, v8
            v_lshrrev_b32 v9, 1, v2
            v_lshl_add_u32 v7, v9, 10, v7
            v_lshrrev_b32 v9, 2, v1
            v_lshl_add_u32 v7, v9, 8, v7
            v_and_b32 v10, 3, v0
            v_lshl_add_u32 v7, v10, 3, v7
            v_lshl_or_b32 v9, v8, 2, v9
            v_xor_b32 v9, {sW}, v9
            v_lshl_add_u32 v200, v9, 5, v7
            v_add_u32 v201, 65536, v200
            v_lshrrev_b32 v7, 3, v0
            v_lshlrev_b32 v7, 8, v7
            v_and_b32 v8, 7, v0
            v_lshl_add_u32 v7, v8, 2, v7
            s_add_u32 s36, s36, {XI}
            v_add_u32 v202, s36, v7
            v_and_b32 v7, 1, v0
            v_lshlrev_b32 v8, 8, v7
            v_lshl_add_u32 v8, v2, 4, v8
            v_add_u32 v203, {XI}, v8
            v_lshlrev_b32 v8, 11, v7
            v_lshl_add_u32 v204, v2, 4, v8
            s_lshl_b32 s38, {sH}, 12
            s_lshl_b32 s36, s63, 9
            s_add_u32 s38, s38, s36
            s_lshl_b32 s36, {sW}, 6
            s_add_u32 s38, s38, s36
            s_xor_b32 s39, s38, {self.hxa << 12}
            s_add_u32 s38, s38, {QB}
            s_add_u32 s39, s39, {QA}""")

        def mid():
            for k in range(32):
                a(f"v_writelane_b32 v205, s{64 + k}, {k}")
            self.exec64(0xffffffff, 0)
            a(f"ds_write_b32 v202, v205\ns_mov_b64 exec, -1\nv_mov_b32 v51, {sTAG}")

        def half(t):
            a(f"; ---- partial query of part {'A' if t else 'B'}: 16 columns per wave over 128 rows")
            a("s_waitcnt lgkmcnt(0)\ns_barrier")
            for s in range(4):
                a(f"ds_read_b128 {vr(160 + 4 * s, 4)}, v203 offset:{512 * t + 64 * s}")
                for p in range(2):
                    a(f"ds_read_b64_tr_b16 {vr(176 + 4 * s + 2 * p, 2)}, v{200 + t} offset:{2048 * s + 8192 * p}")
            for s in range(4):
                a(f"s_waitcnt lgkmcnt({9 - 3 * s})")
                a(f"v_mfma_f32_16x16x32_bf16 v[192:195], {vr(176 + 4 * s, 4)}, {vr(160 + 4 * s, 4)}, {'v[192:195]' if s else '0'}")
            self.exec64(0x00030003)
            a("v_cvt_pk_bf16_f32 v48, v192, v193\nv_cvt_pk_bf16_f32 v49, v194, v195")
            a(f"buffer_store_dwordx4 v[48:51], v204, {SRDW}, s{38 + t} offen sc1\ns_mov_b64 exec, -1")

        self.a_setup()
        H = self.hold
        self.second_batch(mid, 0, self.sd[0], 4, 8 - H)
        a(f"s_waitcnt vmcnt({4 - H})")
        self.stamp(1)
        half(0)
        self.stamp(2)
        self.second_batch(None, 1, 4, 8 - H, 8)
        self.load_e2_ptr()
        self.l2_ptrs()
        items = self.l2_list(0)
        for k in range(4):
            self.l2_item(items[k], D if k < D - H else D - 1)
        a(f"s_waitcnt vmcnt({4 if H else 5})")
        if 'slowa' in self.test:
            a(f"s_and_b32 s33, {sH}, 1\ns_cbranch_scc0 L_ta\ns_sleep 127\ns_sleep 127\ns_sleep 127\nL_ta:")
        half(1)
        self.stamp(3)
        for k, it in enumerate(items[4:]):
            self.l2_item(it, D if k < D else D - 1)
        a("s_branch L_acommon")

    def p2(self):
        a = self.a
        D, pre = self.edepth[0], self.pu_pre
        a(f"""v_lshrrev_b32 v7, 3, v1
            v_lshlrev_b32 v7, 15, v7
            v_bfe_u32 v8, v1, 2, 1
            v_lshl_add_u32 v7, v8, 13, v7
            v_and_b32 v8, 3, v1
            v_lshl_add_u32 v7, v8, 8, v7
            v_add_u32 v7, s44, v7
            v_xor_b32 v8, v2, v1
            v_lshl_add_u32 v216, v8, 4, v7""")
        for s in range(1, 4):
            a(f"v_xor_b32 v{216 + s}, {64 * s}, v216")
        for s in range(4):
            a(f"v_add_u32 v{220 + s}, 65536, v{216 + s}")
        a(f"""v_and_b32 v13, 31, v0
            v_lshlrev_b32 v13, 3, v13
            v_lshrrev_b32 v7, 5, v0
            v_lshl_add_u32 v13, v7, 2, v13
            s_lshl_b32 s33, {sW}, 8
            s_add_u32 s33, s33, {HI}
            v_add_u32 v13, s33, v13
            v_and_b32 v14, 1, v0
            v_lshlrev_b32 v14, 8, v14
            v_lshl_add_u32 v14, v2, 4, v14
            v_add_u32 v14, {HI}, v14
            s_lshl_b32 s49, s63, 12
            s_lshl_b32 s36, {sW}, 11
            s_add_u32 s49, s49, s36
            s_add_u32 s49, s49, {QB}
            v_lshlrev_b32 v15, 15, v1
            v_lshl_add_u32 v15, v2, 4, v15
            s_lshl_b32 s50, s63, 10
            s_lshl_b32 s36, {sB}, 9
            s_add_u32 s50, s50, s36
            s_lshl_b32 s36, {sW}, 6
            s_add_u32 s50, s50, s36
            s_add_u32 s50, s50, {QABS}
            s_lshr_b32 s53, s63, 2
            s_lshl_b32 s53, s53, 7
            s_and_b32 s36, s63, 3
            s_lshl_b32 s36, s36, 3
            s_add_u32 s53, s53, s36
            s_lshl_b32 s36, {sB}, 2
            s_add_u32 s53, s53, s36
            s_add_u32 s53, s53, {F2}
            v_lshlrev_b32 v197, 10, v0""")
        if self.noack:
            for k in range(4):
                a(f"v_mov_b32 v{200 + k}, -1")
            self.exec64(0x00030003)
            a(f"buffer_store_dwordx4 v[200:203], v15, {SRDW}, s50 offen sc1\ns_mov_b64 exec, -1")
        self.a_setup()
        self.second_batch(lambda: a(f"v_mov_b32 v196, {sTAG}"), 1 if self.noack else 0, self.sd[1])
        self.load_e2_ptr()
        self.l2_ptrs()
        items = self.l2_list(1)
        for k in range(pre):
            self.l2_item(items[k], D - 1)
        self.stamp(7)
        if self.hint:
            a(f"""s_lshl_b32 s33, s63, 12
                s_lshl_b32 s36, {sW}, 9
                s_add_u32 s33, s33, s36
                s_add_u32 s33, s33, {QB}
                s_add_u32 s34, s12, s33
                s_addc_u32 s35, s13, 0
                s_mov_b32 s38, {sTAG}
                s_mov_b32 s39, {sTAG}
                s_mov_b32 s37, {SPIN}
                L_h1h:""")
            for k in range(8):
                a(f"s_load_dword s{64 + k}, s[34:35], {64 * k + 12} glc")
            a("s_sub_u32 s37, s37, 1\ns_waitcnt lgkmcnt(0)\ns_cbranch_scc1 L_h1k")
            for k in range(4):
                a(f"s_xor_b64 s[{64 + 2 * k}:{65 + 2 * k}], s[{64 + 2 * k}:{65 + 2 * k}], s[38:39]")
            a("s_or_b64 s[64:65], s[64:65], s[66:67]\ns_or_b64 s[68:69], s[68:69], s[70:71]\ns_or_b64 s[64:65], s[64:65], s[68:69]")
            a("s_cbranch_scc1 L_h1h\nL_h1k:")
            self.stamp(13)
            if self.dbg is True:
                a(f"s_sub_u32 s33, {SPIN}, s37\nv_writelane_b32 v63, s33, 30")
            a("s_barrier")
        skip = self.lab("h1s")
        a(f"s_cmp_gt_u32 {sW}, 1\n{'s_branch' if 'nowait' in self.diag else 's_cbranch_scc1'} {skip}")
        if self.pollw:
            a(f"s_waitcnt vmcnt({pre})")
        self.poll_rows("v16", "s49", two=True)
        self.sum_parts(176)
        a(f"ds_write_b32 v13, v176\n{skip}:\ns_waitcnt vmcnt({pre})")
        self.stamp(1)
        for blk in range(2):
            for s in range(4):
                a(f"ds_read_b128 {vr(224 + 16 * blk + 4 * s, 4)}, v{216 + 4 * blk + s}")
        a("s_waitcnt lgkmcnt(0)\ns_barrier")
        self.stamp(2)
        for s in range(4):
            a(f"ds_read_b128 {vr(176 + 4 * s, 4)}, v14 offset:{64 * s}")
        for s in range(4):
            a(f"s_waitcnt lgkmcnt({3 - s})")
            for blk in range(2):
                c = "0" if s == 0 else vr(208 + 4 * blk, 4)
                a(f"v_mfma_f32_16x16x32_bf16 {vr(208 + 4 * blk, 4)}, {vr(224 + 16 * blk + 4 * s, 4)}, {vr(176 + 4 * s, 4)}, {c}")
        for k in range(4):
            a(f"v_cvt_pk_bf16_f32 v{168 + k}, v{208 + 2 * k}, v{209 + 2 * k}")
        self.exec64(0x00030003)
        if 'slowq' in self.test:
            a(f"s_mov_b64 exec, -1\ns_cmp_lg_u32 {sW}, 0\ns_cbranch_scc1 L_tq\nbuffer_store_dword v196, v197, {SRDW}, s53 offen sc1\nL_tq:\ns_sleep 127\ns_sleep 127\ns_sleep 127")
            self.exec64(0x00030003)
        a(f"buffer_store_dwordx4 v[168:171], v15, {SRDW}, s50 offen sc1")
        a("s_mov_b64 exec, -1")
        if not self.noack:
            a("s_waitcnt vmcnt(0)")
        a("s_barrier")
        skip = self.lab("p2s")
        a(f"""s_cmp_lg_u32 {sW}, 0
            s_cbranch_scc1 {skip}
            buffer_store_dword v196, v197, {SRDW}, s53 offen sc1
            {skip}:""")
        self.stamp(3)
        for k, it in enumerate(items[pre:]):
            self.l2_item(it, D + 1 if k < D else D - 1)

    def a_setup(self):
        a = self.a
        self.l2_setup()
        self.e2_dma_setup()
        a(f"""s_lshl_b32 s51, {sH}, 1
            s_add_u32 s51, s51, {sB}
            s_lshl_b32 s51, s51, 11
            s_add_u32 s51, s51, {QA}
            v_and_b32 v36, 31, v0
            v_lshlrev_b32 v36, 3, v36
            v_lshrrev_b32 v7, 5, v0
            v_lshl_add_u32 v36, v7, 2, v36
            s_lshl_b32 s33, {sW}, 8
            s_add_u32 s33, s33, {QL}
            v_add_u32 v36, s33, v36
            v_lshl_add_u32 v37, v1, 4, s33
            v_mov_b32 v60, {NEGBIG:#x}
            v_mov_b32 v61, 0
            v_lshlrev_b32 v38, 5, v1
            v_lshl_add_u32 v38, v2, 3, v38
            s_lshl_b32 s33, {sW}, 9
            s_add_u32 s33, s33, {RED + 1024}
            v_add_u32 v38, s33, v38
            s_lshl_b32 s33, {sW}, 2
            s_add_u32 s33, s33, {MXA}
            v_mov_b32 v39, s33
            v_mov_b32 v43, {MXA}
            v_lshrrev_b32 v44, 5, v0
            v_mul_u32_u24 v44, 1536, v44
            v_add_u32 v44, v44, v16
            v_add_u32 v44, {RED + 1024}, v44
            s_lshl_b32 s61, {sH}, 3
            s_add_u32 s61, s61, {sJ}
            s_lshl_b32 s61, s61, 9
            s_add_u32 s61, s61, {H4A}""")
        for k in range(8):
            a(f"v_mov_b32 v{52 + k}, 0")

    def a_common(self):
        a = self.a
        D, L, slot, x = self.depth, self.lo, self.slot, self.e2pos[0]
        assert D <= 4
        a("L_acommon:")

        def it(k, extra=0):
            da, dc = (L if lo <= k < hi else D for lo, hi in self.win)
            if da != dc:
                a(f"s_cmp_{'lg' if da < dc else 'eq'}_u32 {sT}, 2\ns_cselect_b64 vcc, -1, 0")
            for i in range(4):
                cnt = lambda d: d - 1 + (extra if i < d else 0)
                self.a_load("K" if i < 2 else "V", k if i < 2 else k - 2, i & 1, cnt(max(da, dc)), cnt(min(da, dc)) if da != dc else None)

        def proc(k):
            self.a_qk(slot(k)); self.a_soft(); self.a_pv(slot(k), 0); self.a_pv(slot(k), 1)
        qld = f"buffer_load_dwordx4 v[20:23], v16, {SRDW}, s51 offen sc1\nbuffer_load_dwordx4 v[24:27], v16, {SRDW}, s51 offen offset:1024 sc1"
        for k in (2, 3, 4):
            it(k, 2 if k == self.qat + 1 else 0)
            if k == self.qat:
                a(qld.replace(" sc1", "") if self.qplain else qld)
            if k == 3:
                self.e2_setup(False)
        a(f"""s_mov_b32 s37, {SPIN}
            s_waitcnt vmcnt(4)
            L_qlp:
            v_bitop3_b32 v8, v23, v27, {sTAG} bitop3:0x7e
            v_cmp_ne_u32 vcc, 0, v8
            s_cbranch_vccz L_qok
            s_sub_u32 s37, s37, 1
            s_cbranch_scc1 L_qok
            {qld}
            s_waitcnt vmcnt(0)
            s_branch L_qlp
            L_qok:""")
        self.sum_parts(20)
        a("ds_write_b32 v36, v20\nds_read_b128 v[24:27], v37\ns_waitcnt lgkmcnt(0)")
        self.stamp(4)
        proc(0)
        it(5)
        proc(1); proc(2)
        for k in range(6, 10):
            it(k)
            proc(k - 3)

        def drain(n):
            a("; ---- last round: workgroup maximum, last two weighted sums")
            self.stamp(5)
            self.a_qk(slot(n - 1), 33)
            for i in range(4):
                self.a_load("V", n - 1 + (i >> 1), i & 1, self.ddepth - 1)
            a("s_waitcnt vmcnt(4)")
            proc(n - 2)
            self.a_qk(slot(n))
            a(f"v_max_f32 v31, v30, v33\nv_max_f32_dpp v31, v31, v31 row_ror:8 {FULL}\nv_mul_f32 v31, s52, v31\nv_max_f32 v31, v31, v60")
            for sw in ("v_permlane16_swap_b32", "v_permlane32_swap_b32"):
                a(f"v_mov_b32 v32, v31\n{sw} v32, v31\nv_max_f32 v31, v31, v32")
            a("ds_write_b32 v39, v31\ns_waitcnt lgkmcnt(0)\ns_barrier\nds_read_b128 v[8:11], v43\nds_read_b128 v[12:15], v43 offset:16")
            for i in range(x):
                self.e2_dma(i)
            if x < 4:
                sk = self.lab("pe")
                a(f"s_cmp_lg_u32 {sW}, 3\ns_cselect_b64 vcc, -1, 0\ns_cbranch_scc1 {sk}")
                for i in range(x, 4):
                    self.e2_dma(i)
                a(f"{sk}:")
            a("""s_waitcnt lgkmcnt(0)
                v_max3_f32 v31, v8, v9, v10
                v_max3_f32 v12, v12, v13, v14
                v_max3_f32 v31, v31, v11, v15
                v_max_f32 v31, v31, v12
                v_fma_f32 v12, v33, s52, -v31
                v_exp_f32 v12, v12""")
            self.a_soft(with_max=False)
            a(f"""v_add_f32 v61, v61, v12
                v_cvt_pk_bf16_f32 v28, v12, 0
                v_cvt_pk_bf16_f32 v29, 0, v12
                v_add_f32_dpp v61, v61, v61 row_ror:8 {FULL}""")
            for sw in ("v_permlane16_swap_b32", "v_permlane32_swap_b32"):
                a(f"v_mov_b32 v32, v61\n{sw} v32, v61\nv_add_f32 v61, v61, v32")
            a("ds_write_b32 v39, v61 offset:32")
            for i in range(4):
                a(f"s_waitcnt vmcnt({7 - i})")
                if x < 4:
                    sk = self.lab("lw")
                    a(f"s_cbranch_vccz {sk}\ns_waitcnt vmcnt({3 - i + x})\n{sk}:")
                self.a_pv(slot(n - 1 + (i >> 1)), i & 1, 28 if i < 2 else 34)
        a(f"s_cmp_lg_u32 {sT}, 2\ns_cbranch_scc1 L_more")
        drain(9)
        a("s_branch L_afin\nL_more:")
        it(10)
        proc(7)
        drain(10)
        a("L_afin:\ns_nop 2")
        self.stamp(6)
        for i in range(4):
            a(f"v_permlane32_swap_b32 v{52 + i}, v{56 + i}")
        a("v_pk_add_f32 v[52:53], v[52:53], v[56:57]\nv_pk_add_f32 v[54:55], v[54:55], v[58:59]")
        a(f"""v_permlane16_swap_b32 v52, v54
            v_permlane16_swap_b32 v53, v55
            v_pk_add_f32 v[52:53], v[52:53], v[54:55]
            ds_write_b64 v38, v[52:53]""")
        for i in range(x, sum(self.e2pos)):
            self.e2_dma(i)
        a(f"""s_waitcnt lgkmcnt(0)
            s_barrier
            s_cmp_lg_u32 {sW}, 3
            s_cbranch_scc1 L_amid
            {f's_setprio {self.prio}' if self.prio else ''}
            ds_read_b128 v[208:211], v44
            ds_read_b128 v[212:215], v44 offset:512
            ds_read_b128 v[216:219], v44 offset:1024
            ds_read_b128 v[220:223], v44 offset:1536
            ds_read_b128 v[224:227], v43 offset:32
            ds_read_b128 v[228:231], v43 offset:48
            s_mov_b32 s38, 0xaaaaaaaa
            s_mov_b32 s39, s38
            v_mov_b32 v11, {sTAG}
            s_waitcnt lgkmcnt(4)
            v_pk_add_f32 v[208:209], v[208:209], v[212:213]
            v_pk_add_f32 v[210:211], v[210:211], v[214:215]
            s_waitcnt lgkmcnt(2)
            v_pk_add_f32 v[216:217], v[216:217], v[220:221]
            v_pk_add_f32 v[218:219], v[218:219], v[222:223]
            v_pk_add_f32 v[208:209], v[208:209], v[216:217]
            v_pk_add_f32 v[210:211], v[210:211], v[218:219]
            s_waitcnt lgkmcnt(0)
            v_pk_add_f32 v[224:225], v[224:225], v[226:227]
            v_permlane32_swap_b32 v208, v210
            v_permlane32_swap_b32 v209, v211
            v_pk_add_f32 v[228:229], v[228:229], v[230:231]
            v_pk_add_f32 v[208:209], v[208:209], v[210:211]
            v_pk_add_f32 v[224:225], v[224:225], v[228:229]
            v_cvt_pk_bf16_f32 v8, v208, v209
            v_cvt_pk_bf16_f32 v9, v208, v209
            v_add_f32 v61, v224, v225
            v_cndmask_b32 v10, v60, v61, s[38:39]
            v_permlane32_swap_b32 v8, v9""")
        self.exec64(0xffffffff, 0)
        a(f"""
            buffer_store_dwordx4 v[8:11], v16, {SRDW}, s61 offen sc1
            ds_write_b64 v238, v[8:9]
            ds_write_b32 v239, v10
            s_mov_b64 exec, -1""")
        if self.nak:
            assert self.e2pos[1] == 0
            self.stamp(12)
            if self.pbar and x < 4:
                a("s_barrier")
            a("ds_write_b64 v246, v[240:241]\nds_write_b32 v247, v242\ns_waitcnt vmcnt(1)\ns_branch L_e2bar")
        a("L_amid:")
        self.stamp(12)
        y = sum(self.e2pos)
        for i in range(y, y + self.e2mid):
            self.e2_dma(i)
        if self.pbar and (x < 4 or not self.nak):
            a("s_barrier")
        for i in range(y + self.e2mid, 4):
            self.e2_dma(i)
        a("s_nop 0")

    def e2_setup(self, role_b):
        self.a(f"""s_load_dwordx2 s[28:29], s[0:1], 88
            v_lshrrev_b32 v9, 2, v1
            v_lshlrev_b32 v7, 10, v2
            v_lshl_add_u32 v7, v9, 7, v7
            v_and_b32 v10, 3, v0
            v_lshl_add_u32 v7, v10, 3, v7
            v_lshrrev_b32 v9, 1, v9
            v_and_b32 v8, 1, v2
            v_lshl_or_b32 v9, v8, 1, v9
            s_and_b32 s33, {sW}, 3
            v_xor_b32 v9, s33, v9
            v_lshl_add_u32 v7, v9, 5, v7
            s_cmp_lt_u32 {sW}, 4
            s_mov_b32 s36, {E2B[1]}
            s_cmov_b32 s36, {E2B[0]}
            s_mov_b32 s40, {H4B}
            s_cmov_b32 s40, {H4A}
            v_add_u32 v244, s36, v7
            s_lshl_b32 s36, {sH}, 12
            s_add_u32 s40, s40, s36
            s_lshl_b32 s36, s33, 9
            s_add_u32 s40, s40, s36
            v_lshrrev_b32 v9, 5, v0
            v_mul_u32_u24 v245, 1536, v9
            v_add_u32 v245, v245, v16
            s_and_b32 s36, {sW}, 4
            s_lshl_b32 s36, s36, 1
            s_add_u32 s33, s36, s33
            v_lshl_add_u32 v9, v9, 2, s33
            v_and_b32 v8, 31, v0
            v_mul_u32_u24 v246, 272, v9
            v_lshl_add_u32 v246, v8, 3, v246
            v_add_u32 v246, {HI}, v246
            v_mul_u32_u24 v247, 136, v9
            v_lshl_add_u32 v247, v8, 2, v247
            v_add_u32 v247, {HS}, v247
            v_and_b32 v9, 7, v0
            v_add_u32 v9, s36, v9
            v_mul_u32_u24 v248, 272, v9
            v_lshl_add_u32 v248, v2, 4, v248
            v_add_u32 v248, {HI}, v248
            v_mul_u32_u24 v249, 136, v9
            v_add_u32 v249, {HS}, v249
            v_mov_b32 v240, 0
            v_mov_b32 v241, 0
            v_and_b32 v8, 1, v0
            v_add_u32 v8, -1, v8
            v_and_b32 v242, {NEGBIG:#x}, v8
            s_mov_b32 s30, 4096
            s_mov_b32 s31, 0x20000
            v_lshlrev_b32 v250, 12, v2
            v_lshl_add_u32 v250, v1, 3, v250
            s_cmp_lt_u32 {sW}, 4
            s_cselect_b32 s41, {self.jx[0]}, {self.jx[1]}
            s_xor_b32 s41, s41, {sJ}
            s_lshl_b32 s41, s41, 3
            s_add_u32 s41, s41, {sW}
            s_lshl_b32 s41, s41, 13
            s_lshl_b32 s36, {sH}, 7
            s_add_u32 s41, s41, s36
            s_add_u32 s41, s41, {H5}
            v_mov_b32 v253, {sTAG}
            s_xor_b32 s38, {sJ}, {self.jr}
            s_lshl_b32 s42, s38, 4
            s_lshr_b32 s36, {sH}, 1
            s_add_u32 s42, s42, s36
            s_lshl_b32 s42, s42, 12
            s_and_b32 s33, {sH}, 1
            s_lshl_b32 s43, s33, 6
            s_add_u32 s42, s42, s43
            s_add_u32 s42, s42, {H5}
            s_lshl_b32 s43, s33, 4
            s_and_b32 s36, s36, 1
            s_lshl_b32 s36, s36, 11
            s_add_u32 s43, s43, s36
            s_lshr_b32 s36, {sH}, 4
            s_lshl_b32 s36, s36, 10
            s_add_u32 s43, s43, s36
            s_lshl_b32 s36, s38, 7
            s_add_u32 s43, s43, s36
            s_bfe_u32 s36, {sH}, 0x20002
            s_lshl_b32 s36, s36, 5
            s_add_u32 s43, s43, s36
            v_lshlrev_b32 v254, 2, v0""")
        if self.warm:
            sk = self.lab("wm")
            self.a(f"""s_cmp_lg_u32 {sW}, 7
                s_cbranch_scc1 {sk}
                s_and_b32 s33, s43, {0x70 if self.warm == 1 else 0x30}
                s_cbranch_scc1 {sk}
                s_waitcnt lgkmcnt(0)
                s_load_dword s33, s[28:29], s43 glc
                s_waitcnt lgkmcnt(0)
                {sk}:""")
        if role_b:
            self.a(f"""v_and_b32 v8, 1, v0
                s_add_u32 s33, {sB}, 8
                v_lshl_add_u32 v8, v8, 2, s33
                v_lshl_add_u32 v9, {sW}, 2, v2
                s_add_u32 s33, {sB}, 4
                s_cmp_eq_u32 {sW}, s33
                s_cselect_b64 s[60:61], 0, -1""")
        else:
            self.a(f"""v_mov_b32 v8, {sJ}
                v_mov_b32 v9, v0
                s_sub_u32 s59, {sB}, 1
                s_not_b32 s58, s59
                s_cmp_eq_u32 {sW}, {sT}
                s_cselect_b64 s[58:59], s[58:59], -1""")
        self.a(f"""v_mul_u32_u24 v238, 272, v8
            v_lshl_add_u32 v238, v9, 3, v238
            v_add_u32 v238, {HI}, v238
            v_mul_u32_u24 v239, 136, v8
            v_lshl_add_u32 v239, v9, 2, v239
            v_add_u32 v239, {HS}, v239""")

    def e2(self):
        a = self.a
        a("L_stageE2:")
        if self.diag and self.diag not in ('cyc', 'iter', 'fine', 'nowait', 'noW'):
            a("s_branch L_done")
        a(f"""s_cmp_eq_u64 s[58:59], 0
            s_cbranch_scc1 L_nowr
            s_mov_b64 exec, s[58:59]
            s_bitcmp1_b32 0x37, {sW}
            s_cbranch_scc0 L_nopoll
            {f's_waitcnt vmcnt({self.pw})' if self.pw is not None else ''}
            s_mov_b32 s37, {SPIN}
            L_h4:
            buffer_load_dwordx4 v[240:243], v245, {SRDW}, s40 offen sc1
            s_sub_u32 s37, s37, 1
            s_waitcnt vmcnt(0)
            s_cbranch_scc1 L_nopoll
            v_cmp_ne_u32 vcc, {sTAG}, v243
            s_cbranch_vccnz L_h4
            L_nopoll:
            ds_write_b64 v246, v[240:241]
            ds_write_b32 v247, v242
            s_mov_b64 exec, -1
            L_nowr:
            s_waitcnt vmcnt(0)
            L_e2bar:
            s_waitcnt lgkmcnt(0)
            s_barrier""")
        self.stamp(14)
        a("ds_read_b64 v[22:23], v249")
        for s in range(4):
            a(f"ds_read_b128 {vr(176 + 4 * s, 4)}, v248 offset:{64 * s}")
            for p in range(2):
                a(f"ds_read_b64_tr_b16 {vr(160 + 4 * s + 2 * p, 2)}, v244 offset:{4096 * s + 512 * p}")
        chain = [f"v_max_f32_dpp v8, v22, v22 quad_perm:[1,0,3,2] {FULL}\nv_max_f32_dpp v8, v8, v8 quad_perm:[2,3,0,1] {FULL}\nv_sub_f32 v8, v22, v8\nv_exp_f32 v8, v8",
                 "v_mul_f32 v9, v8, v23",
                 f"v_add_f32_dpp v9, v9, v9 quad_perm:[1,0,3,2] {FULL}",
                 f"v_add_f32_dpp v9, v9, v9 quad_perm:[2,3,0,1] {FULL}\nv_rcp_f32 v9, v9"]
        a("s_waitcnt lgkmcnt(12)")
        for s in range(4):
            c = "0" if s == 0 else "v[208:211]"
            a(chain[s])
            a(f"s_waitcnt lgkmcnt({9 - 3 * s})")
            a(f"v_mfma_f32_16x16x32_bf16 v[208:211], {vr(176 + 4 * s, 4)}, {vr(160 + 4 * s, 4)}, {c}")
        a("v_mul_f32 v8, v8, v9")
        for r in range(3):
            a(f"v_mov_b32_dpp v{10 + r}, v8 row_newbcast:{r} row_mask:0x1 bank_mask:0xf")
            a(f"v_mov_b32_dpp v{10 + r}, v8 row_newbcast:{4 + r} row_mask:0x2 bank_mask:0xf")
        self.exec64(0xffffffff, 0)
        a(f"""v_mul_f32 v252, v10, v208
            v_fmac_f32 v252, v11, v209
            v_fmac_f32 v252, v12, v210
            buffer_store_dwordx2 v[252:253], v250, {SRDW}, s41 offen sc1
            s_mov_b64 exec, -1""")
        self.stamp(15)
        Wd = self.wide
        a(f"""s_cmp_lg_u32 {sW}, {self.rw}
            s_cbranch_scc1 L_done
            s_and_b32 s33, {sH}, {1 | (Wd - 1) << 2}
            s_cbranch_scc1 L_done
            s_mov_b32 s37, {SPIN}""")
        for k in range(1, Wd):
            a(f"s_add_u32 s{63 + k}, s42, {8192 * k}")
        a("L_fp:")
        for k in range(4 * Wd):
            a(f"buffer_load_dwordx4 {vr(64 + 4 * k, 4)}, v16, {SRDW}, {f's{63 + k // 4}' if k > 3 else 's42'} offen offset:{1024 * (k & 3)} sc1")
        a("s_sub_u32 s37, s37, 1")
        for b in range(Wd):
            r = 64 + 16 * b
            a(f"""s_waitcnt vmcnt({4 * (Wd - 1 - b)})
                v_bitop3_b32 v10, v{r + 1}, v{r + 3}, {sTAG} bitop3:0x7e
                v_bitop3_b32 v11, v{r + 5}, v{r + 7}, {sTAG} bitop3:0x7e
                v_bitop3_b32 v12, v{r + 9}, v{r + 11}, {sTAG} bitop3:0x7e
                v_bitop3_b32 v13, v{r + 13}, v{r + 15}, {sTAG} bitop3:0x7e
                v_add_f32 v{20 + 2 * b}, v{r}, v{r + 4}
                v_or3_b32 v10, v10, v11, v12
                v_add_f32 v{21 + 2 * b}, v{r + 2}, v{r + 6}
                {'v_or3_b32 v9, v9, v10, v13' if b else 'v_or_b32 v9, v10, v13'}
                v_add_f32 v14, v{r + 8}, v{r + 12}
                v_add_f32 v15, v{r + 10}, v{r + 14}""")
            if b == Wd - 1:
                a("v_cmp_ne_u32 vcc, 0, v9")
            a(f"v_pk_add_f32 {vr(20 + 2 * b, 2)}, {vr(20 + 2 * b, 2)}, v[14:15]")
        if self.fmask:
            a("s_cbranch_scc1 L_fok\ns_cbranch_vccz L_fok\ns_mov_b64 exec, vcc\ns_branch L_fp\nL_fok:\ns_mov_b64 exec, -1")
        else:
            a("s_cbranch_scc1 L_fok\ns_cbranch_vccnz L_fp\nL_fok:")
        self.stamp(16)
        for b in range(Wd):
            a(f"v_permlane32_swap_b32 v{20 + 2 * b}, v{21 + 2 * b}")
        for b in range(Wd):
            a(f"v_add_f32 v{20 + 2 * b}, v{20 + 2 * b}, v{21 + 2 * b}")
        if Wd == 1:
            a(f"v_add_f32_dpp v8, v20, v20 row_ror:8 {FULL}\nv_mov_b32 v9, v8")
        else:
            for k in range(Wd // 2):
                a(f"v_add_f32_dpp v{8 + k}, v{20 + 4 * k}, v{20 + 4 * k} row_ror:8 row_mask:0xf bank_mask:0x3")
                a(f"v_add_f32_dpp v{8 + k}, v{22 + 4 * k}, v{22 + 4 * k} row_ror:8 row_mask:0xf bank_mask:0xc")
            if Wd == 2:
                a("v_mov_b32 v9, v8")
        a(f"""v_permlane16_swap_b32 v8, v9
            v_add_f32 v10, v8, v9
            v_add_f32 v11, v8, v9
            v_permlane32_swap_b32 v10, v11""")
        self.exec64((1 << 8 * Wd) - 1, 0)
        a(f"""v_cvt_pk_bf16_f32 v8, v10, v11
            buffer_store_dword v8, v254, {SRDX}, s43 offen {self.outfl}
            L_done:""")
        if self.calib:
            a(f"""L_cal:
                s_memrealtime s[98:99]
                s_waitcnt lgkmcnt(0)
                s_sub_u32 s98, s98, s96
                s_cmp_lt_u32 s98, {self.calib * 100}
                s_cbranch_scc1 L_cal""")
        if self.amp:
            k, roles, neg = self.amp
            a("s_mov_b64 exec, -1")
            self.stamp(17)
            a(f"""s_nop 1
                v_readlane_b32 s33, v63, {k}
                s_lshr_b32 s36, {roles}, {sT}
                s_and_b32 s36, s36, 1
                s_cselect_b32 s33, s33, 0
                s_cmp_eq_u32 s33, 0
                s_cselect_b32 s38, 0, 1
                s_cselect_b32 s33, s96, s33
                s_sub_u32 s33, s33, s96
                {'s_sub_u32 s33, 2500, s33' if neg else ''}
                s_mul_i32 s33, s33, s38
                s_mul_i32 s33, s33, 10
                s_add_u32 s33, s33, 3000
                L_amp:
                s_memrealtime s[98:99]
                s_waitcnt lgkmcnt(0)
                s_sub_u32 s98, s98, s96
                s_cmp_lt_u32 s98, s33
                s_cbranch_scc1 L_amp""")
        elif self.dbg:
            a("s_mov_b64 exec, -1")
            self.stamp(17)
            a(f"""s_getreg_b32 s33, hwreg(HW_REG_XCC_ID)
                v_writelane_b32 v63, s33, 31
                s_getreg_b32 s33, hwreg(HW_REG_HW_ID)
                v_writelane_b32 v63, s33, 28
                s_lshl_b32 s33, s2, 3
                s_add_u32 s33, s33, {sW}
                s_lshl_b32 s33, s33, 7
                s_add_u32 s33, s33, {STAMP}
                v_lshlrev_b32 v7, 2, v0""")
            self.exec64(0xffffffff, 0)
            a(f"buffer_store_dword v63, v7, {SRDW}, s33 offen")

    def role_b(self):
        a = self.a
        D = self.bdepth
        QAR, FR, O, S2, S3, PF, S = 64, 128, 160, 192, 224, 32, 48
        a("L_roleB:")
        a("s_mov_b64 s[16:17], s[70:71]\ns_mov_b32 s18, 0x400000")
        self.second_batch(lambda: None, 0, self.sd[2])
        self.load_e2_ptr()
        for i in range(8):
            a(f"s_waitcnt vmcnt({D - 1})\ns_add_u32 m0, s44, {dest(i) + 16384}\ns_nop 0")
            a(f"buffer_load_dwordx4 v{3 + (i & 1)}, {SRD0}, s43 offen nt lds\ns_add_u32 s43, s43, s41")
        self.stamp(1)

        def stage(i):
            a(f"s_add_u32 s33, s43, {(262144 if self.bx else 8192) * i}\nbuffer_load_dwordx4 {vr(S2 + 4 * (i if i < 4 else i - 8 if i >= 12 else i + 4), 4)}, v{3 + (i & 1)}, {SRD0}, s33 offen nt")

        def late(i, wait=None):
            sk = self.lab("lt")
            a(f"s_cmp_le_u32 s62, {i}\ns_cbranch_scc1 {sk}")
            if wait is not None:
                a(f"s_waitcnt vmcnt({wait})")
            stage(i)
            a(f"{sk}:")

        a(f"""s_and_b32 s54, {sW}, 3
            s_lshr_b32 s55, {sW}, 2
            v_and_b32 v7, 3, v1
            v_lshlrev_b32 v7, 2, v7
            v_lshrrev_b32 v8, 2, v1
            v_or_b32 v7, v7, v8
            v_lshlrev_b32 v7, 4, v7
            v_lshl_add_u32 v7, v2, 8, v7
            v_lshl_add_u32 v7, v1, 10, v7
            s_lshl_b32 s33, s54, 15
            v_add_u32 v28, s33, v7
            v_lshlrev_b32 v7, 4, v1
            v_lshl_add_u32 v7, v2, 8, v7
            v_lshl_add_u32 v7, v1, 10, v7
            s_lshl_b32 s33, s55, 14
            s_add_u32 s33, s33, {AUX}
            v_add_u32 v29, s33, v7
            v_lshrrev_b32 v9, 1, v2
            v_and_b32 v10, 1, v2
            v_bfe_u32 v11, v0, 1, 1
            v_lshl_or_b32 v11, v10, 1, v11
            s_lshl_b32 s33, {sW}, 3
            v_or_b32 v11, s33, v11
            v_lshlrev_b32 v12, 2, v8
            v_lshl_or_b32 v12, v9, 1, v12
            v_xor_b32 v11, v11, v12
            v_lshlrev_b32 v11, 4, v11
            v_lshl_add_u32 v12, v9, 3, v8
            v_lshl_add_u32 v11, v12, 10, v11
            v_and_b32 v12, 1, v0
            v_lshl_add_u32 v20, v12, 3, v11
            v_xor_b32 v21, 16, v20
            v_add_u32 v21, 4096, v21
            v_xor_b32 v22, 64, v20
            v_xor_b32 v23, 64, v21""")
        for k in range(4):
            a(f"v_add_u32 v{24 + k}, 65536, v{20 + k}")
        a(f"""s_lshl_b32 s33, s55, 8
            s_add_u32 s33, s33, {MX}
            v_lshl_add_u32 v30, v1, 4, s33
            s_lshl_b32 s33, s54, 2
            v_add_u32 v31, s33, v30
            v_and_b32 v7, 31, v0
            v_lshlrev_b32 v56, 4, v7
            v_add_u32 v56, {MX}, v56
            v_mul_u32_u24 v60, 272, v7
            v_lshl_add_u32 v60, v9, 4, v60
            v_add_u32 v60, {PB}, v60
            v_mul_u32_u24 v61, 272, v1
            v_lshl_add_u32 v61, v2, 3, v61
            s_mul_i32 s33, s55, {16 * 272}
            s_lshl_b32 s36, s54, 6
            s_add_u32 s33, s33, s36
            s_add_u32 s33, s33, {PB}
            v_add_u32 v61, s33, v61
            v_add_u32 v19, s44, v16
            v_add_u32 v62, 65536, v19
            v_mov_b32 v57, {NEGBIG:#x}
            v_mov_b32 v58, {NEGBIG:#x}
            v_mov_b32 v59, 0
            v_lshlrev_b32 v7, 1, v2
            v_xor_b32 v7, v7, v1
            v_lshlrev_b32 v7, 4, v7
            v_lshl_add_u32 v5, v2, 13, v7
            v_xor_b32 v6, 128, v5
            s_lshl_b32 s45, {sB}, 21
            s_lshl_b32 s36, {sW}, 18
            s_add_u32 s45, s45, s36
            s_lshl_b32 s36, {sH}, 8
            s_add_u32 s45, s45, s36""")
        for k in range(32):
            a(f"v_mov_b32 v{O + k}, 0")
        a("; ---- keep streaming until the absorbed queries are flagged, then copy them into LDS")
        a(f"""s_lshl_b32 s33, {sH}, 1
            s_add_u32 s33, s33, {sB}
            s_lshl_b32 s33, s33, 3
            s_add_u32 s33, s33, {sW}
            s_lshl_b32 s33, s33, 7
            s_add_u32 s33, s33, {F2}
            s_add_u32 s34, s12, s33
            s_addc_u32 s35, s13, 0
            s_lshl_b32 s49, {sB}, 15
            s_lshl_b32 s36, {sW}, 12
            s_add_u32 s49, s49, s36
            s_add_u32 s49, s49, {QABS}
            s_add_u32 s50, s36, {AUX}
            s_mov_b32 s60, {sTAG}
            s_mov_b32 s61, {sTAG}""")

        def flags_differ():
            for k in range(4):
                a(f"s_xor_b64 s[{64 + 2 * k}:{65 + 2 * k}], s[{64 + 2 * k}:{65 + 2 * k}], s[60:61]")
            a("s_or_b64 s[64:65], s[64:65], s[66:67]\ns_or_b64 s[68:69], s[68:69], s[70:71]\ns_or_b64 s[64:65], s[64:65], s[68:69]")
        for i in range(15, 15 - self.bmax, -2):
            chk = 17 - i >= self.bmin
            if chk:
                a("s_load_dwordx8 s[64:71], s[34:35], 0 glc")
            for k in (i, i - 1):
                a(f"s_waitcnt vmcnt({D - 1})")
                stage(k)
            if chk:
                a(f"s_mov_b32 s62, {i - 1}\ns_waitcnt lgkmcnt(0)")
                flags_differ()
                a("s_cbranch_scc0 L_h2ok")
        self.stamp(2)
        a(f"""s_mov_b32 s62, {16 - self.bmax}
            s_mov_b32 s37, {SPIN}
            L_h2:
            s_load_dwordx8 s[64:71], s[34:35], 0 glc
            s_sub_u32 s37, s37, 1
            s_waitcnt lgkmcnt(0)
            s_cbranch_scc1 L_h2ok""")
        flags_differ()
        a("s_cbranch_scc1 L_h2")
        a("L_h2ok:")
        self.stamp(3)
        def qcopy():
            a(f"""s_lshl_b32 s33, s54, 6
                v_xor_b32 v12, s33, v16
                v_xor_b32 v13, 16, v12
                v_xor_b32 v14, 32, v12
                v_xor_b32 v15, 48, v12
                s_mov_b32 m0, s50""")
            for i in range(4):
                a(f"buffer_load_dwordx4 v{12 + i}, {SRDW}, s49 offen offset:{1024 * i} sc1 lds")

        def qread():
            for s in range(16):
                a(f"v_xor_b32 v7, {s << 4}, v29\nds_read_b128 {vr(QAR + 4 * s, 4)}, v7")
        qcopy()
        a("s_barrier")
        for i in range(4):
            a(f"s_waitcnt vmcnt({D + 1})")
            stage(i)
        a("s_waitcnt vmcnt(4)\ns_barrier")
        self.stamp(4)
        a("s_mov_b32 s37, 4096\nL_qa:")
        qread()
        a("s_waitcnt lgkmcnt(0)\ns_barrier")

        def put(reg, sig):
            for i in range(8):
                d = dest(i) + 16384 * sig
                a(f"ds_write_b128 v{62 if d >> 16 else 19}, {vr(reg + 4 * i, 4)} offset:{d & 0xffff}")

        def step(t, sigs, hook):
            ns = len(sigs)
            a(f"; ---- {64 * ns} keys: scores, online softmax, weighted sum of latents")
            blocks = [2 * kb + sg for kb in range(4) for sg in sigs]

            def rd(r):
                if r % ns == 0:
                    a(f"v_xor_b32 v7, {(r // ns) << 4}, v28")
                a(f"ds_read_b128 {vr(FR + 4 * (r & 7), 4)}, v7 offset:{16384 * sigs[r % ns]}")

            def tr(n, blk):
                be = blocks[n]
                for p in range(2):
                    ar = 20 + 4 * (be >> 2) + 2 * blk + p
                    a(f"ds_read_b64_tr_b16 {vr(FR + 8 * (n & 3) + 4 * blk + 2 * p, 2)}, v{ar} offset:{(be & 3) * 16384}")

            def pread(n):
                a(f"ds_read_b128 {vr(PF + 4 * (n & 3), 4)}, v60 offset:{32 * blocks[n]}")
            nr = 16 * ns
            for r in range(8):
                rd(r)
            for r in range(nr):
                a(f"s_waitcnt lgkmcnt({min(7, nr - 1 - r)})")
                acc = vr(S + 4 * (r % ns), 4)
                a(f"v_mfma_f32_16x16x32_bf16 {acc}, {vr(FR + 4 * (r & 7), 4)}, {vr(QAR + 4 * (r // ns), 4)}, {'0' if r < ns else acc}")
                hook("qk", r)
                if r + 8 < nr:
                    rd(r + 8)
            a(f"v_max3_f32 v7, v{S}, v{S + 1}, v{S + 2}")
            if ns == 2:
                a(f"v_max3_f32 v8, v{S + 4}, v{S + 5}, v{S + 6}\nv_max3_f32 v7, v7, v{S + 3}, v{S + 7}\nv_max_f32 v7, v7, v8")
            else:
                a(f"v_max_f32 v7, v7, v{S + 3}")
            for sw in ("v_permlane16_swap_b32", "v_permlane32_swap_b32"):
                a(f"v_mov_b32 v8, v7\n{sw} v8, v7\nv_max_f32 v7, v7, v8")
            a("""v_mul_f32 v7, s52, v7
                ds_write_b32 v31, v7""")
            for n in range(3):
                tr(n, 0); tr(n, 1)
            a("""s_waitcnt lgkmcnt(12)
                s_barrier
                ds_read_b128 v[8:11], v30
                ds_read_b128 v[12:15], v56
                s_waitcnt lgkmcnt(0)""")
            tr(3, 0); tr(3, 1)
            if t == 0 and self.noack and 'nowait' not in self.diag:
                a("v_cmp_u_f32 vcc, v12, v12\ns_cbranch_vccnz L_qretry\nL_qaok:")
                if self.dbg is True:
                    a("s_sub_u32 s33, 4096, s37\nv_writelane_b32 v63, s33, 29")
            a("v_max3_f32 v8, v8, v9, v10\nv_max3_f32 v8, v8, v11, v57")
            for r in range(4 * ns):
                a(f"v_fma_f32 v{S + r}, v{S + r}, s52, -v8")
            for r in range(4 * ns):
                a(f"v_exp_f32 v{S + r}, v{S + r}")
            a("v_max3_f32 v12, v12, v13, v14")
            for r in range(2 * ns):
                a(f"v_cvt_pk_bf16_f32 v{PF + r}, v{S + 2 * r}, v{S + 2 * r + 1}")
            for k, sg in enumerate(sigs):
                a(f"ds_write_b64 v61, {vr(PF + 2 * k, 2)} offset:{32 * sg}")
            a(f"""v_sub_f32 v9, v57, v8
                v_max3_f32 v12, v12, v15, v58
                v_exp_f32 v9, v9
                v_sub_f32 v14, v58, v12
                v_mov_b32 v57, v8
                v_exp_f32 v14, v14
                v_mov_b32 v58, v12
                v_pk_add_f32 {vr(S, 2)}, {vr(S, 2)}, {vr(S + 2, 2)}""")
            if ns == 2:
                a(f"v_pk_add_f32 {vr(S + 4, 2)}, {vr(S + 4, 2)}, {vr(S + 6, 2)}\nv_pk_add_f32 {vr(S, 2)}, {vr(S, 2)}, {vr(S + 4, 2)}")
            a(f"v_fma_f32 v59, v59, v9, v{S}\nv_add_f32 v59, v59, v{S + 1}")
            if t == 2:
                for sw in ("v_permlane16_swap_b32", "v_permlane32_swap_b32"):
                    a(f"v_mov_b32 v8, v59\n{sw} v8, v59\nv_add_f32 v59, v59, v8")
                a(f"ds_write_b32 v31, v59 offset:{LS - MX}")

            def rescale(lo, hi):
                if t:
                    for k in range(lo, hi):
                        a(f"v_pk_mul_f32 {vr(O + 2 * k, 2)}, {vr(O + 2 * k, 2)}, v[14:15] op_sel_hi:[1,0]")
            rescale(0, 6)
            a("s_waitcnt lgkmcnt(0)\ns_barrier")
            for n in range(4):
                pread(n)
            rescale(6, 16)
            for n in range(4 * ns):
                if ns == 1:
                    a(f"s_waitcnt lgkmcnt({3 - n})")
                elif n in (0, 5, 6, 7):
                    a(f"s_waitcnt lgkmcnt({ {0: 0, 5: 10, 6: 5, 7: 0}[n] })")
                if n == 7:
                    a("s_barrier")
                for blk in range(2):
                    a(f"v_mfma_f32_32x32x16_bf16 {vr(O + 16 * blk, 16)}, {vr(FR + 8 * (n & 3) + 4 * blk, 4)}, {vr(PF + 4 * (n & 3), 4)}, {vr(O + 16 * blk, 16)}")
                hook("pv", n)
                if ns == 2 and n < 4:
                    if n == 3:
                        a("s_waitcnt lgkmcnt(10)")
                    pread(n + 4)
                    tr(n + 4, 0); tr(n + 4, 1)

        def uv(i):
            a(f"buffer_load_dwordx4 {vr(S2 + 4 * i, 4)}, v{5 + (i & 1)}, {SRDK}, s45 offen nt\ns_add_u32 s45, s45, 32768")

        def hook0(ph, r):
            if ph == "qk" and r in self.hookpos:
                late(4 + self.hookpos.index(r))
            if ph == "pv" and r in (0, 2, 4, 6):
                late(8 + r // 2)
        step(0, (0, 1), hook0)
        self.stamp(5)
        for n in (8, 6, 4, 2):
            a(f"s_waitcnt vmcnt({n})\ns_cmp_eq_u32 s62, {n + 4}\ns_cbranch_scc1 L_mid")
        a("s_waitcnt vmcnt(0)\nL_mid:")
        put(S2, 0)
        a(f"""s_lshl_b32 s50, s55, 15
            s_lshl_b32 s36, s54, 12
            s_add_u32 s50, s50, s36
            s_add_u32 s50, s50, {PART[0]}
            v_and_b32 v7, 31, v0
            v_and_b32 v8, 7, v0
            v_lshlrev_b32 v9, 4, v8
            v_lshl_add_u32 v9, v7, 7, v9
            v_lshrrev_b32 v10, 5, v0
            v_lshl_add_u32 v9, v10, 3, v9
            v_add_u32 v3, s50, v9
            v_lshrrev_b32 v10, 3, v0
            v_xor_b32 v11, v8, v10
            v_lshlrev_b32 v11, 4, v11
            v_lshl_add_u32 v11, v10, 7, v11
            v_add_u32 v4, s50, v11
            v_lshlrev_b32 v12, 4, v8
            v_lshl_add_u32 v29, v10, 16, v12
            v_lshlrev_b32 v17, 10, v0
            v_mov_b32 v18, 0x10001
            s_mov_b32 s51, 0x07060302
            v_mov_b32 v54, {sTAG}
            v_mov_b32 v55, {sTAG}
            s_lshl_b32 s49, s55, 15
            s_lshl_b32 s36, {sB}, 14
            s_add_u32 s49, s49, s36
            s_lshl_b32 s36, {sH}, 9
            s_add_u32 s49, s49, s36
            s_lshl_b32 s36, s54, 7
            s_add_u32 s49, s49, s36
            s_add_u32 s49, s49, {OP}
            s_lshl_b32 s53, {sB}, 9
            s_lshl_b32 s36, {sH}, 4
            s_add_u32 s53, s53, s36
            s_add_u32 s53, s53, {ST}""")
        for k in range(4):
            a(f"s_bfe_u32 s33, {sTAG}, {0x20000 + 2 * k:#x}\ns_mul_i32 s33, s33, 0x8001\ns_and_b32 s{56 + k}, s33, 0x10001")
        a("s_waitcnt lgkmcnt(0)\ns_barrier")
        self.stamp(6)
        u0, u1, u2 = self.uva
        for i in range(u0):
            uv(i)
        step(1, (0,), lambda ph, r: uv(u0 + r - 4 + u1) if ph == "pv" and r >= 4 - u1 else None)
        a(f"s_waitcnt vmcnt({u0 + u1})")
        put(S3, 1)
        for i in range(u2):
            uv(u0 + u1 + i)
        a("s_waitcnt lgkmcnt(0)\ns_barrier")
        self.stamp(7)
        step(2, (1,), lambda ph, r: None)
        self.stamp(8)
        for k in range(1, 8):
            a(f"v_xor_b32 v{S3 + k}, {16 * k}, v3")
        if 'Bstop8' in self.diag:
            a("s_branch L_done")
        def stats():
            a(f"""s_cmp_lg_u32 {sW}, 0
                s_cbranch_scc1 L_nost
                ds_read_b128 v[8:11], v56 offset:{LS - MX}
                v_mov_b32 v52, v58
                s_waitcnt lgkmcnt(0)
                v_add_f32 v8, v8, v9
                v_add_f32 v10, v10, v11
                v_add_f32 v53, v8, v10""")
            self.exec64(0xffffffff, 0)
            a(f"buffer_store_dwordx4 v[52:55], v17, {SRDW}, s53 offen sc1\ns_mov_b64 exec, -1\nL_nost:")
        if not self.stlate:
            stats()
        a("s_nop 5")
        if 'slowp' in self.test:
            a(f"s_and_b32 s33, {sW}, {sH}\ns_cbranch_scc0 L_tp\ns_sleep 127\ns_sleep 127\nL_tp:")
        for k in range(8):
            a(f"v_perm_b32 v{FR + 2 * k}, v{O + 4 * k + 1}, v{O + 4 * k}, s51")
            a(f"v_perm_b32 v{FR + 2 * k + 1}, v{O + 4 * k + 3}, v{O + 4 * k + 2}, s51")
            a(f"ds_write_b64 v{S3 + k if k else 3}, {vr(FR + 2 * k, 2)}")
        for i in range(4):
            a(f"ds_read_b128 {vr(FR + 16 + 4 * i, 4)}, v4 offset:{1024 * i}")
        for i in range(4):
            a(f"s_waitcnt lgkmcnt({3 - i})")
            for k in range(4):
                a(f"v_bfi_b32 v{FR + 16 + 4 * i + k}, v18, s{56 + k}, v{FR + 16 + 4 * i + k}")
            a(f"{'' if i < self.nst else ';'}buffer_store_dwordx4 {vr(FR + 16 + 4 * i, 4)}, v29, {SRDW}, s49 offen {self.pfl}\ns_add_u32 s49, s49, {8 * 65536}")
        if self.stlate:
            stats()
        self.stamp(9)
        for i in range(sum(self.uva), 8):
            uv(i)
        self.e2_dma_setup()
        if self.e2s and self.sbar:
            a("s_barrier")
        for i in range(self.e2s):
            self.e2_dma(i)
        a(f"""s_lshl_b32 s33, {sH}, 10
            s_lshl_b32 s36, {sW}, 7
            s_add_u32 s33, s33, s36
            s_add_u32 s33, s33, {ST}
            s_add_u32 s34, s12, s33
            s_addc_u32 s35, s13, 0
            v_lshrrev_b32 v7, 5, v0
            s_and_b32 s33, {sW}, 1
            s_lshl_b32 s33, s33, 2
            v_or_b32 v7, s33, v7
            v_lshlrev_b32 v7, 5, v7
            v_xor_b32 v3, v7, v16
            v_xor_b32 v4, 64, v3
            s_lshl_b32 s49, {sH}, 16
            s_lshl_b32 s36, {sB}, 15
            s_add_u32 s49, s49, s36
            s_lshl_b32 s36, {sW}, 12
            s_add_u32 s49, s49, s36
            s_add_u32 s49, s49, {OP}
            v_add_u32 v5, s50, v16
            v_lshrrev_b32 v8, 2, v1
            v_lshrrev_b32 v9, 1, v2
            v_and_b32 v10, 1, v2
            v_lshlrev_b32 v7, 15, v9
            v_lshl_add_u32 v7, v10, 13, v7
            v_lshl_add_u32 v7, v8, 8, v7
            v_and_b32 v11, 3, v0
            v_lshl_add_u32 v7, v11, 3, v7
            v_lshl_or_b32 v10, v10, 2, v8
            v_xor_b32 v9, {sW}, v10
            v_lshl_add_u32 v20, v9, 5, v7
            v_add_u32 v21, 65536, v20
            v_lshlrev_b32 v7, 12, v2
            v_lshl_add_u32 v7, v8, 9, v7
            v_lshl_add_u32 v7, v11, 3, v7
            s_lshl_b32 s33, {sW}, 1
            v_xor_b32 v10, s33, v10
            v_lshl_add_u32 v7, v10, 5, v7
            v_add_u32 v24, {PART[0]}, v7
            v_xor_b32 v25, 32, v24
            s_lshl_b32 s33, {sW}, 7
            s_add_u32 s36, s33, {WB}
            v_lshl_add_u32 v22, v0, 1, s36
            v_and_b32 v8, 1, v0
            v_lshlrev_b32 v7, 6, v8
            v_lshl_add_u32 v7, v2, 4, v7
            v_add_u32 v23, s36, v7
            v_add_u32 v27, {CC}, v7
            v_add_u32 v26, s33, v27
            v_lshlrev_b32 v7, 11, v8
            v_lshl_add_u32 v28, v2, 4, v7
            s_lshl_b32 s53, {sH}, 12
            s_lshl_b32 s36, {sB}, 9
            s_add_u32 s53, s53, s36
            s_lshl_b32 s36, {sW}, 6
            s_add_u32 s53, s53, s36
            s_add_u32 s53, s53, {H4B}
            s_add_u32 s36, s36, {SM}
            v_lshl_add_u32 v29, v0, 3, s36
            v_lshlrev_b32 v30, 3, v0
            v_add_u32 v30, {SM}, v30
            v_and_b32 v7, 1, v2
            v_cvt_f32_u32 v54, v7
            v_mul_f32 v54, 0.5, v54
""")
        if 'Bstop9' in self.diag:
            a("s_branch L_done")
        self.e2_setup(True)
        a(f"""s_mov_b32 s37, {SPIN}
            L_h3:
            {f's_sleep {self.ps[1]}' if self.ps[1] else ''}
            s_load_dwordx16 s[64:79], s[34:35], 0 glc
            s_load_dwordx16 s[80:95], s[34:35], 64 glc
            s_sub_u32 s37, s37, 1
            s_waitcnt lgkmcnt(0)
            s_cbranch_scc1 L_h3ok""")
        for k in range(8):
            a(f"s_cmp_lg_u32 s{66 + 4 * k}, {sTAG}\ns_cbranch_scc1 L_h3")
        a("L_h3ok:")
        self.stamp(10)

        def fetch():
            for i in range(4):
                a(f"buffer_load_dwordx4 {vr(O + 4 * i, 4)}, v{3 + (i & 1)}, {SRDW}, s49 offen offset:{1024 * i} {self.gfl}")
        fetch()
        a("s_waitcnt vmcnt(4)")
        put(S2, 0)
        for k in range(8):
            a(f"v_writelane_b32 v8, s{64 + 4 * k}, {k}\nv_writelane_b32 v9, s{65 + 4 * k}, {k}")
        a("""s_mov_b64 exec, 0xff
            ds_write_b64 v29, v[8:9]
            s_mov_b64 exec, -1
            s_waitcnt lgkmcnt(0)
            s_barrier
            ds_read_b64 v[12:13], v30""")
        for s in range(7):
            for p in range(2):
                a(f"ds_read_b64_tr_b16 {vr(QAR + 4 * s + 2 * p, 2)}, v{20 + p} offset:{1024 * s}")
        a("s_waitcnt lgkmcnt(14)\nv_mov_b32 v14, v12")

        def red32(op, r, t):
            for sh in (1, 2, 4, 8):
                a(f"{op}_dpp v{r}, v{r}, v{r} row_ror:{sh} {FULL}")
            a(f"v_mov_b32 v{t}, v{r}\nv_permlane16_swap_b32 v{t}, v{r}\n{op} v{r}, v{r}, v{t}")
        red32("v_max_f32", 14, 15)
        for p in range(2):
            a(f"ds_read_b64_tr_b16 {vr(QAR + 28 + 2 * p, 2)}, v{20 + p} offset:{1024 * 7}")
        a("v_sub_f32 v12, v12, v14\nv_exp_f32 v12, v12\nv_mul_f32 v13, v12, v13")
        red32("v_add_f32", 13, 15)
        a(f"""v_rcp_f32 v13, v13
            v_mul_f32 v12, v12, v13
            v_cvt_pk_bf16_f32 v12, v12, v12
            ds_write_b16 v22, v12
            ds_read_b128 v[12:15], v23
            v_cmp_eq_u32 vcc, 0, v1
            v_cmp_eq_u32 s[38:39], 1, v1
            s_mov_b32 s37, {SPIN}
            s_waitcnt lgkmcnt(0)""")
        for k in range(4):
            a(f"v_cndmask_b32 v{32 + k}, 0, v{12 + k}, vcc")
            a(f"v_cndmask_b32 v{36 + k}, 0, v{12 + k}, s[38:39]")
        a(f"""L_h3p:
            s_waitcnt vmcnt(0)
""")
        for k in range(4):
            a(f"v_bitop3_b32 v{8 + 2 * k}, v{O + k}, v{O + 4 + k}, s{56 + k} bitop3:0x7e")
            a(f"v_bitop3_b32 v{9 + 2 * k}, v{O + 8 + k}, v{O + 12 + k}, s{56 + k} bitop3:0x7e")
        a(f"""v_or3_b32 v8, v8, v9, v10
            v_or3_b32 v11, v11, v12, v13
            v_or3_b32 v8, v8, v14, v15
            v_or_b32 v8, v8, v11
            v_and_b32 v8, 0x10001, v8
            v_cmp_ne_u32 vcc, 0, v8
            s_cbranch_vccz L_h3pok
            s_sub_u32 s37, s37, 1
            s_cbranch_scc1 L_h3pok""")
        fetch()
        a("s_branch L_h3p\nL_h3pok:")
        for i in range(4):
            for k in range(4):
                a(f"v_or_b32 v{O + 4 * i + k}, 0x10001, v{O + 4 * i + k}")
            a(f"ds_write_b128 v5, {vr(O + 4 * i, 4)} offset:{1024 * i}")
        if self.dbg is True:
            a(f"s_sub_u32 s33, {SPIN}, s37\nv_writelane_b32 v63, s33, 30")
        a("s_waitcnt lgkmcnt(0)\ns_barrier")
        self.stamp(11)
        for s in range(2):
            for cb in range(2):
                for p in range(2):
                    a(f"ds_read_b64_tr_b16 {vr(FR + 8 * s + 4 * cb + 2 * p, 2)}, v{24 + cb} offset:{32768 * s + 2048 * p}")
        if self.e2b == 0:
            for i in range(self.e2s, 4):
                self.e2_dma(i)
        for s in range(2):
            for cb in range(2):
                a(f"s_waitcnt lgkmcnt({6 - 4 * s - 2 * cb})")
                c = "0" if s == 0 else vr(40 + 4 * cb, 4)
                a(f"v_mfma_f32_16x16x32_bf16 {vr(40 + 4 * cb, 4)}, {vr(FR + 8 * s + 4 * cb, 4)}, {vr(32 + 4 * s, 4)}, {c}")
        for k in range(4):
            a(f"v_cvt_pk_bf16_f32 v{48 + k}, v{40 + 2 * k}, v{41 + 2 * k}")
        self.exec64(0x00030003)
        a("ds_write_b128 v26, v[48:51]\ns_mov_b64 exec, -1\ns_waitcnt lgkmcnt(0)\ns_barrier")
        for s in range(8):
            a(f"ds_read_b128 {vr(FR + 4 * s, 4)}, v27 offset:{128 * s}")
        for s in range(8):
            a(f"s_waitcnt lgkmcnt({7 - s})")
            a(f"v_mfma_f32_16x16x32_bf16 v[40:43], {vr(QAR + 4 * s, 4)}, {vr(FR + 4 * s, 4)}, {'v[40:43]' if s else '0'}")
        self.exec64(0x00030003)
        a("v_cvt_pk_bf16_f32 v52, v40, v41\nv_cvt_pk_bf16_f32 v53, v42, v43")
        a(f"buffer_store_dwordx4 v[52:55], v28, {SRDW}, s53 offen sc1")
        a("ds_write_b64 v238, v[52:53]\nds_write_b32 v239, v54\ns_mov_b64 exec, -1\ns_mov_b64 s[58:59], s[60:61]")
        a(f"""s_or_b32 s33, {sH}, {sB}
            s_xor_b32 s36, {sW}, 6
            s_or_b32 s33, s33, s36
            s_cbranch_scc1 L_noep
            s_mov_b64 exec, 1
            buffer_store_dword v253, off, {SRDW}, 0 offset:{EPOCH} sc1
            s_mov_b64 exec, -1
            L_noep:""")
        self.stamp(12)
        if self.e2b == 1:
            for i in range(self.e2s, 4):
                self.e2_dma(i)
        a("s_branch L_stageE2")
        if self.noack and 'nowait' not in self.diag:
            a("L_qretry:\ns_sub_u32 s37, s37, 1\ns_cbranch_scc1 L_qaok\ns_waitcnt lgkmcnt(0)\ns_barrier")
            qcopy()
            a("s_waitcnt vmcnt(0)\ns_barrier\ns_branch L_qa")

    def build(self):
        a = self.a
        self.entry()
        self.p1()
        a("L_rolePU:")
        self.p2()
        self.a_common()
        self.e2()
        a("s_endpgm")
        a("; ==== type 3: latent attention")
        self.role_b()
        a("L_end:\ns_endpgm")
        if 'fine' in self.diag:
            a.stamp_loads()
        body = a.finalize().replace(" nt lds", f" {self.sfl} lds").replace(" nt\n", f" {self.sfl}\n")
        return f"""{HEADER};
; One persistent launch: 256 workgroups of 8 waves, one per CU, 8 workgroups per head h; j = 4*b + type.
;   type 2    absorbed query q.W_uk^T for one half of the latent axis, then a third of the K/V window of (b, h)
;   type 3    latent attention of batch b over 256 keys for all heads, then combine + W_uv for one latent half
; @launch grid=(256,1,1) block=(512,1,1) lds={LDS_BYTES}
.amdgcn_target "amdgcn-amd-amdhsa--gfx950"
.text
.globl {NAME}
.p2align 8
.type {NAME},@function
{NAME}:
{body}.section .rodata,"a"
.p2align 6
.amdhsa_kernel {NAME}
  .amdhsa_next_free_vgpr 256
  .amdhsa_next_free_sgpr 102
  .amdhsa_accum_offset 256
  .amdhsa_group_segment_fixed_size 0
  .amdhsa_kernarg_size 112
  .amdhsa_user_sgpr_count 2
  .amdhsa_user_sgpr_kernarg_segment_ptr 1
  .amdhsa_system_sgpr_workgroup_id_x 1
  .amdhsa_float_denorm_mode_32 3
.end_amdhsa_kernel
"""


if __name__ == "__main__":
    out = sys.argv[1]
    kw = eval("dict(" + (sys.argv[2] if len(sys.argv) > 2 else "") + ")")
    open(out, "w").write(Gen(**kw).build())
```

```python
import sys
from asmlib import Asm

NAME = "concat_heads__sliding_block_cached__compressed_kv_cla__decode_kernel"
HEADER = open("concat_heads__sliding_block_cached__compressed_kv_cla__decode.s.ref").read().split("; Override launch")[0]

EPOCH = 0
QA = 0xa0000
QB = 0xc0000
CNT = 0xa00000
QABS = 0x30000
F2 = 0x40000
ST = 0x50000
H4A = 0x60000
H4B = 0x80000
OP = 0x100000
H5 = 0x400000
STAMP = 0x800000
WS_SIZE = 0x1000000

AUX = 131072
RED = AUX
MXA = AUX + 512
LSA = AUX + 8192 + 64
MX = AUX + 9216
LS = AUX + 9216 + 512
PB = AUX + 10240
SM = AUX + 28672
WB = AUX + 29696
TK = AUX + 768
XI = AUX + 12288
CC = AUX + 30720
QL = AUX + 10240
HI = AUX + 20480
HS = AUX + 25088
E2B = (81920, 114688)
PART = (16384, 49152)
LDS_BYTES = 163840

SCALE = 0x3e0293ee
NEGBIG = 0xff7fffff
SPIN = 1 << 18

sW, sH, sJ, sB, sT, sTAG = "s3", "s4", "s5", "s6", "s7", "s32"
SRD0, SRDW, SRDK, SRDV, SRDE, SRDX = "s[8:11]", "s[12:15]", "s[16:19]", "s[20:23]", "s[24:27]", "s[28:31]"
FULL = "row_mask:0xf bank_mask:0xf"


def vr(a, n):
    return f"v[{a}:{a + n - 1}]"


def dest(i):
    return (i >> 1) * 32768 + (i & 1) * 8192


class Gen:
    def __init__(self, dbg=False, calib=0, amp=None, diag='', depth=4, lo=3, win=((12, 12), (12, 12)), edepth=(4,), bdepth=4,
                 pu_pre=6, xpos=5, rounds=10, hxa=2, hxu=1, jmul=3, hookpos=(0, 9, 18, 27), bmin=4, uva=(4, 4, 0), e2b=1, e2s=0, sbar=True,
                 e2pos=(0, 0), pw=None, noack=True, pollw=False, qplain=True, outfl='sc1', warm=0, wide=2, rw=7, jr=0, fmask=True, ddepth=4, l2c=(6, 4), l2u=(0, 0), l2pre=4, l2fl='', t0=False, qat=2, budget=3, pu_mid=0, stlate=True, sfl='nt', test='', nak=True, late=0, pbar=False, jx=(0, 0), e2mid=0, prio=0, kmul=1, pmul=1, srot=0, bx=0, wsoff=0, bmax=12, hold=1, sd=(4, 4, 4), hint=True, pmask=False, ps=(0, 0, 0, 0)):
        self.__dict__.update(locals())
        self.a = Asm()
        self.uid = 0
        self.pfl, self.gfl, self.nst = 'sc1', 'sc1', 4

    def lab(self, p):
        self.uid += 1
        return f"L_{p}_{self.uid}"

    def stamp(self, k):
        if self.dbg and (self.dbg is True or k in self.dbg or k == 17) and 'fine' not in self.diag:
            self.a(f"s_memrealtime s[98:99]\ns_waitcnt lgkmcnt(0)\nv_writelane_b32 v63, s98, {k}")

    def cyc(self, k):
        if 'cyc' in self.diag:
            self.a(f"s_memtime s[{64 + 2 * k}:{65 + 2 * k}]")

    def exec64(self, lo, hi=None):
        hi = lo if hi is None else hi
        self.a(f"s_mov_b32 exec_lo, {lo:#x}\ns_mov_b32 exec_hi, {hi:#x}")

    def entry(self):
        a = self.a

        def pack(sw, sh, sb, st, rs, kmul, k1, k2):
            return sw | sh << 5 | sb << 10 | st << 15 | rs << 20 | kmul << 25 | (k1 >> 5) << 27 | (k2 >> 7) << 29
        if self.dbg or self.calib or self.t0:
            a("s_memrealtime s[96:97]\nv_mov_b32 v63, 0\ns_mov_b32 s100, 0")
        a("; ---- role decode and first four 1 KiB copies into LDS")
        a(f"""s_load_dwordx8 s[64:71], s[0:1], 48
            v_lshrrev_b32 v8, 6, v0
            s_cmp_ge_u32 s2, 256
            s_cbranch_scc1 L_end
            v_readfirstlane_b32 {sW}, v8
            s_lshr_b32 {sH}, s2, 3
            s_add_u32 {sJ}, s2, {sH}
            s_mul_i32 {sJ}, {sJ}, {self.jmul}
            s_bfe_u32 {sB}, {sJ}, 0x10002
            s_and_b32 {sT}, {sJ}, 3
            v_and_b32 v1, 15, v0
            v_bfe_u32 v2, v0, 4, 2
            s_mul_i32 s38, {sW}, 17
            s_bfe_u32 s38, s38, 0x40002
            s_mov_b32 s33, {pack(17, 8, 20, 15, 13, 2, 0, 128):#x}
            s_cmp_eq_u32 {sT}, 2
            s_cmov_b32 s33, {pack(18, 8, 21, 16, 13, 1, 64, 128):#x}
            s_cselect_b32 s63, {self.hxu}, 0
            s_xor_b32 s63, s63, {sH}
            s_cmp_eq_u32 {sT}, 3
            s_cmov_b32 s33, {pack(10, 13 if self.bx else 18, 23, 18 if self.bx else 13, 8, 0, 32, 0):#x}
            s_cselect_b32 s38, s38, 0
            s_cselect_b32 s10, 24, 22
            s_lshl_b32 s10, 1, s10
            s_cmp_eq_u32 {sT}, 1
            s_cselect_b32 s36, 2, 0
            s_or_b32 s42, s36, {sB}
            s_lshl_b32 s40, {sW}, s33
            s_lshr_b32 s33, s33, 5
            s_lshl_b32 s36, s63, s33
            s_add_u32 s40, s40, s36
            s_lshr_b32 s33, s33, 5
            s_lshl_b32 s36, s42, s33
            s_add_u32 s40, s40, s36
            s_lshr_b32 s33, s33, 5
            s_lshl_b32 s41, 1, s33
            s_lshr_b32 s33, s33, 5
            s_bfe_u32 s36, s33, 0x20005
            v_mul_u32_u24 v11, s36, v2
            v_xor_b32 v10, s38, v1
            v_lshlrev_b32 v9, s33, v2
            v_xor_b32 v10, v10, v11
            s_lshr_b32 s33, s33, 2
            s_and_b32 s38, s33, 0x60
            s_and_b32 s39, s33, 0x80
            v_lshl_add_u32 v3, v10, 4, v9
            s_lshl_b32 s44, {sW}, 10
            s_mov_b32 s11, 0x20000
            v_xor_b32 v4, s38, v3
            v_xor_b32 v5, s39, v3
            s_mov_b32 m0, s44
            v_xor_b32 v6, s39, v4
            s_mov_b32 s43, s40
            s_cmp_eq_u32 {sT}, 2
            s_waitcnt lgkmcnt(0)
            s_cselect_b64 s[8:9], s[68:69], s[66:67]
            s_cmp_eq_u32 {sT}, 3
            s_cselect_b64 s[8:9], s[64:65], s[8:9]""")
        for i in range(4):
            a(f"buffer_load_dwordx4 v{3 + i}, {SRD0}, s40 offen nt lds")
            a(f"s_add_u32 m0, s44, {dest(i + 1)}\ns_add_u32 s40, s40, s41")
        a("; ---- remaining pointers, code prefetch into L2, launch tag")
        a(f"""s_load_dwordx2 s[12:13], s[0:1], 104
            s_load_dwordx2 s[28:29], s[0:1], 0
            s_load_dwordx2 s[30:31], s[0:1], 40
            s_load_dwordx2 s[16:17], s[0:1], 8
            s_load_dwordx2 s[20:21], s[0:1], 16
            s_load_dwordx2 s[24:25], s[0:1], 24
            s_getpc_b64 s[34:35]
            L_pc:
            s_and_b32 {sJ}, {sJ}, 7
            v_and_b32 v0, 63, v0
            v_lshlrev_b32 v16, 4, v0
            s_mov_b32 s27, 0x20000
            s_mov_b32 s26, s10
            s_xor_b32 s36, s43, {self.hxa << 8}
            s_add_u32 s43, s43, 32768
            s_cmp_eq_u32 {sT}, 3
            s_cselect_b32 s43, s40, s43
            s_cmp_lt_u32 {sT}, 2
            s_cselect_b32 s43, s36, s43
            s_cselect_b32 s63, s42, s63
            s_waitcnt lgkmcnt(0)
            s_cselect_b64 s[24:25], s[24:25], s[8:9]""")
        if self.wsoff:
            a(f"s_add_u32 s12, s12, {self.wsoff}\ns_addc_u32 s13, s13, 0")
        a(f"""s_lshl_b32 s33, {sH}, 3
            s_add_u32 s33, s33, {sW}
            s_lshl_b32 s33, s33, 7
            s_min_u32 s33, s33, L_end-L_pc-64
            s_add_u32 s36, s33, 64
            s_load_dword {'s98' if 'fine' in self.diag else 's100'}, s[34:35], s33
            s_load_dword {'s99' if 'fine' in self.diag else 's101'}, s[34:35], s36
            s_load_dword {sTAG}, s[12:13], {EPOCH}
            s_mov_b32 s14, {WS_SIZE:#x}
            s_mov_b32 s15, 0x20000
            s_mov_b32 s19, 0x20000
            s_mov_b32 s52, {SCALE:#x}""")
        if self.dbg:
            a("v_writelane_b32 v63, s96, 0")
        if self.t0:
            a(f"""s_or_b32 s33, {sH}, {sW}
                s_cbranch_scc1 L_nt0
                s_lshl_b32 s33, s2, 7
                s_add_u32 s33, s33, {STAMP}
                v_mov_b32 v63, s96
                s_mov_b64 exec, 1
                buffer_store_dword v63, off, {SRDW}, s33 sc1
                s_mov_b64 exec, -1
                L_nt0:""")
        a(f"""s_cmp_eq_u32 {sT}, 3
            s_cbranch_scc1 L_roleB
            s_mov_b32 s18, 0x8000000
            s_mov_b32 s22, 0x8000000
            s_mov_b32 s23, 0x20000
            s_lshl_b32 s45, {sB}, 5
            s_add_u32 s45, s45, {sH}
            s_lshl_b32 s45, s45, 21
            s_add_u32 s45, s45, {6144 * 256}
            s_lshl_b32 s57, {sT}, 3
            s_add_u32 s57, s57, {sW}""")
        a("s_lshl_b32 s48, s57, 11\ns_add_u32 s48, s48, s45")
        a(f"s_cmp_eq_u32 {sT}, 2\ns_cbranch_scc1 L_rolePU")

    def second_batch(self, mid, extra=0, depth=4, lo=4, hi=8):
        a = self.a
        for i in range(lo, hi):
            a(f"s_waitcnt vmcnt({depth - 1 + extra})\nbuffer_load_dwordx4 v{3 + (i & 3)}, {SRDE}, s43 offen nt lds")
            if i < 7:
                a(f"s_add_u32 m0, s44, {dest(i + 1)}")
            a("s_add_u32 s43, s43, s41")
            if i == self.xpos:
                a(f"s_waitcnt lgkmcnt(0)\ns_add_u32 {sTAG}, {sTAG}, 1")
                mid()

    def load_e2_ptr(self):
        self.a(f"""s_cmp_lt_u32 {sW}, 4
            s_cselect_b32 s33, 32, 80
            s_load_dwordx2 s[24:25], s[0:1], s33
            s_mov_b32 s26, {0 if 'noW' in self.diag else 0x400000}""")

    def sum_parts(self, r):
        self.a(f"""v_lshlrev_b32 v8, 16, v{r}
            v_and_b32 v9, 0xffff0000, v{r}
            v_lshlrev_b32 v10, 16, v{r + 1}
            v_and_b32 v11, 0xffff0000, v{r + 1}
            v_lshlrev_b32 v{r}, 16, v{r + 4}
            v_and_b32 v{r + 1}, 0xffff0000, v{r + 4}
            v_lshlrev_b32 v{r + 2}, 16, v{r + 5}
            v_and_b32 v{r + 3}, 0xffff0000, v{r + 5}
            v_pk_add_f32 v[8:9], v[8:9], {vr(r, 2)}
            v_pk_add_f32 v[10:11], v[10:11], {vr(r + 2, 2)}
            v_permlane32_swap_b32 v8, v10
            v_permlane32_swap_b32 v9, v11
            v_pk_add_f32 v[8:9], v[8:9], v[10:11]
            v_cvt_pk_bf16_f32 v{r}, v8, v9""")

    def poll_rows(self, voff, soff, two=False):
        a = self.a
        lp, ok = self.lab("gp"), self.lab("gok")
        back = self.ps[0 if two else 2]
        a(f"s_mov_b32 s37, {SPIN}\n{lp}:\nbuffer_load_dwordx4 v[176:179], {voff}, {SRDW}, {soff} offen sc1")
        if two:
            a(f"buffer_load_dwordx4 v[180:183], {voff}, {SRDW}, {soff} offen offset:1024 sc1")
        a(f"s_sub_u32 s37, s37, 1\ns_waitcnt vmcnt(0)\ns_cbranch_scc1 {ok}")
        if two:
            a(f"v_bitop3_b32 v8, v179, v183, {sTAG} bitop3:0x7e\nv_cmp_ne_u32 vcc, 0, v8")
        else:
            a(f"v_cmp_ne_u32 vcc, {sTAG}, v179")
        if self.pmask or back:
            a(f"s_cbranch_vccz {ok}")
            if self.pmask:
                a("s_mov_b64 exec, vcc")
            if back:
                a(f"s_sleep {back}")
            a(f"s_branch {lp}\n{ok}:\ns_mov_b64 exec, -1")
        else:
            a(f"s_cbranch_vccnz {lp}\n{ok}:")

    def e2_dma_setup(self):
        self.a(f"""v_lshrrev_b32 v9, 3, v0
            v_and_b32 v10, 7, v0
            v_and_b32 v11, 1, v2
            v_lshlrev_b32 v11, 1, v11
            v_xor_b32 v10, v10, v11
            v_lshlrev_b32 v10, 4, v10
            v_lshl_add_u32 v17, v9, 10, v10
            v_xor_b32 v18, 64, v17
            s_and_b32 s33, {sW}, 3
            s_lshl_b32 s46, {sH}, 17
            s_lshl_b32 s36, s33, 15
            s_add_u32 s46, s46, s36
            s_cmp_lt_u32 {sW}, 4
            s_cselect_b32 s36, {self.jx[0]}, {self.jx[1]}
            s_xor_b32 s36, s36, {sJ}
            s_lshl_b32 s36, s36, 7
            s_add_u32 s46, s46, s36
            s_cmp_lt_u32 {sW}, 4
            s_mov_b32 s47, {E2B[1]}
            s_cmov_b32 s47, {E2B[0]}
            s_lshl_b32 s36, s33, 12
            s_add_u32 s47, s47, s36""")


    def e2_dma(self, i):
        self.a(f"""s_add_u32 m0, s47, {1024 * i}
            s_nop 0
            buffer_load_dwordx4 v{17 + (i & 1)}, {SRDE}, s46 offen nt lds
            s_add_u32 s46, s46, 8192""")

    KV = 64

    def reg(self, t):
        return self.KV + 8 * ((t + 1) % 12)

    def a_load(self, n, t, u, cnt):
        a = self.a
        if u == 0:
            a(f"s_add_u32 s54, s48, {49152 * (t % n)}")
        a(f"s_waitcnt vmcnt({cnt})")
        a(f"buffer_load_dwordx4 {vr(self.reg(t) + 4 * u, 4)}, v16, {SRDK if t < n else SRDV}, s54 offen offset:{1024 * u} nt")

    def l2_setup(self):
        self.a(f"""s_sub_u32 s33, 1, s2
            s_and_b32 s33, s33, 3
            s_and_b32 s36, {sH}, 28
            s_or_b32 s33, s33, s36
            s_add_u32 s36, s33, s2
            s_mul_i32 s36, s36, 3
            s_bfe_u32 s36, s36, 0x10002
            s_lshl_b32 s55, s36, 23
            s_lshl_b32 s36, s33, 18
            s_add_u32 s55, s55, s36
            s_add_u32 s55, s55, s44
            s_mul_i32 s36, {sT}, {8192 * self.l2c[0]}
            s_sub_u32 s55, s55, s36
            s_add_u32 s55, s55, {31 * 8192}""")

    def l2_ptrs(self):
        self.a("""; ---- pull later c_kv rows of the type-3 workgroup with the same id modulo 8 into L2 (speed only)
            s_load_dwordx2 s[8:9], s[0:1], 48
            s_mov_b32 s10, 0x1000000
            s_waitcnt lgkmcnt(0)""")

    def l2_list(self, role):
        return ["c"] * self.l2c[role] + ["u"] * self.l2u[role] + [0, 1, 2, 3]

    def l2_item(self, it, cnt):
        a = self.a
        if it == "c":
            a(f"s_waitcnt vmcnt({cnt})\nbuffer_load_dwordx4 v[64:67], v16, {SRD0}, s55 offen {self.l2fl}\ns_sub_u32 s55, s55, 8192")
        elif it == "u":
            a(f"s_waitcnt vmcnt({cnt})\nbuffer_load_dwordx4 v[64:67], v46, {SRDX}, s56 offen {self.l2fl}\ns_add_u32 s56, s56, 32768")
        else:
            self.a_first(it, cnt)

    def a_first(self, k, cnt):
        self.a_load(10, k >> 1, k & 1, cnt)

    def a_qk(self, K, r):
        a = self.a
        a("v_mov_b32 v28, 0\nv_mov_b32 v29, 0")
        for e in range(4):
            for u in range(2):
                a(f"v_dot2c_f32_bf16 v{28 + u}, v{K + 4 * u + e}, v{24 + e}")
        a(f"v_add_f32_dpp v{r}, v28, v28 row_ror:8 row_mask:0xf bank_mask:0x3")
        a(f"v_add_f32_dpp v{r}, v29, v29 row_ror:8 row_mask:0xf bank_mask:0xc")
        for m in ("row_half_mirror", "quad_perm:[1,0,3,2]", "quad_perm:[2,3,0,1]"):
            a(f"v_add_f32_dpp v{r}, v{r}, v{r} {m} {FULL}")

    def a_pv(self, V, u, p):
        for e in range(4):
            self.a(f"v_dot2c_f32_bf16_dpp v{52 + 2 * e}, v{p}, v{V + 4 * u + e} row_newbcast:{8 * u} {FULL}")
            self.a(f"v_dot2c_f32_bf16_dpp v{53 + 2 * e}, v{p + 1}, v{V + 4 * u + e} row_newbcast:{8 * u} {FULL}")

    def p1(self):
        a = self.a
        D = self.edepth[0]
        a(f"""s_lshl_b32 s33, s63, 8
            s_lshl_b32 s36, {sW}, 5
            s_add_u32 s49, s33, s36
            s_add_u32 s50, s49, 1024
            s_load_dwordx8 s[64:71], s[30:31], s49
            s_load_dwordx8 s[72:79], s[30:31], s50
            s_load_dwordx8 s[80:87], s[28:29], s49
            s_load_dwordx8 s[88:95], s[28:29], s50
            v_and_b32 v8, 1, v2
            v_lshlrev_b32 v7, 15, v8
            v_lshrrev_b32 v9, 1, v2
            v_lshl_add_u32 v7, v9, 10, v7
            v_lshrrev_b32 v9, 2, v1
            v_lshl_add_u32 v7, v9, 8, v7
            v_and_b32 v10, 3, v0
            v_lshl_add_u32 v7, v10, 3, v7
            v_lshl_or_b32 v9, v8, 2, v9
            v_xor_b32 v9, {sW}, v9
            v_lshl_add_u32 v200, v9, 5, v7
            v_add_u32 v201, 65536, v200
            v_lshrrev_b32 v7, 3, v0
            v_lshlrev_b32 v7, 8, v7
            v_and_b32 v8, 7, v0
            v_lshl_add_u32 v7, v8, 2, v7
            s_add_u32 s36, s36, {XI}
            v_add_u32 v202, s36, v7
            v_and_b32 v7, 1, v0
            v_lshlrev_b32 v8, 8, v7
            v_lshl_add_u32 v8, v2, 4, v8
            v_add_u32 v203, {XI}, v8
            v_lshlrev_b32 v8, 11, v7
            v_lshl_add_u32 v204, v2, 4, v8
            s_lshl_b32 s38, {sH}, 12
            s_lshl_b32 s36, s63, 9
            s_add_u32 s38, s38, s36
            s_lshl_b32 s36, {sW}, 6
            s_add_u32 s38, s38, s36
            s_xor_b32 s39, s38, {self.hxa << 12}
            s_add_u32 s38, s38, {QB}
            s_add_u32 s39, s39, {QA}""")

        def mid():
            for k in range(32):
                a(f"v_writelane_b32 v205, s{64 + k}, {k}")
            self.exec64(0xffffffff, 0)
            a(f"ds_write_b32 v202, v205\ns_mov_b64 exec, -1\nv_mov_b32 v51, {sTAG}")

        def half(t):
            a(f"; ---- partial query of part {'A' if t else 'B'}: 16 columns per wave over 128 rows")
            a("s_waitcnt lgkmcnt(0)\ns_barrier")
            for s in range(4):
                a(f"ds_read_b128 {vr(160 + 4 * s, 4)}, v203 offset:{512 * t + 64 * s}")
                for p in range(2):
                    a(f"ds_read_b64_tr_b16 {vr(176 + 4 * s + 2 * p, 2)}, v{200 + t} offset:{2048 * s + 8192 * p}")
            for s in range(4):
                a(f"s_waitcnt lgkmcnt({9 - 3 * s})")
                a(f"v_mfma_f32_16x16x32_bf16 v[192:195], {vr(176 + 4 * s, 4)}, {vr(160 + 4 * s, 4)}, {'v[192:195]' if s else '0'}")
            self.exec64(0x00030003)
            a("v_cvt_pk_bf16_f32 v48, v192, v193\nv_cvt_pk_bf16_f32 v49, v194, v195")
            a(f"buffer_store_dwordx4 v[48:51], v204, {SRDW}, s{38 + t} offen sc1\ns_mov_b64 exec, -1")

        self.a_setup()
        H = self.hold
        self.second_batch(mid, 0, self.sd[0], 4, 8 - H)
        a(f"s_waitcnt vmcnt({4 - H})")
        self.stamp(1)
        half(0)
        self.stamp(2)
        self.second_batch(None, 1, 4, 8 - H, 8)
        self.load_e2_ptr()
        self.l2_ptrs()
        items = self.l2_list(0)
        for k in range(4):
            self.l2_item(items[k], D if k < D - H else D - 1)
        a(f"s_waitcnt vmcnt({4 if H else 5})")
        if 'slowa' in self.test:
            a(f"s_and_b32 s33, {sH}, 1\ns_cbranch_scc0 L_ta\ns_sleep 127\ns_sleep 127\ns_sleep 127\nL_ta:")
        half(1)
        self.stamp(3)
        for k, it in enumerate(items[4:]):
            self.l2_item(it, D if k < D else D - 1)
        a("s_branch L_acommon")

    def p2(self):
        a = self.a
        D, pre = self.edepth[0], self.pu_pre
        a(f"""v_lshrrev_b32 v7, 3, v1
            v_lshlrev_b32 v7, 15, v7
            v_bfe_u32 v8, v1, 2, 1
            v_lshl_add_u32 v7, v8, 13, v7
            v_and_b32 v8, 3, v1
            v_lshl_add_u32 v7, v8, 8, v7
            v_add_u32 v7, s44, v7
            v_xor_b32 v8, v2, v1
            v_lshl_add_u32 v216, v8, 4, v7""")
        for s in range(1, 4):
            a(f"v_xor_b32 v{216 + s}, {64 * s}, v216")
        for s in range(4):
            a(f"v_add_u32 v{220 + s}, 65536, v{216 + s}")
        a(f"""v_and_b32 v13, 31, v0
            v_lshlrev_b32 v13, 3, v13
            v_lshrrev_b32 v7, 5, v0
            v_lshl_add_u32 v13, v7, 2, v13
            s_lshl_b32 s33, {sW}, 8
            s_add_u32 s33, s33, {HI}
            v_add_u32 v13, s33, v13
            v_and_b32 v14, 1, v0
            v_lshlrev_b32 v14, 8, v14
            v_lshl_add_u32 v14, v2, 4, v14
            v_add_u32 v14, {HI}, v14
            s_lshl_b32 s49, s63, 12
            s_lshl_b32 s36, {sW}, 11
            s_add_u32 s49, s49, s36
            s_add_u32 s49, s49, {QB}
            v_lshlrev_b32 v15, 15, v1
            v_lshl_add_u32 v15, v2, 4, v15
            s_lshl_b32 s50, s63, 10
            s_lshl_b32 s36, {sB}, 9
            s_add_u32 s50, s50, s36
            s_lshl_b32 s36, {sW}, 6
            s_add_u32 s50, s50, s36
            s_add_u32 s50, s50, {QABS}
            s_lshr_b32 s53, s63, 2
            s_lshl_b32 s53, s53, 7
            s_and_b32 s36, s63, 3
            s_lshl_b32 s36, s36, 3
            s_add_u32 s53, s53, s36
            s_lshl_b32 s36, {sB}, 2
            s_add_u32 s53, s53, s36
            s_add_u32 s53, s53, {F2}
            v_lshlrev_b32 v197, 10, v0""")
        if self.noack:
            for k in range(4):
                a(f"v_mov_b32 v{200 + k}, -1")
            self.exec64(0x00030003)
            a(f"buffer_store_dwordx4 v[200:203], v15, {SRDW}, s50 offen sc1\ns_mov_b64 exec, -1")
        self.a_setup()
        self.second_batch(lambda: a(f"v_mov_b32 v196, {sTAG}"), 1 if self.noack else 0, self.sd[1])
        self.load_e2_ptr()
        self.l2_ptrs()
        items = self.l2_list(1)
        for k in range(pre):
            self.l2_item(items[k], D - 1)
        self.stamp(7)
        if self.hint:
            a(f"""s_lshl_b32 s33, s63, 12
                s_lshl_b32 s36, {sW}, 9
                s_add_u32 s33, s33, s36
                s_add_u32 s33, s33, {QB}
                s_add_u32 s34, s12, s33
                s_addc_u32 s35, s13, 0
                s_mov_b32 s38, {sTAG}
                s_mov_b32 s39, {sTAG}
                s_mov_b32 s37, {SPIN}
                L_h1h:""")
            for k in range(8):
                a(f"s_load_dword s{64 + k}, s[34:35], {64 * k + 12} glc")
            a("s_sub_u32 s37, s37, 1\ns_waitcnt lgkmcnt(0)\ns_cbranch_scc1 L_h1k")
            for k in range(4):
                a(f"s_xor_b64 s[{64 + 2 * k}:{65 + 2 * k}], s[{64 + 2 * k}:{65 + 2 * k}], s[38:39]")
            a("s_or_b64 s[64:65], s[64:65], s[66:67]\ns_or_b64 s[68:69], s[68:69], s[70:71]\ns_or_b64 s[64:65], s[64:65], s[68:69]")
            a("s_cbranch_scc1 L_h1h\nL_h1k:")
            self.stamp(13)
            if self.dbg is True:
                a(f"s_sub_u32 s33, {SPIN}, s37\nv_writelane_b32 v63, s33, 30")
            a("s_barrier")
        mid = self.pu_mid
        gat = f"buffer_load_dwordx4 v[176:179], v16, {SRDW}, s49 offen sc1\nbuffer_load_dwordx4 v[180:183], v16, {SRDW}, s49 offen offset:1024 sc1"
        a(f"s_cmp_gt_u32 {sW}, 1\ns_cbranch_scc1 L_h1a\n{gat}\nL_h1a:")
        for k in range(pre, pre + mid):
            self.l2_item(items[k], D - 1)
        pre += mid
        a(f"""s_cmp_gt_u32 {sW}, 1
            s_cbranch_scc1 L_h1s
            s_mov_b32 s37, {SPIN}
            s_waitcnt vmcnt({mid})
            L_h1c:
            v_bitop3_b32 v8, v179, v183, {sTAG} bitop3:0x7e
            v_cmp_ne_u32 vcc, 0, v8
            s_cbranch_vccz L_h1d
            s_sub_u32 s37, s37, 1
            s_cbranch_scc1 L_h1d
            {gat}
            s_waitcnt vmcnt(0)
            s_branch L_h1c
            L_h1d:""")
        self.sum_parts(176)
        a(f"ds_write_b32 v13, v176\nL_h1s:\ns_waitcnt vmcnt({pre})")
        self.stamp(1)
        for blk in range(2):
            for s in range(4):
                a(f"ds_read_b128 {vr(224 + 16 * blk + 4 * s, 4)}, v{216 + 4 * blk + s}")
        a("s_waitcnt lgkmcnt(0)\ns_barrier")
        self.stamp(2)
        for s in range(4):
            a(f"ds_read_b128 {vr(176 + 4 * s, 4)}, v14 offset:{64 * s}")
        for s in range(4):
            a(f"s_waitcnt lgkmcnt({3 - s})")
            for blk in range(2):
                c = "0" if s == 0 else vr(208 + 4 * blk, 4)
                a(f"v_mfma_f32_16x16x32_bf16 {vr(208 + 4 * blk, 4)}, {vr(224 + 16 * blk + 4 * s, 4)}, {vr(176 + 4 * s, 4)}, {c}")
        for k in range(4):
            a(f"v_cvt_pk_bf16_f32 v{168 + k}, v{208 + 2 * k}, v{209 + 2 * k}")
        self.exec64(0x00030003)
        if 'slowq' in self.test:
            a(f"s_mov_b64 exec, -1\ns_cmp_lg_u32 {sW}, 0\ns_cbranch_scc1 L_tq\nbuffer_store_dword v196, v197, {SRDW}, s53 offen sc1\nL_tq:\ns_sleep 127\ns_sleep 127\ns_sleep 127")
            self.exec64(0x00030003)
        a(f"buffer_store_dwordx4 v[168:171], v15, {SRDW}, s50 offen sc1")
        a("s_mov_b64 exec, -1")
        if not self.noack:
            a("s_waitcnt vmcnt(0)")
        a("s_barrier")
        skip = self.lab("p2s")
        a(f"""s_cmp_lg_u32 {sW}, 0
            s_cbranch_scc1 {skip}
            buffer_store_dword v196, v197, {SRDW}, s53 offen sc1
            {skip}:""")
        self.stamp(3)
        for k, it in enumerate(items[pre:]):
            self.l2_item(it, (D if mid else D + 1) if k < D else D - 1)

    def a_setup(self):
        a = self.a
        self.l2_setup()
        self.e2_dma_setup()
        a(f"""s_lshl_b32 s51, {sH}, 1
            s_add_u32 s51, s51, {sB}
            s_lshl_b32 s51, s51, 11
            s_add_u32 s51, s51, {QA}
            v_and_b32 v36, 31, v0
            v_lshlrev_b32 v36, 3, v36
            v_lshrrev_b32 v7, 5, v0
            v_lshl_add_u32 v36, v7, 2, v36
            s_lshl_b32 s33, {sW}, 8
            s_add_u32 s33, s33, {QL}
            v_add_u32 v36, s33, v36
            v_lshl_add_u32 v37, v1, 4, s33
            v_mov_b32 v60, {NEGBIG:#x}
            v_mov_b32 v61, 0
            v_lshlrev_b32 v38, 5, v1
            v_lshl_add_u32 v38, v2, 3, v38
            s_lshl_b32 s33, {sW}, 9
            s_add_u32 s33, s33, {RED + 1024}
            v_add_u32 v38, s33, v38
            s_lshl_b32 s33, {sW}, 2
            s_add_u32 s33, s33, {MXA}
            v_mov_b32 v39, s33
            v_mov_b32 v43, {MXA}
            v_lshrrev_b32 v44, 5, v0
            v_mul_u32_u24 v44, 1536, v44
            v_add_u32 v44, v44, v16
            v_add_u32 v44, {RED + 1024}, v44
            s_lshl_b32 s61, {sH}, 3
            s_add_u32 s61, s61, {sJ}
            s_lshl_b32 s61, s61, 9
            s_add_u32 s61, s61, {H4A}""")
        for k in range(8):
            a(f"v_mov_b32 v{52 + k}, 0")

    def a_stream(self, n, role):
        a = self.a
        D, x, S, P = self.depth, self.e2pos[0], 160, 176
        qld = f"buffer_load_dwordx4 v[20:23], v16, {SRDW}, s51 offen sc1\nbuffer_load_dwordx4 v[24:27], v16, {SRDW}, s51 offen offset:1024 sc1"

        def qprep():
            lp, ok = self.lab("qlp"), self.lab("qok")
            a(f"""s_mov_b32 s37, {SPIN}
                s_waitcnt vmcnt(4)
                {lp}:
                v_bitop3_b32 v8, v23, v27, {sTAG} bitop3:0x7e
                v_cmp_ne_u32 vcc, 0, v8
                s_cbranch_vccz {ok}
                s_sub_u32 s37, s37, 1
                s_cbranch_scc1 {ok}
                {qld}
                s_waitcnt vmcnt(0)
                s_branch {lp}
                {ok}:""")
            self.sum_parts(20)
            a("ds_write_b32 v36, v20\nds_read_b128 v[24:27], v37\ns_waitcnt lgkmcnt(0)")
            self.stamp(4)

        def allred(op, r):
            a(f"{op}_dpp v{r}, v{r}, v{r} row_ror:8 {FULL}")
            for sw in ("v_permlane16_swap_b32", "v_permlane32_swap_b32"):
                a(f"v_mov_b32 v32, v{r}\n{sw} v32, v{r}\n{op} v{r}, v{r}, v32")

        def wavemax():
            a("; ---- maximum of this wave's scores")
            a(f"v_max_f32 v31, v{S}, v{S + n - 1}")
            for k in range(1, n - 1, 2):
                a(f"v_max3_f32 v31, v31, v{S + k}, v{S + k + 1}")
            allred("v_max_f32", 31)
            a("v_mul_f32 v31, s52, v31\nds_write_b32 v39, v31")

        def probs(lo, hi, m):
            for k in range(lo, hi):
                a(f"v_fma_f32 v{S + k}, v{S + k}, s52, -v{m}")
            for k in range(lo, hi):
                a(f"v_exp_f32 v{S + k}, v{S + k}")
            for k in range(lo, hi):
                a(f"v_cvt_pk_bf16_f32 v{P + 2 * k}, v{S + k}, 0\nv_cvt_pk_bf16_f32 v{P + 2 * k + 1}, 0, v{S + k}")
                a(f"v_add_f32 v61, v61, v{S + k}")

        def soft():
            probs(0, n - 2, 31)
            self.stamp(5)

        def common():
            a("; ---- last round: rescale to the workgroup maximum, last two steps")
            a("""s_waitcnt lgkmcnt(0)
                s_barrier
                ds_read_b128 v[8:11], v43
                ds_read_b128 v[12:15], v43 offset:16
                s_waitcnt lgkmcnt(0)
                v_max3_f32 v60, v8, v9, v10
                v_max3_f32 v12, v12, v13, v14
                v_max3_f32 v60, v60, v11, v15
                v_max_f32 v60, v60, v12
                v_sub_f32 v34, v31, v60
                v_exp_f32 v34, v34
                v_mul_f32 v61, v61, v34""")
            for k in range(4):
                a(f"v_pk_mul_f32 {vr(52 + 2 * k, 2)}, {vr(52 + 2 * k, 2)}, v[34:35] op_sel_hi:[1,0]")
            probs(n - 2, n, 60)
            allred("v_add_f32", 61)
            a("ds_write_b32 v39, v61 offset:32")

        def pv(k):
            for u in range(2):
                self.a_pv(self.reg(n + k), u, P + 2 * k)
        work = [("setup", -1, 3, lambda: self.e2_setup(False)), ("q", 2 * self.qat + 1, 1, qprep)]
        work += [(("k", k), k, 1, lambda k=k: self.a_qk(self.reg(k), S + k)) for k in range(n)]
        work += [("max", -1, 0, wavemax), ("soft", -1, 2, soft)]
        work += [(("v", k), n + k, 1, lambda k=k: pv(k)) for k in range(n - 2)]
        done = set()
        lo, hi = self.win[role]
        for r in range(1, n):
            d = self.lo if lo <= r < hi else D
            for i in range(4):
                t = 2 * r + (i >> 1)
                assert t < 11 or t - 12 < 0 or ("k", t - 12) in done, (r, t)
                self.a_load(n, t, i & 1, d - 1 + (2 if r == self.qat + 1 and i < d else 0))
            if r == self.qat:
                a(qld.replace(" sc1", ""))
            left = self.budget if r < n - 1 else 99
            while work and work[0][1] <= 2 * r - 1 and work[0][2] <= left:
                name, _, cost, fn = work.pop(0)
                fn(); done.add(name); left -= cost
        assert not work
        common()
        for i in range(x):
            self.e2_dma(i)
        if x < 4:
            sk = self.lab("pe")
            a(f"s_cmp_lg_u32 {sW}, 3\ns_cselect_b64 vcc, -1, 0\ns_cbranch_scc1 {sk}")
            for i in range(x, 4):
                self.e2_dma(i)
            a(f"{sk}:")
        for i in range(4):
            a(f"s_waitcnt vmcnt({7 - i})")
            if x < 4:
                sk = self.lab("lw")
                a(f"s_cbranch_vccz {sk}\ns_waitcnt vmcnt({3 - i + x})\n{sk}:")
            k = n - 2 + (i >> 1)
            self.a_pv(self.reg(n + k), i & 1, P + 2 * k)

    def a_common(self):
        a = self.a
        x = self.e2pos[0]
        self.a_stream(10, 1)
        a("s_branch L_afin\nL_acommon:")
        self.a_stream(11, 0)
        a("L_afin:\ns_nop 2")
        self.stamp(6)
        for i in range(4):
            a(f"v_permlane32_swap_b32 v{52 + i}, v{56 + i}")
        a("v_pk_add_f32 v[52:53], v[52:53], v[56:57]\nv_pk_add_f32 v[54:55], v[54:55], v[58:59]")
        a(f"""v_permlane16_swap_b32 v52, v54
            v_permlane16_swap_b32 v53, v55
            v_pk_add_f32 v[52:53], v[52:53], v[54:55]
            ds_write_b64 v38, v[52:53]""")
        for i in range(x, sum(self.e2pos)):
            self.e2_dma(i)
        a(f"""s_waitcnt lgkmcnt(0)
            s_barrier
            s_cmp_lg_u32 {sW}, 3
            s_cbranch_scc1 L_amid
            {f's_setprio {self.prio}' if self.prio else ''}
            ds_read_b128 v[208:211], v44
            ds_read_b128 v[212:215], v44 offset:512
            ds_read_b128 v[216:219], v44 offset:1024
            ds_read_b128 v[220:223], v44 offset:1536
            ds_read_b128 v[224:227], v43 offset:32
            ds_read_b128 v[228:231], v43 offset:48
            s_mov_b32 s38, 0xaaaaaaaa
            s_mov_b32 s39, s38
            v_mov_b32 v11, {sTAG}
            s_waitcnt lgkmcnt(4)
            v_pk_add_f32 v[208:209], v[208:209], v[212:213]
            v_pk_add_f32 v[210:211], v[210:211], v[214:215]
            s_waitcnt lgkmcnt(2)
            v_pk_add_f32 v[216:217], v[216:217], v[220:221]
            v_pk_add_f32 v[218:219], v[218:219], v[222:223]
            v_pk_add_f32 v[208:209], v[208:209], v[216:217]
            v_pk_add_f32 v[210:211], v[210:211], v[218:219]
            s_waitcnt lgkmcnt(0)
            v_pk_add_f32 v[224:225], v[224:225], v[226:227]
            v_permlane32_swap_b32 v208, v210
            v_permlane32_swap_b32 v209, v211
            v_pk_add_f32 v[228:229], v[228:229], v[230:231]
            v_pk_add_f32 v[208:209], v[208:209], v[210:211]
            v_pk_add_f32 v[224:225], v[224:225], v[228:229]
            v_cvt_pk_bf16_f32 v8, v208, v209
            v_cvt_pk_bf16_f32 v9, v208, v209
            v_add_f32 v61, v224, v225
            v_cndmask_b32 v10, v60, v61, s[38:39]
            v_permlane32_swap_b32 v8, v9""")
        self.exec64(0xffffffff, 0)
        a(f"""
            buffer_store_dwordx4 v[8:11], v16, {SRDW}, s61 offen sc1
            ds_write_b64 v238, v[8:9]
            ds_write_b32 v239, v10
            s_mov_b64 exec, -1""")
        if self.nak:
            assert self.e2pos[1] == 0
            self.stamp(12)
            if self.pbar and x < 4:
                a("s_barrier")
            a("ds_write_b64 v246, v[240:241]\nds_write_b32 v247, v242\ns_waitcnt vmcnt(1)\ns_branch L_e2bar")
        a("L_amid:")
        self.stamp(12)
        y = sum(self.e2pos)
        for i in range(y, y + self.e2mid):
            self.e2_dma(i)
        if self.pbar and (x < 4 or not self.nak):
            a("s_barrier")
        for i in range(y + self.e2mid, 4):
            self.e2_dma(i)
        a("s_nop 0")

    def e2_setup(self, role_b):
        self.a(f"""s_load_dwordx2 s[28:29], s[0:1], 88
            v_lshrrev_b32 v9, 2, v1
            v_lshlrev_b32 v7, 10, v2
            v_lshl_add_u32 v7, v9, 7, v7
            v_and_b32 v10, 3, v0
            v_lshl_add_u32 v7, v10, 3, v7
            v_lshrrev_b32 v9, 1, v9
            v_and_b32 v8, 1, v2
            v_lshl_or_b32 v9, v8, 1, v9
            s_and_b32 s33, {sW}, 3
            v_xor_b32 v9, s33, v9
            v_lshl_add_u32 v7, v9, 5, v7
            s_cmp_lt_u32 {sW}, 4
            s_mov_b32 s36, {E2B[1]}
            s_cmov_b32 s36, {E2B[0]}
            s_mov_b32 s40, {H4B}
            s_cmov_b32 s40, {H4A}
            v_add_u32 v244, s36, v7
            s_lshl_b32 s36, {sH}, 12
            s_add_u32 s40, s40, s36
            s_lshl_b32 s36, s33, 9
            s_add_u32 s40, s40, s36
            v_lshrrev_b32 v9, 5, v0
            v_mul_u32_u24 v245, 1536, v9
            v_add_u32 v245, v245, v16
            s_and_b32 s36, {sW}, 4
            s_lshl_b32 s36, s36, 1
            s_add_u32 s33, s36, s33
            v_lshl_add_u32 v9, v9, 2, s33
            v_and_b32 v8, 31, v0
            v_mul_u32_u24 v246, 272, v9
            v_lshl_add_u32 v246, v8, 3, v246
            v_add_u32 v246, {HI}, v246
            v_mul_u32_u24 v247, 136, v9
            v_lshl_add_u32 v247, v8, 2, v247
            v_add_u32 v247, {HS}, v247
            v_and_b32 v9, 7, v0
            v_add_u32 v9, s36, v9
            v_mul_u32_u24 v248, 272, v9
            v_lshl_add_u32 v248, v2, 4, v248
            v_add_u32 v248, {HI}, v248
            v_mul_u32_u24 v249, 136, v9
            v_add_u32 v249, {HS}, v249
            v_mov_b32 v240, 0
            v_mov_b32 v241, 0
            v_and_b32 v8, 1, v0
            v_add_u32 v8, -1, v8
            v_and_b32 v242, {NEGBIG:#x}, v8
            s_mov_b32 s30, 4096
            s_mov_b32 s31, 0x20000
            v_lshlrev_b32 v250, 12, v2
            v_lshl_add_u32 v250, v1, 3, v250
            s_cmp_lt_u32 {sW}, 4
            s_cselect_b32 s41, {self.jx[0]}, {self.jx[1]}
            s_xor_b32 s41, s41, {sJ}
            s_lshl_b32 s41, s41, 3
            s_add_u32 s41, s41, {sW}
            s_lshl_b32 s41, s41, 13
            s_lshl_b32 s36, {sH}, 7
            s_add_u32 s41, s41, s36
            s_add_u32 s41, s41, {H5}
            v_mov_b32 v253, {sTAG}
            s_xor_b32 s38, {sJ}, {self.jr}
            s_lshl_b32 s42, s38, 4
            s_lshr_b32 s36, {sH}, 1
            s_add_u32 s42, s42, s36
            s_lshl_b32 s42, s42, 12
            s_and_b32 s33, {sH}, 1
            s_lshl_b32 s43, s33, 6
            s_add_u32 s42, s42, s43
            s_add_u32 s42, s42, {H5}
            s_lshl_b32 s43, s33, 4
            s_and_b32 s36, s36, 1
            s_lshl_b32 s36, s36, 11
            s_add_u32 s43, s43, s36
            s_lshr_b32 s36, {sH}, 4
            s_lshl_b32 s36, s36, 10
            s_add_u32 s43, s43, s36
            s_lshl_b32 s36, s38, 7
            s_add_u32 s43, s43, s36
            s_bfe_u32 s36, {sH}, 0x20002
            s_lshl_b32 s36, s36, 5
            s_add_u32 s43, s43, s36
            v_lshlrev_b32 v254, 2, v0""")
        if self.warm:
            sk = self.lab("wm")
            self.a(f"""s_cmp_lg_u32 {sW}, 7
                s_cbranch_scc1 {sk}
                s_and_b32 s33, s43, {0x70 if self.warm == 1 else 0x30}
                s_cbranch_scc1 {sk}
                s_waitcnt lgkmcnt(0)
                s_load_dword s33, s[28:29], s43 glc
                s_waitcnt lgkmcnt(0)
                {sk}:""")
        if role_b:
            self.a(f"""v_and_b32 v8, 1, v0
                s_add_u32 s33, {sB}, 8
                v_lshl_add_u32 v8, v8, 2, s33
                v_lshl_add_u32 v9, {sW}, 2, v2
                s_add_u32 s33, {sB}, 4
                s_cmp_eq_u32 {sW}, s33
                s_cselect_b64 s[60:61], 0, -1""")
        else:
            self.a(f"""v_mov_b32 v8, {sJ}
                v_mov_b32 v9, v0
                s_sub_u32 s59, {sB}, 1
                s_not_b32 s58, s59
                s_cmp_eq_u32 {sW}, {sT}
                s_cselect_b64 s[58:59], s[58:59], -1""")
        self.a(f"""v_mul_u32_u24 v238, 272, v8
            v_lshl_add_u32 v238, v9, 3, v238
            v_add_u32 v238, {HI}, v238
            v_mul_u32_u24 v239, 136, v8
            v_lshl_add_u32 v239, v9, 2, v239
            v_add_u32 v239, {HS}, v239""")

    def e2(self):
        a = self.a
        a("L_stageE2:")
        if self.diag and self.diag not in ('cyc', 'iter', 'fine', 'nowait', 'noW'):
            a("s_branch L_done")
        a(f"""s_cmp_eq_u64 s[58:59], 0
            s_cbranch_scc1 L_nowr
            s_mov_b64 exec, s[58:59]
            s_bitcmp1_b32 0x37, {sW}
            s_cbranch_scc0 L_nopoll
            {f's_waitcnt vmcnt({self.pw})' if self.pw is not None else ''}
            s_mov_b32 s37, {SPIN}
            L_h4:
            buffer_load_dwordx4 v[240:243], v245, {SRDW}, s40 offen sc1
            s_sub_u32 s37, s37, 1
            s_waitcnt vmcnt(0)
            s_cbranch_scc1 L_nopoll
            v_cmp_ne_u32 vcc, {sTAG}, v243
            s_cbranch_vccnz L_h4
            L_nopoll:
            ds_write_b64 v246, v[240:241]
            ds_write_b32 v247, v242
            s_mov_b64 exec, -1
            L_nowr:
            s_waitcnt vmcnt(0)
            L_e2bar:
            s_waitcnt lgkmcnt(0)
            s_barrier""")
        self.stamp(14)
        a("ds_read_b64 v[22:23], v249")
        for s in range(4):
            a(f"ds_read_b128 {vr(176 + 4 * s, 4)}, v248 offset:{64 * s}")
            for p in range(2):
                a(f"ds_read_b64_tr_b16 {vr(160 + 4 * s + 2 * p, 2)}, v244 offset:{4096 * s + 512 * p}")
        chain = [f"v_max_f32_dpp v8, v22, v22 quad_perm:[1,0,3,2] {FULL}\nv_max_f32_dpp v8, v8, v8 quad_perm:[2,3,0,1] {FULL}\nv_sub_f32 v8, v22, v8\nv_exp_f32 v8, v8",
                 "v_mul_f32 v9, v8, v23",
                 f"v_add_f32_dpp v9, v9, v9 quad_perm:[1,0,3,2] {FULL}",
                 f"v_add_f32_dpp v9, v9, v9 quad_perm:[2,3,0,1] {FULL}\nv_rcp_f32 v9, v9"]
        a("s_waitcnt lgkmcnt(12)")
        for s in range(4):
            c = "0" if s == 0 else "v[208:211]"
            a(chain[s])
            a(f"s_waitcnt lgkmcnt({9 - 3 * s})")
            a(f"v_mfma_f32_16x16x32_bf16 v[208:211], {vr(176 + 4 * s, 4)}, {vr(160 + 4 * s, 4)}, {c}")
        a("v_mul_f32 v8, v8, v9")
        for r in range(3):
            a(f"v_mov_b32_dpp v{10 + r}, v8 row_newbcast:{r} row_mask:0x1 bank_mask:0xf")
            a(f"v_mov_b32_dpp v{10 + r}, v8 row_newbcast:{4 + r} row_mask:0x2 bank_mask:0xf")
        self.exec64(0xffffffff, 0)
        a(f"""v_mul_f32 v252, v10, v208
            v_fmac_f32 v252, v11, v209
            v_fmac_f32 v252, v12, v210
            buffer_store_dwordx2 v[252:253], v250, {SRDW}, s41 offen sc1
            s_mov_b64 exec, -1""")
        self.stamp(15)
        Wd = self.wide
        a(f"""s_cmp_lg_u32 {sW}, {self.rw}
            s_cbranch_scc1 L_done
            s_and_b32 s33, {sH}, {1 | (Wd - 1) << 2}
            s_cbranch_scc1 L_done
            s_mov_b32 s37, {SPIN}""")
        for k in range(1, Wd):
            a(f"s_add_u32 s{63 + k}, s42, {8192 * k}")
        a("L_fp:")
        for k in range(4 * Wd):
            a(f"buffer_load_dwordx4 {vr(64 + 4 * k, 4)}, v16, {SRDW}, {f's{63 + k // 4}' if k > 3 else 's42'} offen offset:{1024 * (k & 3)} sc1")
        a("s_sub_u32 s37, s37, 1")
        for b in range(Wd):
            r = 64 + 16 * b
            a(f"""s_waitcnt vmcnt({4 * (Wd - 1 - b)})
                v_bitop3_b32 v10, v{r + 1}, v{r + 3}, {sTAG} bitop3:0x7e
                v_bitop3_b32 v11, v{r + 5}, v{r + 7}, {sTAG} bitop3:0x7e
                v_bitop3_b32 v12, v{r + 9}, v{r + 11}, {sTAG} bitop3:0x7e
                v_bitop3_b32 v13, v{r + 13}, v{r + 15}, {sTAG} bitop3:0x7e
                v_add_f32 v{20 + 2 * b}, v{r}, v{r + 4}
                v_or3_b32 v10, v10, v11, v12
                v_add_f32 v{21 + 2 * b}, v{r + 2}, v{r + 6}
                {'v_or3_b32 v9, v9, v10, v13' if b else 'v_or_b32 v9, v10, v13'}
                v_add_f32 v14, v{r + 8}, v{r + 12}
                v_add_f32 v15, v{r + 10}, v{r + 14}""")
            if b == Wd - 1:
                a("v_cmp_ne_u32 vcc, 0, v9")
            a(f"v_pk_add_f32 {vr(20 + 2 * b, 2)}, {vr(20 + 2 * b, 2)}, v[14:15]")
        if self.fmask:
            a("s_cbranch_scc1 L_fok\ns_cbranch_vccz L_fok\ns_mov_b64 exec, vcc\ns_branch L_fp\nL_fok:\ns_mov_b64 exec, -1")
        else:
            a("s_cbranch_scc1 L_fok\ns_cbranch_vccnz L_fp\nL_fok:")
        self.stamp(16)
        for b in range(Wd):
            a(f"v_permlane32_swap_b32 v{20 + 2 * b}, v{21 + 2 * b}")
        for b in range(Wd):
            a(f"v_add_f32 v{20 + 2 * b}, v{20 + 2 * b}, v{21 + 2 * b}")
        if Wd == 1:
            a(f"v_add_f32_dpp v8, v20, v20 row_ror:8 {FULL}\nv_mov_b32 v9, v8")
        else:
            for k in range(Wd // 2):
                a(f"v_add_f32_dpp v{8 + k}, v{20 + 4 * k}, v{20 + 4 * k} row_ror:8 row_mask:0xf bank_mask:0x3")
                a(f"v_add_f32_dpp v{8 + k}, v{22 + 4 * k}, v{22 + 4 * k} row_ror:8 row_mask:0xf bank_mask:0xc")
            if Wd == 2:
                a("v_mov_b32 v9, v8")
        a(f"""v_permlane16_swap_b32 v8, v9
            v_add_f32 v10, v8, v9
            v_add_f32 v11, v8, v9
            v_permlane32_swap_b32 v10, v11""")
        self.exec64((1 << 8 * Wd) - 1, 0)
        a(f"""v_cvt_pk_bf16_f32 v8, v10, v11
            buffer_store_dword v8, v254, {SRDX}, s43 offen {self.outfl}
            L_done:""")
        if self.calib:
            a(f"""L_cal:
                s_memrealtime s[98:99]
                s_waitcnt lgkmcnt(0)
                s_sub_u32 s98, s98, s96
                s_cmp_lt_u32 s98, {self.calib * 100}
                s_cbranch_scc1 L_cal""")
        if self.amp:
            k, roles, neg = self.amp
            a("s_mov_b64 exec, -1")
            self.stamp(17)
            a(f"""s_nop 1
                v_readlane_b32 s33, v63, {k}
                s_lshr_b32 s36, {roles}, {sT}
                s_and_b32 s36, s36, 1
                s_cselect_b32 s33, s33, 0
                s_cmp_eq_u32 s33, 0
                s_cselect_b32 s38, 0, 1
                s_cselect_b32 s33, s96, s33
                s_sub_u32 s33, s33, s96
                {'s_sub_u32 s33, 2500, s33' if neg else ''}
                s_mul_i32 s33, s33, s38
                s_mul_i32 s33, s33, 10
                s_add_u32 s33, s33, 3000
                L_amp:
                s_memrealtime s[98:99]
                s_waitcnt lgkmcnt(0)
                s_sub_u32 s98, s98, s96
                s_cmp_lt_u32 s98, s33
                s_cbranch_scc1 L_amp""")
        elif self.dbg:
            a("s_mov_b64 exec, -1")
            self.stamp(17)
            a(f"""s_getreg_b32 s33, hwreg(HW_REG_XCC_ID)
                v_writelane_b32 v63, s33, 31
                s_getreg_b32 s33, hwreg(HW_REG_HW_ID)
                v_writelane_b32 v63, s33, 28
                s_lshl_b32 s33, s2, 3
                s_add_u32 s33, s33, {sW}
                s_lshl_b32 s33, s33, 7
                s_add_u32 s33, s33, {STAMP}
                v_lshlrev_b32 v7, 2, v0""")
            self.exec64(0xffffffff, 0)
            a(f"buffer_store_dword v63, v7, {SRDW}, s33 offen")

    def role_b(self):
        a = self.a
        D = self.bdepth
        QAR, FR, O, S2, S3, PF, S = 64, 128, 160, 192, 224, 32, 48
        a("L_roleB:")
        a("s_mov_b64 s[16:17], s[70:71]\ns_mov_b32 s18, 0x400000")
        self.second_batch(lambda: None, 0, self.sd[2])
        self.load_e2_ptr()
        for i in range(8):
            a(f"s_waitcnt vmcnt({D - 1})\ns_add_u32 m0, s44, {dest(i) + 16384}\ns_nop 0")
            a(f"buffer_load_dwordx4 v{3 + (i & 1)}, {SRD0}, s43 offen nt lds\ns_add_u32 s43, s43, s41")
        self.stamp(1)

        def stage(i):
            a(f"s_add_u32 s33, s43, {(262144 if self.bx else 8192) * i}\nbuffer_load_dwordx4 {vr(S2 + 4 * (i if i < 4 else i - 8 if i >= 12 else i + 4), 4)}, v{3 + (i & 1)}, {SRD0}, s33 offen nt")

        def late(i, wait=None):
            sk = self.lab("lt")
            a(f"s_cmp_le_u32 s62, {i}\ns_cbranch_scc1 {sk}")
            if wait is not None:
                a(f"s_waitcnt vmcnt({wait})")
            stage(i)
            a(f"{sk}:")

        a(f"""s_and_b32 s54, {sW}, 3
            s_lshr_b32 s55, {sW}, 2
            v_and_b32 v7, 3, v1
            v_lshlrev_b32 v7, 2, v7
            v_lshrrev_b32 v8, 2, v1
            v_or_b32 v7, v7, v8
            v_lshlrev_b32 v7, 4, v7
            v_lshl_add_u32 v7, v2, 8, v7
            v_lshl_add_u32 v7, v1, 10, v7
            s_lshl_b32 s33, s54, 15
            v_add_u32 v28, s33, v7
            v_lshlrev_b32 v7, 4, v1
            v_lshl_add_u32 v7, v2, 8, v7
            v_lshl_add_u32 v7, v1, 10, v7
            s_lshl_b32 s33, s55, 14
            s_add_u32 s33, s33, {AUX}
            v_add_u32 v29, s33, v7
            v_lshrrev_b32 v9, 1, v2
            v_and_b32 v10, 1, v2
            v_bfe_u32 v11, v0, 1, 1
            v_lshl_or_b32 v11, v10, 1, v11
            s_lshl_b32 s33, {sW}, 3
            v_or_b32 v11, s33, v11
            v_lshlrev_b32 v12, 2, v8
            v_lshl_or_b32 v12, v9, 1, v12
            v_xor_b32 v11, v11, v12
            v_lshlrev_b32 v11, 4, v11
            v_lshl_add_u32 v12, v9, 3, v8
            v_lshl_add_u32 v11, v12, 10, v11
            v_and_b32 v12, 1, v0
            v_lshl_add_u32 v20, v12, 3, v11
            v_xor_b32 v21, 16, v20
            v_add_u32 v21, 4096, v21
            v_xor_b32 v22, 64, v20
            v_xor_b32 v23, 64, v21""")
        for k in range(4):
            a(f"v_add_u32 v{24 + k}, 65536, v{20 + k}")
        a(f"""s_lshl_b32 s33, s55, 8
            s_add_u32 s33, s33, {MX}
            v_lshl_add_u32 v30, v1, 4, s33
            s_lshl_b32 s33, s54, 2
            v_add_u32 v31, s33, v30
            v_and_b32 v7, 31, v0
            v_lshlrev_b32 v56, 4, v7
            v_add_u32 v56, {MX}, v56
            v_mul_u32_u24 v60, 272, v7
            v_lshl_add_u32 v60, v9, 4, v60
            v_add_u32 v60, {PB}, v60
            v_mul_u32_u24 v61, 272, v1
            v_lshl_add_u32 v61, v2, 3, v61
            s_mul_i32 s33, s55, {16 * 272}
            s_lshl_b32 s36, s54, 6
            s_add_u32 s33, s33, s36
            s_add_u32 s33, s33, {PB}
            v_add_u32 v61, s33, v61
            v_add_u32 v19, s44, v16
            v_add_u32 v62, 65536, v19
            v_mov_b32 v57, {NEGBIG:#x}
            v_mov_b32 v58, {NEGBIG:#x}
            v_mov_b32 v59, 0
            v_lshlrev_b32 v7, 1, v2
            v_xor_b32 v7, v7, v1
            v_lshlrev_b32 v7, 4, v7
            v_lshl_add_u32 v5, v2, 13, v7
            v_xor_b32 v6, 128, v5
            s_lshl_b32 s45, {sB}, 21
            s_lshl_b32 s36, {sW}, 18
            s_add_u32 s45, s45, s36
            s_lshl_b32 s36, {sH}, 8
            s_add_u32 s45, s45, s36""")
        for k in range(32):
            a(f"v_mov_b32 v{O + k}, 0")
        a("; ---- keep streaming until the absorbed queries are flagged, then copy them into LDS")
        a(f"""s_lshl_b32 s33, {sH}, 1
            s_add_u32 s33, s33, {sB}
            s_lshl_b32 s33, s33, 3
            s_add_u32 s33, s33, {sW}
            s_lshl_b32 s33, s33, 7
            s_add_u32 s33, s33, {F2}
            s_add_u32 s34, s12, s33
            s_addc_u32 s35, s13, 0
            s_lshl_b32 s49, {sB}, 15
            s_lshl_b32 s36, {sW}, 12
            s_add_u32 s49, s49, s36
            s_add_u32 s49, s49, {QABS}
            s_add_u32 s50, s36, {AUX}
            s_mov_b32 s60, {sTAG}
            s_mov_b32 s61, {sTAG}""")

        def flags_differ():
            for k in range(4):
                a(f"s_xor_b64 s[{64 + 2 * k}:{65 + 2 * k}], s[{64 + 2 * k}:{65 + 2 * k}], s[60:61]")
            a("s_or_b64 s[64:65], s[64:65], s[66:67]\ns_or_b64 s[68:69], s[68:69], s[70:71]\ns_or_b64 s[64:65], s[64:65], s[68:69]")
        for i in range(15, 15 - self.bmax, -2):
            chk = 17 - i >= self.bmin
            if chk:
                a("s_load_dwordx8 s[64:71], s[34:35], 0 glc")
            for k in (i, i - 1):
                a(f"s_waitcnt vmcnt({D - 1})")
                stage(k)
            if chk:
                a(f"s_mov_b32 s62, {i - 1}\ns_waitcnt lgkmcnt(0)")
                flags_differ()
                a("s_cbranch_scc0 L_h2ok")
        self.stamp(2)
        a(f"""s_mov_b32 s62, {16 - self.bmax}
            s_mov_b32 s37, {SPIN}
            L_h2:
            s_load_dwordx8 s[64:71], s[34:35], 0 glc
            s_sub_u32 s37, s37, 1
            s_waitcnt lgkmcnt(0)
            s_cbranch_scc1 L_h2ok""")
        flags_differ()
        a("s_cbranch_scc1 L_h2")
        a("L_h2ok:")
        self.stamp(3)
        def qcopy():
            a(f"""s_lshl_b32 s33, s54, 6
                v_xor_b32 v12, s33, v16
                v_xor_b32 v13, 16, v12
                v_xor_b32 v14, 32, v12
                v_xor_b32 v15, 48, v12
                s_mov_b32 m0, s50""")
            for i in range(4):
                a(f"buffer_load_dwordx4 v{12 + i}, {SRDW}, s49 offen offset:{1024 * i} sc1 lds")

        def qread():
            for s in range(16):
                a(f"v_xor_b32 v7, {s << 4}, v29\nds_read_b128 {vr(QAR + 4 * s, 4)}, v7")
        qcopy()
        a("s_barrier")
        for i in range(4):
            a(f"s_waitcnt vmcnt({D + 1})")
            stage(i)
        a("s_waitcnt vmcnt(4)\ns_barrier")
        self.stamp(4)
        a("s_mov_b32 s37, 4096\nL_qa:")
        qread()
        a("s_waitcnt lgkmcnt(0)\ns_barrier")

        def put(reg, sig):
            for i in range(8):
                d = dest(i) + 16384 * sig
                a(f"ds_write_b128 v{62 if d >> 16 else 19}, {vr(reg + 4 * i, 4)} offset:{d & 0xffff}")

        def step(t, sigs, hook):
            ns = len(sigs)
            a(f"; ---- {64 * ns} keys: scores, online softmax, weighted sum of latents")
            blocks = [2 * kb + sg for kb in range(4) for sg in sigs]

            def rd(r):
                if r % ns == 0:
                    a(f"v_xor_b32 v7, {(r // ns) << 4}, v28")
                a(f"ds_read_b128 {vr(FR + 4 * (r & 7), 4)}, v7 offset:{16384 * sigs[r % ns]}")

            def tr(n, blk):
                be = blocks[n]
                for p in range(2):
                    ar = 20 + 4 * (be >> 2) + 2 * blk + p
                    a(f"ds_read_b64_tr_b16 {vr(FR + 8 * (n & 3) + 4 * blk + 2 * p, 2)}, v{ar} offset:{(be & 3) * 16384}")

            def pread(n):
                a(f"ds_read_b128 {vr(PF + 4 * (n & 3), 4)}, v60 offset:{32 * blocks[n]}")
            nr = 16 * ns
            for r in range(8):
                rd(r)
            for r in range(nr):
                a(f"s_waitcnt lgkmcnt({min(7, nr - 1 - r)})")
                acc = vr(S + 4 * (r % ns), 4)
                a(f"v_mfma_f32_16x16x32_bf16 {acc}, {vr(FR + 4 * (r & 7), 4)}, {vr(QAR + 4 * (r // ns), 4)}, {'0' if r < ns else acc}")
                hook("qk", r)
                if r + 8 < nr:
                    rd(r + 8)
            a(f"v_max3_f32 v7, v{S}, v{S + 1}, v{S + 2}")
            if ns == 2:
                a(f"v_max3_f32 v8, v{S + 4}, v{S + 5}, v{S + 6}\nv_max3_f32 v7, v7, v{S + 3}, v{S + 7}\nv_max_f32 v7, v7, v8")
            else:
                a(f"v_max_f32 v7, v7, v{S + 3}")
            for sw in ("v_permlane16_swap_b32", "v_permlane32_swap_b32"):
                a(f"v_mov_b32 v8, v7\n{sw} v8, v7\nv_max_f32 v7, v7, v8")
            a("""v_mul_f32 v7, s52, v7
                ds_write_b32 v31, v7""")
            for n in range(3):
                tr(n, 0); tr(n, 1)
            a("""s_waitcnt lgkmcnt(12)
                s_barrier
                ds_read_b128 v[8:11], v30
                ds_read_b128 v[12:15], v56
                s_waitcnt lgkmcnt(0)""")
            tr(3, 0); tr(3, 1)
            if t == 0 and self.noack and 'nowait' not in self.diag:
                a("v_cmp_u_f32 vcc, v12, v12\ns_cbranch_vccnz L_qretry\nL_qaok:")
                if self.dbg is True:
                    a("s_sub_u32 s33, 4096, s37\nv_writelane_b32 v63, s33, 29")
            a("v_max3_f32 v8, v8, v9, v10\nv_max3_f32 v8, v8, v11, v57")
            for r in range(4 * ns):
                a(f"v_fma_f32 v{S + r}, v{S + r}, s52, -v8")
            for r in range(4 * ns):
                a(f"v_exp_f32 v{S + r}, v{S + r}")
            a("v_max3_f32 v12, v12, v13, v14")
            for r in range(2 * ns):
                a(f"v_cvt_pk_bf16_f32 v{PF + r}, v{S + 2 * r}, v{S + 2 * r + 1}")
            for k, sg in enumerate(sigs):
                a(f"ds_write_b64 v61, {vr(PF + 2 * k, 2)} offset:{32 * sg}")
            a(f"""v_sub_f32 v9, v57, v8
                v_max3_f32 v12, v12, v15, v58
                v_exp_f32 v9, v9
                v_sub_f32 v14, v58, v12
                v_mov_b32 v57, v8
                v_exp_f32 v14, v14
                v_mov_b32 v58, v12
                v_pk_add_f32 {vr(S, 2)}, {vr(S, 2)}, {vr(S + 2, 2)}""")
            if ns == 2:
                a(f"v_pk_add_f32 {vr(S + 4, 2)}, {vr(S + 4, 2)}, {vr(S + 6, 2)}\nv_pk_add_f32 {vr(S, 2)}, {vr(S, 2)}, {vr(S + 4, 2)}")
            a(f"v_fma_f32 v59, v59, v9, v{S}\nv_add_f32 v59, v59, v{S + 1}")
            if t == 2:
                for sw in ("v_permlane16_swap_b32", "v_permlane32_swap_b32"):
                    a(f"v_mov_b32 v8, v59\n{sw} v8, v59\nv_add_f32 v59, v59, v8")
                a(f"ds_write_b32 v31, v59 offset:{LS - MX}")

            def rescale(lo, hi):
                if t:
                    for k in range(lo, hi):
                        a(f"v_pk_mul_f32 {vr(O + 2 * k, 2)}, {vr(O + 2 * k, 2)}, v[14:15] op_sel_hi:[1,0]")
            rescale(0, 6)
            a("s_waitcnt lgkmcnt(0)\ns_barrier")
            for n in range(4):
                pread(n)
            rescale(6, 16)
            for n in range(4 * ns):
                if ns == 1:
                    a(f"s_waitcnt lgkmcnt({3 - n})")
                elif n in (0, 5, 6, 7):
                    a(f"s_waitcnt lgkmcnt({ {0: 0, 5: 10, 6: 5, 7: 0}[n] })")
                if n == 7:
                    a("s_barrier")
                for blk in range(2):
                    a(f"v_mfma_f32_32x32x16_bf16 {vr(O + 16 * blk, 16)}, {vr(FR + 8 * (n & 3) + 4 * blk, 4)}, {vr(PF + 4 * (n & 3), 4)}, {vr(O + 16 * blk, 16)}")
                hook("pv", n)
                if ns == 2 and n < 4:
                    if n == 3:
                        a("s_waitcnt lgkmcnt(10)")
                    pread(n + 4)
                    tr(n + 4, 0); tr(n + 4, 1)

        def uv(i):
            a(f"buffer_load_dwordx4 {vr(S2 + 4 * i, 4)}, v{5 + (i & 1)}, {SRDK}, s45 offen nt\ns_add_u32 s45, s45, 32768")

        def hook0(ph, r):
            if ph == "qk" and r in self.hookpos:
                late(4 + self.hookpos.index(r))
            if ph == "pv" and r in (0, 2, 4, 6):
                late(8 + r // 2)
        step(0, (0, 1), hook0)
        self.stamp(5)
        for n in (8, 6, 4, 2):
            a(f"s_waitcnt vmcnt({n})\ns_cmp_eq_u32 s62, {n + 4}\ns_cbranch_scc1 L_mid")
        a("s_waitcnt vmcnt(0)\nL_mid:")
        put(S2, 0)
        a(f"""s_lshl_b32 s50, s55, 15
            s_lshl_b32 s36, s54, 12
            s_add_u32 s50, s50, s36
            s_add_u32 s50, s50, {PART[0]}
            v_and_b32 v7, 31, v0
            v_and_b32 v8, 7, v0
            v_lshlrev_b32 v9, 4, v8
            v_lshl_add_u32 v9, v7, 7, v9
            v_lshrrev_b32 v10, 5, v0
            v_lshl_add_u32 v9, v10, 3, v9
            v_add_u32 v3, s50, v9
            v_lshrrev_b32 v10, 3, v0
            v_xor_b32 v11, v8, v10
            v_lshlrev_b32 v11, 4, v11
            v_lshl_add_u32 v11, v10, 7, v11
            v_add_u32 v4, s50, v11
            v_lshlrev_b32 v12, 4, v8
            v_lshl_add_u32 v29, v10, 16, v12
            v_lshlrev_b32 v17, 10, v0
            v_mov_b32 v18, 0x10001
            s_mov_b32 s51, 0x07060302
            v_mov_b32 v54, {sTAG}
            v_mov_b32 v55, {sTAG}
            s_lshl_b32 s49, s55, 15
            s_lshl_b32 s36, {sB}, 14
            s_add_u32 s49, s49, s36
            s_lshl_b32 s36, {sH}, 9
            s_add_u32 s49, s49, s36
            s_lshl_b32 s36, s54, 7
            s_add_u32 s49, s49, s36
            s_add_u32 s49, s49, {OP}
            s_lshl_b32 s53, {sB}, 9
            s_lshl_b32 s36, {sH}, 4
            s_add_u32 s53, s53, s36
            s_add_u32 s53, s53, {ST}""")
        for k in range(4):
            a(f"s_bfe_u32 s33, {sTAG}, {0x20000 + 2 * k:#x}\ns_mul_i32 s33, s33, 0x8001\ns_and_b32 s{56 + k}, s33, 0x10001")
        a("s_waitcnt lgkmcnt(0)\ns_barrier")
        self.stamp(6)
        u0, u1, u2 = self.uva
        for i in range(u0):
            uv(i)
        step(1, (0,), lambda ph, r: uv(u0 + r - 4 + u1) if ph == "pv" and r >= 4 - u1 else None)
        a(f"s_waitcnt vmcnt({u0 + u1})")
        put(S3, 1)
        for i in range(u2):
            uv(u0 + u1 + i)
        a("s_waitcnt lgkmcnt(0)\ns_barrier")
        self.stamp(7)
        step(2, (1,), lambda ph, r: None)
        self.stamp(8)
        for k in range(1, 8):
            a(f"v_xor_b32 v{S3 + k}, {16 * k}, v3")
        if 'Bstop8' in self.diag:
            a("s_branch L_done")
        def stats():
            a(f"""s_cmp_lg_u32 {sW}, 0
                s_cbranch_scc1 L_nost
                ds_read_b128 v[8:11], v56 offset:{LS - MX}
                v_mov_b32 v52, v58
                s_waitcnt lgkmcnt(0)
                v_add_f32 v8, v8, v9
                v_add_f32 v10, v10, v11
                v_add_f32 v53, v8, v10""")
            self.exec64(0xffffffff, 0)
            a(f"buffer_store_dwordx4 v[52:55], v17, {SRDW}, s53 offen sc1\ns_mov_b64 exec, -1\nL_nost:")
        if not self.stlate:
            stats()
        a("s_nop 5")
        if 'slowp' in self.test:
            a(f"s_and_b32 s33, {sW}, {sH}\ns_cbranch_scc0 L_tp\ns_sleep 127\ns_sleep 127\nL_tp:")
        for k in range(8):
            a(f"v_perm_b32 v{FR + 2 * k}, v{O + 4 * k + 1}, v{O + 4 * k}, s51")
            a(f"v_perm_b32 v{FR + 2 * k + 1}, v{O + 4 * k + 3}, v{O + 4 * k + 2}, s51")
            a(f"ds_write_b64 v{S3 + k if k else 3}, {vr(FR + 2 * k, 2)}")
        for i in range(4):
            a(f"ds_read_b128 {vr(FR + 16 + 4 * i, 4)}, v4 offset:{1024 * i}")
        for i in range(4):
            a(f"s_waitcnt lgkmcnt({3 - i})")
            for k in range(4):
                a(f"v_bfi_b32 v{FR + 16 + 4 * i + k}, v18, s{56 + k}, v{FR + 16 + 4 * i + k}")
            a(f"{'' if i < self.nst else ';'}buffer_store_dwordx4 {vr(FR + 16 + 4 * i, 4)}, v29, {SRDW}, s49 offen {self.pfl}\ns_add_u32 s49, s49, {8 * 65536}")
        if self.stlate:
            stats()
        self.stamp(9)
        for i in range(sum(self.uva), 8):
            uv(i)
        self.e2_dma_setup()
        if self.e2s and self.sbar:
            a("s_barrier")
        for i in range(self.e2s):
            self.e2_dma(i)
        a(f"""s_lshl_b32 s33, {sH}, 10
            s_lshl_b32 s36, {sW}, 7
            s_add_u32 s33, s33, s36
            s_add_u32 s33, s33, {ST}
            s_add_u32 s34, s12, s33
            s_addc_u32 s35, s13, 0
            v_lshrrev_b32 v7, 5, v0
            s_and_b32 s33, {sW}, 1
            s_lshl_b32 s33, s33, 2
            v_or_b32 v7, s33, v7
            v_lshlrev_b32 v7, 5, v7
            v_xor_b32 v3, v7, v16
            v_xor_b32 v4, 64, v3
            s_lshl_b32 s49, {sH}, 16
            s_lshl_b32 s36, {sB}, 15
            s_add_u32 s49, s49, s36
            s_lshl_b32 s36, {sW}, 12
            s_add_u32 s49, s49, s36
            s_add_u32 s49, s49, {OP}
            v_add_u32 v5, s50, v16
            v_lshrrev_b32 v8, 2, v1
            v_lshrrev_b32 v9, 1, v2
            v_and_b32 v10, 1, v2
            v_lshlrev_b32 v7, 15, v9
            v_lshl_add_u32 v7, v10, 13, v7
            v_lshl_add_u32 v7, v8, 8, v7
            v_and_b32 v11, 3, v0
            v_lshl_add_u32 v7, v11, 3, v7
            v_lshl_or_b32 v10, v10, 2, v8
            v_xor_b32 v9, {sW}, v10
            v_lshl_add_u32 v20, v9, 5, v7
            v_add_u32 v21, 65536, v20
            v_lshlrev_b32 v7, 12, v2
            v_lshl_add_u32 v7, v8, 9, v7
            v_lshl_add_u32 v7, v11, 3, v7
            s_lshl_b32 s33, {sW}, 1
            v_xor_b32 v10, s33, v10
            v_lshl_add_u32 v7, v10, 5, v7
            v_add_u32 v24, {PART[0]}, v7
            v_xor_b32 v25, 32, v24
            s_lshl_b32 s33, {sW}, 7
            s_add_u32 s36, s33, {WB}
            v_lshl_add_u32 v22, v0, 1, s36
            v_and_b32 v8, 1, v0
            v_lshlrev_b32 v7, 6, v8
            v_lshl_add_u32 v7, v2, 4, v7
            v_add_u32 v23, s36, v7
            v_add_u32 v27, {CC}, v7
            v_add_u32 v26, s33, v27
            v_lshlrev_b32 v7, 11, v8
            v_lshl_add_u32 v28, v2, 4, v7
            s_lshl_b32 s53, {sH}, 12
            s_lshl_b32 s36, {sB}, 9
            s_add_u32 s53, s53, s36
            s_lshl_b32 s36, {sW}, 6
            s_add_u32 s53, s53, s36
            s_add_u32 s53, s53, {H4B}
            s_add_u32 s36, s36, {SM}
            v_lshl_add_u32 v29, v0, 3, s36
            v_lshlrev_b32 v30, 3, v0
            v_add_u32 v30, {SM}, v30
            v_and_b32 v7, 1, v2
            v_cvt_f32_u32 v54, v7
            v_mul_f32 v54, 0.5, v54
""")
        if 'Bstop9' in self.diag:
            a("s_branch L_done")
        self.e2_setup(True)
        a(f"""s_mov_b32 s37, {SPIN}
            L_h3:
            {f's_sleep {self.ps[1]}' if self.ps[1] else ''}
            s_load_dwordx16 s[64:79], s[34:35], 0 glc
            s_load_dwordx16 s[80:95], s[34:35], 64 glc
            s_sub_u32 s37, s37, 1
            s_waitcnt lgkmcnt(0)
            s_cbranch_scc1 L_h3ok""")
        for k in range(8):
            a(f"s_cmp_lg_u32 s{66 + 4 * k}, {sTAG}\ns_cbranch_scc1 L_h3")
        a("L_h3ok:")
        self.stamp(10)

        def fetch():
            for i in range(4):
                a(f"buffer_load_dwordx4 {vr(O + 4 * i, 4)}, v{3 + (i & 1)}, {SRDW}, s49 offen offset:{1024 * i} {self.gfl}")
        fetch()
        a("s_waitcnt vmcnt(4)")
        put(S2, 0)
        for k in range(8):
            a(f"v_writelane_b32 v8, s{64 + 4 * k}, {k}\nv_writelane_b32 v9, s{65 + 4 * k}, {k}")
        a("""s_mov_b64 exec, 0xff
            ds_write_b64 v29, v[8:9]
            s_mov_b64 exec, -1
            s_waitcnt lgkmcnt(0)
            s_barrier
            ds_read_b64 v[12:13], v30""")
        for s in range(7):
            for p in range(2):
                a(f"ds_read_b64_tr_b16 {vr(QAR + 4 * s + 2 * p, 2)}, v{20 + p} offset:{1024 * s}")
        a("s_waitcnt lgkmcnt(14)\nv_mov_b32 v14, v12")

        def red32(op, r, t):
            for sh in (1, 2, 4, 8):
                a(f"{op}_dpp v{r}, v{r}, v{r} row_ror:{sh} {FULL}")
            a(f"v_mov_b32 v{t}, v{r}\nv_permlane16_swap_b32 v{t}, v{r}\n{op} v{r}, v{r}, v{t}")
        red32("v_max_f32", 14, 15)
        for p in range(2):
            a(f"ds_read_b64_tr_b16 {vr(QAR + 28 + 2 * p, 2)}, v{20 + p} offset:{1024 * 7}")
        a("v_sub_f32 v12, v12, v14\nv_exp_f32 v12, v12\nv_mul_f32 v13, v12, v13")
        red32("v_add_f32", 13, 15)
        a(f"""v_rcp_f32 v13, v13
            v_mul_f32 v12, v12, v13
            v_cvt_pk_bf16_f32 v12, v12, v12
            ds_write_b16 v22, v12
            ds_read_b128 v[12:15], v23
            v_cmp_eq_u32 vcc, 0, v1
            v_cmp_eq_u32 s[38:39], 1, v1
            s_mov_b32 s37, {SPIN}
            s_waitcnt lgkmcnt(0)""")
        for k in range(4):
            a(f"v_cndmask_b32 v{32 + k}, 0, v{12 + k}, vcc")
            a(f"v_cndmask_b32 v{36 + k}, 0, v{12 + k}, s[38:39]")
        a(f"""L_h3p:
            s_waitcnt vmcnt(0)
""")
        for k in range(4):
            a(f"v_bitop3_b32 v{8 + 2 * k}, v{O + k}, v{O + 4 + k}, s{56 + k} bitop3:0x7e")
            a(f"v_bitop3_b32 v{9 + 2 * k}, v{O + 8 + k}, v{O + 12 + k}, s{56 + k} bitop3:0x7e")
        a(f"""v_or3_b32 v8, v8, v9, v10
            v_or3_b32 v11, v11, v12, v13
            v_or3_b32 v8, v8, v14, v15
            v_or_b32 v8, v8, v11
            v_and_b32 v8, 0x10001, v8
            v_cmp_ne_u32 vcc, 0, v8
            s_cbranch_vccz L_h3pok
            s_sub_u32 s37, s37, 1
            s_cbranch_scc1 L_h3pok""")
        fetch()
        a("s_branch L_h3p\nL_h3pok:")
        for i in range(4):
            for k in range(4):
                a(f"v_or_b32 v{O + 4 * i + k}, 0x10001, v{O + 4 * i + k}")
            a(f"ds_write_b128 v5, {vr(O + 4 * i, 4)} offset:{1024 * i}")
        if self.dbg is True:
            a(f"s_sub_u32 s33, {SPIN}, s37\nv_writelane_b32 v63, s33, 30")
        a("s_waitcnt lgkmcnt(0)\ns_barrier")
        self.stamp(11)
        for s in range(2):
            for cb in range(2):
                for p in range(2):
                    a(f"ds_read_b64_tr_b16 {vr(FR + 8 * s + 4 * cb + 2 * p, 2)}, v{24 + cb} offset:{32768 * s + 2048 * p}")
        if self.e2b == 0:
            for i in range(self.e2s, 4):
                self.e2_dma(i)
        for s in range(2):
            for cb in range(2):
                a(f"s_waitcnt lgkmcnt({6 - 4 * s - 2 * cb})")
                c = "0" if s == 0 else vr(40 + 4 * cb, 4)
                a(f"v_mfma_f32_16x16x32_bf16 {vr(40 + 4 * cb, 4)}, {vr(FR + 8 * s + 4 * cb, 4)}, {vr(32 + 4 * s, 4)}, {c}")
        for k in range(4):
            a(f"v_cvt_pk_bf16_f32 v{48 + k}, v{40 + 2 * k}, v{41 + 2 * k}")
        self.exec64(0x00030003)
        a("ds_write_b128 v26, v[48:51]\ns_mov_b64 exec, -1\ns_waitcnt lgkmcnt(0)\ns_barrier")
        for s in range(8):
            a(f"ds_read_b128 {vr(FR + 4 * s, 4)}, v27 offset:{128 * s}")
        for s in range(8):
            a(f"s_waitcnt lgkmcnt({7 - s})")
            a(f"v_mfma_f32_16x16x32_bf16 v[40:43], {vr(QAR + 4 * s, 4)}, {vr(FR + 4 * s, 4)}, {'v[40:43]' if s else '0'}")
        self.exec64(0x00030003)
        a("v_cvt_pk_bf16_f32 v52, v40, v41\nv_cvt_pk_bf16_f32 v53, v42, v43")
        a(f"buffer_store_dwordx4 v[52:55], v28, {SRDW}, s53 offen sc1")
        a("ds_write_b64 v238, v[52:53]\nds_write_b32 v239, v54\ns_mov_b64 exec, -1\ns_mov_b64 s[58:59], s[60:61]")
        a(f"""s_or_b32 s33, {sH}, {sB}
            s_xor_b32 s36, {sW}, 6
            s_or_b32 s33, s33, s36
            s_cbranch_scc1 L_noep
            s_mov_b64 exec, 1
            buffer_store_dword v253, off, {SRDW}, 0 offset:{EPOCH} sc1
            s_mov_b64 exec, -1
            L_noep:""")
        self.stamp(12)
        if self.e2b == 1:
            for i in range(self.e2s, 4):
                self.e2_dma(i)
        a("s_branch L_stageE2")
        if self.noack and 'nowait' not in self.diag:
            a("L_qretry:\ns_sub_u32 s37, s37, 1\ns_cbranch_scc1 L_qaok\ns_waitcnt lgkmcnt(0)\ns_barrier")
            qcopy()
            a("s_waitcnt vmcnt(0)\ns_barrier\ns_branch L_qa")

    def build(self):
        a = self.a
        self.entry()
        self.p1()
        a("L_rolePU:")
        self.p2()
        self.a_common()
        self.e2()
        a("s_endpgm")
        a("; ==== type 3: latent attention")
        self.role_b()
        a("L_end:\ns_endpgm")
        if 'fine' in self.diag:
            a.stamp_loads()
        body = a.finalize().replace(" nt lds", f" {self.sfl} lds").replace(" nt\n", f" {self.sfl}\n")
        return f"""{HEADER};
; One persistent launch: 256 workgroups of 8 waves, one per CU, 8 workgroups per head h; j = 4*b + type.
;   type 2    absorbed query q.W_uk^T for one half of the latent axis, then a third of the K/V window of (b, h)
;   type 3    latent attention of batch b over 256 keys for all heads, then combine + W_uv for one latent half
; @launch grid=(256,1,1) block=(512,1,1) lds={LDS_BYTES}
.amdgcn_target "amdgcn-amd-amdhsa--gfx950"
.text
.globl {NAME}
.p2align 8
.type {NAME},@function
{NAME}:
{body}.section .rodata,"a"
.p2align 6
.amdhsa_kernel {NAME}
  .amdhsa_next_free_vgpr 256
  .amdhsa_next_free_sgpr 102
  .amdhsa_accum_offset 256
  .amdhsa_group_segment_fixed_size 0
  .amdhsa_kernarg_size 112
  .amdhsa_user_sgpr_count 2
  .amdhsa_user_sgpr_kernarg_segment_ptr 1
  .amdhsa_system_sgpr_workgroup_id_x 1
  .amdhsa_float_denorm_mode_32 3
.end_amdhsa_kernel
"""


if __name__ == "__main__":
    out = sys.argv[1]
    kw = eval("dict(" + (sys.argv[2] if len(sys.argv) > 2 else "") + ")")
    open(out, "w").write(Gen(**kw).build())
```

```python
import sys
from asmlib import Asm

NAME = "concat_heads__sliding_block_cached__compressed_kv_cla__decode_kernel"
HEADER = open("concat_heads__sliding_block_cached__compressed_kv_cla__decode.s.ref").read().split("; Override launch")[0]

EPOCH = 0
QA = 0xa0000
QB = 0xc0000
CNT = 0xa00000
QABS = 0x30000
F2 = 0x40000
ST = 0x50000
H4A = 0x60000
H4B = 0x80000
OP = 0x100000
H5 = 0x400000
STAMP = 0x800000
WS_SIZE = 0x1000000

AUX = 131072
RED = AUX
MXA = AUX + 512
LSA = AUX + 8192 + 64
MX = AUX + 9216
LS = AUX + 9216 + 512
PB = AUX + 10240
SM = AUX + 28672
WB = AUX + 29696
TK = AUX + 768
XI = AUX + 12288
CC = AUX + 30720
QL = AUX + 10240
HI = AUX + 20480
HS = AUX + 25088
E2B = (81920, 114688)
PART = (16384, 49152)
LDS_BYTES = 163840

SCALE = 0x3e0293ee
NEGBIG = 0xff7fffff
SPIN = 1 << 18

sW, sH, sJ, sB, sT, sTAG = "s3", "s4", "s5", "s6", "s7", "s32"
SRD0, SRDW, SRDK, SRDV, SRDE, SRDX = "s[8:11]", "s[12:15]", "s[16:19]", "s[20:23]", "s[24:27]", "s[28:31]"
FULL = "row_mask:0xf bank_mask:0xf"


def vr(a, n):
    return f"v[{a}:{a + n - 1}]"


def dest(i):
    return (i >> 1) * 32768 + (i & 1) * 8192


class Gen:
    def __init__(self, dbg=False, calib=0, amp=None, diag='', depth=4, lo=3, win=((12, 12), (12, 12)), edepth=(4,), bdepth=4,
                 pu_pre=5, xpos=5, rounds=10, hxa=2, hxu=1, jmul=3, hookpos=(0, 9, 18, 27), bmin=4, uva=(4, 4, 0), e2b=1, e2s=0, sbar=True,
                 e2pos=(0, 0), pw=None, noack=False, pollw=False, qplain=True, outfl='sc1', warm=0, wide=2, rw=7, jr=0, fmask=False, ddepth=4, fcop=16, l2c=(6, 4), l2u=(0, 0), l2pre=4, l2fl='', t0=False, qat=2, budget=3, pu_mid=0, stlate=True, sfl='nt', test='', nak=True, late=0, pbar=False, jx=(0, 0), e2mid=0, prio=0, kmul=1, pmul=1, srot=0, bx=0, wsoff=0, bmax=12, hold=1, sd=(4, 4, 4), hint=True, pmask=False, ps=(0, 0, 0, 0)):
        self.__dict__.update(locals())
        self.a = Asm()
        self.uid = 0
        self.pfl, self.gfl, self.nst = 'sc1', 'sc1', 4

    def lab(self, p):
        self.uid += 1
        return f"L_{p}_{self.uid}"

    def stamp(self, k):
        if self.dbg and (self.dbg is True or k in self.dbg or k == 17) and 'fine' not in self.diag:
            self.a(f"s_memrealtime s[98:99]\ns_waitcnt lgkmcnt(0)\nv_writelane_b32 v63, s98, {k}")

    def cyc(self, k):
        if 'cyc' in self.diag:
            self.a(f"s_memtime s[{64 + 2 * k}:{65 + 2 * k}]")

    def exec64(self, lo, hi=None):
        hi = lo if hi is None else hi
        self.a(f"s_mov_b32 exec_lo, {lo:#x}\ns_mov_b32 exec_hi, {hi:#x}")

    def entry(self):
        a = self.a

        def pack(sw, sh, sb, st, rs, kmul, k1, k2):
            return sw | sh << 5 | sb << 10 | st << 15 | rs << 20 | kmul << 25 | (k1 >> 5) << 27 | (k2 >> 7) << 29
        if self.dbg or self.calib or self.t0:
            a("s_memrealtime s[96:97]\nv_mov_b32 v63, 0\ns_mov_b32 s100, 0")
        a("; ---- role decode and first four 1 KiB copies into LDS")
        a(f"""s_load_dwordx8 s[64:71], s[0:1], 48
            v_lshrrev_b32 v8, 6, v0
            s_cmp_ge_u32 s2, 256
            s_cbranch_scc1 L_end
            v_readfirstlane_b32 {sW}, v8
            s_lshr_b32 {sH}, s2, 3
            s_add_u32 {sJ}, s2, {sH}
            s_mul_i32 {sJ}, {sJ}, {self.jmul}
            s_bfe_u32 {sB}, {sJ}, 0x10002
            s_and_b32 {sT}, {sJ}, 3
            v_and_b32 v1, 15, v0
            v_bfe_u32 v2, v0, 4, 2
            s_mul_i32 s38, {sW}, 17
            s_bfe_u32 s38, s38, 0x40002
            s_mov_b32 s33, {pack(17, 8, 20, 15, 13, 2, 0, 128):#x}
            s_cmp_eq_u32 {sT}, 2
            s_cmov_b32 s33, {pack(18, 8, 21, 16, 13, 1, 64, 128):#x}
            s_cselect_b32 s63, {self.hxu}, 0
            s_xor_b32 s63, s63, {sH}
            s_cmp_eq_u32 {sT}, 3
            s_cmov_b32 s33, {pack(10, 13 if self.bx else 18, 23, 18 if self.bx else 13, 8, 0, 32, 0):#x}
            s_cselect_b32 s38, s38, 0
            s_cselect_b32 s10, 24, 22
            s_lshl_b32 s10, 1, s10
            s_cmp_eq_u32 {sT}, 1
            s_cselect_b32 s36, 2, 0
            s_or_b32 s42, s36, {sB}
            s_lshl_b32 s40, {sW}, s33
            s_lshr_b32 s33, s33, 5
            s_lshl_b32 s36, s63, s33
            s_add_u32 s40, s40, s36
            s_lshr_b32 s33, s33, 5
            s_lshl_b32 s36, s42, s33
            s_add_u32 s40, s40, s36
            s_lshr_b32 s33, s33, 5
            s_lshl_b32 s41, 1, s33
            s_lshr_b32 s33, s33, 5
            s_bfe_u32 s36, s33, 0x20005
            v_mul_u32_u24 v11, s36, v2
            v_xor_b32 v10, s38, v1
            v_lshlrev_b32 v9, s33, v2
            v_xor_b32 v10, v10, v11
            s_lshr_b32 s33, s33, 2
            s_and_b32 s38, s33, 0x60
            s_and_b32 s39, s33, 0x80
            v_lshl_add_u32 v3, v10, 4, v9
            s_lshl_b32 s44, {sW}, 10
            s_mov_b32 s11, 0x20000
            v_xor_b32 v4, s38, v3
            v_xor_b32 v5, s39, v3
            s_mov_b32 m0, s44
            v_xor_b32 v6, s39, v4
            s_mov_b32 s43, s40
            s_cmp_eq_u32 {sT}, 2
            s_waitcnt lgkmcnt(0)
            s_cselect_b64 s[8:9], s[68:69], s[66:67]
            s_cmp_eq_u32 {sT}, 3
            s_cselect_b64 s[8:9], s[64:65], s[8:9]""")
        for i in range(4):
            a(f"buffer_load_dwordx4 v{3 + i}, {SRD0}, s40 offen nt lds")
            a(f"s_add_u32 m0, s44, {dest(i + 1)}\ns_add_u32 s40, s40, s41")
        a("; ---- remaining pointers, code prefetch into L2, launch tag")
        a(f"""s_load_dwordx2 s[12:13], s[0:1], 104
            s_load_dwordx2 s[28:29], s[0:1], 0
            s_load_dwordx2 s[30:31], s[0:1], 40
            s_load_dwordx2 s[16:17], s[0:1], 8
            s_load_dwordx2 s[20:21], s[0:1], 16
            s_load_dwordx2 s[24:25], s[0:1], 24
            s_getpc_b64 s[34:35]
            L_pc:
            s_and_b32 {sJ}, {sJ}, 7
            v_and_b32 v0, 63, v0
            v_lshlrev_b32 v16, 4, v0
            s_mov_b32 s27, 0x20000
            s_mov_b32 s26, s10
            s_xor_b32 s36, s43, {self.hxa << 8}
            s_add_u32 s43, s43, 32768
            s_cmp_eq_u32 {sT}, 3
            s_cselect_b32 s43, s40, s43
            s_cmp_lt_u32 {sT}, 2
            s_cselect_b32 s43, s36, s43
            s_cselect_b32 s63, s42, s63
            s_waitcnt lgkmcnt(0)
            s_cselect_b64 s[24:25], s[24:25], s[8:9]""")
        if self.wsoff:
            a(f"s_add_u32 s12, s12, {self.wsoff}\ns_addc_u32 s13, s13, 0")
        a(f"""s_lshl_b32 s33, {sH}, 3
            s_add_u32 s33, s33, {sW}
            s_lshl_b32 s33, s33, 7
            s_min_u32 s33, s33, L_end-L_pc-64
            s_add_u32 s36, s33, 64
            s_load_dword {'s98' if 'fine' in self.diag else 's100'}, s[34:35], s33
            s_load_dword {'s99' if 'fine' in self.diag else 's101'}, s[34:35], s36
            s_load_dword {sTAG}, s[12:13], {EPOCH}
            s_mov_b32 s14, {WS_SIZE:#x}
            s_mov_b32 s15, 0x20000
            s_mov_b32 s19, 0x20000
            s_mov_b32 s52, {SCALE:#x}""")
        if self.dbg:
            a("v_writelane_b32 v63, s96, 0")
        if self.t0:
            a(f"""s_or_b32 s33, {sH}, {sW}
                s_cbranch_scc1 L_nt0
                s_lshl_b32 s33, s2, 7
                s_add_u32 s33, s33, {STAMP}
                v_mov_b32 v63, s96
                s_mov_b64 exec, 1
                buffer_store_dword v63, off, {SRDW}, s33 sc1
                s_mov_b64 exec, -1
                L_nt0:""")
        a(f"""s_cmp_eq_u32 {sT}, 3
            s_cbranch_scc1 L_roleB
            s_mov_b32 s18, 0x8000000
            s_mov_b32 s22, 0x8000000
            s_mov_b32 s23, 0x20000
            s_lshl_b32 s45, {sB}, 5
            s_add_u32 s45, s45, {sH}
            s_lshl_b32 s45, s45, 21
            s_add_u32 s45, s45, {6144 * 256}
            s_lshl_b32 s57, {sT}, 3
            s_add_u32 s57, s57, {sW}""")
        a("s_lshl_b32 s48, s57, 11\ns_add_u32 s48, s48, s45")
        a(f"s_cmp_eq_u32 {sT}, 2\ns_cbranch_scc1 L_rolePU")

    def second_batch(self, mid, extra=0, depth=4, lo=4, hi=8):
        a = self.a
        for i in range(lo, hi):
            a(f"s_waitcnt vmcnt({depth - 1 + extra})\nbuffer_load_dwordx4 v{3 + (i & 3)}, {SRDE}, s43 offen nt lds")
            if i < 7:
                a(f"s_add_u32 m0, s44, {dest(i + 1)}")
            a("s_add_u32 s43, s43, s41")
            if i == self.xpos:
                a(f"s_waitcnt lgkmcnt(0)\ns_add_u32 {sTAG}, {sTAG}, 1")
                mid()

    def load_e2_ptr(self):
        self.a(f"""s_cmp_lt_u32 {sW}, 4
            s_cselect_b32 s33, 32, 80
            s_load_dwordx2 s[24:25], s[0:1], s33
            s_mov_b32 s26, {0 if 'noW' in self.diag else 0x400000}""")

    def sum_parts(self, r):
        self.a(f"""v_lshlrev_b32 v8, 16, v{r}
            v_and_b32 v9, 0xffff0000, v{r}
            v_lshlrev_b32 v10, 16, v{r + 1}
            v_and_b32 v11, 0xffff0000, v{r + 1}
            v_lshlrev_b32 v{r}, 16, v{r + 4}
            v_and_b32 v{r + 1}, 0xffff0000, v{r + 4}
            v_lshlrev_b32 v{r + 2}, 16, v{r + 5}
            v_and_b32 v{r + 3}, 0xffff0000, v{r + 5}
            v_pk_add_f32 v[8:9], v[8:9], {vr(r, 2)}
            v_pk_add_f32 v[10:11], v[10:11], {vr(r + 2, 2)}
            v_permlane32_swap_b32 v8, v10
            v_permlane32_swap_b32 v9, v11
            v_pk_add_f32 v[8:9], v[8:9], v[10:11]
            v_cvt_pk_bf16_f32 v{r}, v8, v9""")

    def poll_rows(self, voff, soff, two=False):
        a = self.a
        lp, ok = self.lab("gp"), self.lab("gok")
        back = self.ps[0 if two else 2]
        a(f"s_mov_b32 s37, {SPIN}\n{lp}:\nbuffer_load_dwordx4 v[176:179], {voff}, {SRDW}, {soff} offen sc1")
        if two:
            a(f"buffer_load_dwordx4 v[180:183], {voff}, {SRDW}, {soff} offen offset:1024 sc1")
        a(f"s_sub_u32 s37, s37, 1\ns_waitcnt vmcnt(0)\ns_cbranch_scc1 {ok}")
        if two:
            a(f"v_bitop3_b32 v8, v179, v183, {sTAG} bitop3:0x7e\nv_cmp_ne_u32 vcc, 0, v8")
        else:
            a(f"v_cmp_ne_u32 vcc, {sTAG}, v179")
        if self.pmask or back:
            a(f"s_cbranch_vccz {ok}")
            if self.pmask:
                a("s_mov_b64 exec, vcc")
            if back:
                a(f"s_sleep {back}")
            a(f"s_branch {lp}\n{ok}:\ns_mov_b64 exec, -1")
        else:
            a(f"s_cbranch_vccnz {lp}\n{ok}:")

    def e2_dma_setup(self):
        self.a(f"""v_lshrrev_b32 v9, 3, v0
            v_and_b32 v10, 7, v0
            v_and_b32 v11, 1, v2
            v_lshlrev_b32 v11, 1, v11
            v_xor_b32 v10, v10, v11
            v_lshlrev_b32 v10, 4, v10
            v_lshl_add_u32 v17, v9, 10, v10
            v_xor_b32 v18, 64, v17
            s_and_b32 s33, {sW}, 3
            s_lshl_b32 s46, {sH}, 17
            s_lshl_b32 s36, s33, 15
            s_add_u32 s46, s46, s36
            s_cmp_lt_u32 {sW}, 4
            s_cselect_b32 s36, {self.jx[0]}, {self.jx[1]}
            s_xor_b32 s36, s36, {sJ}
            s_lshl_b32 s36, s36, 7
            s_add_u32 s46, s46, s36
            s_cmp_lt_u32 {sW}, 4
            s_mov_b32 s47, {E2B[1]}
            s_cmov_b32 s47, {E2B[0]}
            s_lshl_b32 s36, s33, 12
            s_add_u32 s47, s47, s36""")


    def e2_dma(self, i):
        self.a(f"""s_add_u32 m0, s47, {1024 * i}
            s_nop 0
            buffer_load_dwordx4 v{17 + (i & 1)}, {SRDE}, s46 offen nt lds
            s_add_u32 s46, s46, 8192""")

    KV = 64

    def reg(self, t):
        return self.KV + 8 * ((t + 1) % 12)

    def a_load(self, n, t, u, cnt):
        a = self.a
        if u == 0:
            a(f"s_add_u32 s54, s48, {49152 * (t % n)}")
        a(f"s_waitcnt vmcnt({cnt})")
        a(f"buffer_load_dwordx4 {vr(self.reg(t) + 4 * u, 4)}, v16, {SRDK if t < n else SRDV}, s54 offen offset:{1024 * u} nt")

    def l2_setup(self):
        self.a(f"""s_sub_u32 s33, 1, s2
            s_and_b32 s33, s33, 3
            s_and_b32 s36, {sH}, 28
            s_or_b32 s33, s33, s36
            s_add_u32 s36, s33, s2
            s_mul_i32 s36, s36, 3
            s_bfe_u32 s36, s36, 0x10002
            s_lshl_b32 s55, s36, 23
            s_lshl_b32 s36, s33, 18
            s_add_u32 s55, s55, s36
            s_add_u32 s55, s55, s44
            s_mul_i32 s36, {sT}, {8192 * self.l2c[0]}
            s_sub_u32 s55, s55, s36
            s_add_u32 s55, s55, {31 * 8192}""")

    def l2_ptrs(self):
        self.a("""; ---- pull later c_kv rows of the type-3 workgroup with the same id modulo 8 into L2 (speed only)
            s_load_dwordx2 s[8:9], s[0:1], 48
            s_mov_b32 s10, 0x1000000
            s_waitcnt lgkmcnt(0)""")

    def l2_list(self, role):
        return ["c"] * self.l2c[role] + ["u"] * self.l2u[role] + [0, 1, 2, 3]

    def l2_item(self, it, cnt):
        a = self.a
        if it == "c":
            a(f"s_waitcnt vmcnt({cnt})\nbuffer_load_dwordx4 v[64:67], v16, {SRD0}, s55 offen {self.l2fl}\ns_sub_u32 s55, s55, 8192")
        elif it == "u":
            a(f"s_waitcnt vmcnt({cnt})\nbuffer_load_dwordx4 v[64:67], v46, {SRDX}, s56 offen {self.l2fl}\ns_add_u32 s56, s56, 32768")
        else:
            self.a_first(it, cnt)

    def a_first(self, k, cnt):
        self.a_load(10, k >> 1, k & 1, cnt)

    def a_qk(self, K, r):
        a = self.a
        a("v_mov_b32 v28, 0\nv_mov_b32 v29, 0")
        for e in range(4):
            for u in range(2):
                a(f"v_dot2c_f32_bf16 v{28 + u}, v{K + 4 * u + e}, v{24 + e}")
        a(f"v_add_f32_dpp v{r}, v28, v28 row_ror:8 row_mask:0xf bank_mask:0x3")
        a(f"v_add_f32_dpp v{r}, v29, v29 row_ror:8 row_mask:0xf bank_mask:0xc")
        for m in ("row_half_mirror", "quad_perm:[1,0,3,2]", "quad_perm:[2,3,0,1]"):
            a(f"v_add_f32_dpp v{r}, v{r}, v{r} {m} {FULL}")

    def a_pv(self, V, u, p):
        for e in range(4):
            self.a(f"v_dot2c_f32_bf16_dpp v{52 + 2 * e}, v{p}, v{V + 4 * u + e} row_newbcast:{8 * u} {FULL}")
            self.a(f"v_dot2c_f32_bf16_dpp v{53 + 2 * e}, v{p + 1}, v{V + 4 * u + e} row_newbcast:{8 * u} {FULL}")

    def p1(self):
        a = self.a
        D = self.edepth[0]
        a(f"""s_lshl_b32 s33, s63, 8
            s_lshl_b32 s36, {sW}, 5
            s_add_u32 s49, s33, s36
            s_add_u32 s50, s49, 1024
            s_load_dwordx8 s[64:71], s[30:31], s49
            s_load_dwordx8 s[72:79], s[30:31], s50
            s_load_dwordx8 s[80:87], s[28:29], s49
            s_load_dwordx8 s[88:95], s[28:29], s50
            v_and_b32 v8, 1, v2
            v_lshlrev_b32 v7, 15, v8
            v_lshrrev_b32 v9, 1, v2
            v_lshl_add_u32 v7, v9, 10, v7
            v_lshrrev_b32 v9, 2, v1
            v_lshl_add_u32 v7, v9, 8, v7
            v_and_b32 v10, 3, v0
            v_lshl_add_u32 v7, v10, 3, v7
            v_lshl_or_b32 v9, v8, 2, v9
            v_xor_b32 v9, {sW}, v9
            v_lshl_add_u32 v200, v9, 5, v7
            v_add_u32 v201, 65536, v200
            v_lshrrev_b32 v7, 3, v0
            v_lshlrev_b32 v7, 8, v7
            v_and_b32 v8, 7, v0
            v_lshl_add_u32 v7, v8, 2, v7
            s_add_u32 s36, s36, {XI}
            v_add_u32 v202, s36, v7
            v_and_b32 v7, 1, v0
            v_lshlrev_b32 v8, 8, v7
            v_lshl_add_u32 v8, v2, 4, v8
            v_add_u32 v203, {XI}, v8
            v_lshlrev_b32 v8, 11, v7
            v_lshl_add_u32 v204, v2, 4, v8
            s_lshl_b32 s38, {sH}, 12
            s_lshl_b32 s36, s63, 9
            s_add_u32 s38, s38, s36
            s_lshl_b32 s36, {sW}, 6
            s_add_u32 s38, s38, s36
            s_xor_b32 s39, s38, {self.hxa << 12}
            s_add_u32 s38, s38, {QB}
            s_add_u32 s39, s39, {QA}""")

        def mid():
            for k in range(32):
                a(f"v_writelane_b32 v205, s{64 + k}, {k}")
            self.exec64(0xffffffff, 0)
            a(f"ds_write_b32 v202, v205\ns_mov_b64 exec, -1\nv_mov_b32 v51, {sTAG}")

        def half(t):
            a(f"; ---- partial query of part {'A' if t else 'B'}: 16 columns per wave over 128 rows")
            a("s_waitcnt lgkmcnt(0)\ns_barrier")
            for s in range(4):
                a(f"ds_read_b128 {vr(160 + 4 * s, 4)}, v203 offset:{512 * t + 64 * s}")
                for p in range(2):
                    a(f"ds_read_b64_tr_b16 {vr(176 + 4 * s + 2 * p, 2)}, v{200 + t} offset:{2048 * s + 8192 * p}")
            for s in range(4):
                a(f"s_waitcnt lgkmcnt({9 - 3 * s})")
                a(f"v_mfma_f32_16x16x32_bf16 v[192:195], {vr(176 + 4 * s, 4)}, {vr(160 + 4 * s, 4)}, {'v[192:195]' if s else '0'}")
            self.exec64(0x00030003)
            a("v_cvt_pk_bf16_f32 v48, v192, v193\nv_cvt_pk_bf16_f32 v49, v194, v195")
            a(f"buffer_store_dwordx4 v[48:51], v204, {SRDW}, s{38 + t} offen sc1\ns_mov_b64 exec, -1")

        self.a_setup()
        H = self.hold
        self.second_batch(mid, 0, self.sd[0], 4, 8 - H)
        a(f"s_waitcnt vmcnt({4 - H})")
        self.stamp(1)
        half(0)
        self.stamp(2)
        self.second_batch(None, 1, 4, 8 - H, 8)
        self.load_e2_ptr()
        self.l2_ptrs()
        items = self.l2_list(0)
        for k in range(4):
            self.l2_item(items[k], D if k < D - H else D - 1)
        a(f"s_waitcnt vmcnt({4 if H else 5})")
        if 'slowa' in self.test:
            a(f"s_and_b32 s33, {sH}, 1\ns_cbranch_scc0 L_ta\ns_sleep 127\ns_sleep 127\ns_sleep 127\nL_ta:")
        half(1)
        self.stamp(3)
        for k, it in enumerate(items[4:]):
            self.l2_item(it, D if k < D else D - 1)
        a("s_branch L_acommon")

    def p2(self):
        a = self.a
        D, pre = self.edepth[0], self.pu_pre
        a(f"""v_lshrrev_b32 v7, 3, v1
            v_lshlrev_b32 v7, 15, v7
            v_bfe_u32 v8, v1, 2, 1
            v_lshl_add_u32 v7, v8, 13, v7
            v_and_b32 v8, 3, v1
            v_lshl_add_u32 v7, v8, 8, v7
            v_add_u32 v7, s44, v7
            v_xor_b32 v8, v2, v1
            v_lshl_add_u32 v216, v8, 4, v7""")
        for s in range(1, 4):
            a(f"v_xor_b32 v{216 + s}, {64 * s}, v216")
        for s in range(4):
            a(f"v_add_u32 v{220 + s}, 65536, v{216 + s}")
        a(f"""v_and_b32 v13, 31, v0
            v_lshlrev_b32 v13, 3, v13
            v_lshrrev_b32 v7, 5, v0
            v_lshl_add_u32 v13, v7, 2, v13
            s_lshl_b32 s33, {sW}, 8
            s_add_u32 s33, s33, {HI}
            v_add_u32 v13, s33, v13
            v_and_b32 v14, 1, v0
            v_lshlrev_b32 v14, 8, v14
            v_lshl_add_u32 v14, v2, 4, v14
            v_add_u32 v14, {HI}, v14
            s_lshl_b32 s49, s63, 12
            s_lshl_b32 s36, {sW}, 11
            s_add_u32 s49, s49, s36
            s_add_u32 s49, s49, {QB}
            v_lshlrev_b32 v15, 15, v1
            v_lshl_add_u32 v15, v2, 4, v15
            s_lshl_b32 s50, s63, 10
            s_lshl_b32 s36, {sB}, 9
            s_add_u32 s50, s50, s36
            s_lshl_b32 s36, {sW}, 6
            s_add_u32 s50, s50, s36
            s_add_u32 s50, s50, {QABS}
            s_lshr_b32 s53, s63, 2
            s_lshl_b32 s53, s53, 7
            s_and_b32 s36, s63, 3
            s_lshl_b32 s36, s36, 3
            s_add_u32 s53, s53, s36
            s_lshl_b32 s36, {sB}, 2
            s_add_u32 s53, s53, s36
            s_add_u32 s53, s53, {F2}
            v_lshlrev_b32 v197, 10, v0""")
        if self.noack:
            for k in range(4):
                a(f"v_mov_b32 v{200 + k}, -1")
            self.exec64(0x00030003)
            a(f"buffer_store_dwordx4 v[200:203], v15, {SRDW}, s50 offen sc1\ns_mov_b64 exec, -1")
        self.a_setup()
        self.second_batch(lambda: a(f"v_mov_b32 v196, {sTAG}"), 1 if self.noack else 0, self.sd[1])
        self.load_e2_ptr()
        self.l2_ptrs()
        items = self.l2_list(1)
        for k in range(pre):
            self.l2_item(items[k], D - 1)
        self.stamp(7)
        if self.hint:
            a(f"""s_lshl_b32 s33, s63, 12
                s_lshl_b32 s36, {sW}, 9
                s_add_u32 s33, s33, s36
                s_add_u32 s33, s33, {QB}
                s_add_u32 s34, s12, s33
                s_addc_u32 s35, s13, 0
                s_mov_b32 s38, {sTAG}
                s_mov_b32 s39, {sTAG}
                s_mov_b32 s37, {SPIN}
                L_h1h:""")
            for k in range(8):
                a(f"s_load_dword s{64 + k}, s[34:35], {64 * k + 12} glc")
            a("s_sub_u32 s37, s37, 1\ns_waitcnt lgkmcnt(0)\ns_cbranch_scc1 L_h1k")
            for k in range(4):
                a(f"s_xor_b64 s[{64 + 2 * k}:{65 + 2 * k}], s[{64 + 2 * k}:{65 + 2 * k}], s[38:39]")
            a("s_or_b64 s[64:65], s[64:65], s[66:67]\ns_or_b64 s[68:69], s[68:69], s[70:71]\ns_or_b64 s[64:65], s[64:65], s[68:69]")
            a("s_cbranch_scc1 L_h1h\nL_h1k:")
            self.stamp(13)
            if self.dbg is True:
                a(f"s_sub_u32 s33, {SPIN}, s37\nv_writelane_b32 v63, s33, 30")
            a("s_barrier")
        mid = self.pu_mid
        gat = f"buffer_load_dwordx4 v[176:179], v16, {SRDW}, s49 offen sc1\nbuffer_load_dwordx4 v[180:183], v16, {SRDW}, s49 offen offset:1024 sc1"
        a(f"s_cmp_gt_u32 {sW}, 1\ns_cbranch_scc1 L_h1a\n{gat}\nL_h1a:")
        for k in range(pre, pre + mid):
            self.l2_item(items[k], D - 1)
        pre += mid
        a(f"""s_cmp_gt_u32 {sW}, 1
            s_cbranch_scc1 L_h1s
            s_mov_b32 s37, {SPIN}
            s_waitcnt vmcnt({mid})
            L_h1c:
            v_bitop3_b32 v8, v179, v183, {sTAG} bitop3:0x7e
            v_cmp_ne_u32 vcc, 0, v8
            s_cbranch_vccz L_h1d
            s_sub_u32 s37, s37, 1
            s_cbranch_scc1 L_h1d
            {gat}
            s_waitcnt vmcnt(0)
            s_branch L_h1c
            L_h1d:""")
        self.sum_parts(176)
        a(f"ds_write_b32 v13, v176\nL_h1s:\ns_waitcnt vmcnt({pre})")
        self.stamp(1)
        for blk in range(2):
            for s in range(4):
                a(f"ds_read_b128 {vr(224 + 16 * blk + 4 * s, 4)}, v{216 + 4 * blk + s}")
        a("s_waitcnt lgkmcnt(0)\ns_barrier")
        self.stamp(2)
        for s in range(4):
            a(f"ds_read_b128 {vr(176 + 4 * s, 4)}, v14 offset:{64 * s}")
        for s in range(4):
            a(f"s_waitcnt lgkmcnt({3 - s})")
            for blk in range(2):
                c = "0" if s == 0 else vr(208 + 4 * blk, 4)
                a(f"v_mfma_f32_16x16x32_bf16 {vr(208 + 4 * blk, 4)}, {vr(224 + 16 * blk + 4 * s, 4)}, {vr(176 + 4 * s, 4)}, {c}")
        for k in range(4):
            a(f"v_cvt_pk_bf16_f32 v{168 + k}, v{208 + 2 * k}, v{209 + 2 * k}")
        self.exec64(0x00030003)
        if 'slowq' in self.test:
            a(f"s_mov_b64 exec, -1\ns_cmp_lg_u32 {sW}, 0\ns_cbranch_scc1 L_tq\nbuffer_store_dword v196, v197, {SRDW}, s53 offen sc1\nL_tq:\ns_sleep 127\ns_sleep 127\ns_sleep 127")
            self.exec64(0x00030003)
        a(f"buffer_store_dwordx4 v[168:171], v15, {SRDW}, s50 offen sc1")
        a("s_mov_b64 exec, -1")
        if not self.noack:
            a("s_waitcnt vmcnt(0)")
        a("s_barrier")
        skip = self.lab("p2s")
        a(f"""s_cmp_lg_u32 {sW}, 0
            s_cbranch_scc1 {skip}
            s_mov_b64 exec, {-1 if self.fcop == 64 else hex((1 << self.fcop) - 1)}
            buffer_store_dword v196, v197, {SRDW}, s53 offen sc1
            s_mov_b64 exec, -1
            {skip}:""")
        self.stamp(3)
        for k, it in enumerate(items[pre:]):
            self.l2_item(it, (D if mid else D + 1) if k < D else D - 1)

    def a_setup(self):
        a = self.a
        self.l2_setup()
        self.e2_dma_setup()
        a(f"""s_lshl_b32 s51, {sH}, 1
            s_add_u32 s51, s51, {sB}
            s_lshl_b32 s51, s51, 11
            s_add_u32 s51, s51, {QA}
            v_and_b32 v36, 31, v0
            v_lshlrev_b32 v36, 3, v36
            v_lshrrev_b32 v7, 5, v0
            v_lshl_add_u32 v36, v7, 2, v36
            s_lshl_b32 s33, {sW}, 8
            s_add_u32 s33, s33, {QL}
            v_add_u32 v36, s33, v36
            v_lshl_add_u32 v37, v1, 4, s33
            v_mov_b32 v60, {NEGBIG:#x}
            v_mov_b32 v61, 0
            v_lshlrev_b32 v38, 5, v1
            v_lshl_add_u32 v38, v2, 3, v38
            s_lshl_b32 s33, {sW}, 9
            s_add_u32 s33, s33, {RED + 1024}
            v_add_u32 v38, s33, v38
            s_lshl_b32 s33, {sW}, 2
            s_add_u32 s33, s33, {MXA}
            v_mov_b32 v39, s33
            v_mov_b32 v43, {MXA}
            v_lshrrev_b32 v44, 5, v0
            v_mul_u32_u24 v44, 1536, v44
            v_add_u32 v44, v44, v16
            v_add_u32 v44, {RED + 1024}, v44
            s_lshl_b32 s61, {sH}, 3
            s_add_u32 s61, s61, {sJ}
            s_lshl_b32 s61, s61, 9
            s_add_u32 s61, s61, {H4A}""")
        for k in range(8):
            a(f"v_mov_b32 v{52 + k}, 0")

    def a_stream(self, n, role):
        a = self.a
        D, x, S, P = self.depth, self.e2pos[0], 160, 176
        qld = f"buffer_load_dwordx4 v[20:23], v16, {SRDW}, s51 offen sc1\nbuffer_load_dwordx4 v[24:27], v16, {SRDW}, s51 offen offset:1024 sc1"

        def qprep():
            lp, ok = self.lab("qlp"), self.lab("qok")
            a(f"""s_mov_b32 s37, {SPIN}
                s_waitcnt vmcnt(4)
                {lp}:
                v_bitop3_b32 v8, v23, v27, {sTAG} bitop3:0x7e
                v_cmp_ne_u32 vcc, 0, v8
                s_cbranch_vccz {ok}
                s_sub_u32 s37, s37, 1
                s_cbranch_scc1 {ok}
                {qld}
                s_waitcnt vmcnt(0)
                s_branch {lp}
                {ok}:""")
            self.sum_parts(20)
            a("ds_write_b32 v36, v20\nds_read_b128 v[24:27], v37\ns_waitcnt lgkmcnt(0)")
            self.stamp(4)

        def allred(op, r):
            a(f"{op}_dpp v{r}, v{r}, v{r} row_ror:8 {FULL}")
            for sw in ("v_permlane16_swap_b32", "v_permlane32_swap_b32"):
                a(f"v_mov_b32 v32, v{r}\n{sw} v32, v{r}\n{op} v{r}, v{r}, v32")

        def wavemax():
            a("; ---- maximum of this wave's scores")
            a(f"v_max_f32 v31, v{S}, v{S + n - 1}")
            for k in range(1, n - 1, 2):
                a(f"v_max3_f32 v31, v31, v{S + k}, v{S + k + 1}")
            allred("v_max_f32", 31)
            a("v_mul_f32 v31, s52, v31\nds_write_b32 v39, v31")

        def probs(lo, hi, m):
            for k in range(lo, hi):
                a(f"v_fma_f32 v{S + k}, v{S + k}, s52, -v{m}")
            for k in range(lo, hi):
                a(f"v_exp_f32 v{S + k}, v{S + k}")
            for k in range(lo, hi):
                a(f"v_cvt_pk_bf16_f32 v{P + 2 * k}, v{S + k}, 0\nv_cvt_pk_bf16_f32 v{P + 2 * k + 1}, 0, v{S + k}")
                a(f"v_add_f32 v61, v61, v{S + k}")

        def soft():
            probs(0, n - 2, 31)
            self.stamp(5)

        def common():
            a("; ---- last round: rescale to the workgroup maximum, last two steps")
            a("""s_waitcnt lgkmcnt(0)
                s_barrier
                ds_read_b128 v[8:11], v43
                ds_read_b128 v[12:15], v43 offset:16
                s_waitcnt lgkmcnt(0)
                v_max3_f32 v60, v8, v9, v10
                v_max3_f32 v12, v12, v13, v14
                v_max3_f32 v60, v60, v11, v15
                v_max_f32 v60, v60, v12
                v_sub_f32 v34, v31, v60
                v_exp_f32 v34, v34
                v_mul_f32 v61, v61, v34""")
            for k in range(4):
                a(f"v_pk_mul_f32 {vr(52 + 2 * k, 2)}, {vr(52 + 2 * k, 2)}, v[34:35] op_sel_hi:[1,0]")
            probs(n - 2, n, 60)
            allred("v_add_f32", 61)
            a("ds_write_b32 v39, v61 offset:32")

        def pv(k):
            for u in range(2):
                self.a_pv(self.reg(n + k), u, P + 2 * k)
        work = [("setup", -1, 3, lambda: self.e2_setup(False)), ("q", 2 * self.qat + 1, 1, qprep)]
        work += [(("k", k), k, 1, lambda k=k: self.a_qk(self.reg(k), S + k)) for k in range(n)]
        work += [("max", -1, 0, wavemax), ("soft", -1, 2, soft)]
        work += [(("v", k), n + k, 1, lambda k=k: pv(k)) for k in range(n - 2)]
        done = set()
        lo, hi = self.win[role]
        for r in range(1, n):
            d = self.lo if lo <= r < hi else D
            for i in range(4):
                t = 2 * r + (i >> 1)
                assert t < 11 or t - 12 < 0 or ("k", t - 12) in done, (r, t)
                self.a_load(n, t, i & 1, d - 1 + (2 if r == self.qat + 1 and i < d else 0))
            if r == self.qat:
                a(qld.replace(" sc1", ""))
            left = self.budget if r < n - 1 else 99
            while work and work[0][1] <= 2 * r - 1 and work[0][2] <= left:
                name, _, cost, fn = work.pop(0)
                fn(); done.add(name); left -= cost
        assert not work
        common()
        for i in range(x):
            self.e2_dma(i)
        if x < 4:
            sk = self.lab("pe")
            a(f"s_cmp_lg_u32 {sW}, 3\ns_cselect_b64 vcc, -1, 0\ns_cbranch_scc1 {sk}")
            for i in range(x, 4):
                self.e2_dma(i)
            a(f"{sk}:")
        for i in range(4):
            a(f"s_waitcnt vmcnt({7 - i})")
            if x < 4:
                sk = self.lab("lw")
                a(f"s_cbranch_vccz {sk}\ns_waitcnt vmcnt({3 - i + x})\n{sk}:")
            k = n - 2 + (i >> 1)
            self.a_pv(self.reg(n + k), i & 1, P + 2 * k)

    def a_common(self):
        a = self.a
        x = self.e2pos[0]
        self.a_stream(10, 1)
        a("s_branch L_afin\nL_acommon:")
        self.a_stream(11, 0)
        a("L_afin:\ns_nop 2")
        self.stamp(6)
        for i in range(4):
            a(f"v_permlane32_swap_b32 v{52 + i}, v{56 + i}")
        a("v_pk_add_f32 v[52:53], v[52:53], v[56:57]\nv_pk_add_f32 v[54:55], v[54:55], v[58:59]")
        a(f"""v_permlane16_swap_b32 v52, v54
            v_permlane16_swap_b32 v53, v55
            v_pk_add_f32 v[52:53], v[52:53], v[54:55]
            ds_write_b64 v38, v[52:53]""")
        for i in range(x, sum(self.e2pos)):
            self.e2_dma(i)
        a(f"""s_waitcnt lgkmcnt(0)
            s_barrier
            s_cmp_lg_u32 {sW}, 3
            s_cbranch_scc1 L_amid
            {f's_setprio {self.prio}' if self.prio else ''}
            ds_read_b128 v[208:211], v44
            ds_read_b128 v[212:215], v44 offset:512
            ds_read_b128 v[216:219], v44 offset:1024
            ds_read_b128 v[220:223], v44 offset:1536
            ds_read_b128 v[224:227], v43 offset:32
            ds_read_b128 v[228:231], v43 offset:48
            s_mov_b32 s38, 0xaaaaaaaa
            s_mov_b32 s39, s38
            v_mov_b32 v11, {sTAG}
            s_waitcnt lgkmcnt(4)
            v_pk_add_f32 v[208:209], v[208:209], v[212:213]
            v_pk_add_f32 v[210:211], v[210:211], v[214:215]
            s_waitcnt lgkmcnt(2)
            v_pk_add_f32 v[216:217], v[216:217], v[220:221]
            v_pk_add_f32 v[218:219], v[218:219], v[222:223]
            v_pk_add_f32 v[208:209], v[208:209], v[216:217]
            v_pk_add_f32 v[210:211], v[210:211], v[218:219]
            s_waitcnt lgkmcnt(0)
            v_pk_add_f32 v[224:225], v[224:225], v[226:227]
            v_permlane32_swap_b32 v208, v210
            v_permlane32_swap_b32 v209, v211
            v_pk_add_f32 v[228:229], v[228:229], v[230:231]
            v_pk_add_f32 v[208:209], v[208:209], v[210:211]
            v_pk_add_f32 v[224:225], v[224:225], v[228:229]
            v_cvt_pk_bf16_f32 v8, v208, v209
            v_cvt_pk_bf16_f32 v9, v208, v209
            v_add_f32 v61, v224, v225
            v_cndmask_b32 v10, v60, v61, s[38:39]
            v_permlane32_swap_b32 v8, v9""")
        self.exec64(0xffffffff, 0)
        a(f"""
            buffer_store_dwordx4 v[8:11], v16, {SRDW}, s61 offen sc1
            ds_write_b64 v238, v[8:9]
            ds_write_b32 v239, v10
            s_mov_b64 exec, -1""")
        if self.nak:
            assert self.e2pos[1] == 0
            self.stamp(12)
            if self.pbar and x < 4:
                a("s_barrier")
            a("ds_write_b64 v246, v[240:241]\nds_write_b32 v247, v242\ns_waitcnt vmcnt(1)\ns_branch L_e2bar")
        a("L_amid:")
        self.stamp(12)
        y = sum(self.e2pos)
        for i in range(y, y + self.e2mid):
            self.e2_dma(i)
        if self.pbar and (x < 4 or not self.nak):
            a("s_barrier")
        for i in range(y + self.e2mid, 4):
            self.e2_dma(i)
        a("s_nop 0")

    def e2_setup(self, role_b):
        self.a(f"""s_load_dwordx2 s[28:29], s[0:1], 88
            v_lshrrev_b32 v9, 2, v1
            v_lshlrev_b32 v7, 10, v2
            v_lshl_add_u32 v7, v9, 7, v7
            v_and_b32 v10, 3, v0
            v_lshl_add_u32 v7, v10, 3, v7
            v_lshrrev_b32 v9, 1, v9
            v_and_b32 v8, 1, v2
            v_lshl_or_b32 v9, v8, 1, v9
            s_and_b32 s33, {sW}, 3
            v_xor_b32 v9, s33, v9
            v_lshl_add_u32 v7, v9, 5, v7
            s_cmp_lt_u32 {sW}, 4
            s_mov_b32 s36, {E2B[1]}
            s_cmov_b32 s36, {E2B[0]}
            s_mov_b32 s40, {H4B}
            s_cmov_b32 s40, {H4A}
            v_add_u32 v244, s36, v7
            s_lshl_b32 s36, {sH}, 12
            s_add_u32 s40, s40, s36
            s_lshl_b32 s36, s33, 9
            s_add_u32 s40, s40, s36
            v_lshrrev_b32 v9, 5, v0
            v_mul_u32_u24 v245, 1536, v9
            v_add_u32 v245, v245, v16
            s_and_b32 s36, {sW}, 4
            s_lshl_b32 s36, s36, 1
            s_add_u32 s33, s36, s33
            v_lshl_add_u32 v9, v9, 2, s33
            v_and_b32 v8, 31, v0
            v_mul_u32_u24 v246, 272, v9
            v_lshl_add_u32 v246, v8, 3, v246
            v_add_u32 v246, {HI}, v246
            v_mul_u32_u24 v247, 136, v9
            v_lshl_add_u32 v247, v8, 2, v247
            v_add_u32 v247, {HS}, v247
            v_and_b32 v9, 7, v0
            v_add_u32 v9, s36, v9
            v_mul_u32_u24 v248, 272, v9
            v_lshl_add_u32 v248, v2, 4, v248
            v_add_u32 v248, {HI}, v248
            v_mul_u32_u24 v249, 136, v9
            v_add_u32 v249, {HS}, v249
            v_mov_b32 v240, 0
            v_mov_b32 v241, 0
            v_and_b32 v8, 1, v0
            v_add_u32 v8, -1, v8
            v_and_b32 v242, {NEGBIG:#x}, v8
            s_mov_b32 s30, 4096
            s_mov_b32 s31, 0x20000
            v_lshlrev_b32 v250, 12, v2
            v_lshl_add_u32 v250, v1, 2, v250
            s_cmp_lt_u32 {sW}, 4
            s_cselect_b32 s41, {self.jx[0]}, {self.jx[1]}
            s_xor_b32 s41, s41, {sJ}
            s_lshl_b32 s41, s41, 3
            s_add_u32 s41, s41, {sW}
            s_lshr_b32 s41, s41, 1
            s_lshl_b32 s41, s41, 13
            s_and_b32 s36, {sW}, 1
            s_lshl_b32 s36, s36, 6
            s_add_u32 s41, s41, s36
            v_mov_b32 v251, 0xff
            s_lshl_b32 s36, {sH}, 7
            s_add_u32 s41, s41, s36
            s_add_u32 s41, s41, {H5}
            v_mov_b32 v253, {sTAG}
            s_xor_b32 s38, {sJ}, {self.jr}
            s_lshl_b32 s42, s38, 2
            s_lshr_b32 s36, {sH}, 3
            s_add_u32 s42, s42, s36
            s_lshl_b32 s42, s42, 1
            s_bfe_u32 s36, {sH}, 0x10001
            s_add_u32 s42, s42, s36
            s_lshl_b32 s42, s42, 12
            s_and_b32 s33, {sH}, 1
            s_lshl_b32 s43, s33, 6
            s_add_u32 s42, s42, s43
            s_add_u32 s42, s42, {H5}
            s_lshl_b32 s43, s33, 4
            s_and_b32 s36, s36, 1
            s_lshl_b32 s36, s36, 11
            s_add_u32 s43, s43, s36
            s_lshr_b32 s36, {sH}, 4
            s_lshl_b32 s36, s36, 10
            s_add_u32 s43, s43, s36
            s_lshl_b32 s36, s38, 7
            s_add_u32 s43, s43, s36
            s_bfe_u32 s36, {sH}, 0x20002
            s_lshl_b32 s36, s36, 5
            s_add_u32 s43, s43, s36
            v_lshlrev_b32 v254, 3, v0""")
        if self.warm:
            sk = self.lab("wm")
            self.a(f"""s_cmp_lg_u32 {sW}, 7
                s_cbranch_scc1 {sk}
                s_and_b32 s33, s43, {0x70 if self.warm == 1 else 0x30}
                s_cbranch_scc1 {sk}
                s_waitcnt lgkmcnt(0)
                s_load_dword s33, s[28:29], s43 glc
                s_waitcnt lgkmcnt(0)
                {sk}:""")
        if role_b:
            self.a(f"""v_and_b32 v8, 1, v0
                s_add_u32 s33, {sB}, 8
                v_lshl_add_u32 v8, v8, 2, s33
                v_lshl_add_u32 v9, {sW}, 2, v2
                s_add_u32 s33, {sB}, 4
                s_cmp_eq_u32 {sW}, s33
                s_cselect_b64 s[60:61], 0, -1""")
        else:
            self.a(f"""v_mov_b32 v8, {sJ}
                v_mov_b32 v9, v0
                s_sub_u32 s59, {sB}, 1
                s_not_b32 s58, s59
                s_cmp_eq_u32 {sW}, {sT}
                s_cselect_b64 s[58:59], s[58:59], -1""")
        self.a(f"""v_mul_u32_u24 v238, 272, v8
            v_lshl_add_u32 v238, v9, 3, v238
            v_add_u32 v238, {HI}, v238
            v_mul_u32_u24 v239, 136, v8
            v_lshl_add_u32 v239, v9, 2, v239
            v_add_u32 v239, {HS}, v239""")

    def e2(self):
        a = self.a
        a("L_stageE2:")
        if self.diag and self.diag not in ('cyc', 'iter', 'fine', 'nowait', 'noW'):
            a("s_branch L_done")
        a(f"""s_cmp_eq_u64 s[58:59], 0
            s_cbranch_scc1 L_nowr
            s_mov_b64 exec, s[58:59]
            s_bitcmp1_b32 0x37, {sW}
            s_cbranch_scc0 L_nopoll
            {f's_waitcnt vmcnt({self.pw})' if self.pw is not None else ''}
            s_mov_b32 s37, {SPIN}
            L_h4:
            buffer_load_dwordx4 v[240:243], v245, {SRDW}, s40 offen sc1
            s_sub_u32 s37, s37, 1
            s_waitcnt vmcnt(0)
            s_cbranch_scc1 L_nopoll
            v_cmp_ne_u32 vcc, {sTAG}, v243
            s_cbranch_vccnz L_h4
            L_nopoll:
            ds_write_b64 v246, v[240:241]
            ds_write_b32 v247, v242
            s_mov_b64 exec, -1
            L_nowr:
            s_waitcnt vmcnt(0)
            L_e2bar:
            s_waitcnt lgkmcnt(0)
            s_barrier""")
        self.stamp(14)
        a("ds_read_b64 v[22:23], v249")
        for s in range(4):
            a(f"ds_read_b128 {vr(176 + 4 * s, 4)}, v248 offset:{64 * s}")
            for p in range(2):
                a(f"ds_read_b64_tr_b16 {vr(160 + 4 * s + 2 * p, 2)}, v244 offset:{4096 * s + 512 * p}")
        chain = [f"v_max_f32_dpp v8, v22, v22 quad_perm:[1,0,3,2] {FULL}\nv_max_f32_dpp v8, v8, v8 quad_perm:[2,3,0,1] {FULL}\nv_sub_f32 v8, v22, v8\nv_exp_f32 v8, v8",
                 "v_mul_f32 v9, v8, v23",
                 f"v_add_f32_dpp v9, v9, v9 quad_perm:[1,0,3,2] {FULL}",
                 f"v_add_f32_dpp v9, v9, v9 quad_perm:[2,3,0,1] {FULL}\nv_rcp_f32 v9, v9"]
        a("s_waitcnt lgkmcnt(12)")
        for s in range(4):
            c = "0" if s == 0 else "v[208:211]"
            a(chain[s])
            a(f"s_waitcnt lgkmcnt({9 - 3 * s})")
            a(f"v_mfma_f32_16x16x32_bf16 v[208:211], {vr(176 + 4 * s, 4)}, {vr(160 + 4 * s, 4)}, {c}")
        a("v_mul_f32 v8, v8, v9")
        for r in range(3):
            a(f"v_mov_b32_dpp v{10 + r}, v8 row_newbcast:{r} row_mask:0x1 bank_mask:0xf")
            a(f"v_mov_b32_dpp v{10 + r}, v8 row_newbcast:{4 + r} row_mask:0x2 bank_mask:0xf")
        self.exec64(0xffffffff, 0)
        a(f"""v_mul_f32 v252, v10, v208
            v_fmac_f32 v252, v11, v209
            v_fmac_f32 v252, v12, v210
            v_bfi_b32 v252, v251, v253, v252
            buffer_store_dword v252, v250, {SRDW}, s41 offen sc1
            s_mov_b64 exec, -1""")
        self.stamp(15)
        Wd = self.wide
        a(f"""s_cmp_lg_u32 {sW}, {self.rw}
            s_cbranch_scc1 L_done
            s_and_b32 s33, {sH}, {1 | (Wd - 1) << 2}
            s_cbranch_scc1 L_done
            s_mov_b32 s37, {SPIN}""")
        a("L_fp:")
        for k in range(4):
            a(f"buffer_load_dwordx4 {vr(64 + 4 * k, 4)}, v16, {SRDW}, s42 offen offset:{1024 * k} sc1")
        a("s_sub_u32 s37, s37, 1")
        for k in range(4):
            r = 64 + 4 * k
            a(f"""s_waitcnt vmcnt({3 - k})
                v_bitop3_b32 v10, v{r}, v{r + 1}, {sTAG} bitop3:0x7e
                v_bitop3_b32 v11, v{r + 2}, v{r + 3}, {sTAG} bitop3:0x7e
                {'v_or3_b32 v9, v9, v10, v11' if k else 'v_or_b32 v9, v10, v11'}""")
        a("v_and_b32 v9, 0xff, v9\nv_cmp_ne_u32 vcc, 0, v9")
        if self.fmask:
            a("s_cbranch_scc1 L_fok\ns_cbranch_vccz L_fok\ns_mov_b64 exec, vcc\ns_branch L_fp\nL_fok:\ns_mov_b64 exec, -1")
        else:
            a("s_cbranch_scc1 L_fok\ns_cbranch_vccnz L_fp\nL_fok:")
        self.stamp(16)
        for k in range(16):
            a(f"v_and_b32 v{64 + k}, 0xffffff00, v{64 + k}")
        a(f"""v_pk_add_f32 v[64:65], v[64:65], v[68:69]
            v_pk_add_f32 v[72:73], v[72:73], v[76:77]
            v_pk_add_f32 v[66:67], v[66:67], v[70:71]
            v_pk_add_f32 v[74:75], v[74:75], v[78:79]
            v_pk_add_f32 v[64:65], v[64:65], v[72:73]
            v_pk_add_f32 v[66:67], v[66:67], v[74:75]
            v_permlane32_swap_b32 v64, v66
            v_permlane32_swap_b32 v65, v67
            v_pk_add_f32 v[64:65], v[64:65], v[66:67]
            v_permlane16_swap_b32 v64, v65
            v_add_f32 v64, v64, v65
            v_add_f32_dpp v8, v64, v64 row_ror:8 {FULL}
            v_add_f32_dpp v9, v64, v64 row_ror:8 {FULL}
            v_permlane16_swap_b32 v8, v9
            v_cvt_pk_bf16_f32 v10, v8, v9
            v_cvt_pk_bf16_f32 v11, v8, v9
            v_permlane32_swap_b32 v10, v11
            s_mov_b64 exec, 0xff
            buffer_store_dwordx2 v[10:11], v254, {SRDX}, s43 offen {self.outfl}
            L_done:""")
        if self.calib:
            a(f"""L_cal:
                s_memrealtime s[98:99]
                s_waitcnt lgkmcnt(0)
                s_sub_u32 s98, s98, s96
                s_cmp_lt_u32 s98, {self.calib * 100}
                s_cbranch_scc1 L_cal""")
        if self.amp:
            k, roles, neg = self.amp
            a("s_mov_b64 exec, -1")
            self.stamp(17)
            a(f"""s_nop 1
                v_readlane_b32 s33, v63, {k}
                s_lshr_b32 s36, {roles}, {sT}
                s_and_b32 s36, s36, 1
                s_cselect_b32 s33, s33, 0
                s_cmp_eq_u32 s33, 0
                s_cselect_b32 s38, 0, 1
                s_cselect_b32 s33, s96, s33
                s_sub_u32 s33, s33, s96
                {'s_sub_u32 s33, 2500, s33' if neg else ''}
                s_mul_i32 s33, s33, s38
                s_mul_i32 s33, s33, 10
                s_add_u32 s33, s33, 3000
                L_amp:
                s_memrealtime s[98:99]
                s_waitcnt lgkmcnt(0)
                s_sub_u32 s98, s98, s96
                s_cmp_lt_u32 s98, s33
                s_cbranch_scc1 L_amp""")
        elif self.dbg:
            a("s_mov_b64 exec, -1")
            self.stamp(17)
            a(f"""s_getreg_b32 s33, hwreg(HW_REG_XCC_ID)
                v_writelane_b32 v63, s33, 31
                s_getreg_b32 s33, hwreg(HW_REG_HW_ID)
                v_writelane_b32 v63, s33, 28
                s_lshl_b32 s33, s2, 3
                s_add_u32 s33, s33, {sW}
                s_lshl_b32 s33, s33, 7
                s_add_u32 s33, s33, {STAMP}
                v_lshlrev_b32 v7, 2, v0""")
            self.exec64(0xffffffff, 0)
            a(f"buffer_store_dword v63, v7, {SRDW}, s33 offen")

    def role_b(self):
        a = self.a
        D = self.bdepth
        QAR, FR, O, S2, S3, PF, S = 64, 128, 160, 192, 224, 32, 48
        a("L_roleB:")
        a("s_mov_b64 s[16:17], s[70:71]\ns_mov_b32 s18, 0x400000")
        self.second_batch(lambda: None, 0, self.sd[2])
        self.load_e2_ptr()
        for i in range(8):
            a(f"s_waitcnt vmcnt({D - 1})\ns_add_u32 m0, s44, {dest(i) + 16384}\ns_nop 0")
            a(f"buffer_load_dwordx4 v{3 + (i & 1)}, {SRD0}, s43 offen nt lds\ns_add_u32 s43, s43, s41")
        self.stamp(1)

        def stage(i):
            a(f"s_add_u32 s33, s43, {(262144 if self.bx else 8192) * i}\nbuffer_load_dwordx4 {vr(S2 + 4 * (i if i < 4 else i - 8 if i >= 12 else i + 4), 4)}, v{3 + (i & 1)}, {SRD0}, s33 offen nt")

        def late(i, wait=None):
            sk = self.lab("lt")
            a(f"s_cmp_le_u32 s62, {i}\ns_cbranch_scc1 {sk}")
            if wait is not None:
                a(f"s_waitcnt vmcnt({wait})")
            stage(i)
            a(f"{sk}:")

        a(f"""s_and_b32 s54, {sW}, 3
            s_lshr_b32 s55, {sW}, 2
            v_and_b32 v7, 3, v1
            v_lshlrev_b32 v7, 2, v7
            v_lshrrev_b32 v8, 2, v1
            v_or_b32 v7, v7, v8
            v_lshlrev_b32 v7, 4, v7
            v_lshl_add_u32 v7, v2, 8, v7
            v_lshl_add_u32 v7, v1, 10, v7
            s_lshl_b32 s33, s54, 15
            v_add_u32 v28, s33, v7
            v_lshlrev_b32 v7, 4, v1
            v_lshl_add_u32 v7, v2, 8, v7
            v_lshl_add_u32 v7, v1, 10, v7
            s_lshl_b32 s33, s55, 14
            s_add_u32 s33, s33, {AUX}
            v_add_u32 v29, s33, v7
            v_lshrrev_b32 v9, 1, v2
            v_and_b32 v10, 1, v2
            v_bfe_u32 v11, v0, 1, 1
            v_lshl_or_b32 v11, v10, 1, v11
            s_lshl_b32 s33, {sW}, 3
            v_or_b32 v11, s33, v11
            v_lshlrev_b32 v12, 2, v8
            v_lshl_or_b32 v12, v9, 1, v12
            v_xor_b32 v11, v11, v12
            v_lshlrev_b32 v11, 4, v11
            v_lshl_add_u32 v12, v9, 3, v8
            v_lshl_add_u32 v11, v12, 10, v11
            v_and_b32 v12, 1, v0
            v_lshl_add_u32 v20, v12, 3, v11
            v_xor_b32 v21, 16, v20
            v_add_u32 v21, 4096, v21
            v_xor_b32 v22, 64, v20
            v_xor_b32 v23, 64, v21""")
        for k in range(4):
            a(f"v_add_u32 v{24 + k}, 65536, v{20 + k}")
        a(f"""s_lshl_b32 s33, s55, 8
            s_add_u32 s33, s33, {MX}
            v_lshl_add_u32 v30, v1, 4, s33
            s_lshl_b32 s33, s54, 2
            v_add_u32 v31, s33, v30
            v_and_b32 v7, 31, v0
            v_lshlrev_b32 v56, 4, v7
            v_add_u32 v56, {MX}, v56
            v_mul_u32_u24 v60, 272, v7
            v_lshl_add_u32 v60, v9, 4, v60
            v_add_u32 v60, {PB}, v60
            v_mul_u32_u24 v61, 272, v1
            v_lshl_add_u32 v61, v2, 3, v61
            s_mul_i32 s33, s55, {16 * 272}
            s_lshl_b32 s36, s54, 6
            s_add_u32 s33, s33, s36
            s_add_u32 s33, s33, {PB}
            v_add_u32 v61, s33, v61
            v_add_u32 v19, s44, v16
            v_add_u32 v62, 65536, v19
            v_mov_b32 v57, {NEGBIG:#x}
            v_mov_b32 v58, {NEGBIG:#x}
            v_mov_b32 v59, 0
            v_lshlrev_b32 v7, 1, v2
            v_xor_b32 v7, v7, v1
            v_lshlrev_b32 v7, 4, v7
            v_lshl_add_u32 v5, v2, 13, v7
            v_xor_b32 v6, 128, v5
            s_lshl_b32 s45, {sB}, 21
            s_lshl_b32 s36, {sW}, 18
            s_add_u32 s45, s45, s36
            s_lshl_b32 s36, {sH}, 8
            s_add_u32 s45, s45, s36""")
        for k in range(32):
            a(f"v_mov_b32 v{O + k}, 0")
        a("; ---- keep streaming until the absorbed queries are flagged, then copy them into LDS")
        a(f"""s_lshl_b32 s33, {sH}, 1
            s_add_u32 s33, s33, {sB}
            s_and_b32 s33, s33, {self.fcop - 1}
            s_lshl_b32 s33, s33, 3
            s_add_u32 s33, s33, {sW}
            s_lshl_b32 s33, s33, 7
            s_add_u32 s33, s33, {F2}
            s_add_u32 s34, s12, s33
            s_addc_u32 s35, s13, 0
            s_lshl_b32 s49, {sB}, 15
            s_lshl_b32 s36, {sW}, 12
            s_add_u32 s49, s49, s36
            s_add_u32 s49, s49, {QABS}
            s_add_u32 s50, s36, {AUX}
            s_mov_b32 s60, {sTAG}
            s_mov_b32 s61, {sTAG}""")

        def flags_differ():
            for k in range(4):
                a(f"s_xor_b64 s[{64 + 2 * k}:{65 + 2 * k}], s[{64 + 2 * k}:{65 + 2 * k}], s[60:61]")
            a("s_or_b64 s[64:65], s[64:65], s[66:67]\ns_or_b64 s[68:69], s[68:69], s[70:71]\ns_or_b64 s[64:65], s[64:65], s[68:69]")
        for i in range(15, 15 - self.bmax, -2):
            chk = 17 - i >= self.bmin
            if chk:
                a("s_load_dwordx8 s[64:71], s[34:35], 0 glc")
            for k in (i, i - 1):
                a(f"s_waitcnt vmcnt({D - 1})")
                stage(k)
            if chk:
                a(f"s_mov_b32 s62, {i - 1}\ns_waitcnt lgkmcnt(0)")
                flags_differ()
                a("s_cbranch_scc0 L_h2ok")
        self.stamp(2)
        a(f"""s_mov_b32 s62, {16 - self.bmax}
            s_mov_b32 s37, {SPIN}
            L_h2:
            s_load_dwordx8 s[64:71], s[34:35], 0 glc
            s_sub_u32 s37, s37, 1
            s_waitcnt lgkmcnt(0)
            s_cbranch_scc1 L_h2ok""")
        flags_differ()
        a("s_cbranch_scc1 L_h2")
        a("L_h2ok:")
        self.stamp(3)
        def qcopy():
            a(f"""s_lshl_b32 s33, s54, 6
                v_xor_b32 v12, s33, v16
                v_xor_b32 v13, 16, v12
                v_xor_b32 v14, 32, v12
                v_xor_b32 v15, 48, v12
                s_mov_b32 m0, s50""")
            for i in range(4):
                a(f"buffer_load_dwordx4 v{12 + i}, {SRDW}, s49 offen offset:{1024 * i} sc1 lds")

        def qread():
            for s in range(16):
                a(f"v_xor_b32 v7, {s << 4}, v29\nds_read_b128 {vr(QAR + 4 * s, 4)}, v7")
        qcopy()
        a("s_barrier")
        for i in range(4):
            a(f"s_waitcnt vmcnt({D + 1})")
            stage(i)
        a("s_waitcnt vmcnt(4)\ns_barrier")
        self.stamp(4)
        a("s_mov_b32 s37, 4096\nL_qa:")
        qread()
        a("s_waitcnt lgkmcnt(0)\ns_barrier")

        def put(reg, sig):
            for i in range(8):
                d = dest(i) + 16384 * sig
                a(f"ds_write_b128 v{62 if d >> 16 else 19}, {vr(reg + 4 * i, 4)} offset:{d & 0xffff}")

        def step(t, sigs, hook):
            ns = len(sigs)
            a(f"; ---- {64 * ns} keys: scores, online softmax, weighted sum of latents")
            blocks = [2 * kb + sg for kb in range(4) for sg in sigs]

            def rd(r):
                if r % ns == 0:
                    a(f"v_xor_b32 v7, {(r // ns) << 4}, v28")
                a(f"ds_read_b128 {vr(FR + 4 * (r & 7), 4)}, v7 offset:{16384 * sigs[r % ns]}")

            def tr(n, blk):
                be = blocks[n]
                for p in range(2):
                    ar = 20 + 4 * (be >> 2) + 2 * blk + p
                    a(f"ds_read_b64_tr_b16 {vr(FR + 8 * (n & 3) + 4 * blk + 2 * p, 2)}, v{ar} offset:{(be & 3) * 16384}")

            def pread(n):
                a(f"ds_read_b128 {vr(PF + 4 * (n & 3), 4)}, v60 offset:{32 * blocks[n]}")
            nr = 16 * ns
            for r in range(8):
                rd(r)
            for r in range(nr):
                a(f"s_waitcnt lgkmcnt({min(7, nr - 1 - r)})")
                acc = vr(S + 4 * (r % ns), 4)
                a(f"v_mfma_f32_16x16x32_bf16 {acc}, {vr(FR + 4 * (r & 7), 4)}, {vr(QAR + 4 * (r // ns), 4)}, {'0' if r < ns else acc}")
                hook("qk", r)
                if r + 8 < nr:
                    rd(r + 8)
            a(f"v_max3_f32 v7, v{S}, v{S + 1}, v{S + 2}")
            if ns == 2:
                a(f"v_max3_f32 v8, v{S + 4}, v{S + 5}, v{S + 6}\nv_max3_f32 v7, v7, v{S + 3}, v{S + 7}\nv_max_f32 v7, v7, v8")
            else:
                a(f"v_max_f32 v7, v7, v{S + 3}")
            for sw in ("v_permlane16_swap_b32", "v_permlane32_swap_b32"):
                a(f"v_mov_b32 v8, v7\n{sw} v8, v7\nv_max_f32 v7, v7, v8")
            a("""v_mul_f32 v7, s52, v7
                ds_write_b32 v31, v7""")
            for n in range(3):
                tr(n, 0); tr(n, 1)
            a("""s_waitcnt lgkmcnt(12)
                s_barrier
                ds_read_b128 v[8:11], v30
                ds_read_b128 v[12:15], v56
                s_waitcnt lgkmcnt(0)""")
            tr(3, 0); tr(3, 1)
            if t == 0 and self.noack and 'nowait' not in self.diag:
                a("v_cmp_u_f32 vcc, v12, v12\ns_cbranch_vccnz L_qretry\nL_qaok:")
                if self.dbg is True:
                    a("s_sub_u32 s33, 4096, s37\nv_writelane_b32 v63, s33, 29")
            a("v_max3_f32 v8, v8, v9, v10\nv_max3_f32 v8, v8, v11, v57")
            for r in range(4 * ns):
                a(f"v_fma_f32 v{S + r}, v{S + r}, s52, -v8")
            for r in range(4 * ns):
                a(f"v_exp_f32 v{S + r}, v{S + r}")
            a("v_max3_f32 v12, v12, v13, v14")
            for r in range(2 * ns):
                a(f"v_cvt_pk_bf16_f32 v{PF + r}, v{S + 2 * r}, v{S + 2 * r + 1}")
            for k, sg in enumerate(sigs):
                a(f"ds_write_b64 v61, {vr(PF + 2 * k, 2)} offset:{32 * sg}")
            a(f"""v_sub_f32 v9, v57, v8
                v_max3_f32 v12, v12, v15, v58
                v_exp_f32 v9, v9
                v_sub_f32 v14, v58, v12
                v_mov_b32 v57, v8
                v_exp_f32 v14, v14
                v_mov_b32 v58, v12
                v_pk_add_f32 {vr(S, 2)}, {vr(S, 2)}, {vr(S + 2, 2)}""")
            if ns == 2:
                a(f"v_pk_add_f32 {vr(S + 4, 2)}, {vr(S + 4, 2)}, {vr(S + 6, 2)}\nv_pk_add_f32 {vr(S, 2)}, {vr(S, 2)}, {vr(S + 4, 2)}")
            a(f"v_fma_f32 v59, v59, v9, v{S}\nv_add_f32 v59, v59, v{S + 1}")
            if t == 2:
                for sw in ("v_permlane16_swap_b32", "v_permlane32_swap_b32"):
                    a(f"v_mov_b32 v8, v59\n{sw} v8, v59\nv_add_f32 v59, v59, v8")
                a(f"ds_write_b32 v31, v59 offset:{LS - MX}")

            def rescale(lo, hi):
                if t:
                    for k in range(lo, hi):
                        a(f"v_pk_mul_f32 {vr(O + 2 * k, 2)}, {vr(O + 2 * k, 2)}, v[14:15] op_sel_hi:[1,0]")
            rescale(0, 6)
            a("s_waitcnt lgkmcnt(0)\ns_barrier")
            for n in range(4):
                pread(n)
            rescale(6, 16)
            for n in range(4 * ns):
                if ns == 1:
                    a(f"s_waitcnt lgkmcnt({3 - n})")
                elif n in (0, 5, 6, 7):
                    a(f"s_waitcnt lgkmcnt({ {0: 0, 5: 10, 6: 5, 7: 0}[n] })")
                if n == 7:
                    a("s_barrier")
                for blk in range(2):
                    a(f"v_mfma_f32_32x32x16_bf16 {vr(O + 16 * blk, 16)}, {vr(FR + 8 * (n & 3) + 4 * blk, 4)}, {vr(PF + 4 * (n & 3), 4)}, {vr(O + 16 * blk, 16)}")
                hook("pv", n)
                if ns == 2 and n < 4:
                    if n == 3:
                        a("s_waitcnt lgkmcnt(10)")
                    pread(n + 4)
                    tr(n + 4, 0); tr(n + 4, 1)

        def uv(i):
            a(f"buffer_load_dwordx4 {vr(S2 + 4 * i, 4)}, v{5 + (i & 1)}, {SRDK}, s45 offen nt\ns_add_u32 s45, s45, 32768")

        def hook0(ph, r):
            if ph == "qk" and r in self.hookpos:
                late(4 + self.hookpos.index(r))
            if ph == "pv" and r in (0, 2, 4, 6):
                late(8 + r // 2)
        step(0, (0, 1), hook0)
        self.stamp(5)
        for n in (8, 6, 4, 2):
            a(f"s_waitcnt vmcnt({n})\ns_cmp_eq_u32 s62, {n + 4}\ns_cbranch_scc1 L_mid")
        a("s_waitcnt vmcnt(0)\nL_mid:")
        put(S2, 0)
        a(f"""s_lshl_b32 s50, s55, 15
            s_lshl_b32 s36, s54, 12
            s_add_u32 s50, s50, s36
            s_add_u32 s50, s50, {PART[0]}
            v_and_b32 v7, 31, v0
            v_and_b32 v8, 7, v0
            v_lshlrev_b32 v9, 4, v8
            v_lshl_add_u32 v9, v7, 7, v9
            v_lshrrev_b32 v10, 5, v0
            v_lshl_add_u32 v9, v10, 3, v9
            v_add_u32 v3, s50, v9
            v_lshrrev_b32 v10, 3, v0
            v_xor_b32 v11, v8, v10
            v_lshlrev_b32 v11, 4, v11
            v_lshl_add_u32 v11, v10, 7, v11
            v_add_u32 v4, s50, v11
            v_lshlrev_b32 v12, 4, v8
            v_lshl_add_u32 v29, v10, 16, v12
            v_lshlrev_b32 v17, 10, v0
            v_mov_b32 v18, 0x10001
            s_mov_b32 s51, 0x07060302
            v_mov_b32 v54, {sTAG}
            v_mov_b32 v55, {sTAG}
            s_lshl_b32 s49, s55, 15
            s_lshl_b32 s36, {sB}, 14
            s_add_u32 s49, s49, s36
            s_lshl_b32 s36, {sH}, 9
            s_add_u32 s49, s49, s36
            s_lshl_b32 s36, s54, 7
            s_add_u32 s49, s49, s36
            s_add_u32 s49, s49, {OP}
            s_lshl_b32 s53, {sB}, 9
            s_lshl_b32 s36, {sH}, 4
            s_add_u32 s53, s53, s36
            s_add_u32 s53, s53, {ST}""")
        for k in range(4):
            a(f"s_bfe_u32 s33, {sTAG}, {0x20000 + 2 * k:#x}\ns_mul_i32 s33, s33, 0x8001\ns_and_b32 s{56 + k}, s33, 0x10001")
        a("s_waitcnt lgkmcnt(0)\ns_barrier")
        self.stamp(6)
        u0, u1, u2 = self.uva
        for i in range(u0):
            uv(i)
        step(1, (0,), lambda ph, r: uv(u0 + r - 4 + u1) if ph == "pv" and r >= 4 - u1 else None)
        a(f"s_waitcnt vmcnt({u0 + u1})")
        put(S3, 1)
        for i in range(u2):
            uv(u0 + u1 + i)
        a("s_waitcnt lgkmcnt(0)\ns_barrier")
        self.stamp(7)
        step(2, (1,), lambda ph, r: None)
        self.stamp(8)
        for k in range(1, 8):
            a(f"v_xor_b32 v{S3 + k}, {16 * k}, v3")
        if 'Bstop8' in self.diag:
            a("s_branch L_done")
        def stats():
            a(f"""s_cmp_lg_u32 {sW}, 0
                s_cbranch_scc1 L_nost
                ds_read_b128 v[8:11], v56 offset:{LS - MX}
                v_mov_b32 v52, v58
                s_waitcnt lgkmcnt(0)
                v_add_f32 v8, v8, v9
                v_add_f32 v10, v10, v11
                v_add_f32 v53, v8, v10""")
            self.exec64(0xffffffff, 0)
            a(f"buffer_store_dwordx4 v[52:55], v17, {SRDW}, s53 offen sc1\ns_mov_b64 exec, -1\nL_nost:")
        if not self.stlate:
            stats()
        a("s_nop 5")
        if 'slowp' in self.test:
            a(f"s_and_b32 s33, {sW}, {sH}\ns_cbranch_scc0 L_tp\ns_sleep 127\ns_sleep 127\nL_tp:")
        for k in range(8):
            a(f"v_perm_b32 v{FR + 2 * k}, v{O + 4 * k + 1}, v{O + 4 * k}, s51")
            a(f"v_perm_b32 v{FR + 2 * k + 1}, v{O + 4 * k + 3}, v{O + 4 * k + 2}, s51")
            a(f"ds_write_b64 v{S3 + k if k else 3}, {vr(FR + 2 * k, 2)}")
        for i in range(4):
            a(f"ds_read_b128 {vr(FR + 16 + 4 * i, 4)}, v4 offset:{1024 * i}")
        for i in range(4):
            a(f"s_waitcnt lgkmcnt({3 - i})")
            for k in range(4):
                a(f"v_bfi_b32 v{FR + 16 + 4 * i + k}, v18, s{56 + k}, v{FR + 16 + 4 * i + k}")
            a(f"{'' if i < self.nst else ';'}buffer_store_dwordx4 {vr(FR + 16 + 4 * i, 4)}, v29, {SRDW}, s49 offen {self.pfl}\ns_add_u32 s49, s49, {8 * 65536}")
        if self.stlate:
            stats()
        self.stamp(9)
        for i in range(sum(self.uva), 8):
            uv(i)
        self.e2_dma_setup()
        if self.e2s and self.sbar:
            a("s_barrier")
        for i in range(self.e2s):
            self.e2_dma(i)
        a(f"""s_lshl_b32 s33, {sH}, 10
            s_lshl_b32 s36, {sW}, 7
            s_add_u32 s33, s33, s36
            s_add_u32 s33, s33, {ST}
            s_add_u32 s34, s12, s33
            s_addc_u32 s35, s13, 0
            v_lshrrev_b32 v7, 5, v0
            s_and_b32 s33, {sW}, 1
            s_lshl_b32 s33, s33, 2
            v_or_b32 v7, s33, v7
            v_lshlrev_b32 v7, 5, v7
            v_xor_b32 v3, v7, v16
            v_xor_b32 v4, 64, v3
            s_lshl_b32 s49, {sH}, 16
            s_lshl_b32 s36, {sB}, 15
            s_add_u32 s49, s49, s36
            s_lshl_b32 s36, {sW}, 12
            s_add_u32 s49, s49, s36
            s_add_u32 s49, s49, {OP}
            v_add_u32 v5, s50, v16
            v_lshrrev_b32 v8, 2, v1
            v_lshrrev_b32 v9, 1, v2
            v_and_b32 v10, 1, v2
            v_lshlrev_b32 v7, 15, v9
            v_lshl_add_u32 v7, v10, 13, v7
            v_lshl_add_u32 v7, v8, 8, v7
            v_and_b32 v11, 3, v0
            v_lshl_add_u32 v7, v11, 3, v7
            v_lshl_or_b32 v10, v10, 2, v8
            v_xor_b32 v9, {sW}, v10
            v_lshl_add_u32 v20, v9, 5, v7
            v_add_u32 v21, 65536, v20
            v_lshlrev_b32 v7, 12, v2
            v_lshl_add_u32 v7, v8, 9, v7
            v_lshl_add_u32 v7, v11, 3, v7
            s_lshl_b32 s33, {sW}, 1
            v_xor_b32 v10, s33, v10
            v_lshl_add_u32 v7, v10, 5, v7
            v_add_u32 v24, {PART[0]}, v7
            v_xor_b32 v25, 32, v24
            s_lshl_b32 s33, {sW}, 7
            s_add_u32 s36, s33, {WB}
            v_lshl_add_u32 v22, v0, 1, s36
            v_and_b32 v8, 1, v0
            v_lshlrev_b32 v7, 6, v8
            v_lshl_add_u32 v7, v2, 4, v7
            v_add_u32 v23, s36, v7
            v_add_u32 v27, {CC}, v7
            v_add_u32 v26, s33, v27
            v_lshlrev_b32 v7, 11, v8
            v_lshl_add_u32 v28, v2, 4, v7
            s_lshl_b32 s53, {sH}, 12
            s_lshl_b32 s36, {sB}, 9
            s_add_u32 s53, s53, s36
            s_lshl_b32 s36, {sW}, 6
            s_add_u32 s53, s53, s36
            s_add_u32 s53, s53, {H4B}
            s_add_u32 s36, s36, {SM}
            v_lshl_add_u32 v29, v0, 3, s36
            v_lshlrev_b32 v30, 3, v0
            v_add_u32 v30, {SM}, v30
            v_and_b32 v7, 1, v2
            v_cvt_f32_u32 v54, v7
            v_mul_f32 v54, 0.5, v54
""")
        if 'Bstop9' in self.diag:
            a("s_branch L_done")
        self.e2_setup(True)
        a(f"""s_mov_b32 s37, {SPIN}
            L_h3:
            {f's_sleep {self.ps[1]}' if self.ps[1] else ''}
            s_load_dwordx16 s[64:79], s[34:35], 0 glc
            s_load_dwordx16 s[80:95], s[34:35], 64 glc
            s_sub_u32 s37, s37, 1
            s_waitcnt lgkmcnt(0)
            s_cbranch_scc1 L_h3ok""")
        for k in range(8):
            a(f"s_cmp_lg_u32 s{66 + 4 * k}, {sTAG}\ns_cbranch_scc1 L_h3")
        a("L_h3ok:")
        self.stamp(10)

        def fetch():
            for i in range(4):
                a(f"buffer_load_dwordx4 {vr(O + 4 * i, 4)}, v{3 + (i & 1)}, {SRDW}, s49 offen offset:{1024 * i} {self.gfl}")
        fetch()
        a("s_waitcnt vmcnt(4)")
        put(S2, 0)
        for k in range(8):
            a(f"v_writelane_b32 v8, s{64 + 4 * k}, {k}\nv_writelane_b32 v9, s{65 + 4 * k}, {k}")
        a("""s_mov_b64 exec, 0xff
            ds_write_b64 v29, v[8:9]
            s_mov_b64 exec, -1
            s_waitcnt lgkmcnt(0)
            s_barrier
            ds_read_b64 v[12:13], v30""")
        for s in range(7):
            for p in range(2):
                a(f"ds_read_b64_tr_b16 {vr(QAR + 4 * s + 2 * p, 2)}, v{20 + p} offset:{1024 * s}")
        a("s_waitcnt lgkmcnt(14)\nv_mov_b32 v14, v12")

        def red32(op, r, t):
            for sh in (1, 2, 4, 8):
                a(f"{op}_dpp v{r}, v{r}, v{r} row_ror:{sh} {FULL}")
            a(f"v_mov_b32 v{t}, v{r}\nv_permlane16_swap_b32 v{t}, v{r}\n{op} v{r}, v{r}, v{t}")
        red32("v_max_f32", 14, 15)
        for p in range(2):
            a(f"ds_read_b64_tr_b16 {vr(QAR + 28 + 2 * p, 2)}, v{20 + p} offset:{1024 * 7}")
        a("v_sub_f32 v12, v12, v14\nv_exp_f32 v12, v12\nv_mul_f32 v13, v12, v13")
        red32("v_add_f32", 13, 15)
        a(f"""v_rcp_f32 v13, v13
            v_mul_f32 v12, v12, v13
            v_cvt_pk_bf16_f32 v12, v12, v12
            ds_write_b16 v22, v12
            ds_read_b128 v[12:15], v23
            v_cmp_eq_u32 vcc, 0, v1
            v_cmp_eq_u32 s[38:39], 1, v1
            s_mov_b32 s37, {SPIN}
            s_waitcnt lgkmcnt(0)""")
        for k in range(4):
            a(f"v_cndmask_b32 v{32 + k}, 0, v{12 + k}, vcc")
            a(f"v_cndmask_b32 v{36 + k}, 0, v{12 + k}, s[38:39]")
        a(f"""L_h3p:
            s_waitcnt vmcnt(0)
""")
        for k in range(4):
            a(f"v_bitop3_b32 v{8 + 2 * k}, v{O + k}, v{O + 4 + k}, s{56 + k} bitop3:0x7e")
            a(f"v_bitop3_b32 v{9 + 2 * k}, v{O + 8 + k}, v{O + 12 + k}, s{56 + k} bitop3:0x7e")
        a(f"""v_or3_b32 v8, v8, v9, v10
            v_or3_b32 v11, v11, v12, v13
            v_or3_b32 v8, v8, v14, v15
            v_or_b32 v8, v8, v11
            v_and_b32 v8, 0x10001, v8
            v_cmp_ne_u32 vcc, 0, v8
            s_cbranch_vccz L_h3pok
            s_sub_u32 s37, s37, 1
            s_cbranch_scc1 L_h3pok""")
        fetch()
        a("s_branch L_h3p\nL_h3pok:")
        for i in range(4):
            for k in range(4):
                a(f"v_or_b32 v{O + 4 * i + k}, 0x10001, v{O + 4 * i + k}")
            a(f"ds_write_b128 v5, {vr(O + 4 * i, 4)} offset:{1024 * i}")
        if self.dbg is True:
            a(f"s_sub_u32 s33, {SPIN}, s37\nv_writelane_b32 v63, s33, 30")
        a("s_waitcnt lgkmcnt(0)\ns_barrier")
        self.stamp(11)
        for s in range(2):
            for cb in range(2):
                for p in range(2):
                    a(f"ds_read_b64_tr_b16 {vr(FR + 8 * s + 4 * cb + 2 * p, 2)}, v{24 + cb} offset:{32768 * s + 2048 * p}")
        if self.e2b == 0:
            for i in range(self.e2s, 4):
                self.e2_dma(i)
        for s in range(2):
            for cb in range(2):
                a(f"s_waitcnt lgkmcnt({6 - 4 * s - 2 * cb})")
                c = "0" if s == 0 else vr(40 + 4 * cb, 4)
                a(f"v_mfma_f32_16x16x32_bf16 {vr(40 + 4 * cb, 4)}, {vr(FR + 8 * s + 4 * cb, 4)}, {vr(32 + 4 * s, 4)}, {c}")
        for k in range(4):
            a(f"v_cvt_pk_bf16_f32 v{48 + k}, v{40 + 2 * k}, v{41 + 2 * k}")
        self.exec64(0x00030003)
        a("ds_write_b128 v26, v[48:51]\ns_mov_b64 exec, -1\ns_waitcnt lgkmcnt(0)\ns_barrier")
        for s in range(8):
            a(f"ds_read_b128 {vr(FR + 4 * s, 4)}, v27 offset:{128 * s}")
        for s in range(8):
            a(f"s_waitcnt lgkmcnt({7 - s})")
            a(f"v_mfma_f32_16x16x32_bf16 v[40:43], {vr(QAR + 4 * s, 4)}, {vr(FR + 4 * s, 4)}, {'v[40:43]' if s else '0'}")
        self.exec64(0x00030003)
        a("v_cvt_pk_bf16_f32 v52, v40, v41\nv_cvt_pk_bf16_f32 v53, v42, v43")
        a(f"buffer_store_dwordx4 v[52:55], v28, {SRDW}, s53 offen sc1")
        a("ds_write_b64 v238, v[52:53]\nds_write_b32 v239, v54\ns_mov_b64 exec, -1\ns_mov_b64 s[58:59], s[60:61]")
        a(f"""s_or_b32 s33, {sH}, {sB}
            s_xor_b32 s36, {sW}, 6
            s_or_b32 s33, s33, s36
            s_cbranch_scc1 L_noep
            s_mov_b64 exec, 1
            buffer_store_dword v253, off, {SRDW}, 0 offset:{EPOCH} sc1
            s_mov_b64 exec, -1
            L_noep:""")
        self.stamp(12)
        if self.e2b == 1:
            for i in range(self.e2s, 4):
                self.e2_dma(i)
        a("s_branch L_stageE2")
        if self.noack and 'nowait' not in self.diag:
            a("L_qretry:\ns_sub_u32 s37, s37, 1\ns_cbranch_scc1 L_qaok\ns_waitcnt lgkmcnt(0)\ns_barrier")
            qcopy()
            a("s_waitcnt vmcnt(0)\ns_barrier\ns_branch L_qa")

    def build(self):
        a = self.a
        self.entry()
        self.p1()
        a("L_rolePU:")
        self.p2()
        self.a_common()
        self.e2()
        a("s_endpgm")
        a("; ==== type 3: latent attention")
        self.role_b()
        a("L_end:\ns_endpgm")
        if 'fine' in self.diag:
            a.stamp_loads()
        body = a.finalize().replace(" nt lds", f" {self.sfl} lds").replace(" nt\n", f" {self.sfl}\n")
        return f"""{HEADER};
; One persistent launch: 256 workgroups of 8 waves, one per CU, 8 workgroups per head h; j = 4*b + type.
;   type 2    absorbed query q.W_uk^T for one half of the latent axis, then a third of the K/V window of (b, h)
;   type 3    latent attention of batch b over 256 keys for all heads, then combine + W_uv for one latent half
; @launch grid=(256,1,1) block=(512,1,1) lds={LDS_BYTES}
.amdgcn_target "amdgcn-amd-amdhsa--gfx950"
.text
.globl {NAME}
.p2align 8
.type {NAME},@function
{NAME}:
{body}.section .rodata,"a"
.p2align 6
.amdhsa_kernel {NAME}
  .amdhsa_next_free_vgpr 256
  .amdhsa_next_free_sgpr 102
  .amdhsa_accum_offset 256
  .amdhsa_group_segment_fixed_size 0
  .amdhsa_kernarg_size 112
  .amdhsa_user_sgpr_count 2
  .amdhsa_user_sgpr_kernarg_segment_ptr 1
  .amdhsa_system_sgpr_workgroup_id_x 1
  .amdhsa_float_denorm_mode_32 3
.end_amdhsa_kernel
"""


if __name__ == "__main__":
    out = sys.argv[1]
    kw = eval("dict(" + (sys.argv[2] if len(sys.argv) > 2 else "") + ")")
    open(out, "w").write(Gen(**kw).build())
```
